```python
import torch

def _softmax(x, axis=-1):
    return torch.softmax(x, dim=axis)
def _gelu(x):
    return torch.nn.functional.gelu(x, approximate="tanh")
def _silu(x):
    return torch.nn.functional.silu(x)
def _sigmoid(x):
    return torch.sigmoid(x)
def _layernorm(x, axis=-1, eps=1e-5):
    m = x.mean(dim=axis, keepdim=True)
    v = x.var(dim=axis, keepdim=True, unbiased=False)
    return (x - m) / torch.sqrt(v + eps)
def _scatter_add(tgt, idx, src, axis=0):
    return tgt.clone().index_add_(axis, idx, src)
def _segment_sum(src, seg, n):
    out = torch.zeros((n,) + src.shape[1:], dtype=src.dtype)
    return out.index_add_(0, seg, src)
def _pad(x, pw):
    flat = tuple(v for pair in reversed(pw) for v in pair)
    return torch.nn.functional.pad(x, flat)

kernel_name = 'gated_mix__ssm_conv_s4__swiglu_ffn__prompt'

def setup_inputs():

    _w = (lambda a: (lambda t: t.to(torch.bfloat16) if t.is_floating_point() else t)(torch.as_tensor(a)))
    def _A_setup():
        B, L, D, N = 1, 2048, 448, 256
        A_re = -(lambda _x: torch.exp(torch.as_tensor(_x)))((lambda *s: torch.randn(*s, dtype=torch.bfloat16) * 3.2)(D, N))
        A_im = torch.pi * (lambda *s: torch.randn(*s, dtype=torch.bfloat16) * 0.05)(D, N)
        B_re = (lambda *s: torch.randn(*s, dtype=torch.bfloat16) * 0.05)(D, N)
        B_im = (lambda *s: torch.randn(*s, dtype=torch.bfloat16) * 0.05)(D, N)
        C_re = (lambda *s: torch.randn(*s, dtype=torch.bfloat16) * 0.1)(D, N)
        C_im = (lambda *s: torch.randn(*s, dtype=torch.bfloat16) * 0.1)(D, N)
        log_dt = (lambda *s: torch.randn(*s, dtype=torch.bfloat16) * 0.05)(D) * 0.5 - 4.0
        Dskip = (lambda *s: torch.randn(*s, dtype=torch.bfloat16) * 0.05)(D)
        return {
            "u": _w((lambda *s: torch.randn(*s, dtype=torch.bfloat16) * 0.05)(B, L, D)),
            "A_re": _w(A_re),
            "A_im": _w(A_im),
            "B_re": _w(B_re),
            "B_im": _w(B_im),
            "C_re": _w(C_re),
            "C_im": _w(C_im),
            "log_dt": _w(log_dt),
            "Dskip": _w(Dskip),
        }
    _A_in = _A_setup()

    def _B_setup():
        B, S, D, F = 1, 2048, 448, 1792
        return {
            "x": _w((lambda *s: torch.randn(*s, dtype=torch.bfloat16) * 0.05)(B, S, D)),
            "w_gate": _w((lambda *s: torch.randn(*s, dtype=torch.bfloat16) * 0.05)(D, F)),
            "w_up": _w((lambda *s: torch.randn(*s, dtype=torch.bfloat16) * 0.05)(D, F)),
            "w_down": _w((lambda *s: torch.randn(*s, dtype=torch.bfloat16) * 0.05)(F, D)),
        }
    _B_in = _B_setup()

    return {
        "A_u": _A_in["u"],
        "A_A_re": _A_in["A_re"],
        "A_A_im": _A_in["A_im"],
        "A_B_re": _A_in["B_re"],
        "A_B_im": _A_in["B_im"],
        "A_C_re": _A_in["C_re"],
        "A_C_im": _A_in["C_im"],
        "A_log_dt": _A_in["log_dt"],
        "A_Dskip": _A_in["Dskip"],
        "B_x": _B_in["x"],
        "B_w_gate": _B_in["w_gate"],
        "B_w_up": _B_in["w_up"],
        "B_w_down": _B_in["w_down"],
        "gate_w": _w((lambda *s: torch.randn(*s, dtype=torch.bfloat16) * 0.05)(448) * 16.0),
    }

def reference(A_u, A_A_re, A_A_im, A_B_re, A_B_im, A_C_re, A_C_im, A_log_dt, A_Dskip, B_x, B_w_gate, B_w_up, B_w_down, gate_w):
    def _A_ref(u, A_re, A_im, B_re, B_im, C_re, C_im, log_dt, Dskip):
        Bsz, L, D = u.shape
        dt = torch.exp(log_dt)[:, None]
        A = A_re + 1j * A_im
        Bc = B_re + 1j * B_im
        Cc = C_re + 1j * C_im
        logdA = dt * A
        dB = dt * Bc
        l = (lambda x, dt: x.to(dt))(torch.arange(L), A_re.dtype)
        P = torch.exp(logdA[:, :, None] * l[None, None, :])
        K = torch.einsum("dn,dnl,dn->dl", Cc, P, dB).real
        L2 = 2 * L
        Kp = _pad(K, ((0, 0), (0, L)))
        up = (lambda x, *d: x.permute(*d))(u, 0, 2, 1)
        up = _pad(up, ((0, 0), (0, 0), (0, L)))
        Kf = (lambda x, axes=(-2,-1): torch.fft.rfft2(x.float(), dim=axes))(Kp[:, None, :], axes=(-2, -1))
        Uf = (lambda x, axes=(-2,-1): torch.fft.rfft2(x.float(), dim=axes))(up[:, :, None, :], axes=(-2, -1))
        Yf = Uf * Kf[None, :, :, :]
        y = (lambda x, s, axes=(-2,-1): torch.fft.irfft2(x, s=s, dim=axes).to(torch.bfloat16))(Yf, (1, L2), axes=(-2, -1))[:, :, 0, :L]
        y = (lambda x, *d: x.permute(*d))(y, 0, 2, 1) + u * Dskip[None, None, :]
        return y

    def _B_ref(x, w_gate, w_up, w_down):
        g = _silu(x @ w_gate)
        u = x @ w_up
        return (g * u) @ w_down

    x = A_u
    g = _sigmoid((x * gate_w).sum(-1, keepdims=True))
    a = _A_ref(x, A_A_re, A_A_im, A_B_re, A_B_im, A_C_re, A_C_im, A_log_dt, A_Dskip)
    b = _B_ref(x, B_w_gate, B_w_up, B_w_down)
    return g * a + (1 - g) * b
```

```python
import re

TRANS = ("v_exp_f32","v_log_f32","v_rcp_f32","v_rsq_f32","v_sqrt_f32","v_sin_f32","v_cos_f32","v_rcp_iflag_f32")
_reg = re.compile(r"^(-|\|)?(abs\()?([vas])(\d+|\[(\d+):(\d+)\])\)?\|?$")

def regs_of(tok):
    tok = tok.strip()
    if tok in ("vcc",): return {("s","vcc")}
    if tok in ("vcc_lo","vcc_hi"): return {("s","vcc")}
    if tok in ("exec","exec_lo","exec_hi"): return {("s","exec")}
    if tok == "m0": return {("s","m0")}
    m = _reg.match(tok)
    if not m: return set()
    k = m.group(3)
    if m.group(5) is not None:
        return {(k,i) for i in range(int(m.group(5)), int(m.group(6))+1)}
    return {(k,int(m.group(4)))}

def split_ops(s):
    out=[]; depth=0; cur=""
    for ch in s:
        if ch in "[(": depth+=1
        if ch in "])": depth-=1
        if ch=="," and depth==0:
            out.append(cur.strip()); cur=""
        else: cur+=ch
    if cur.strip(): out.append(cur.strip())
    return out

class Ins:
    pass

def parse(text):
    t = text.split(";")[0].strip()
    parts = t.split(None,1)
    mn = parts[0]; rest = parts[1] if len(parts)>1 else ""
    ops = split_ops(rest)
    mods = ""
    if ops:
        last = ops[-1].split(None,1)
        if len(last)>1 and not last[0].endswith("("):
            ops[-1] = last[0]; mods = last[1]
    i = Ins(); i.mn = mn; i.ops = ops; i.mods = mods; i.text = text
    i.w=set(); i.r=set(); i.kind="other"; i.states=1
    R=[regs_of(o) for o in ops]
    base = re.sub(r"_(e32|e64|dpp|sdwa)$","",mn)
    i.base=base
    i.dpp = ("quad_perm" in mods or "row_" in mods or mn.endswith("_dpp"))
    if mn=="s_nop":
        i.states=int(ops[0],0)+1; i.kind="nop"
    elif mn.startswith("v_mfma"):
        i.kind="mfma"; i.w=R[0]; i.A=R[1]; i.B=R[2]; i.C=R[3]; i.r=R[1]|R[2]|R[3]
        i.passes = 8 if "32x32x16" in mn else 4 if "16x16x32" in mn else None
        assert i.passes
    elif mn.startswith("v_"):
        i.kind="valu"
        nd=1
        if base in ("v_add_co_u32","v_sub_co_u32","v_addc_co_u32","v_subb_co_u32","v_mad_u64_u32"): nd=2
        if base.startswith("v_permlane") and "swap" in base:
            i.w=R[0]|R[1]; i.r=R[0]|R[1]
        elif base=="v_nop":
            pass
        else:
            for x in R[:nd]: i.w|=x
            for x in R[nd:]: i.r|=x
            if base in ("v_fmac_f32","v_dot2c_f32_bf16","v_pk_fmac_f16") or i.dpp: i.r|=R[0]
            if base.startswith("v_cmpx"): i.w|={("s","exec")}
        i.trans = base in TRANS
        i.dl = base.startswith("v_dot")
    elif mn.startswith("ds_"):
        i.kind="ds"
        if mn.startswith("ds_read") or "_rtn" in mn or "permute" in mn or "swizzle" in mn:
            i.w=R[0]
            for x in R[1:]: i.r|=x
        else:
            for x in R: i.r|=x
        if "addtid" in mn: i.m0=True
    elif mn.startswith("buffer_") or mn.startswith("global_") or mn.startswith("flat_"):
        i.kind="vmem"
        islds = ("lds" in mods.split()) or "_lds_" in mn
        if "load" in mn and not islds:
            i.w=R[0]
            for x in R[1:]: i.r|=x
            if "d16" in mn: i.r|=R[0]
        else:
            for x in R: i.r|=x
        if islds: i.m0=True
        if "store" in mn and ("x4" in mn or "x3" in mn):
            i.wide = R[0] if mn.startswith("buffer_") else R[1]
    elif mn.startswith("s_"):
        i.kind="salu"
        if mn.startswith(("s_cmp","s_cbranch","s_branch","s_waitcnt","s_barrier","s_sleep","s_setprio","s_endpgm","s_bitcmp")):
            for x in R: i.r|=x
        else:
            if R: i.w=R[0]
            for x in R[1:]: i.r|=x
            if "saveexec" in mn: i.w|={("s","exec")}
    return i

def need(p, c):
    n=0
    vw = {x for x in p.w if x[0] in "va"}
    sw = {x for x in p.w if x[0]=="s"}
    if p.kind=="valu":
        if c.kind=="mfma" and vw & c.r: n=max(n,2)
        if c.kind=="mfma" and ("s","exec") in sw: n=max(n,4)
        if p.trans and c.kind=="valu" and not c.trans and vw & c.r: n=max(n,1)
        if p.trans and c.kind=="valu" and c.trans and vw & c.r: n=max(n,1)
        if sw:
            if c.kind=="vmem" and sw & c.r: n=max(n,5)
            if c.kind=="valu" and sw & c.r: n=max(n, 4 if c.base in ("v_readlane_b32","v_writelane_b32") else 2)
            if c.kind=="salu" and sw & c.r: n=max(n,1)
        if c.kind=="valu":
            if c.base in ("v_readfirstlane_b32","v_readlane_b32") and vw & c.r: n=max(n,1)
            if c.dpp and vw & c.r: n=max(n,2)
            if c.base.startswith("v_permlane") and vw & c.r: n=max(n,2)
        if p.dl:
            if c.kind=="valu" and c.base==p.base:
                ab=set()
                for o in c.ops[1:3]: ab|=regs_of(o)
                if vw & ab: n=max(n,3)
            elif vw & (c.r|c.w): n=max(n,3)
    if p.kind=="mfma":
        big = 12 if p.passes==8 else 8
        if c.kind=="mfma":
            if vw & (c.A|c.B): n=max(n,big)
            if vw & c.C:
                if not (c.C==p.w and c.mn==p.mn): n=max(n, big-2)
            elif vw & c.w: n=max(n, big)
        elif c.kind in ("valu","vmem","ds"):
            if vw & (c.r|c.w): n=max(n,big)
        if c.kind=="valu" and (p.C & c.w): n=max(n, 7 if p.passes==8 else 3)
    if p.kind=="salu" and ("s","m0") in p.w and getattr(c,"m0",False): n=max(n,1)
    if getattr(p,"wide",None) and (p.wide & c.w): n=max(n, 2 if c.kind in("valu","mfma") else 1)
    return n

class Asm:
    def __init__(self):
        self.lines=[]; self.hist=[]; self.nops=0
    def raw(self, s): self.lines.append(s)
    def c(self, s): self.lines.append("    ; "+s)
    def label(self, s): self.lines.append(s+":")
    def reset(self): self.hist=[]
    def __call__(self, text):
        for t in text.strip().split("\n"):
            t=t.strip()
            if not t: continue
            if t.startswith(";"): self.lines.append("    "+t); continue
            if t.endswith(":"): self.lines.append(t); continue
            self.I(t)
    def I(self, text):
        c = parse(text)
        dist=0; pad=0
        for p in reversed(self.hist):
            n=need(p,c)
            if n-dist>pad: pad=n-dist
            dist+=p.states
            if dist>=14: break
        while pad>0:
            k=min(pad,16)
            nop=parse("s_nop %d"%(k-1)); self.hist.append(nop); self.lines.append("    s_nop %d"%(k-1)); self.nops+=1
            pad-=k
        self.hist.append(c); self.hist=self.hist[-20:]
        self.lines.append("    "+text)
    def text(self): return "\n".join(self.lines)+"\n"

def vr(b,n=1): return "v%d"%b if n==1 else "v[%d:%d]"%(b,b+n-1)
def sr(b,n=1): return "s%d"%b if n==1 else "s[%d:%d]"%(b,b+n-1)
```

```python
import sys, math, struct
from asm import *

NAME = "gated_mix__ssm_conv_s4__swiglu_ffn__prompt"
HP, WDP, UT, KT, AT, GG, FL = 0, 0x800000, 0xA00000, 0xC00000, 0xE00000, 0x1000000, 0x1010000
UTP = 4224
KTP = 4096
def fbits(x): return "0x%08x" % struct.unpack("<I", struct.pack("<f", x))[0]
LOG2E = 1.4426950408889634

OPT = dict(l2pf=1, ntx="", ntw="", st_h="", st_aux="sc1", stamp=0)
for a_ in sys.argv[2:]:
    k, v = a_.split("="); OPT[k] = int(v) if v.lstrip("-").isdigit() else v

a = Asm()

def srd(d, ptr, nbytes, off=None):
    if off is None:
        a(f"s_mov_b32 s{d}, s{ptr}\ns_mov_b32 s{d+1}, s{ptr+1}")
    else:
        a(f"s_add_u32 s{d}, s{ptr}, {off}\ns_addc_u32 s{d+1}, s{ptr+1}, 0")
    a(f"s_mov_b32 s{d+2}, {nbytes}\ns_mov_b32 s{d+3}, 0x20000")

def cmuls(lst):
    for d, x, y in lst:
        assert d != x and d != y
        a(f"v_pk_mul_f32 {vr(d,2)}, {vr(x,2)}, {vr(y,2)} op_sel_hi:[1,0]")
    for d, x, y in lst:
        a(f"v_pk_fma_f32 {vr(d,2)}, {vr(x,2)}, {vr(y,2)}, {vr(d,2)} op_sel:[1,1,0] op_sel_hi:[0,1,1] neg_lo:[1,0,0]")

def stamp(idx, sreg=90):
    if not OPT["stamp"]: return
    a(f"""s_memrealtime s[{sreg}:{sreg+1}]
s_waitcnt lgkmcnt(0)
v_mov_b32 v254, s{sreg}
s_lshl_b32 s{sreg}, s2, 7
s_add_u32 s{sreg}, s{sreg}, {0x2000000 + OPT['stampbase'] + idx*4}
s_lshl_b32 s{sreg+1}, s3, 18
s_add_u32 s{sreg}, s{sreg}, s{sreg+1}
v_mov_b32 v255, s{sreg}
global_store_dword v255, v254, s[40:41]""")
    OPT["_extra"] += 1

XB, WB = 0, 98304
K1_LDS = 149504
def k1():
    OPT["stampbase"] = 0; OPT["_extra"] = 0
    a.raw(".text\n.globl k1_kernel\n.p2align 8\n.type k1_kernel,@function\nk1_kernel:")
    a.reset()
    a("""
s_cmp_ge_u32 s2, 256
s_cbranch_scc1 k1_end
s_load_dwordx16 s[16:31], s[0:1], 0
s_load_dwordx8 s[32:39], s[0:1], 80
s_load_dwordx2 s[40:41], s[0:1], 128
s_getpc_b64 s[4:5]
k1_pc:
v_lshrrev_b32 v2, 6, v0
v_and_b32 v1, 63, v0
v_readfirstlane_b32 s3, v2
s_lshr_b32 s6, s2, 3                 ; j = wg>>3
s_and_b32 s7, s6, 3
s_lshl_b32 s7, s7, 12
v_and_b32 v3, 3, v0
v_lshl_add_u32 v3, v2, 2, v3
v_lshlrev_b32 v3, 7, v3
v_add_u32 v3, s7, v3
v_min_u32 v3, code_end-k1_pc-4, v3
global_load_dword v9, v3, s[4:5]
s_cmp_ge_u32 s2, 224
s_cbranch_scc1 k1_aux
""")
    a("""
s_lshl_b32 s7, s2, 10
v_lshl_add_u32 v3, v0, 1, s7
s_lshr_b32 s8, s3, 2
s_lshl_b32 s9, s2, 1
s_add_u32 s9, s9, s8                 ; s9 = channel d
s_lshl_b32 s8, s9, 1
v_mov_b32 v4, s8
""")
    for r in range(10, 17): a(f"v_mov_b32 v{r}, 0")
    a("""
s_and_b32 s10, s2, 4                 ; (xcd>>2)*4
s_and_b32 s11, s6, 3
s_add_u32 s10, s10, s11              ; s10 = rb (0..7)
s_and_b32 s11, s2, 3
s_mul_i32 s11, s11, 7
s_lshr_b32 s12, s6, 2
s_add_u32 s11, s11, s12              ; s11 = fb (0..27)
""")
    a("""
v_lshrrev_b32 v20, 3, v1             ; l>>3
v_lshrrev_b32 v21, 4, v1             ; l>>4
v_and_b32 v22, 7, v1
v_xor_b32 v23, v22, v21
v_xor_b32 v24, 4, v23
s_lshl_b32 s13, s3, 5
v_add_u32 v25, s13, v20
v_mul_u32_u24 v25, 896, v25
""")
    a("s_waitcnt lgkmcnt(0)")
    for r, p in zip(range(10, 16), range(18, 30, 2)):
        a(f"global_load_short_d16_hi v{r}, v3, s[{p}:{p+1}]")
    a("global_load_short_d16_hi v16, v4, s[30:31]")
    a("s_mul_i32 s13, s10, 229376")
    srd(44, 16, 229376, "s13")
    srd(48, 32, 1605632)
    srd(52, 34, 1605632)
    a("""
v_lshl_add_u32 v2, v23, 4, v25
v_lshl_add_u32 v3, v24, 4, v25
v_add_u32 v3, 7168, v3
v_add_u32 v4, 14336, v2
v_add_u32 v5, 14336, v3
s_lshl_b32 s13, s3, 3
v_add_u32 v25, s13, v20
v_mul_u32_u24 v25, 3584, v25
s_lshl_b32 s13, s11, 7
v_add_u32 v25, s13, v25
v_and_b32 v26, 1, v21
v_lshlrev_b32 v26, 1, v26
v_xor_b32 v26, v22, v26
v_lshl_add_u32 v6, v26, 4, v25
v_xor_b32 v26, 4, v26
v_lshl_add_u32 v7, v26, 4, v25
s_lshr_b32 s14, s3, 1
s_mul_i32 s14, s14, 24576
s_and_b32 s13, s3, 1
s_lshl_b32 s13, s13, 12
s_add_u32 s14, s14, s13
s_lshl_b32 s15, s3, 11
""")
    a(f"s_add_u32 s15, s15, {WB}")

    def dma(stage, fill=None):
        buf = stage % 3
        ops = []
        a(f"s_mov_b32 s56, {stage*128}")
        a(f"s_mov_b32 s57, {stage*64*3584}")
        for i in range(4):
            ops.append((f"s_add_u32 m0, s14, {buf*8192+i*1024}", f"buffer_load_dwordx4 v{2+i}, s[44:47], s56 offen {OPT['ntx']} lds"))
        ops.append((f"s_add_u32 m0, s15, {buf*16384}", f"buffer_load_dwordx4 v6, s[48:51], s57 offen {OPT['ntw']} lds"))
        ops.append((f"s_add_u32 m0, s15, {buf*16384+1024}", f"buffer_load_dwordx4 v7, s[52:55], s57 offen {OPT['ntw']} lds"))
        return ops
    for st in (0, 1):
        for m, l in dma(st):
            a(m); a(l)
    npf = 0
    if OPT["l2pf"]:
        a("""
s_cmp_lt_u32 s3, 4
s_cbranch_scc0 k1_pfw
v_mul_u32_u24 v20, 896, v0
s_lshl_b32 s13, s12, 7
buffer_load_dword v8, v20, s[44:47], s13 offen
s_branch k1_pfd
k1_pfw:
v_min_u32 v20, 39, v1
v_mul_u32_u24 v20, 3584, v20
s_and_b32 s13, s6, 3
s_lshl_b32 s13, s13, 1
s_and_b32 s58, s3, 1
s_add_u32 s13, s13, s58
s_mul_i32 s13, s13, 143360
s_lshl_b32 s58, s11, 7
s_add_u32 s13, s13, s58
s_add_u32 s13, s13, 458752
s_cmp_lt_u32 s3, 6
s_cbranch_scc0 k1_pfu
buffer_load_dword v8, v20, s[48:51], s13 offen
s_branch k1_pfd
k1_pfu:
buffer_load_dword v8, v20, s[52:55], s13 offen
k1_pfd:
""")
        npf = 1
    Z = lambda k: 20 + 2*k
    Wp = lambda k: 50 + 2*k
    E = lambda k: 68 + 2*k
    Y = {1: 84, 2: 86, 4: 88, 8: 90}
    T = lambda k: 92 + 2*k
    CV = lambda k: 108 + (k & 7)
    FE, FX0, FX1, KA = 116, 132, 148, 164
    a(f"""
s_mul_i32 s58, s3, 24576
s_add_u32 s58, s58, 16384
s_mul_i32 s59, s3, 4608
s_add_u32 s59, s59, {131072-4*4608}
s_cmp_lt_u32 s3, 4
s_cselect_b32 s58, s58, s59
v_lshl_add_u32 v17, v1, 2, s58
v_and_b32 v18, 15, v1
v_mul_u32_u24 v18, 288, v18
v_and_b32 v19, 48, v1
v_add3_u32 v18, v18, v19, s58
s_waitcnt vmcnt({12+npf})
v_mul_f32 v16, {fbits(LOG2E)}, v16
v_exp_f32 v16, v16
v_cvt_pk_bf16_f32 v16, v16, v16
v_and_b32 v16, 0xffff0000, v16
v_mul_f32 v92, {fbits(LOG2E)}, v16
v_mul_f32 v93, 0.15915494, v16
v_mul_f32 v10, v10, v92              ; a2
v_mul_f32 v11, v11, v93              ; b2 (revolutions)
v_mul_f32 v12, v12, v16
v_mul_f32 v13, v13, v16              ; dB
v_mul_f32 v{E(0)}, v14, v12
v_mul_f32 v{E(0)+1}, v14, v13
v_fma_f32 v{E(0)}, -v15, v13, v{E(0)}
v_fma_f32 v{E(0)+1}, -v15, v12, -v{E(0)+1}   ; conj(W)
""")
    anc = [(Y[1], 16.0, True), (Z(1), 1.0, False), (Wp(1), 256.0, False)]
    for n, (d, p, cj) in enumerate(anc):
        if p == 1.0:
            a(f"v_exp_f32 v{T(n)}, v10\nv_fract_f32 v{T(n)+1}, v11")
        else:
            a(f"v_mul_f32 v{T(n)}, {fbits(p)}, v10\nv_mul_f32 v{T(n)+1}, {fbits(p)}, v11")
            a(f"v_exp_f32 v{T(n)}, v{T(n)}\nv_fract_f32 v{T(n)+1}, v{T(n)+1}")
    for n, (d, p, cj) in enumerate(anc):
        a(f"v_cos_f32 v{d}, v{T(n)+1}\nv_sin_f32 v{d+1}, v{T(n)+1}")
    for n, (d, p, cj) in enumerate(anc):
        a(f"v_pk_mul_f32 {vr(d,2)}, {vr(d,2)}, {vr(T(n),2)} op_sel_hi:[1,0]" + (" neg_hi:[1,0]" if cj else ""))
    cnt = [0]
    def put(row, src):
        c = CV(cnt[0]); cnt[0] += 1
        a(f"v_cvt_pk_bf16_f32 v{c}, v{src}, v{src+1}")
        a(f"ds_write_b32 v17, v{c} offset:{row*288}")
    def frags(F):
        for s in range(4): a(f"ds_read_b128 {vr(F+4*s,4)}, v18 offset:{s*64}")
    def mf(tau, F):
        for s in range(4):
            a(f"v_mfma_f32_16x16x32_bf16 {vr(KA+4*tau,4)}, {vr(F+4*s,4)}, {vr(FE+4*s,4)}, " + ("0" if s == 0 else vr(KA+4*tau,4)))
    cmuls([(Y[2], Y[1], Y[1]), (E(1), E(0), Y[1]), (Z(2), Z(1), Z(1)), (Wp(2), Wp(1), Wp(1))])
    put(0, E(0)); put(1, E(1))
    cmuls([(Y[4], Y[2], Y[2]), (E(2), E(0), Y[2]), (E(3), E(1), Y[2]), (Z(3), Z(2), Z(1)), (Z(4), Z(2), Z(2)), (Wp(3), Wp(2), Wp(1)), (Wp(4), Wp(2), Wp(2))])
    put(2, E(2)); put(3, E(3))
    cmuls([(Y[8], Y[4], Y[4])] + [(E(4+i), E(i), Y[4]) for i in range(4)])
    for i in range(4, 8): put(i, E(i))
    cmuls([(T(i), E(i), Y[8]) for i in range(8)])
    for i in range(8): put(8+i, T(i))
    frags(FE)
    cmuls([(Z(5), Z(4), Z(1)), (Z(6), Z(4), Z(2)), (Z(7), Z(4), Z(3)), (Z(8), Z(4), Z(4))])
    a(f"v_mov_b32 v{CV(cnt[0])}, 0x3f80\nds_write_b32 v17, v{CV(cnt[0])}"); cnt[0] += 1
    for i in range(1, 9): put(i, Z(i))
    cmuls([(Z(8+i), Z(8), Z(i)) for i in range(1, 8)])
    for i in range(9, 16): put(i, Z(i))
    frags(FX0)
    cmuls([(T(r), Wp(1), Z(2*r)) for r in range(1, 8)])
    put(0, Wp(1))
    for r in range(1, 8): put(r, T(r))
    cmuls([(T(j-1), Wp(2), Z(4*j)) for j in (1, 2, 3)] + [(T(2+j), Wp(3), Z(4*j)) for j in (1, 2, 3)])
    a("s_waitcnt lgkmcnt(8)")
    mf(0, FX0)
    put(8, Wp(2))
    for j in (1, 2, 3): put(8+j, T(j-1))
    put(12, Wp(3))
    for j in (1, 2, 3): put(12+j, T(2+j))
    frags(FX1)
    cmuls([(Wp(5), Wp(4), Wp(1)), (Wp(6), Wp(4), Wp(2)), (Wp(7), Wp(4), Wp(3)), (Wp(8), Wp(4), Wp(4))])
    cmuls([(T(h), Wp(4+h), Z(8)) for h in range(4)])
    for h in range(4):
        put(2*h, Wp(4+h)); put(2*h+1, T(h))
    put(8, Wp(8))
    frags(FX0)
    a("s_waitcnt lgkmcnt(13)")
    mf(1, FX1)
    a(f"""
v_lshl_add_u32 v19, v1, 4, s58
s_and_b32 s59, s3, 3                 ; tau
s_cmp_lt_u32 s3, 4
s_movk_i32 s60, 4608
s_mov_b32 s61, 131072
s_cselect_b32 s60, 24576, s60
s_cselect_b32 s61, 16384, s61
s_lshl_b32 s62, s59, 10
s_add_u32 s61, s61, s62
v_lshl_add_u32 v20, v1, 4, s61
v_add_u32 v21, s60, v20
v_add_u32 v22, s60, v21
v_add_u32 v23, s60, v22
v_and_b32 v24, 15, v1                ; c
v_lshrrev_b32 v25, 4, v1             ; g
s_waitcnt lgkmcnt(0)
""")
    mf(2, FX0)
    a(f"""
v_lshlrev_b32 v26, 2, v25            ; 4g
v_lshlrev_b32 v27, 6, v25            ; 64g
s_cmp_eq_u32 s59, 0
s_cbranch_scc0 k1_t1
v_lshl_add_u32 v28, v24, 4, v26
v_add_u32 v29, 2, v28
s_branch k1_td
k1_t1:
s_cmp_eq_u32 s59, 1
s_cbranch_scc0 k1_t2
v_lshl_add_u32 v28, v24, 3, v26
v_lshl_add_u32 v29, v24, 2, v27
v_cmp_gt_u32 vcc, 2, v25
v_cndmask_b32 v28, v29, v28, vcc
v_add_u32 v28, 256, v28
v_add_u32 v29, 2, v28
s_branch k1_td
k1_t2:
v_lshl_add_u32 v28, v24, 1, v27
v_add_u32 v28, 512, v28
v_add_u32 v29, 32, v28
s_cmp_eq_u32 s59, 2
s_cbranch_scc1 k1_td
v_mov_b32 v28, -2
v_mov_b32 v29, -2
k1_td:
s_nop 4
""")
    a.reset()
    for t in range(3): a(f"ds_write_b128 v19, {vr(KA+4*t,4)} offset:{t*1024}")
    a(f"""
s_mul_i32 s62, s9, {KTP}
s_add_u32 s62, s62, {KT+64}
v_lshl_add_u32 v28, v28, 2, s62
v_lshl_add_u32 v29, v29, 2, s62
s_waitcnt lgkmcnt(0)
s_barrier
ds_read_b128 v[32:35], v20
ds_read_b128 v[36:39], v21
ds_read_b128 v[40:43], v22
ds_read_b128 v[44:47], v23
""")
    a(f"""
v_and_b32 v48, 31, v1
v_lshrrev_b32 v49, 5, v1
v_bfe_u32 v50, v1, 1, 3
v_xor_b32 v49, v49, v50
v_lshlrev_b32 v49, 4, v49
v_lshl_add_u32 v48, v48, 7, v49
s_lshr_b32 s13, s3, 1
s_mul_i32 s13, s13, 24576
v_add_u32 v10, s13, v48
v_xor_b32 v11, 32, v10
v_xor_b32 v12, 64, v10
v_xor_b32 v13, 96, v10
v_lshlrev_b32 v48, 6, v1
v_and_b32 v48, 0xc00, v48            ; G*1024
v_lshlrev_b32 v49, 5, v1
v_and_b32 v49, 0x180, v49            ; r*128
v_and_b32 v50, 3, v1
v_lshlrev_b32 v50, 3, v50
v_add3_u32 v48, v48, v49, v50
v_bfe_u32 v49, v1, 3, 2              ; (r>>1) + 2*mat
s_and_b32 s13, s3, 1
s_lshl_b32 s13, s13, 1
v_xor_b32 v49, s13, v49
v_lshl_add_u32 v48, v49, 5, v48
v_add_u32 v14, {WB}, v48
v_xor_b32 v15, 32, v14
s_waitcnt lgkmcnt(0)
v_pk_add_f32 v[32:33], v[32:33], v[36:37]
v_pk_add_f32 v[34:35], v[34:35], v[38:39]
v_pk_add_f32 v[40:41], v[40:41], v[44:45]
v_pk_add_f32 v[42:43], v[42:43], v[46:47]
v_pk_add_f32 v[32:33], v[32:33], v[40:41]
v_pk_add_f32 v[34:35], v[34:35], v[42:43]
s_cmp_eq_u32 s59, 3
s_cbranch_scc0 k1_nz
v_mov_b32 v32, 0
v_mov_b32 v33, 0
v_mov_b32 v34, 0
v_mov_b32 v35, 0
k1_nz:
v_cvt_pk_bf16_f32 v32, v32, v32
v_cvt_pk_bf16_f32 v33, v33, v33
v_cvt_pk_bf16_f32 v34, v34, v34
v_cvt_pk_bf16_f32 v35, v35, v35
global_store_dwordx2 v28, v[32:33], s[40:41] {OPT['st_aux']}
global_store_dwordx2 v29, v[34:35], s[40:41] {OPT['st_aux']}
""")
    ACC = 64
    FB = [128, 144]
    def reads(stage, ks, F):
        buf = stage % 3
        out = []
        for fa in range(2):
            for hh in range(2):
                out.append(f"ds_read_b64_tr_b16 {vr(F+4*fa+2*hh,2)}, v{14+fa} offset:{buf*16384+ks*4096+hh*512}")
        for tb in range(2):
            out.append(f"ds_read_b128 {vr(F+8+4*tb,4)}, v{10+ks} offset:{buf*8192+tb*4096}")
        return [out[0], out[1], out[4], out[5], out[2], out[3]]
    def mfmas(F, first):
        out = []
        for fa, tb in ((0, 0), (0, 1), (1, 0), (1, 1)):
            d = vr(ACC+32*fa+16*tb, 16)
            out.append(f"v_mfma_f32_32x32x16_bf16 {d}, {vr(F+4*fa,4)}, {vr(F+8+4*tb,4)}, " + ("0" if first else d))
        return out
    a(f"s_waitcnt vmcnt({8+npf})")
    a("s_barrier")
    for r in reads(0, 0, FB[0]): a(r)
    for m, l in dma(2): a(m); a(l)
    step = 0
    for st in range(7):
        for ks in range(4):
            F = FB[step & 1]; Fn = FB[(step+1) & 1]
            fill = []
            last = (st == 6 and ks == 3)
            a("s_waitcnt lgkmcnt(0)")
            if ks == 3 and not last:
                n = {0: 8+npf, 5: 0}.get(st, 6)
                a(f"s_waitcnt vmcnt({n})")
                a("s_barrier")
                fill = reads(st+1, 0, Fn)
                if st+3 < 7:
                    for m, l in dma(st+3): fill += [m, l]
            elif not last:
                fill = reads(st, ks+1, Fn)
            mm = mfmas(F, step == 0)
            per = (len(fill)+3)//4
            if len(fill) > 6:
                chunks = [fill[:6], fill[6:10], fill[10:14], fill[14:]]
            else:
                chunks = [fill[:3], fill[3:6], [], []]
            for i in range(4):
                a(mm[i])
                for x in chunks[i]: a(x)
            step += 1
    a(f"""
s_lshl_b32 s13, s10, 2
s_lshr_b32 s58, s3, 1
s_add_u32 s13, s13, s58
s_mul_i32 s13, s13, 112
s_lshl_b32 s58, s11, 2
s_add_u32 s13, s13, s58
s_and_b32 s58, s3, 1
s_lshl_b32 s58, s58, 1
s_add_u32 s13, s13, s58
s_lshl_b32 s13, s13, 11
v_lshl_add_u32 v2, v1, 4, s13
s_mov_b32 s60, {fbits(-LOG2E)}
""")
    for n, (fa, tb) in enumerate(((0, 0), (0, 1), (1, 0), (1, 1))):
        R = ACC+32*fa+16*tb
        Tm = 16 + 12*(n & 1)*2
        for i in range(0, 8, 2): a(f"v_pk_mul_f32 {vr(Tm+i,2)}, {vr(R+i,2)}, s[60:61] op_sel_hi:[1,0]")
        for i in range(8): a(f"v_exp_f32 v{Tm+i}, v{Tm+i}")
        for i in range(0, 8, 2): a(f"v_pk_mul_f32 {vr(R+i,2)}, {vr(R+i,2)}, {vr(R+8+i,2)}")
        for i in range(0, 8, 2): a(f"v_pk_add_f32 {vr(Tm+i,2)}, {vr(Tm+i,2)}, 1.0 op_sel_hi:[1,0]")
        for i in range(8): a(f"v_rcp_f32 v{Tm+i}, v{Tm+i}")
        for i in range(0, 8, 2): a(f"v_pk_mul_f32 {vr(R+i,2)}, {vr(R+i,2)}, {vr(Tm+i,2)}")
        for i in range(4): a(f"v_cvt_pk_bf16_f32 v{Tm+8+i}, v{R+2*i}, v{R+2*i+1}")
        a(f"global_store_dwordx4 v2, {vr(Tm+8,4)}, s[40:41] offset:{fa*2048+tb*1024} {OPT['st_h']}")
    a("s_endpgm")

    P = 912
    a.label("k1_aux"); a.reset()
    a(f"""
s_sub_u32 s6, s2, 224                ; j' 0..31
s_cmp_lt_u32 s3, 4
s_cbranch_scc1 k1_aux_go
s_cmp_ge_u32 s6, 28
s_cbranch_scc1 k1_end
k1_aux_go:
s_waitcnt lgkmcnt(0)
s_cmp_lt_u32 s3, 4
s_cselect_b32 s44, s16, s36
s_cselect_b32 s45, s17, s37
s_mov_b32 s46, 1605632
s_cselect_b32 s46, 1835008, s46
s_mov_b32 s47, 0x20000
s_and_b32 s7, s3, 3
s_lshl_b32 s8, s6, 2
s_add_u32 s8, s8, s7
s_mul_i32 s8, s8, 14336
s_mul_i32 s9, s3, {16*P}
v_lshlrev_b32 v2, 4, v1
s_mov_b32 exec_hi, 0x00ffffff
""")
    for r in range(16):
        a(f"s_add_u32 m0, s9, {r*P}")
        a(f"s_add_u32 s10, s8, {r*896}")
        a(f"buffer_load_dwordx4 v2, s[44:47], s10 offen lds")
    a("""
s_mov_b64 exec, -1
s_cmp_lt_u32 s3, 4
s_cbranch_scc0 k1_aux_wd
""")
    a("v_and_b32 v3, 3, v0\nv_lshlrev_b32 v3, 4, v3")
    for i in range(14): a(f"global_load_dwordx4 {vr(64+4*i,4)}, v3, s[38:39] offset:{i*64}")
    a(f"""
v_lshrrev_b32 v4, 2, v0              ; row 0..63
v_mul_u32_u24 v5, {P}, v4
v_add_u32 v5, v5, v3
v_and_b32 v6, 3, v1
v_lshrrev_b32 v7, 5, v1
v_lshl_add_u32 v6, v7, 2, v6         ; chunk
v_bfe_u32 v7, v1, 2, 2               ; r
v_lshl_add_u32 v6, v6, 3, v7
v_mul_u32_u24 v6, {P}, v6
v_bfe_u32 v7, v1, 4, 1
v_lshl_add_u32 v6, v7, 3, v6
s_mul_i32 s10, s3, 224
v_add_u32 v6, s10, v6
v_and_b32 v8, 3, v1
v_lshl_add_u32 v8, v7, 2, v8
v_mul_u32_u24 v8, {UTP}, v8
v_lshrrev_b32 v7, 5, v1
v_bfe_u32 v10, v1, 2, 2
v_lshl_add_u32 v7, v7, 2, v10
v_lshl_add_u32 v8, v7, 4, v8
s_mul_i32 s10, s3, {112*UTP}
s_lshl_b32 s11, s6, 7
s_add_u32 s10, s10, s11
s_add_u32 s10, s10, {UT}
v_add_u32 v8, s10, v8
s_waitcnt vmcnt(14)
s_barrier
""")
    for X in range(14):
        a(f"ds_read_b64_tr_b16 {vr(128+4*X,2)}, v6 offset:{X*16}")
        a(f"ds_read_b64_tr_b16 {vr(130+4*X,2)}, v6 offset:{X*16+4*P}")
        if X == 6: a("s_waitcnt lgkmcnt(0)")
    for X in range(14):
        if X == 7: a("s_waitcnt lgkmcnt(0)")
        a(f"global_store_dwordx4 v8, {vr(128+4*X,4)}, s[40:41] {OPT['st_aux']}")
        a(f"v_add_u32 v8, {8*UTP}, v8")
    for i in range(14): a(f"ds_read_b128 {vr(192+4*i,4)}, v5 offset:{i*64}")
    a("v_mov_b32 v12, 0\nv_mov_b32 v13, 0\ns_waitcnt vmcnt(14)")
    for i in range(14):
        a(f"s_waitcnt lgkmcnt({13-i})")
        for q in range(4): a(f"v_dot2c_f32_bf16 v{12+(q&1)}, v{192+4*i+q}, v{64+4*i+q}")
    a(f"""
v_add_f32 v12, v12, v13
v_add_f32_dpp v12, v12, v12 quad_perm:[1,0,3,2] row_mask:0xf bank_mask:0xf
v_add_f32_dpp v12, v12, v12 quad_perm:[2,3,0,1] row_mask:0xf bank_mask:0xf
v_cvt_pk_bf16_f32 v12, v12, v12
v_and_b32 v12, 0xffff0000, v12
v_mul_f32 v12, {fbits(-LOG2E)}, v12
v_exp_f32 v12, v12
v_add_f32 v12, 1.0, v12
v_rcp_f32 v12, v12
v_cvt_pk_bf16_f32 v12, v12, v12
v_and_b32 v12, 0xffff0000, v12
v_sub_f32 v13, 1.0, v12
v_cvt_pk_bf16_f32 v13, v13, v13
v_and_b32 v13, 0xffff0000, v13
s_lshl_b32 s10, s6, 9
s_add_u32 s10, s10, {GG}
v_lshl_add_u32 v4, v4, 3, s10
global_store_dwordx2 v4, v[12:13], s[40:41] {OPT['st_aux']}
s_cmp_eq_u32 s6, 0
s_cbranch_scc0 k1_end
v_mov_b32 v14, 0
v_lshlrev_b32 v4, 2, v0
v_add_u32 v4, {FL}, v4
global_store_dword v4, v14, s[40:41] {OPT['st_aux']}
s_endpgm
""")
    a.label("k1_aux_wd"); a.reset()
    a(f"""
v_lshrrev_b32 v6, 5, v1
v_bfe_u32 v7, v1, 2, 2
v_lshl_add_u32 v6, v6, 2, v7
v_mul_u32_u24 v6, {P}, v6
v_bfe_u32 v7, v1, 4, 1
v_lshl_add_u32 v6, v7, 5, v6
v_and_b32 v7, 3, v1
v_lshl_add_u32 v6, v7, 3, v6
v_add_u32 v6, s9, v6
s_lshl_b32 s10, s6, 2
s_add_u32 s10, s10, s7               ; ks
s_lshl_b32 s10, s10, 11
s_add_u32 s10, s10, {WDP}
v_add_u32 v8, s10, v2
s_waitcnt vmcnt(0)
s_barrier
""")
    for X in range(14):
        a(f"ds_read_b64_tr_b16 {vr(128+4*X,2)}, v6 offset:{X*64}")
        a(f"ds_read_b64_tr_b16 {vr(130+4*X,2)}, v6 offset:{X*64+8*P}")
        if X == 6: a("s_waitcnt lgkmcnt(0)")
    for X in range(14):
        if X == 7: a("s_waitcnt lgkmcnt(0)")
        a(f"global_store_dwordx4 v8, {vr(128+4*X,4)}, s[40:41] offset:{(X&1)*1024} {OPT['st_aux']}")
        if X & 1: a(f"v_add_u32 v8, {112*2048}, v8")
    a.label("k1_end")
    a("s_endpgm")

PP = 272
ATB = 0
ATPI = 144
PB = 64*ATPI
CNT = PB + 4*64*PP
CB0 = CNT + 64
CBS = 12928
K2_LDS = CB0 + 4*CBS
def k2():
    a.raw(".globl k2_kernel\n.p2align 8\n.type k2_kernel,@function\nk2_kernel:")
    a.reset()
    a(f"""
s_cmp_ge_u32 s2, 224
s_cbranch_scc1 k2_end
s_load_dwordx2 s[40:41], s[0:1], 128
s_load_dwordx2 s[42:43], s[0:1], 112
s_load_dwordx2 s[38:39], s[0:1], 64
v_lshrrev_b32 v2, 6, v0
v_and_b32 v1, 63, v0
v_readfirstlane_b32 s3, v2
s_lshr_b32 s6, s2, 3                 ; j 0..27
s_mul_i32 s7, s6, 37
s_lshr_b32 s7, s7, 8                 ; j/7
s_mul_i32 s8, s7, 7
s_sub_u32 s11, s6, s8                ; s11 = cb
s_and_b32 s10, s2, 7
s_lshl_b32 s10, s10, 2
s_add_u32 s10, s10, s7               ; s10 = rb64
v_lshlrev_b32 v2, 4, v1
s_cmp_ge_u32 s3, 4
s_cbranch_scc1 k2_conv
""")
    D = 11
    ACC = 8; RING = 72
    a(f"""
s_mul_i32 s12, s10, {112*2048}
s_mul_i32 s13, s11, {112*2048}
s_add_u32 s13, s13, {WDP}
s_mul_i32 s14, s3, {28*2048}
s_add_u32 s14, s14, 4096
v_add_u32 v2, s14, v2
s_waitcnt lgkmcnt(0)
s_add_u32 s16, s40, s12
s_addc_u32 s17, s41, 0
s_add_u32 s18, s40, s13
s_addc_u32 s19, s41, 0
""")
    def loads(step):
        S = RING + 16*(step % D)
        o = (step % 4)*2048 - 4096
        out = [f"global_load_dwordx4 {vr(S,4)}, v2, s[18:19] offset:{o}",
               f"global_load_dwordx4 {vr(S+8,4)}, v2, s[16:17] offset:{o}",
               f"global_load_dwordx4 {vr(S+12,4)}, v2, s[16:17] offset:{o+1024}",
               f"global_load_dwordx4 {vr(S+4,4)}, v2, s[18:19] offset:{o+1024}"]
        if step % 4 == 3: out.append("v_add_u32 v2, 8192, v2")
        return out
    for st in range(D):
        for l in loads(st): a(l)
    a("s_barrier")
    for st in range(28):
        S = RING + 16*(st % D)
        rem = min(28, st+D) - st - 1
        a(f"s_waitcnt vmcnt({4*rem})")
        for db, tb in ((0, 0), (0, 1), (1, 0), (1, 1)):
            d = vr(ACC+32*db+16*tb, 16)
            a(f"v_mfma_f32_32x32x16_bf16 {d}, {vr(S+4*db,4)}, {vr(S+8+4*tb,4)}, " + ("0" if st == 0 else d))
        if st+D < 28:
            for l in loads(st+D): a(l)
    a(f"""
v_and_b32 v3, 31, v1
v_mul_u32_u24 v3, {PP}, v3
v_lshrrev_b32 v4, 5, v1
v_lshl_add_u32 v3, v4, 4, v3
s_mul_i32 s12, s3, {64*PP}
v_add_u32 v3, s12, v3
""")
    for db, tb in ((0, 0), (0, 1), (1, 0), (1, 1)):
        for q in range(4):
            a(f"ds_write_b128 v3, {vr(ACC+32*db+16*tb+4*q,4)} offset:{PB+tb*32*PP+db*128+q*32}")
    a("s_branch k2_final")

    a.label("k2_conv"); a.reset()
    a(f"""
s_sub_u32 s12, s3, 4                 ; cw
s_lshr_b32 s13, s12, 1
s_lshl_b32 s9, s2, 1
s_add_u32 s9, s9, s13                ; channel d
s_mul_i32 s14, s12, {CBS}
s_add_u32 s14, s14, {CB0}
s_mul_i32 s15, s9, {UTP}
s_add_u32 s15, s15, {UT}
v_add_u32 v3, s15, v2
s_mul_i32 s16, s9, {KTP}
s_add_u32 s16, s16, {KT+64}
v_add_u32 v4, s16, v2
v_lshl_add_u32 v5, v1, 3, s16
v_lshl_add_u32 v6, v1, 2, s16
s_lshl_b32 s17, s9, 1
v_mov_b32 v7, s17
v_mov_b32 v8, 0
s_waitcnt lgkmcnt(0)
global_load_dword v16, v4, s[40:41] offset:-4
global_load_dwordx4 v[20:23], v4, s[40:41]
global_load_dwordx4 v[24:27], v5, s[40:41] offset:1020
global_load_dwordx3 v[28:30], v5, s[40:41] offset:1536
global_load_dwordx2 v[32:33], v6, s[40:41] offset:2048
global_load_dwordx2 v[34:35], v6, s[40:41] offset:2304
s_add_u32 m0, s14, 8832
global_load_short_d16_hi v8, v7, s[38:39]
""")
    for i in range(4): a(f"global_load_lds_dwordx4 v3, s[40:41] offset:{i*1024}")
    a(f"""
v_mov_b32 v40, 0
v_mov_b32 v41, 0
v_mov_b32 v42, 0
v_mov_b32 v43, 0
v_min_u32 v9, 39, v1
v_lshlrev_b32 v9, 4, v9
v_add_u32 v10, 8256, v9
v_add_u32 v11, {4096-36*16}, v9
v_cmp_gt_u32 vcc, 36, v1
v_cndmask_b32 v10, v11, v10, vcc
v_add_u32 v10, s14, v10
ds_write_b128 v10, v[40:43]
v_mov_b32 v11, {CNT}
ds_write_b32 v11, v40
s_mov_b32 s20, 0xffff
v_and_b32 v12, 1, v1
v_cmp_eq_u32 vcc, 0, v12
v_mov_b32 v13, s20
v_cndmask_b32 v14, -1, v13, vcc
v_cndmask_b32 v15, v13, v40, vcc
v_lshlrev_b32 v9, 3, v1
v_sub_u32 v9, s14, v9
v_sub_u32 v10, s14, v2
s_waitcnt lgkmcnt(0)
s_barrier
s_waitcnt vmcnt(9)
v_bfi_b32 v44, s20, v23, v22
v_bfi_b32 v45, s20, v21, v20
v_bfi_b32 v46, s20, v22, v21
v_bfi_b32 v47, s20, v20, v16
ds_write_b64 v9, v[44:45] offset:4088
ds_write_b64 v9, v[46:47] offset:{4160+4088}
s_waitcnt vmcnt(8)
v_cmp_eq_u32 vcc, 0, v1
v_bfi_b32 v48, s20, v27, v26
v_mov_b32 v49, v25
v_bfi_b32 v50, s20, v26, v25
v_bfi_b32 v51, s20, v25, v24
v_cndmask_b32 v51, v25, v51, vcc
ds_write_b64 v9, v[48:49] offset:{4088-512}
ds_write_b64 v9, v[50:51] offset:{4160+4088-512}
s_waitcnt vmcnt(7)
v_mov_b32 v52, v30
v_mov_b32 v53, v29
v_bfi_b32 v54, s20, v29, v28
v_mov_b32 v55, v28
v_bfi_b32 v56, s20, v30, v29
v_mov_b32 v57, v29
v_mov_b32 v58, v28
v_mov_b32 v59, v28
ds_write_b128 v10, v[52:55] offset:{4080-1024}
ds_write_b128 v10, v[56:59] offset:{4160+4080-1024}
""")
    for hh in range(2):
        A_, B_ = 32+2*hh, 33+2*hh
        R = 60+8*hh
        a(f"""
s_waitcnt vmcnt({6-hh})
v_mov_b32 v{R}, v{B_}
v_bfi_b32 v{R+1}, v14, v{B_}, v{A_}
v_mov_b32 v{R+2}, v{A_}
v_mov_b32 v{R+3}, v{A_}
v_mov_b32 v{R+4}, v{B_}
v_bfi_b32 v{R+5}, v15, v{B_}, v{A_}
v_mov_b32 v{R+6}, v{A_}
v_mov_b32 v{R+7}, v{A_}
ds_write_b128 v10, {vr(R,4)} offset:{4080-2048-1024*hh}
ds_write_b128 v10, {vr(R+4,4)} offset:{4160+4080-2048-1024*hh}
""")
    a(f"""
v_and_b32 v16, 15, v1                ; i / j
v_lshrrev_b32 v17, 4, v1             ; kg / g
v_or_b32 v18, 1, v16                 ; i|1
v_lshlrev_b32 v19, 3, v17
v_sub_u32 v18, v19, v18
v_lshlrev_b32 v18, 1, v18
v_mul_u32_u24 v19, 4160, v12
v_sub_u32 v18, v18, v19
v_add_u32 v18, s14, v18
v_add_u32 v20, {4160+2*2031-512}, v18
v_add_u32 v21, {4160+2*2031-512*3}, v18
v_add_u32 v22, {4160+2*2031-512*5}, v18
v_add_u32 v23, {4160+2*2031-512*7}, v18
v_lshlrev_b32 v24, 5, v16
v_lshl_add_u32 v25, v17, 3, v24      ; 32j + 8g  (epilogue)
v_lshl_add_u32 v24, v17, 4, v24
v_add_u32 v24, s14, v24
v_add_u32 v24, {8832-32}, v24
s_waitcnt vmcnt(0)
s_and_b32 s13, s12, 1
s_cmp_eq_u32 s13, 0
s_cbranch_scc0 k2_set1
""")
    CA = 32
    FBUF = [64, 128]
    def creads(F, amax):
        out = []
        for i in range(amax+1):
            o = 0 if (i & 1) else 128
            out.append(f"ds_read_b128 {vr(F+32+4*i,4)}, v24 offset:{512*i}")
            out.append(f"ds_read2_b32 {vr(F+4*i,2)}, v{20+(i>>1)} offset0:{o} offset1:{o+1}")
            out.append(f"ds_read2_b32 {vr(F+4*i+2,2)}, v{20+(i>>1)} offset0:{o+2} offset1:{o+3}")
        out += [f"v_subrev_u32 v{r}, 64, v{r}" for r in range(20, 25)]
        return out
    for sidx, cbs in enumerate(((0, 3, 4, 7), (1, 2, 5, 6))):
        if sidx == 1:
            a.label("k2_set1"); a.reset()
        amax = max(cbs)
        for r in range(CA, CA+16): a(f"v_mov_b32 v{r}, 0")
        for x in creads(FBUF[0], amax): a(x)
        a("s_mov_b32 s21, 4")
        a.label(f"k2_cl{sidx}")
        for half in range(2):
            F = FBUF[half]
            a("s_waitcnt lgkmcnt(0)")
            lists = [[(n, aa, cb-aa) for aa in range(cb+1)] for n, cb in enumerate(cbs)]
            order = []
            while any(lists):
                for L in sorted(lists, key=lambda L: -len(L)):
                    if L: order.append(L.pop(0))
            fill = creads(FBUF[half ^ 1], amax)
            for k, (n, aa, bb) in enumerate(order):
                d = vr(CA+4*n, 4)
                a(f"v_mfma_f32_16x16x32_bf16 {d}, {vr(F+4*aa,4)}, {vr(F+32+4*bb,4)}, {d}")
                take = 2 if len(fill) > (len(order)-k-1) else 1
                for _ in range(take):
                    if fill: a(fill.pop(0))
            for x in fill: a(x)
        a(f"""
s_sub_u32 s21, s21, 1
s_cmp_lg_u32 s21, 0
s_cbranch_scc1 k2_cl{sidx}
v_add_u32 v26, s14, v25
s_waitcnt lgkmcnt(0)
""")
        for n, cb in enumerate(cbs): a(f"ds_read_b64 {vr(48+2*n,2)}, v26 offset:{8832+512*cb}")
        a(f"""
s_mul_i32 s15, s9, {UTP}
s_add_u32 s15, s15, {AT}
v_add_u32 v27, s15, v25
s_waitcnt lgkmcnt(0)
""")
        for n, cb in enumerate(cbs):
            R = CA+4*n
            a(f"""
v_lshlrev_b32 v56, 16, v{48+2*n}
v_and_b32 v57, 0xffff0000, v{48+2*n}
v_lshlrev_b32 v58, 16, v{49+2*n}
v_and_b32 v59, 0xffff0000, v{49+2*n}
v_fmac_f32 v{R}, v56, v8
v_fmac_f32 v{R+1}, v57, v8
v_fmac_f32 v{R+2}, v58, v8
v_fmac_f32 v{R+3}, v59, v8
v_cvt_pk_bf16_f32 v{R}, v{R}, v{R+1}
v_cvt_pk_bf16_f32 v{R+1}, v{R+2}, v{R+3}
global_store_dwordx2 v27, {vr(R,2)}, s[40:41] offset:{512*cb} sc1
""")
        if sidx == 0: a("s_branch k2_pub")
    a.label("k2_pub"); a.reset()
    a(f"""
v_mov_b32 v11, {CNT}
v_mov_b32 v12, 1
s_lshl_b32 s15, s2, 2
s_add_u32 s15, s15, {FL}
v_mov_b32 v13, s15
s_waitcnt vmcnt(0)
s_mov_b64 exec, 1
ds_add_rtn_u32 v14, v11, v12
s_waitcnt lgkmcnt(0)
v_readfirstlane_b32 s16, v14
s_cmp_eq_u32 s16, 3
s_cbranch_scc0 k2_nosig
global_store_dword v13, v12, s[40:41] sc1
k2_nosig:
s_mov_b64 exec, -1
v_and_b32 v13, 31, v1
s_lshl_b32 s15, s11, 7
s_add_u32 s15, s15, {FL}
v_lshl_add_u32 v13, v13, 2, s15
v_lshrrev_b32 v14, 3, v1
s_lshl_b32 s15, s12, 4
v_add_u32 v14, s15, v14
v_and_b32 v15, 7, v1
v_lshlrev_b32 v15, 4, v15
v_mul_u32_u24 v16, {UTP}, v14
v_mul_u32_u24 v17, {ATPI}, v14
s_mul_i32 s15, s11, {64*UTP}
s_lshl_b32 s16, s10, 7
s_add_u32 s15, s15, s16
s_add_u32 s15, s15, {AT}
v_add3_u32 v16, v16, v15, s15
v_add_u32 v18, {8*UTP}, v16
v_add_u32 v17, v17, v15
s_mov_b32 s21, 100000
k2_poll:
global_load_dword v19, v13, s[40:41] sc1
s_waitcnt vmcnt(0)
v_cmp_ne_u32 vcc, 1, v19
s_cmp_eq_u64 vcc, 0
s_cbranch_scc1 k2_got
s_sleep 2
s_sub_u32 s21, s21, 1
s_cmp_lg_u32 s21, 0
s_cbranch_scc1 k2_poll
k2_got:
global_load_dwordx4 v[20:23], v16, s[40:41] sc1
global_load_dwordx4 v[24:27], v18, s[40:41] sc1
s_waitcnt vmcnt(1)
ds_write_b128 v17, v[20:23] offset:{ATB}
s_waitcnt vmcnt(0)
ds_write_b128 v17, v[24:27] offset:{ATB+8*ATPI}
""")
    a.label("k2_final"); a.reset()
    a(f"""
s_lshr_b32 s12, s3, 1
s_lshl_b32 s12, s12, 4
s_and_b32 s13, s3, 1
s_lshl_b32 s13, s13, 2
v_and_b32 v2, 15, v1
v_add_u32 v2, s12, v2
v_lshrrev_b32 v3, 4, v1
v_add_u32 v3, s13, v3                ; dg
s_lshl_b32 s14, s10, 6
v_add_u32 v4, s14, v2                ; global t
v_lshlrev_b32 v5, 3, v4
v_add_u32 v5, {GG}, v5
global_load_dwordx2 v[6:7], v5, s[40:41]
v_mul_u32_u24 v5, {PP}, v2
v_lshl_add_u32 v5, v3, 5, v5
v_mul_u32_u24 v4, 896, v4
v_lshl_add_u32 v4, v3, 4, v4
s_lshl_b32 s14, s11, 7
v_add_u32 v4, s14, v4
v_bfe_u32 v8, v1, 2, 2
v_lshl_add_u32 v8, v3, 3, v8
v_mul_u32_u24 v8, {ATPI}, v8
v_and_b32 v9, 3, v1
v_lshl_add_u32 v8, v9, 3, v8
s_lshl_b32 s12, s12, 1
v_add_u32 v8, s12, v8
s_waitcnt lgkmcnt(0)
s_barrier
""")
    for w in range(4):
        a(f"ds_read_b128 {vr(16+8*w,4)}, v5 offset:{PB+w*64*PP}")
        a(f"ds_read_b128 {vr(20+8*w,4)}, v5 offset:{PB+w*64*PP+16}")
    a(f"""
ds_read_b64_tr_b16 v[48:49], v8 offset:{ATB}
ds_read_b64_tr_b16 v[50:51], v8 offset:{ATB+4*ATPI}
s_waitcnt lgkmcnt(6)
""")
    for i in range(0, 8, 2): a(f"v_pk_add_f32 {vr(16+i,2)}, {vr(16+i,2)}, {vr(24+i,2)}")
    a("s_waitcnt lgkmcnt(2)")
    for i in range(0, 8, 2): a(f"v_pk_add_f32 {vr(32+i,2)}, {vr(32+i,2)}, {vr(40+i,2)}")
    for i in range(0, 8, 2): a(f"v_pk_add_f32 {vr(16+i,2)}, {vr(16+i,2)}, {vr(32+i,2)}")
    a("s_waitcnt vmcnt(0) lgkmcnt(0)")
    for i in range(4):
        a(f"v_lshlrev_b32 v{24+2*i}, 16, v{48+i}\nv_and_b32 v{25+2*i}, 0xffff0000, v{48+i}")
    for i in range(0, 8, 2): a(f"v_pk_mul_f32 {vr(16+i,2)}, {vr(16+i,2)}, v[6:7] op_sel:[0,1] op_sel_hi:[1,1]")
    for i in range(0, 8, 2): a(f"v_pk_fma_f32 {vr(16+i,2)}, {vr(24+i,2)}, v[6:7], {vr(16+i,2)} op_sel_hi:[1,0,1]")
    for i in range(4): a(f"v_cvt_pk_bf16_f32 v{32+i}, v{16+2*i}, v{17+2*i}")
    a("global_store_dwordx4 v4, v[32:35], s[42:43]")
    a.label("k2_end")
    a("s_endpgm")
    a.label("code_end")

def desc(name, vg, sg=96):
    return f""".p2align 6
.amdhsa_kernel {name}
  .amdhsa_next_free_vgpr {vg}
  .amdhsa_next_free_sgpr {sg}
  .amdhsa_accum_offset {vg}
  .amdhsa_group_segment_fixed_size 0
  .amdhsa_kernarg_size 136
  .amdhsa_user_sgpr_count 2
  .amdhsa_user_sgpr_kernarg_segment_ptr 1
  .amdhsa_system_sgpr_workgroup_id_x 1
.end_amdhsa_kernel
"""
k1(); k2()
hdr = open("cdna_kernels/%s.s.ref" % NAME).read().split("; Override launch")[0]
out = hdr + f"; @launch kernel=k1_kernel grid=(256,1,1) block=(512,1,1) lds={K1_LDS}\n"
out += f"; @launch kernel=k2_kernel grid=(224,1,1) block=(512,1,1) lds={K2_LDS}\n"
out += '.amdgcn_target "amdgcn-amd-amdhsa--gfx950"\n' + a.text()
out += '.section .rodata,"a"\n' + desc("k1_kernel", 256) + desc("k2_kernel", 256)
open(sys.argv[1], "w").write(out)
print("written", sys.argv[1], "lines", len(a.lines), "nops", a.nops, "K2_LDS", K2_LDS)
```

```python
import sys, math, struct
from asm import *

NAME = "gated_mix__ssm_conv_s4__swiglu_ffn__prompt"
HP, WDP, UT, KT, AT, GG, FL = 0, 0x800000, 0xA00000, 0xC00000, 0xE00000, 0x1000000, 0x1010000
UTP = 4224
KTP = 4096
def fbits(x): return "0x%08x" % struct.unpack("<I", struct.pack("<f", x))[0]
LOG2E = 1.4426950408889634

OPT = dict(ntx="", ntw="", ntp="", st_h="sc1", st_aux="sc1", stamp=0, rot2=0, D=6, prio=1, l2pf=0, wdpf=1, epi=1, lt=1, ntt="", pdelay=20, nopoll=0)
for a_ in sys.argv[2:]:
    k, v = a_.split("="); OPT[k] = int(v) if v.lstrip("-").isdigit() else v

a = Asm()

def srd(d, ptr, nbytes, off=None):
    if off is None:
        a(f"s_mov_b32 s{d}, s{ptr}\ns_mov_b32 s{d+1}, s{ptr+1}")
    else:
        a(f"s_add_u32 s{d}, s{ptr}, {off}\ns_addc_u32 s{d+1}, s{ptr+1}, 0")
    a(f"s_mov_b32 s{d+2}, {nbytes}\ns_mov_b32 s{d+3}, 0x20000")

def cmuls(lst):
    for d, x, y in lst:
        assert d != x and d != y
        a(f"v_pk_mul_f32 {vr(d,2)}, {vr(x,2)}, {vr(y,2)} op_sel_hi:[1,0]")
    for d, x, y in lst:
        a(f"v_pk_fma_f32 {vr(d,2)}, {vr(x,2)}, {vr(y,2)}, {vr(d,2)} op_sel:[1,1,0] op_sel_hi:[0,1,1] neg_lo:[1,0,0]")

def stamp(idx):
    if OPT["stamp"]: a(f"{'s_memtime' if OPT['stamp']==2 else 's_memrealtime'} s[{64+2*idx}:{65+2*idx}]")
def stamps_out(kern, idx):
    if not OPT["stamp"]: return
    a("s_waitcnt vmcnt(0)")
    stamp(idx)
    a("s_waitcnt lgkmcnt(0)")
    for i in range(16): a(f"v_writelane_b32 v250, s{64+2*i}, {i}")
    a(f"""s_lshl_b32 s64, s2, 3
s_add_u32 s64, s64, s3
s_lshl_b32 s64, s64, 6
s_add_u32 s64, s64, {0x2000000 + kern*0x100000}
v_lshl_add_u32 v251, v1, 2, s64
s_mov_b64 exec, 0xffff
global_store_dword v251, v250, s[40:41]""")
def stamps_init():
    if OPT["stamp"]:
        for i in range(1,16): a(f"s_mov_b32 s{64+2*i}, 0")
        stamp(0)

XB = 49152
XO = [8192, 16384, 0]
SCR = 32768
SP = 147456
SP_GW = SP + 15360
K1_LDS = 163840
def k1():
    a.raw(".text\n.globl k1_kernel\n.p2align 8\n.type k1_kernel,@function\nk1_kernel:")
    a.reset()
    a("""
s_cmp_ge_u32 s2, 256
s_cbranch_scc1 k1_end
""")
    stamps_init()
    a("""
s_load_dwordx16 s[16:31], s[0:1], 0
s_load_dwordx8 s[32:39], s[0:1], 80
s_load_dwordx2 s[40:41], s[0:1], 128
s_getpc_b64 s[4:5]
k1_pc:
v_lshrrev_b32 v2, 6, v0
v_and_b32 v1, 63, v0
v_readfirstlane_b32 s3, v2
s_lshr_b32 s6, s2, 3                 ; j = wg>>3
s_and_b32 s8, s6, 3                  ; rbl
s_mul_i32 s7, s8, 6144
v_min_u32 v3, 5, v1
v_mad_u32_u24 v3, v2, 6, v3
v_lshlrev_b32 v3, 7, v3
v_add_u32 v3, s7, v3
v_min_u32 v3, code_end-k1_pc-4, v3
global_load_dword v249, v3, s[4:5]
s_and_b32 s10, s2, 4                 ; (xcd>>2)*4
s_add_u32 s10, s10, s8               ; s10 = rb (0..7)
s_and_b32 s9, s2, 3                  ; fq
s_mul_i32 s11, s9, 7
s_lshr_b32 s12, s6, 2
s_add_u32 s11, s11, s12              ; s11 = fb (0..27)
s_and_b32 s7, s3, 3
v_lshlrev_b32 v10, 4, v1
s_cmp_lt_u32 s3, 4
s_cbranch_scc1 k1_comp
s_cmp_eq_u32 s12, 7
s_cbranch_scc1 k1_comp
""")
    a(f"""
v_lshrrev_b32 v20, 3, v1             ; l>>3
v_lshrrev_b32 v21, 4, v1             ; l>>4
v_and_b32 v22, 7, v1
v_xor_b32 v23, v22, v21
v_xor_b32 v24, 4, v23                ; odd i
s_lshl_b32 s13, s7, 6
v_add_u32 v25, s13, v20
v_mul_u32_u24 v25, 896, v25
v_lshl_add_u32 v2, v23, 4, v25
v_lshl_add_u32 v3, v24, 4, v25
v_add_u32 v3, 6144, v3
v_add_u32 v4, 12288, v2
v_add_u32 v5, 12288, v3
s_lshl_b32 s13, s7, 4
v_add_u32 v25, s13, v20
v_mul_u32_u24 v25, 3584, v25
s_lshl_b32 s13, s11, 7
v_add_u32 v25, s13, v25
v_and_b32 v26, 1, v21
v_lshlrev_b32 v26, 1, v26
v_xor_b32 v26, v22, v26
v_lshl_add_u32 v6, v26, 4, v25
v_xor_b32 v26, 4, v26
v_lshl_add_u32 v7, v26, 4, v25
v_add_u32 v7, {28672-1024}, v7
s_mul_i32 s14, s7, 24576
s_add_u32 s14, s14, {XB+XO[0]}
s_lshl_b32 s15, s7, 11
s_mov_b32 s56, 0
s_mov_b32 s57, 0
s_mov_b32 s62, 0
s_mul_i32 s13, s10, 229376
s_mov_b32 s46, 229376
s_mov_b32 s47, 0x20000
s_mov_b32 s50, 1605632
s_mov_b32 s51, 0x20000
s_mov_b32 s54, 1605632
s_mov_b32 s55, 0x20000
v_min_u32 v8, 18, v1
s_mul_i32 s42, s12, 37
s_cmp_eq_u32 s7, 3
s_cselect_b32 s43, 19, 0
s_add_u32 s42, s42, s43
v_add_u32 v8, s42, v8
v_min_u32 v8, 255, v8
v_mul_u32_u24 v8, 896, v8
v_add_u32 v8, s13, v8
v_and_b32 v9, 15, v1
v_mul_u32_u24 v9, 3584, v9
s_mul_i32 s42, s8, 57344
s_lshl_b32 s43, s11, 7
s_add_u32 s42, s42, s43
v_add_u32 v9, s42, v9
s_add_u32 s42, s7, 1
s_and_b32 s42, s42, 2
s_cmp_eq_u32 s42, 0
s_cselect_b64 vcc, -1, 0
s_mov_b32 s60, 229376
s_cselect_b32 s60, 128, s60
v_cndmask_b32 v8, v9, v8, vcc
s_waitcnt lgkmcnt(0)
""")
    stamp(1)
    a("""
s_cselect_b32 s42, s16, s32
s_cselect_b32 s43, s17, s33
s_cmp_eq_u32 s7, 2
s_cselect_b32 s42, s34, s42
s_cselect_b32 s43, s35, s43
""")
    def touch():
        if OPT["lt"]: a(f"global_load_dword v0, v8, s[42:43] {OPT['ntt']}\nv_add_u32 v8, s24, v8")
    a("s_mov_b32 s24, s60")
    touch(); touch()
    a("""
s_add_u32 s44, s16, s13
s_addc_u32 s45, s17, 0
s_mov_b32 s48, s32
s_mov_b32 s49, s33
s_mov_b32 s52, s34
s_mov_b32 s53, s35
""")
    def dma():
        a("s_mov_b32 m0, s14\ns_add_u32 s58, s56, 28672")
        for i in range(4): a(f"buffer_load_dwordx4 v{2+i}, s[44:47], s56 offen offset:{i*1024} {OPT['ntx']} lds")
        a("s_mov_b32 m0, s15\ns_add_u32 s56, s56, 128")
        for i in range(2): a(f"buffer_load_dwordx4 v{6+i}, s[48:51], s57 offen offset:{i*1024} {OPT['ntw']} lds")
        a("s_add_u32 m0, s15, 8192\ns_add_u32 s62, s62, 1")
        for i in range(2): a(f"buffer_load_dwordx4 v{6+i}, s[52:55], s57 offen offset:{i*1024} {OPT['ntw']} lds")
        a("s_add_u32 m0, s14, 4096\ns_add_u32 s57, s57, 229376")
        for i in range(4): a(f"buffer_load_dwordx4 v{2+i}, s[44:47], s58 offen offset:{i*1024} {OPT['ntx']} lds")
        a("""
s_add_u32 s14, s14, 8192
s_add_u32 s15, s15, 16384
s_cmp_eq_u32 s62, 2
s_cselect_b32 s58, 24576, 0
s_sub_u32 s14, s14, s58
s_cmp_eq_u32 s62, 3
s_cselect_b32 s58, 49152, 0
s_cselect_b32 s62, 0, s62
s_sub_u32 s15, s15, s58
""")
    dma()
    srd(20, 38, 896)
    a(f"s_mov_b32 m0, {SP_GW}\ns_nop 0\nbuffer_load_dwordx4 v10, s[20:23], 0 offen lds")
    touch()
    stamp(3)
    dma()
    touch();
    stamp(2)
    a("s_branch k1_loader")

    Z = lambda k: 20 + 2*k
    Wp = lambda k: 50 + 2*k
    E = lambda k: 68 + 2*k
    Y = {1: 84, 2: 86, 4: 88, 8: 90}
    T = lambda k: 92 + 2*k
    CV = lambda k: 108 + (k & 7)
    FE, FX0, FX1, KA = 116, 132, 148, 164
    PR = 176
    a.label("k1_comp"); a.reset()
    a(f"""
s_sub_u32 s13, s2, 224
s_mul_i32 s13, s13, 7
s_add_u32 s13, s13, 224
s_add_u32 s13, s13, s3
s_cmp_eq_u32 s3, 7
s_cbranch_scc1 k1_end
s_lshl_b32 s14, s7, 7
s_cmp_eq_u32 s12, 7
s_cselect_b32 s60, s13, s2           ; s60 = channel
s_cselect_b32 s14, 0, s14
s_lshl_b32 s13, s60, 9
s_add_u32 s13, s13, s14
v_lshl_add_u32 v8, v1, 1, s13
s_lshl_b32 s14, s60, 1
v_mov_b32 v9, s14
""")
    for r in range(KA, PR+7): a(f"v_mov_b32 v{r}, 0")
    a(f"""
s_mul_i32 s58, s3, 4608
s_add_u32 s58, s58, {SCR}
s_mov_b32 m0, s58
s_waitcnt lgkmcnt(0)
""")
    stamp(1)
    def pload():
        a(f"global_load_short_d16_hi v{PR+6}, v9, s[30:31]")
        for r, p in zip(range(PR, PR+6), range(18, 30, 2)):
            a(f"global_load_short_d16_hi v{r}, v8, s[{p}:{p+1}] {OPT['ntp']}")
    pload()
    if OPT["l2pf"]:
        a("""
s_cmp_lt_u32 s7, 2
s_cselect_b32 s42, s16, s32
s_cselect_b32 s43, s17, s33
s_cmp_eq_u32 s7, 3
s_cselect_b32 s42, s34, s42
s_cselect_b32 s43, s35, s43
global_load_dword v0, v21, s[42:43]
""")
    a(f"""
v_and_b32 v18, 15, v1
v_mul_u32_u24 v18, 288, v18
v_and_b32 v19, 48, v1
v_add3_u32 v18, v18, v19, s58
s_mov_b32 s61, {SP}
s_cmp_eq_u32 s12, 7
s_cselect_b32 s61, 0x14000, s61
s_mul_i32 s13, s3, 3072
s_add_u32 s13, s13, s61
v_add_u32 v19, s13, v10
s_mov_b32 s59, 0
""")
    if OPT["l2pf"]:
        a(f"""
s_lshl_b32 s13, s7, 7
v_add_u32 v2, s13, v1                ; n (x)
v_add_u32 v3, 64, v2
v_min_u32 v2, 184, v2
v_min_u32 v3, 184, v3
v_mul_u32_u24 v4, 1772, v2
v_mul_u32_u24 v5, 1772, v3
v_lshrrev_b32 v4, 16, v4             ; n/37
v_lshrrev_b32 v5, 16, v5
v_mul_u32_u24 v6, 37, v4
v_mul_u32_u24 v7, 37, v5
v_sub_u32 v2, v2, v6
v_sub_u32 v3, v3, v7
s_mul_i32 s13, s12, 37
v_add_u32 v2, s13, v2
v_add_u32 v3, s13, v3
v_min_u32 v2, 255, v2
v_min_u32 v3, 255, v3
v_mul_u32_u24 v2, 896, v2
v_mul_u32_u24 v3, 896, v3
v_lshl_add_u32 v2, v4, 7, v2
v_lshl_add_u32 v3, v5, 7, v3
s_mul_i32 s13, s10, 229376
s_add_u32 s13, s13, 256
v_add_u32 v2, s13, v2
v_add_u32 v3, s13, v3
v_add_u32 v5, 458752, v20
v_and_b32 v4, 15, v1
v_mul_u32_u24 v4, 3584, v4
v_add_u32 v4, s15, v4
v_add_u32 v4, {384*3584}, v4
v_cndmask_b32 v2, v5, v2, vcc
v_cndmask_b32 v3, v4, v3, vcc
""")
    a("s_waitcnt vmcnt(%d)" % (1 if OPT["l2pf"] else 0))
    stamp(2)
    if OPT["l2pf"]:
        a("""
s_cmp_eq_u32 s12, 7
s_cbranch_scc1 k1_kg
global_load_dword v0, v2, s[42:43]
global_load_dword v0, v3, s[42:43]
""")
    a.label("k1_kg")
    a(f"""
v_mul_f32 v16, {fbits(LOG2E)}, v{PR+6}
v_exp_f32 v16, v16
v_mov_b32 v14, v{PR+4}
v_mov_b32 v15, v{PR+5}
v_cvt_pk_bf16_f32 v16, v16, v16
v_and_b32 v16, 0xffff0000, v16
v_mul_f32 v92, {fbits(LOG2E)}, v16
v_mul_f32 v93, 0.15915494, v16
v_mul_f32 v17, v{PR}, v92            ; a2
v_mul_f32 v11, v{PR+1}, v93          ; b2 (revolutions)
v_mul_f32 v12, v{PR+2}, v16
v_mul_f32 v13, v{PR+3}, v16          ; dB
s_cmp_eq_u32 s12, 7
s_cbranch_scc0 k1_kg2
v_add_u32 v8, 128, v8
v_min_u32 v8, 229374, v8
""")
    pload()
    a(f"""
k1_kg2:
v_mul_f32 v{E(0)}, v14, v12
v_mul_f32 v{E(0)+1}, v14, v13
v_fma_f32 v{E(0)}, -v15, v13, v{E(0)}
v_fma_f32 v{E(0)+1}, -v15, v12, -v{E(0)+1}   ; conj(W)
""")
    anc = [(Y[1], 16.0, True), (Z(1), 1.0, False), (Wp(1), 256.0, False)]
    for n, (d, p, cj) in enumerate(anc):
        if p != 1.0:
            a(f"v_mul_f32 v{T(n)}, {fbits(p)}, v17\nv_mul_f32 v{T(n)+1}, {fbits(p)}, v11")
    for n, (d, p, cj) in enumerate(anc):
        if p == 1.0: a(f"v_exp_f32 v{T(n)}, v17\nv_fract_f32 v{T(n)+1}, v11")
        else: a(f"v_exp_f32 v{T(n)}, v{T(n)}\nv_fract_f32 v{T(n)+1}, v{T(n)+1}")
    for n, (d, p, cj) in enumerate(anc):
        a(f"v_cos_f32 v{d}, v{T(n)+1}\nv_sin_f32 v{d+1}, v{T(n)+1}")
    for n, (d, p, cj) in enumerate(anc):
        a(f"v_pk_mul_f32 {vr(d,2)}, {vr(d,2)}, {vr(T(n),2)} op_sel_hi:[1,0]" + (" neg_hi:[1,0]" if cj else ""))
    cnt = [0]
    def puts(lst):
        cs = []
        for row, src in lst:
            c = CV(cnt[0]); cnt[0] += 1; cs.append(c)
            if src is None: a(f"v_mov_b32 v{c}, 0x3f80")
            else: a(f"v_cvt_pk_bf16_f32 v{c}, v{src}, v{src+1}")
        for (row, src), c in zip(lst, cs):
            a(f"ds_write_addtid_b32 v{c} offset:{row*288}")
    def putl(lst):
        for i in range(0, len(lst), 4): puts(lst[i:i+4])
    def frags(F):
        for s in range(4): a(f"ds_read_b128 {vr(F+4*s,4)}, v18 offset:{s*64}")
    def mf(tau, F):
        for s in range(4):
            a(f"v_mfma_f32_16x16x32_bf16 {vr(KA+4*tau,4)}, {vr(F+4*s,4)}, {vr(FE+4*s,4)}, {vr(KA+4*tau,4)}")
    cmuls([(Y[2], Y[1], Y[1]), (E(1), E(0), Y[1]), (Z(2), Z(1), Z(1)), (Wp(2), Wp(1), Wp(1))])
    cmuls([(Y[4], Y[2], Y[2]), (E(2), E(0), Y[2]), (E(3), E(1), Y[2]), (Z(3), Z(2), Z(1)), (Z(4), Z(2), Z(2)), (Wp(3), Wp(2), Wp(1)), (Wp(4), Wp(2), Wp(2))])
    putl([(i, E(i)) for i in range(4)])
    cmuls([(Y[8], Y[4], Y[4])] + [(E(4+i), E(i), Y[4]) for i in range(4)])
    putl([(i, E(i)) for i in range(4, 8)])
    cmuls([(T(i), E(i), Y[8]) for i in range(4)])
    putl([(8+i, T(i)) for i in range(4)])
    cmuls([(T(i), E(i), Y[8]) for i in range(4, 8)])
    putl([(8+i, T(i)) for i in range(4, 8)])
    frags(FE)
    putl([(0, None)] + [(i, Z(i)) for i in range(1, 4)])
    cmuls([(Z(5), Z(4), Z(1)), (Z(6), Z(4), Z(2)), (Z(7), Z(4), Z(3)), (Z(8), Z(4), Z(4))])
    putl([(i, Z(i)) for i in range(4, 8)])
    cmuls([(Z(8+i), Z(8), Z(i)) for i in range(1, 4)])
    putl([(i, Z(i)) for i in range(8, 12)])
    cmuls([(Z(8+i), Z(8), Z(i)) for i in range(4, 8)])
    putl([(i, Z(i)) for i in range(12, 16)])
    frags(FX0)
    cmuls([(T(r), Wp(1), Z(2*r)) for r in range(1, 4)])
    putl([(0, Wp(1))] + [(r, T(r)) for r in range(1, 4)])
    cmuls([(T(r), Wp(1), Z(2*r)) for r in range(4, 8)])
    putl([(r, T(r)) for r in range(4, 8)])
    cmuls([(T(j-1), Wp(2), Z(4*j)) for j in (1, 2, 3)])
    a("s_waitcnt lgkmcnt(8)")
    mf(0, FX0)
    putl([(8, Wp(2))] + [(8+j, T(j-1)) for j in (1, 2, 3)])
    cmuls([(T(2+j), Wp(3), Z(4*j)) for j in (1, 2, 3)])
    putl([(12, Wp(3))] + [(12+j, T(2+j)) for j in (1, 2, 3)])
    frags(FX1)
    cmuls([(Wp(5), Wp(4), Wp(1)), (Wp(6), Wp(4), Wp(2)), (Wp(7), Wp(4), Wp(3)), (Wp(8), Wp(4), Wp(4))])
    putl([(2*h, Wp(4+h)) for h in range(5)])
    cmuls([(T(h), Wp(4+h), Z(8)) for h in range(4)])
    putl([(2*h+1, T(h)) for h in range(4)])
    frags(FX0)
    a("s_waitcnt lgkmcnt(13)")
    mf(1, FX1)
    a(f"""
v_and_b32 v48, 15, v1
v_lshrrev_b32 v49, 4, v1
v_bfe_u32 v50, v1, 1, 3
v_xor_b32 v49, v49, v50
v_lshlrev_b32 v49, 4, v49
v_lshl_add_u32 v48, v48, 7, v49
s_lshr_b32 s13, s7, 1
s_mul_i32 s13, s13, 49152
s_add_u32 s13, s13, {XB}
v_add_u32 v2, s13, v48
v_xor_b32 v3, 64, v2
v_lshlrev_b32 v48, 6, v1
v_and_b32 v48, 0xc00, v48
v_lshlrev_b32 v49, 5, v1
v_and_b32 v49, 0x180, v49
v_and_b32 v50, 3, v1
v_lshlrev_b32 v50, 3, v50
v_add3_u32 v48, v48, v49, v50
v_bfe_u32 v49, v1, 3, 2
s_and_b32 s13, s7, 1
s_lshl_b32 s13, s13, 1
v_xor_b32 v49, s13, v49
v_lshl_add_u32 v4, v49, 5, v48
v_xor_b32 v5, 32, v4
s_waitcnt lgkmcnt(0)
""")
    mf(2, FX0)
    a("""
s_cmp_eq_u32 s12, 7
s_cbranch_scc1 k1_spare
""")
    stamp(3)
    for t in range(3): a(f"ds_write_b128 v19, {vr(KA+4*t,4)} offset:{t*1024}")
    ACC = 128
    FB = [16, 64]
    def reads(stage, ks, F):
        buf = stage % 3
        A_ = lambda fa, mat, hh: f"ds_read_b64_tr_b16 {vr(F+8*fa+4*mat+2*hh,2)}, v{4+fa} offset:{buf*16384+mat*8192+ks*4096+hh*512}"
        B_ = lambda tb: f"ds_read_b128 {vr(F+16+4*tb,4)}, v{2+ks} offset:{XO[buf]+(tb&3)*2048+(tb>>2)*24576}"
        return [A_(fa,mat,hh) for fa in range(2) for mat in range(2) for hh in range(2)] + [B_(tb) for tb in range(8)]
    def acc(tb, am): return ACC + 16*tb + 4*am
    def mfma1(F, tb, am, first):
        d = vr(acc(tb, am), 4)
        return f"v_mfma_f32_16x16x32_bf16 {d}, {vr(F+4*am,4)}, {vr(F+16+4*tb,4)}, " + ("0" if first else d)
    a(f"""
s_lshl_b32 s13, s10, 2
s_and_b32 s58, s7, 2
s_add_u32 s13, s13, s58
s_mul_i32 s13, s13, 56
s_lshl_b32 s58, s11, 1
s_add_u32 s13, s13, s58
s_and_b32 s58, s7, 1
s_add_u32 s13, s13, s58
s_lshl_b32 s13, s13, 12
v_add_u32 v6, s13, v10
v_add_u32 v7, {56*4096}, v6
s_mov_b32 s62, {fbits(-LOG2E)}
s_waitcnt lgkmcnt(0)
""")
    stamp(4)
    a("s_barrier")
    stamp(5)
    for r in reads(0, 0, FB[0]): a(r)
    def epi(tb, Tm):
        o = []
        G = [acc(tb,0), acc(tb,0)+2, acc(tb,2), acc(tb,2)+2]
        U = [acc(tb,1), acc(tb,1)+2, acc(tb,3), acc(tb,3)+2]
        for i in range(4): o.append(f"v_pk_mul_f32 {vr(Tm+2*i,2)}, {vr(G[i],2)}, s[62:63] op_sel_hi:[1,0]")
        for i in range(8): o.append(f"v_exp_f32 v{Tm+i}, v{Tm+i}")
        for i in range(4): o.append(f"v_pk_mul_f32 {vr(G[i],2)}, {vr(G[i],2)}, {vr(U[i],2)}")
        for i in range(4): o.append(f"v_pk_add_f32 {vr(Tm+2*i,2)}, {vr(Tm+2*i,2)}, 1.0 op_sel_hi:[1,0]")
        for i in range(8): o.append(f"v_rcp_f32 v{Tm+i}, v{Tm+i}")
        for i in range(4): o.append(f"v_pk_mul_f32 {vr(G[i],2)}, {vr(G[i],2)}, {vr(Tm+2*i,2)}")
        for i in range(4): o.append(f"v_cvt_pk_bf16_f32 v{acc(tb,1)+i}, v{G[i]}, v{G[i]+1}")
        o.append(f"global_store_dwordx4 v{6+(tb>>2)}, {vr(acc(tb,1),4)}, s[40:41] offset:{(tb&3)*1024} {OPT['st_h']}")
        return o
    step = 0
    nst = 12 if OPT["epi"] else 14
    for step in range(nst):
        st, ks = divmod(step, 2)
        F = FB[step & 1]; Fn = FB[(step+1) & 1]
        a("s_waitcnt lgkmcnt(0)")
        mm = [mfma1(F, tb, am, step == 0) for tb in range(8) for am in range(4)]
        fill = []
        if step < 13:
            if ks == 1:
                a(mm.pop(0)); a(mm.pop(0))
                a("s_barrier")
                stamp(6+st)
                fill = reads(st+1, 0, Fn)
            else:
                fill = reads(st, 1, Fn)
        for i, m in enumerate(mm):
            a(m)
            if i < len(fill): a(fill[i])
    stamp(12)
    if OPT["epi"]:
        rd = reads(6, 1, FB[1])
        a("s_waitcnt lgkmcnt(0)")
        pre = [mfma1(FB[0], tb, am, False) for tb in range(4) for am in range(4)]
        for i, m in enumerate(pre):
            a(m); a(rd[i])
        a("s_waitcnt lgkmcnt(7)")
        pend = []
        for tb in range(8):
            mm = ([mfma1(FB[0], tb, am, False) for am in range(4)] if tb >= 4 else []) + [mfma1(FB[1], tb, am, False) for am in range(4)]
            if tb == 1: a("s_waitcnt lgkmcnt(0)")
            per = (len(pend) + len(mm) - 1)//len(mm)
            for m in mm:
                a(m)
                for x in pend[:per]: a(x)
                pend = pend[per:]
            for x in pend: a(x)
            pend = epi(tb, 112 + 8*(tb & 1))
        for x in pend: a(x)
    else:
        for tb in range(8):
            for x in epi(tb, 112 + 8*(tb & 1)): a(x)
    stamp(13)
    stamps_out(0, 14)
    a("s_endpgm")

    def red_addr():
        a(f"""
v_lshrrev_b32 v11, 2, v1             ; tau0: src lane = (l&3)*16 + (l>>2)
v_and_b32 v12, 3, v1
v_lshl_add_u32 v11, v12, 4, v11
v_lshlrev_b32 v11, 4, v11
s_cmp_eq_u32 s7, 1
s_cbranch_scc0 {{L}}_a
v_bfe_u32 v11, v1, 1, 4              ; l<32: src = (l&1)*16 + (l>>1) ; else l
v_and_b32 v12, 1, v1
v_lshl_add_u32 v11, v12, 4, v11
v_cmp_gt_u32 vcc, 32, v1
v_cndmask_b32 v11, v1, v11, vcc
v_lshlrev_b32 v11, 4, v11
{{L}}_a:
v_add_u32 v12, 8, v11
s_cmp_eq_u32 s7, 2
s_cbranch_scc0 {{L}}_b
v_and_b32 v11, 7, v1                 ; src lane = (l>>4)*16 + 2*(l&7), half (l>>3)&1
v_lshlrev_b32 v11, 5, v11
v_and_b32 v12, 48, v1
v_lshl_add_u32 v11, v12, 4, v11
v_and_b32 v12, 8, v1
v_add_u32 v11, v11, v12
v_add_u32 v12, 16, v11
{{L}}_b:
s_lshl_b32 s13, s7, 10
v_add_u32 v13, s13, v10
s_add_u32 s13, s13, s61
v_add_u32 v11, s13, v11
v_add_u32 v12, s13, v12
s_cmp_eq_u32 s7, 3
s_cbranch_scc0 {{L}}_c
v_and_b32 v13, 48, v10
v_subrev_u32 v13, 64, v13
{{L}}_c:
""".replace("{L}", LBL[0]))
    def red_do():
        for w in range(4):
            a(f"ds_read_b64 {vr(32+4*w,2)}, v11 offset:{w*3072}")
            a(f"ds_read_b64 {vr(34+4*w,2)}, v12 offset:{w*3072}")
        a(f"""
s_mul_i32 s13, s60, {KTP}
s_add_u32 s13, s13, {KT+64}
v_add_u32 v14, s13, v13
s_cmp_eq_u32 s7, 3
s_cselect_b32 s13, 0, -1
s_waitcnt lgkmcnt(0)
v_pk_add_f32 v[32:33], v[32:33], v[36:37]
v_pk_add_f32 v[34:35], v[34:35], v[38:39]
v_pk_add_f32 v[40:41], v[40:41], v[44:45]
v_pk_add_f32 v[42:43], v[42:43], v[46:47]
v_pk_add_f32 v[32:33], v[32:33], v[40:41]
v_pk_add_f32 v[34:35], v[34:35], v[42:43]
""")
        for i in range(4): a(f"v_cvt_pk_bf16_f32 v{32+i}, v{32+i}, v{32+i}")
        for i in range(4): a(f"v_and_b32 v{32+i}, s13, v{32+i}")
        a(f"global_store_dwordx4 v14, v[32:35], s[40:41] {OPT['st_aux']}")
    LBL = ["k1_rs"]
    a.label("k1_spare"); a.reset()
    a("""
s_add_u32 s59, s59, 1
s_waitcnt vmcnt(0)
s_cmp_lt_u32 s59, 4
s_cbranch_scc1 k1_kg
s_nop 4
""")
    stamp(3)
    for t in range(3): a(f"ds_write_b128 v19, {vr(KA+4*t,4)} offset:{t*1024}")
    a(f"""
v_sub_u32 v19, v19, v10
v_lshrrev_b32 v11, 2, v1
v_and_b32 v12, 3, v1
v_lshl_add_u32 v11, v12, 4, v11
v_lshl_add_u32 v11, v11, 4, v19      ; tau0
v_bfe_u32 v13, v1, 1, 4
v_and_b32 v12, 1, v1
v_lshl_add_u32 v13, v12, 4, v13
v_cmp_gt_u32 vcc, 32, v1
v_cndmask_b32 v13, v1, v13, vcc
v_lshl_add_u32 v13, v13, 4, v19      ; tau1
v_and_b32 v14, 7, v1
v_lshlrev_b32 v14, 5, v14
v_and_b32 v12, 48, v1
v_lshl_add_u32 v14, v12, 4, v14
v_and_b32 v12, 8, v1
v_add3_u32 v14, v14, v12, v19        ; tau2
ds_read_b128 v[32:35], v11
ds_read_b128 v[36:39], v13 offset:1024
ds_read_b64 v[40:41], v14 offset:2048
ds_read_b64 v[42:43], v14 offset:2064
s_mul_i32 s13, s60, {KTP}
s_add_u32 s13, s13, {KT+64}
v_add_u32 v15, s13, v10
v_mov_b32 v16, s13
v_mov_b32 v44, 0
s_waitcnt lgkmcnt(0)
""")
    for i in range(12): a(f"v_cvt_pk_bf16_f32 v{32+i}, v{32+i}, v{32+i}")
    for t in range(3): a(f"global_store_dwordx4 v15, {vr(32+4*t,4)}, s[40:41] offset:{t*1024} {OPT['st_aux']}")
    a(f"global_store_dword v16, v44, s[40:41] offset:-4 {OPT['st_aux']}")
    stamp(13)
    stamps_out(0, 14)
    a("s_endpgm")

    a.label("k1_loader"); a.reset()
    LBL[0] = "k1_rl"
    a(f"s_mov_b32 s61, {SP}\ns_mov_b32 s60, s2")
    red_addr()
    a(f"""
s_lshl_b32 s13, s9, 1
s_add_u32 s13, s13, s12
s_lshl_b32 s13, s13, 2
s_add_u32 s13, s13, s7
s_and_b32 s13, s13, 31
s_lshl_b32 s13, s13, 3
v_add_u32 v16, s13, v20
v_bfe_u32 v17, v16, 1, 3
v_xor_b32 v17, v17, v22
v_lshlrev_b32 v17, 4, v17
v_add_u32 v17, {SP_GW}, v17
s_lshr_b32 s58, s13, 6
s_mul_i32 s58, s58, 24576
s_and_b32 s13, s13, 63
s_lshl_b32 s13, s13, 7
s_add_u32 s13, s13, s58
s_add_u32 s13, s13, {XB}
v_add_u32 v18, s13, v10
v_mov_b32 v28, 0
v_mov_b32 v29, 0
v_mov_b32 v30, 0
v_and_b32 v48, 3, v1
v_lshrrev_b32 v49, 5, v1
v_lshl_add_u32 v48, v49, 2, v48
v_bfe_u32 v49, v1, 2, 2
v_lshl_add_u32 v48, v48, 3, v49      ; t (hh=0)
v_bfe_u32 v49, v48, 1, 3
s_lshl_b32 s13, s7, 1
v_xor_b32 v49, s13, v49
v_lshlrev_b32 v48, 7, v48
v_lshl_add_u32 v48, v49, 4, v48
v_bfe_u32 v49, v1, 4, 1
v_lshl_add_u32 v48, v49, 3, v48
s_mul_i32 s13, s9, 24576
s_add_u32 s13, s13, {XB}
v_add_u32 v48, s13, v48
v_and_b32 v49, 4, v1
v_lshlrev_b32 v49, 3, v49
v_and_b32 v50, 32, v1
v_lshrrev_b32 v50, 1, v50
v_and_b32 v51, 3, v1
v_lshlrev_b32 v51, 2, v51
v_add3_u32 v49, v49, v50, v51
v_bfe_u32 v50, v1, 3, 2
v_add_lshl_u32 v49, v49, v50, 2
s_lshl_b32 s13, s12, 6
s_lshl_b32 s58, s7, 4
s_add_u32 s13, s13, s58
v_add_u32 v50, s13, v20
v_mul_u32_u24 v50, {UTP}, v50
v_lshl_add_u32 v50, v22, 4, v50
s_lshl_b32 s13, s10, 9
s_lshl_b32 s58, s9, 7
s_add_u32 s13, s13, s58
s_add_u32 s13, s13, {UT}
v_add_u32 v50, s13, v50
v_add_u32 v51, {8*UTP}, v50
v_min_u32 v52, 55, v1
v_lshlrev_b32 v52, 7, v52
s_lshl_b32 s13, s6, 2
s_add_u32 s13, s13, s7
s_mul_i32 s13, s13, 14336
v_add_u32 v52, s13, v52
v_add_u32 v53, 7168, v52
s_lshl_b32 s13, s2, 7
s_add_u32 s13, s13, {FL}
v_and_b32 v54, 31, v1
v_lshl_add_u32 v54, v54, 2, s13
s_mov_b32 s59, 0                     ; stage
s_mov_b32 s63, {XO[0]}
s_waitcnt vmcnt({14 if OPT["lt"] else 12})
""")
    stamp(4)
    a.label("k1_ll"); a.reset()
    a("""
s_barrier
s_cmp_ge_u32 s59, 5
s_cbranch_scc1 k1_l1
""")
    dma()
    if OPT["lt"]:
        a("s_cmp_ge_u32 s59, 3\ns_cbranch_scc1 k1_l1")
        touch()
    a(f"""
k1_l1:
v_add_u32 v19, s63, v18
ds_read_b128 v[56:59], v19
ds_read_b128 v[60:63], v17
v_add_u32 v17, 128, v17
s_cmp_eq_u32 s59, 0
s_cbranch_scc0 k1_l2
""")
    red_do()
    a(f"""
global_store_dword v54, v30, s[40:41] {OPT['st_aux']}
k1_l2:
s_cmp_eq_u32 s59, s12
s_cbranch_scc0 k1_l3
v_add_u32 v64, s63, v48
v_xor_b32 v65, 32, v64
v_xor_b32 v66, 16, v64
v_xor_b32 v67, 48, v64
ds_read_b64_tr_b16 v[68:69], v64
ds_read_b64_tr_b16 v[70:71], v65 offset:512
ds_read_b64_tr_b16 v[72:73], v66
ds_read_b64_tr_b16 v[74:75], v67 offset:512
s_waitcnt lgkmcnt(0)
""")
    for i in range(8): a(f"ds_bpermute_b32 v{76+i}, v49, v{68+i}")
    a(f"""
s_waitcnt lgkmcnt(0)
global_store_dwordx4 v50, v[76:79], s[40:41] {OPT['st_aux']}
global_store_dwordx4 v51, v[80:83], s[40:41] {OPT['st_aux']}
k1_l3:
""")
    if OPT["wdpf"]:
        a("""
s_cmp_eq_u32 s59, 4
s_cbranch_scc0 k1_l4
global_load_dword v249, v52, s[36:37]
global_load_dword v249, v53, s[36:37]
""")
        if OPT["wdpf"] == 2:
            a("global_load_dword v249, v52, s[36:37] offset:64\nglobal_load_dword v249, v53, s[36:37] offset:64")
        a("k1_l4:")
    a(f"""
s_waitcnt lgkmcnt(0)
v_dot2c_f32_bf16 v28, v56, v60
v_dot2c_f32_bf16 v29, v57, v61
v_dot2c_f32_bf16 v28, v58, v62
v_dot2c_f32_bf16 v29, v59, v63
s_add_u32 s63, s63, 8192
s_cmp_eq_u32 s63, 24576
s_cselect_b32 s63, 0, s63
s_add_u32 s59, s59, 1
s_cmp_lt_u32 s59, 6
s_cbranch_scc0 k1_l5
s_waitcnt vmcnt(12)
s_branch k1_ll
k1_l5:
s_cmp_eq_u32 s59, 7
s_cbranch_scc1 k1_l7
s_cmp_eq_u32 s12, 5
s_cbranch_scc1 k1_l6
s_waitcnt vmcnt({2*OPT["wdpf"]})
k1_l6:
s_waitcnt vmcnt({2+2*OPT["wdpf"]})
s_branch k1_ll
k1_l7:
s_cmp_lt_u32 s12, 2
s_cbranch_scc0 k1_lend
v_add_f32 v12, v28, v29
v_add_f32_dpp v12, v12, v12 quad_perm:[1,0,3,2] row_mask:0xf bank_mask:0xf
v_add_f32_dpp v12, v12, v12 quad_perm:[2,3,0,1] row_mask:0xf bank_mask:0xf
v_add_f32_dpp v12, v12, v12 row_half_mirror row_mask:0xf bank_mask:0xf
v_cvt_pk_bf16_f32 v12, v12, v12
v_and_b32 v12, 0xffff0000, v12
v_mul_f32 v12, {fbits(-LOG2E)}, v12
v_exp_f32 v12, v12
v_add_f32 v12, 1.0, v12
v_rcp_f32 v12, v12
v_cvt_pk_bf16_f32 v12, v12, v12
v_and_b32 v12, 0xffff0000, v12
v_sub_f32 v13, 1.0, v12
v_cvt_pk_bf16_f32 v13, v13, v13
v_and_b32 v13, 0xffff0000, v13
s_lshl_b32 s13, s10, 11
s_add_u32 s13, s13, {GG}
v_lshl_add_u32 v16, v16, 3, s13
global_store_dwordx2 v16, v[12:13], s[40:41] {OPT['st_aux']}
k1_lend:
""")
    stamp(13)
    stamps_out(0, 14)
    a.label("k1_end")
    a("s_endpgm")

PP = 272
ATB = 0
ATPI = 144
CNT = 64*ATPI
CB0 = CNT + 64
CBS = 12928
PB = (CB0 + 4*CBS + 127)//128*128
PWS = 24576
K2_LDS = PB + 4*PWS
def k2():
    a.raw(".globl k2_kernel\n.p2align 8\n.type k2_kernel,@function\nk2_kernel:")
    a.reset()
    a(f"""
s_cmp_ge_u32 s2, 224
s_cbranch_scc1 k2_end
""")
    stamps_init()
    a(f"""
s_load_dwordx2 s[40:41], s[0:1], 128
s_load_dwordx2 s[42:43], s[0:1], 112
s_load_dwordx2 s[38:39], s[0:1], 64
s_load_dwordx2 s[36:37], s[0:1], 96
v_lshrrev_b32 v2, 6, v0
v_and_b32 v1, 63, v0
v_readfirstlane_b32 s3, v2
v_mov_b32 v40, 0
v_mov_b32 v11, {CNT}
ds_write_b32 v11, v40
s_lshr_b32 s6, s2, 3                 ; j 0..27
s_mul_i32 s7, s6, 37
s_lshr_b32 s7, s7, 8                 ; j/7
s_mul_i32 s8, s7, 7
s_sub_u32 s11, s6, s8                ; s11 = cb
s_and_b32 s10, s2, 7
s_lshl_b32 s10, s10, 2
s_add_u32 s10, s10, s7               ; s10 = rb64
v_lshlrev_b32 v2, 4, v1
s_cmp_lt_u32 s3, 4
s_cbranch_scc1 k2_conv
""")
    D = OPT["D"]
    ACC = 16; AF = [80, 96]; RING = 112
    a(f"""
s_sub_u32 s9, s3, 4
s_mul_i32 s12, s10, {56*4096}
s_mul_i32 s14, s9, {14*4096}
s_add_u32 s12, s12, s14              ; h base
s_mul_i32 s13, s9, {448*896}
s_lshl_b32 s14, s11, 7
s_add_u32 s13, s13, s14
v_lshrrev_b32 v3, 3, v1
v_mul_u32_u24 v3, 896, v3
v_lshrrev_b32 v4, 3, v1
v_and_b32 v4, 6, v4
v_and_b32 v5, 7, v1
v_xor_b32 v4, v4, v5
v_lshl_add_u32 v4, v4, 4, v3
v_add_u32 v5, 6144, v4
v_add_u32 v6, 12288, v4
v_add_u32 v7, 18432, v4
v_lshrrev_b32 v8, 2, v1
v_lshlrev_b32 v8, 7, v8
v_bfe_u32 v9, v1, 3, 2
v_lshl_add_u32 v8, v9, 5, v8
v_and_b32 v9, 3, v1
v_lshl_add_u32 v8, v9, 3, v8
s_mul_i32 s24, s9, {PWS}
s_add_u32 s24, s24, {PB}
v_add_u32 v8, s24, v8
v_xor_b32 v9, 32, v8
v_xor_b32 v10, 64, v8
v_xor_b32 v11, 96, v8
""")
    if OPT["rot2"]:
        a("s_lshl_b32 s25, s11, 1")
    else:
        a("s_mov_b32 s25, 0")
    a("""
s_lshl_b32 s15, s25, 12
s_mul_i32 s26, s25, 28672
s_waitcnt lgkmcnt(0)
s_barrier
""")
    srd(16, 40, 14*4096, "s12")
    srd(20, 36, 448*896, "s13")
    def ldw(step):
        out = [f"s_add_u32 m0, s24, {(step % D)*4096}", "s_nop 0"]
        out += [f"buffer_load_dwordx4 v{4+i}, s[20:23], s26 offen offset:{i*1024} lds" for i in range(4)]
        out += ["s_add_u32 s26, s26, 28672", f"s_cmp_eq_u32 s26, {14*28672}", "s_cselect_b32 s26, 0, s26"]
        return out
    def ldh(step):
        S = RING + 16*(step % D)
        out = [f"buffer_load_dwordx4 {vr(S+4*i,4)}, v2, s[16:19], s15 offen offset:{i*1024}" for i in range(4)]
        out += ["s_add_u32 s15, s15, 4096", f"s_cmp_eq_u32 s15, {14*4096}", "s_cselect_b32 s15, 0, s15"]
        return out
    def rda(step):
        F = AF[step & 1]
        return [f"ds_read_b64_tr_b16 {vr(F+4*db+2*hh,2)}, v{8+db} offset:{(step % D)*4096+hh*2048}" for db in range(4) for hh in range(2)]
    stamp(1)
    if OPT.get("htouch", 1):
        a("""
v_mul_u32_u24 v12, 896, v1
s_lshl_b32 s27, s11, 7
buffer_load_dword v13, v12, s[16:19], s27 offen
""")
    for st in range(D):
        for l in ldw(st) + ldh(st): a(l)
    stamp(2)
    a(f"s_waitcnt vmcnt({8*(D-1)+4})")
    for l in rda(0): a(l)
    NS = 14
    for st in range(NS):
        S = RING + 16*(st % D); F = AF[st & 1]
        iss = min(NS, st+D)
        if st+1 < NS: n = 8*(iss-(st+1)) - 4
        else: n = 0
        a(f"s_waitcnt vmcnt({n}) lgkmcnt(0)")
        if st % 2 == 0: stamp(4+st//2)
        fill = (rda(st+1) if st+1 < NS else []) + (ldw(st+D) if st+D < NS else [])
        k = 0
        for db in range(4):
            for tb in range(4):
                d = vr(ACC+16*db+4*tb, 4)
                a(f"v_mfma_f32_16x16x32_bf16 {d}, {vr(F+4*db,4)}, {vr(S+4*tb,4)}, " + ("0" if st == 0 else d))
                if fill: a(fill.pop(0))
        for x in fill: a(x)
        if st+D < NS:
            for l in ldh(st+D): a(l)
    stamp(11)
    a(f"""
v_and_b32 v3, 15, v1
v_mul_u32_u24 v3, {PP}, v3
v_and_b32 v4, 48, v1
v_add3_u32 v3, v3, v4, s24
""")
    for db in range(4):
        for tb in range(4):
            a(f"ds_write_b128 v3, {vr(ACC+16*db+4*tb,4)} offset:{tb*16*PP+db*64}")
    a("s_branch k2_final")

    a.label("k2_conv"); a.reset()
    if OPT["prio"]: a("s_setprio 2")
    a(f"""
s_mov_b32 s12, s3                    ; cw
s_lshr_b32 s13, s12, 1
s_lshl_b32 s9, s2, 1
s_add_u32 s9, s9, s13                ; channel d
s_mul_i32 s14, s12, {CBS}
s_add_u32 s14, s14, {CB0}
s_mul_i32 s15, s9, {UTP}
s_add_u32 s15, s15, {UT}
v_add_u32 v3, s15, v2
s_mul_i32 s16, s9, {KTP}
s_add_u32 s16, s16, {KT+64}
v_add_u32 v4, s16, v2
v_lshl_add_u32 v5, v1, 3, s16
v_lshl_add_u32 v6, v1, 2, s16
s_lshl_b32 s17, s9, 1
v_mov_b32 v7, s17
v_mov_b32 v8, 0
s_add_u32 m0, s14, 8832
s_waitcnt lgkmcnt(0)
global_load_dword v16, v4, s[40:41] offset:-4
global_load_dwordx4 v[20:23], v4, s[40:41]
global_load_dwordx4 v[24:27], v5, s[40:41] offset:1020
global_load_dwordx3 v[28:30], v5, s[40:41] offset:1536
global_load_dwordx2 v[32:33], v6, s[40:41] offset:2048
global_load_dwordx2 v[34:35], v6, s[40:41] offset:2304
global_load_short_d16_hi v8, v7, s[38:39]
""")
    for i in range(4): a(f"global_load_lds_dwordx4 v3, s[40:41] offset:{i*1024}")
    a("s_barrier")
    stamp(3)
    a(f"""
v_mov_b32 v41, 0
v_mov_b32 v42, 0
v_mov_b32 v43, 0
v_min_u32 v9, 39, v1
v_lshlrev_b32 v9, 4, v9
v_add_u32 v10, 8256, v9
v_add_u32 v11, {4096-36*16}, v9
v_cmp_gt_u32 vcc, 36, v1
v_cndmask_b32 v10, v11, v10, vcc
v_add_u32 v10, s14, v10
ds_write_b128 v10, v[40:43]
s_mov_b32 s20, 0xffff
v_and_b32 v12, 1, v1
v_cmp_eq_u32 vcc, 0, v12
v_mov_b32 v13, s20
v_cndmask_b32 v14, -1, v13, vcc
v_cndmask_b32 v15, v13, v40, vcc
v_lshlrev_b32 v9, 3, v1
v_sub_u32 v9, s14, v9
v_sub_u32 v10, s14, v2
v_and_b32 v36, 15, v1                ; i / j
v_lshrrev_b32 v37, 4, v1             ; kg / g
v_or_b32 v18, 1, v36                 ; i|1
v_lshlrev_b32 v19, 3, v37
v_sub_u32 v18, v19, v18
v_lshlrev_b32 v18, 1, v18
v_mul_u32_u24 v19, 4160, v12
v_sub_u32 v18, v18, v19
v_add_u32 v18, s14, v18
v_add_u32 v76, {4160+2*2031-512}, v18
v_add_u32 v77, {4160+2*2031-512*3}, v18
v_add_u32 v78, {4160+2*2031-512*5}, v18
v_add_u32 v79, {4160+2*2031-512*7}, v18
v_lshlrev_b32 v80, 5, v36
v_lshl_add_u32 v81, v37, 3, v80      ; 32j + 8g  (epilogue)
v_lshl_add_u32 v80, v37, 4, v80
v_add_u32 v80, s14, v80
v_add_u32 v80, {8832-32}, v80
v_cmp_eq_u32 vcc, 0, v1
s_waitcnt vmcnt(9)
""")
    stamp(4)
    a(f"""
v_bfi_b32 v44, s20, v23, v22
v_bfi_b32 v45, s20, v21, v20
v_bfi_b32 v46, s20, v22, v21
v_bfi_b32 v47, s20, v20, v16
ds_write_b64 v9, v[44:45] offset:4088
ds_write_b64 v9, v[46:47] offset:{4160+4088}
s_waitcnt vmcnt(8)
v_bfi_b32 v48, s20, v27, v26
v_mov_b32 v49, v25
v_bfi_b32 v50, s20, v26, v25
v_bfi_b32 v51, s20, v25, v24
v_cndmask_b32 v51, v25, v51, vcc
ds_write_b64 v9, v[48:49] offset:{4088-512}
ds_write_b64 v9, v[50:51] offset:{4160+4088-512}
s_waitcnt vmcnt(7)
v_mov_b32 v52, v30
v_mov_b32 v53, v29
v_bfi_b32 v54, s20, v29, v28
v_mov_b32 v55, v28
v_bfi_b32 v56, s20, v30, v29
v_mov_b32 v57, v29
v_mov_b32 v58, v28
v_mov_b32 v59, v28
ds_write_b128 v10, v[52:55] offset:{4080-1024}
ds_write_b128 v10, v[56:59] offset:{4160+4080-1024}
""")
    for hh in range(2):
        A_, B_ = 32+2*hh, 33+2*hh
        R = 60+8*hh
        a(f"""
s_waitcnt vmcnt({6-hh})
v_mov_b32 v{R}, v{B_}
v_bfi_b32 v{R+1}, v14, v{B_}, v{A_}
v_mov_b32 v{R+2}, v{A_}
v_mov_b32 v{R+3}, v{A_}
v_mov_b32 v{R+4}, v{B_}
v_bfi_b32 v{R+5}, v15, v{B_}, v{A_}
v_mov_b32 v{R+6}, v{A_}
v_mov_b32 v{R+7}, v{A_}
ds_write_b128 v10, {vr(R,4)} offset:{4080-2048-1024*hh}
ds_write_b128 v10, {vr(R+4,4)} offset:{4160+4080-2048-1024*hh}
""")
    CA = 84
    for r in range(CA, CA+16): a(f"v_mov_b32 v{r}, 0")
    a("s_waitcnt vmcnt(0)")
    stamp(5)
    a(f"""
s_and_b32 s13, s12, 1
s_cmp_eq_u32 s13, 0
s_cbranch_scc0 k2_set1
""")
    FBUF = [100, 164]
    def creads(F, amax):
        out = []
        for i in range(amax+1):
            o = 0 if (i & 1) else 128
            out.append(f"ds_read_b128 {vr(F+32+4*i,4)}, v80 offset:{512*i}")
            out.append(f"ds_read2_b32 {vr(F+4*i,2)}, v{76+(i>>1)} offset0:{o} offset1:{o+1}")
            out.append(f"ds_read2_b32 {vr(F+4*i+2,2)}, v{76+(i>>1)} offset0:{o+2} offset1:{o+3}")
        out += [f"v_subrev_u32 v{r}, 64, v{r}" for r in range(76, 81)]
        return out
    for sidx, cbs in enumerate(((0, 3, 4, 7), (1, 2, 5, 6))):
        if sidx == 1:
            a.label("k2_set1"); a.reset()
        amax = max(cbs)
        for x in creads(FBUF[0], amax): a(x)
        a("s_mov_b32 s21, 4")
        a.label(f"k2_cl{sidx}")
        for half in range(2):
            F = FBUF[half]
            a("s_waitcnt lgkmcnt(0)")
            lists = [[(n, aa, cb-aa) for aa in range(cb+1)] for n, cb in enumerate(cbs)]
            order = []
            while any(lists):
                for L in sorted(lists, key=lambda L: -len(L)):
                    if L: order.append(L.pop(0))
            fill = creads(FBUF[half ^ 1], amax)
            for k, (n, aa, bb) in enumerate(order):
                d = vr(CA+4*n, 4)
                a(f"v_mfma_f32_16x16x32_bf16 {d}, {vr(F+4*aa,4)}, {vr(F+32+4*bb,4)}, {d}")
                for _ in range(2):
                    if fill: a(fill.pop(0))
            for x in fill: a(x)
        a(f"""
s_sub_u32 s21, s21, 1
s_cmp_lg_u32 s21, 0
s_cbranch_scc1 k2_cl{sidx}
v_add_u32 v26, s14, v81
""")
        stamp(6)
        for n, cb in enumerate(cbs): a(f"ds_read_b64 {vr(48+2*n,2)}, v26 offset:{8832+512*cb}")
        a(f"""
s_mul_i32 s15, s9, {UTP}
s_add_u32 s15, s15, {AT}
v_add_u32 v27, s15, v81
s_waitcnt lgkmcnt(0)
""")
        for n, cb in enumerate(cbs):
            R = CA+4*n
            a(f"""
v_lshlrev_b32 v56, 16, v{48+2*n}
v_and_b32 v57, 0xffff0000, v{48+2*n}
v_lshlrev_b32 v58, 16, v{49+2*n}
v_and_b32 v59, 0xffff0000, v{49+2*n}
v_fmac_f32 v{R}, v56, v8
v_fmac_f32 v{R+1}, v57, v8
v_fmac_f32 v{R+2}, v58, v8
v_fmac_f32 v{R+3}, v59, v8
v_cvt_pk_bf16_f32 v{R}, v{R}, v{R+1}
v_cvt_pk_bf16_f32 v{R+1}, v{R+2}, v{R+3}
global_store_dwordx2 v27, {vr(R,2)}, s[40:41] offset:{512*cb} sc1
""")
        if sidx == 0: a("s_branch k2_pub")
    a.label("k2_pub"); a.reset()
    a(f"""
v_mov_b32 v11, {CNT}
v_mov_b32 v12, 1
s_lshr_b32 s15, s2, 5
s_lshl_b32 s15, s15, 12
s_add_u32 s15, s15, {FL}
v_lshl_add_u32 v13, v1, 7, s15
""")
    stamp(7)
    a("s_waitcnt vmcnt(0)")
    stamp(8)
    a(f"""
s_mov_b64 exec, 1
ds_add_rtn_u32 v14, v11, v12
s_waitcnt lgkmcnt(0)
v_readfirstlane_b32 s16, v14
s_mov_b32 exec_lo, -1
s_cmp_eq_u32 s16, 3
s_cbranch_scc1 k2_sig
s_mov_b64 exec, -1
s_branch k2_final
k2_sig:
global_atomic_add v13, v12, s[40:41] sc1
s_mov_b64 exec, -1
s_setprio 0
s_lshl_b32 s15, s11, 5
s_add_u32 s15, s15, s10
s_lshl_b32 s15, s15, 7
s_add_u32 s15, s15, {FL}
v_mov_b32 v13, s15
v_lshrrev_b32 v14, 3, v1
v_and_b32 v15, 7, v1
v_lshlrev_b32 v15, 4, v15
v_mul_u32_u24 v16, {UTP}, v14
v_mul_u32_u24 v17, {ATPI}, v14
s_mul_i32 s15, s11, {64*UTP}
s_lshl_b32 s16, s10, 7
s_add_u32 s15, s15, s16
s_add_u32 s15, s15, {AT}
v_add3_u32 v16, v16, v15, s15
v_add_u32 v17, v17, v15
s_mov_b32 s21, 50000
s_sleep {OPT["pdelay"]}
k2_poll:
global_load_dword v19, v13, s[40:41] sc1
s_waitcnt vmcnt(0)
v_readfirstlane_b32 s16, v19
s_cmp_eq_u32 s16, 32
s_cbranch_scc1 k2_got
s_sleep 8
s_sub_u32 s21, s21, 1
s_cmp_lg_u32 s21, 0
s_cbranch_scc1 k2_poll
k2_got:
""")
    stamp(9)
    for i in range(8):
        a(f"global_load_dwordx4 {vr(20+4*i,4)}, v16, s[40:41] sc1")
        if i < 7: a(f"v_add_u32 v16, {8*UTP}, v16")
    for i in range(8):
        a(f"s_waitcnt vmcnt({7-i})")
        a(f"ds_write_b128 v17, {vr(20+4*i,4)} offset:{ATB+8*i*ATPI}")
    a.label("k2_final"); a.reset()
    a(f"""
s_lshr_b32 s12, s3, 1
s_lshl_b32 s12, s12, 4
s_and_b32 s13, s3, 1
s_lshl_b32 s13, s13, 2
v_and_b32 v2, 15, v1
v_add_u32 v2, s12, v2
v_lshrrev_b32 v3, 4, v1
v_add_u32 v3, s13, v3                ; dg
s_lshl_b32 s14, s10, 6
v_add_u32 v4, s14, v2                ; global t
v_lshlrev_b32 v5, 3, v4
v_add_u32 v5, {GG}, v5
global_load_dwordx2 v[6:7], v5, s[40:41]
v_mul_u32_u24 v5, {PP}, v2
v_lshl_add_u32 v5, v3, 5, v5
v_add_u32 v5, {PB}, v5
v_add_u32 v10, {2*PWS}, v5
v_mul_u32_u24 v4, 896, v4
v_lshl_add_u32 v4, v3, 4, v4
s_lshl_b32 s14, s11, 7
v_add_u32 v4, s14, v4
v_bfe_u32 v8, v1, 2, 2
v_lshl_add_u32 v8, v3, 3, v8
v_mul_u32_u24 v8, {ATPI}, v8
v_and_b32 v9, 3, v1
v_lshl_add_u32 v8, v9, 3, v8
s_lshl_b32 s12, s12, 1
v_add_u32 v8, s12, v8
s_waitcnt lgkmcnt(0)
""")
    stamp(12)
    a("s_barrier")
    stamp(13)
    for w in range(4):
        a(f"ds_read_b128 {vr(16+8*w,4)}, v{5 if w < 2 else 10} offset:{(w&1)*PWS}")
        a(f"ds_read_b128 {vr(20+8*w,4)}, v{5 if w < 2 else 10} offset:{(w&1)*PWS+16}")
    a(f"""
ds_read_b64_tr_b16 v[48:49], v8 offset:{ATB}
ds_read_b64_tr_b16 v[50:51], v8 offset:{ATB+4*ATPI}
s_waitcnt lgkmcnt(6)
""")
    for i in range(0, 8, 2): a(f"v_pk_add_f32 {vr(16+i,2)}, {vr(16+i,2)}, {vr(24+i,2)}")
    a("s_waitcnt lgkmcnt(2)")
    for i in range(0, 8, 2): a(f"v_pk_add_f32 {vr(32+i,2)}, {vr(32+i,2)}, {vr(40+i,2)}")
    for i in range(0, 8, 2): a(f"v_pk_add_f32 {vr(16+i,2)}, {vr(16+i,2)}, {vr(32+i,2)}")
    a("s_waitcnt vmcnt(0) lgkmcnt(0)")
    for i in range(4):
        a(f"v_lshlrev_b32 v{24+2*i}, 16, v{48+i}\nv_and_b32 v{25+2*i}, 0xffff0000, v{48+i}")
    for i in range(0, 8, 2): a(f"v_pk_mul_f32 {vr(16+i,2)}, {vr(16+i,2)}, v[6:7] op_sel:[0,1] op_sel_hi:[1,1]")
    for i in range(0, 8, 2): a(f"v_pk_fma_f32 {vr(16+i,2)}, {vr(24+i,2)}, v[6:7], {vr(16+i,2)} op_sel_hi:[1,0,1]")
    for i in range(4): a(f"v_cvt_pk_bf16_f32 v{32+i}, v{16+2*i}, v{17+2*i}")
    a("global_store_dwordx4 v4, v[32:35], s[42:43]")
    stamp(14)
    stamps_out(1, 15)
    a.label("k2_end")
    a("s_endpgm")
    a.label("code_end")

def desc(name, vg, sg=100):
    return f""".p2align 6
.amdhsa_kernel {name}
  .amdhsa_next_free_vgpr {vg}
  .amdhsa_next_free_sgpr {sg}
  .amdhsa_accum_offset {vg}
  .amdhsa_group_segment_fixed_size 0
  .amdhsa_kernarg_size 136
  .amdhsa_user_sgpr_count 2
  .amdhsa_user_sgpr_kernarg_segment_ptr 1
  .amdhsa_system_sgpr_workgroup_id_x 1
.end_amdhsa_kernel
"""
k1(); k2()
hdr = open("cdna_kernels/%s.s.ref" % NAME).read().split("; Override launch")[0]
out = hdr + f"; @launch kernel=k1_kernel grid=(256,1,1) block=(512,1,1) lds={K1_LDS}\n"
out += f"; @launch kernel=k2_kernel grid=(224,1,1) block=(512,1,1) lds={K2_LDS}\n"
out += '.amdgcn_target "amdgcn-amd-amdhsa--gfx950"\n' + a.text()
out += '.section .rodata,"a"\n' + desc("k1_kernel", 256) + desc("k2_kernel", 256)
open(sys.argv[1], "w").write(out)
print("written", sys.argv[1], "lines", len(a.lines), "nops", a.nops, "K2_LDS", K2_LDS)
```

```python
import sys, math, struct
from asm import *

NAME = "gated_mix__ssm_conv_s4__swiglu_ffn__prompt"
KN = NAME + "_kernel"
HP, UT, AT, GG, FL = 0, 0xA00000, 0xE00000, 0x1000000, 0x1010000
UTP = 4224
def fbits(x): return "0x%08x" % struct.unpack("<I", struct.pack("<f", x))[0]
LOG2E = 1.4426950408889634
OPT = dict(ntx="", ntw="", ntp="", stamp=0, CK=6, spare=1, xwd=0, cprio=0, pdelay=2, yprio=2)
for a_ in sys.argv[2:]:
    k, v = a_.split("="); OPT[k] = int(v) if v.lstrip("-").isdigit() else v
a = Asm()
SPIN = 40000

def cmuls(lst):
    for d, x, y in lst:
        assert d != x and d != y
        a(f"v_pk_mul_f32 {vr(d,2)}, {vr(x,2)}, {vr(y,2)} op_sel_hi:[1,0]")
    for d, x, y in lst:
        a(f"v_pk_fma_f32 {vr(d,2)}, {vr(x,2)}, {vr(y,2)}, {vr(d,2)} op_sel:[1,1,0] op_sel_hi:[0,1,1] neg_lo:[1,0,0]")
def stamp(idx):
    if OPT["stamp"]: a(f"{'s_memtime' if OPT['stamp']==2 else 's_memrealtime'} s[{64+2*idx}:{65+2*idx}]")
def stamps_out(idx):
    if not OPT["stamp"]: return
    a("s_waitcnt vmcnt(0)")
    stamp(idx)
    a("s_waitcnt lgkmcnt(0)")
    for i in range(16): a(f"v_writelane_b32 v250, s{64+2*i}, {i}")
    a(f"""s_lshl_b32 s64, s2, 3
s_add_u32 s64, s64, s3
s_lshl_b32 s64, s64, 6
s_add_u32 s64, s64, 0x2000000
v_lshl_add_u32 v251, v1, 2, s64
s_mov_b64 exec, 0xffff
global_store_dword v251, v250, s[40:41]""")
def stamps_init():
    if OPT["stamp"]:
        for i in range(1,16): a(f"s_mov_b32 s{64+2*i}, 0")
        stamp(0)

class VM:
    def __init__(self): self.q = []
    def op(self, text, tag):
        a(text); self.q.append(tag)
    def n_for(self, *tags):
        idx = max(i for i, t in enumerate(self.q) if t in tags)
        return len(self.q) - 1 - idx
    def wait(self, *tags, extra=""):
        n = self.n_for(*tags); assert n <= 63
        a(f"s_waitcnt vmcnt({n}){extra}")

XA = [98304, 49152, 65536, 81920, 32768, 0, 16384]
WR = [114688, 131072, 147456]
WA = [WR[s % 3] for s in range(10)] + [WR[1], XA[0], WR[2], XA[1]]
CS = [XA[2], WR[0]]
RSL = [XA[3], WR[1], XA[4], XA[5], XA[6], XA[0], XA[1]]
TABO = 12992
CNT = CS[0] + 16064
GL = CS[1] + 16064
ATPI = 144
LDS = 163840

a.raw(f".text\n.globl {KN}\n.p2align 8\n.type {KN},@function\n{KN}:")
a("""
s_cmp_ge_u32 s2, 256
s_cbranch_scc1 k_end
""")
stamps_init()
a("""
s_load_dwordx16 s[16:31], s[0:1], 0
s_load_dwordx8 s[32:39], s[0:1], 80
s_load_dwordx2 s[40:41], s[0:1], 128
s_load_dwordx4 s[96:99], s[0:1], 112
s_getpc_b64 s[4:5]
k_pc:
v_lshrrev_b32 v2, 6, v0
v_and_b32 v1, 63, v0
v_readfirstlane_b32 s3, v2
s_lshr_b32 s6, s2, 3                 ; j
s_and_b32 s8, s6, 3                  ; rbl
; code prefetch into L2: line = rbl*56 + wave*7 + min(lane,6)
s_mul_i32 s7, s8, 7168
v_min_u32 v3, 6, v1
v_mad_u32_u24 v3, v2, 7, v3
v_lshlrev_b32 v3, 7, v3
v_add_u32 v3, s7, v3
v_min_u32 v3, code_end-k_pc-4, v3
global_load_dword v0, v3, s[4:5]
s_and_b32 s10, s2, 6
s_lshl_b32 s10, s10, 1
s_add_u32 s10, s10, s8               ; rb128
s_and_b32 s9, s2, 1
s_mul_i32 s11, s9, 7
s_lshr_b32 s12, s6, 2                ; fbl (7 = spare WG)
s_add_u32 s11, s11, s12              ; fb128
s_and_b32 s7, s3, 3
v_lshlrev_b32 v10, 4, v1
s_lshl_b32 s42, s8, 1
s_add_u32 s42, s42, s12
s_sub_u32 s43, s42, 7
s_cmp_ge_u32 s42, 7
s_cselect_b32 s42, s43, s42          ; rot
v_lshrrev_b32 v20, 3, v1
v_lshrrev_b32 v21, 4, v1
v_and_b32 v22, 7, v1
s_lshl_b32 s13, s7, 4
v_add_u32 v25, s13, v20
v_mul_u32_u24 v25, 3584, v25
s_lshl_b32 s13, s11, 8
v_add_u32 v25, s13, v25
v_and_b32 v26, 1, v21
v_lshlrev_b32 v26, 1, v26
v_xor_b32 v26, v22, v26
v_lshl_add_u32 v14, v26, 4, v25
v_xor_b32 v26, 4, v26
v_lshl_add_u32 v15, v26, 4, v25
v_add_u32 v15, 27648, v15
s_lshl_b32 s15, s7, 11
s_mov_b32 s50, 1605632
s_mov_b32 s51, 0x20000
s_mov_b32 s54, 1605632
s_mov_b32 s55, 0x20000
s_cmp_eq_u32 s12, 7
s_cbranch_scc1 k_spare
""")
def dmaw(vm, st):
    a(f"s_add_u32 m0, s15, {WA[st]}")
    if st >= 7: a("s_add_u32 s58, s57, 128")
    else: a("s_mov_b32 s58, s57")
    for i in range(2): vm.op(f"buffer_load_dwordx4 v{14+i}, s[48:51], s58 offen offset:{i*1024} {OPT['ntw']} lds", f"W{st}")
    a(f"s_add_u32 m0, s15, {WA[st]+8192}\ns_add_u32 s57, s57, 229376")
    for i in range(2): vm.op(f"buffer_load_dwordx4 v{14+i}, s[52:55], s58 offen offset:{i*1024} {OPT['ntw']} lds", f"W{st}")
    a("s_cmp_eq_u32 s57, 1605632\ns_cselect_b32 s57, 0, s57")
def dmax(vm, st):
    a(f"s_add_u32 m0, s14, {XA[st]}\ns_mov_b32 s58, s56")
    for i in range(4): vm.op(f"buffer_load_dwordx4 v{212+i}, s[44:47], s58 offen offset:{i*1024} {OPT['ntx']} lds", f"X{st}")
    a("s_add_u32 s56, s56, 128\ns_cmp_eq_u32 s56, 896\ns_cselect_b32 s56, 0, s56")

FB = [16, 48]; ACC = 80; TM = 144; KA = 164
def pass_addrs():
    a(f"""
v_and_b32 v6, 15, v1
v_lshrrev_b32 v7, 4, v1
v_bfe_u32 v8, v1, 1, 3
v_xor_b32 v7, v7, v8
v_lshlrev_b32 v7, 4, v7
v_lshl_add_u32 v6, v6, 7, v7
s_lshr_b32 s13, s7, 1
s_lshl_b32 s13, s13, 13
v_add_u32 v2, s13, v6
v_xor_b32 v3, 64, v2
v_lshlrev_b32 v6, 6, v1
v_and_b32 v6, 0xc00, v6
v_lshlrev_b32 v7, 5, v1
v_and_b32 v7, 0x180, v7
v_and_b32 v8, 3, v1
v_lshlrev_b32 v8, 3, v8
v_add3_u32 v6, v6, v7, v8
v_bfe_u32 v7, v1, 3, 2
s_and_b32 s13, s7, 1
s_lshl_b32 s13, s13, 1
v_xor_b32 v7, s13, v7
v_lshl_add_u32 v4, v7, 5, v6
v_xor_b32 v5, 32, v4
""")
def h_addr(p):
    a(f"""
s_lshl_b32 s13, s10, 1
s_lshr_b32 s58, s7, 1
s_add_u32 s13, s13, s58
s_mul_i32 s13, s13, 56
s_lshl_b32 s58, s11, 1
s_add_u32 s13, s13, s58
s_and_b32 s58, s7, 1
s_add_u32 s13, s13, s58
s_add_u32 s13, s13, {28*p}
s_lshl_b32 s13, s13, 12
v_add_u32 v11, s13, v10
s_mov_b32 s62, {fbits(-LOG2E)}
""")
def setaddr(st):
    return [f"v_add_u32 v6, {XA[st % 7]}, v2", f"v_add_u32 v7, {XA[st % 7]}, v3", f"v_add_u32 v8, {WA[st]}, v4", f"v_add_u32 v9, {WA[st]}, v5"]
def reads(ks, F):
    A_ = lambda fa, mat, hh: f"ds_read_b64_tr_b16 {vr(F+8*fa+4*mat+2*hh,2)}, v{8+fa} offset:{mat*8192+ks*4096+hh*512}"
    B_ = lambda tb: f"ds_read_b128 {vr(F+16+4*tb,4)}, v{6+ks} offset:{tb*2048}"
    return [A_(fa,mat,hh) for fa in range(2) for mat in range(2) for hh in range(2)] + [B_(tb) for tb in range(4)]
def acc(tb, am): return ACC + 16*tb + 4*am
def gpass(p, hooks):
    s0 = 7*p
    for x in setaddr(s0): a(x)
    for r in reads(0, FB[0]): a(r)
    if "start" in hooks: hooks["start"]()
    for step in range(14):
        st, ks = s0 + step//2, step & 1
        F = FB[step & 1]; Fn = FB[(step+1) & 1]
        a("s_waitcnt lgkmcnt(0)")
        mm = []
        for tb in range(4):
            for am in range(4):
                d = vr(acc(tb, am), 4)
                mm.append(f"v_mfma_f32_16x16x32_bf16 {d}, {vr(F+4*am,4)}, {vr(F+16+4*tb,4)}, " + ("0" if step == 0 else d))
        fill = []
        if ks == 0:
            fill = reads(1, Fn)
            if step < 12: fill += setaddr(st+1)
        else:
            nb = st+1
            if nb <= 11:
                a(mm.pop(0))
                if ("pre", nb) in hooks: hooks[("pre", nb)]()
                a("s_barrier")
                if ("post", nb) in hooks: hooks[("post", nb)]()
            elif ("at", nb) in hooks: hooks[("at", nb)]()
            if step < 13: fill = reads(0, Fn)
        for i, m in enumerate(mm):
            a(m)
            if i < len(fill): a(fill[i])
        for x in fill[len(mm):]: a(x)
def epi(vm, tb, tag):
    Tm = TM + 8*(tb & 1)
    G = [acc(tb,0), acc(tb,0)+2, acc(tb,2), acc(tb,2)+2]
    U = [acc(tb,1), acc(tb,1)+2, acc(tb,3), acc(tb,3)+2]
    for i in range(4): a(f"v_pk_mul_f32 {vr(Tm+2*i,2)}, {vr(G[i],2)}, s[62:63] op_sel_hi:[1,0]")
    for i in range(8): a(f"v_exp_f32 v{Tm+i}, v{Tm+i}")
    for i in range(4): a(f"v_pk_mul_f32 {vr(G[i],2)}, {vr(G[i],2)}, {vr(U[i],2)}")
    for i in range(4): a(f"v_pk_add_f32 {vr(Tm+2*i,2)}, {vr(Tm+2*i,2)}, 1.0 op_sel_hi:[1,0]")
    for i in range(8): a(f"v_rcp_f32 v{Tm+i}, v{Tm+i}")
    for i in range(4): a(f"v_pk_mul_f32 {vr(G[i],2)}, {vr(G[i],2)}, {vr(Tm+2*i,2)}")
    for i in range(4): a(f"v_cvt_pk_bf16_f32 v{acc(tb,1)+i}, v{G[i]}, v{G[i]+1}")
    vm.op(f"global_store_dwordx4 v11, {vr(acc(tb,1),4)}, s[40:41] offset:{tb*1024} sc1", tag)
def pre_poll(base, off):
    a(f"s_load_dword s27, {base}, {off} glc")
def check(lbl, base, off, target, vt, sleep=1):
    a(f"""
s_mov_b32 s59, 0
{lbl}_l:
s_waitcnt lgkmcnt(0)
s_cmp_eq_u32 s27, {target}
s_cbranch_scc1 {lbl}_d
s_add_u32 s59, s59, 1
s_sleep {sleep}
s_cmp_lt_u32 s59, 256
s_cbranch_scc0 {lbl}_v
s_load_dword s27, {base}, {off} glc
s_branch {lbl}_l
{lbl}_v:
v_mov_b32 v{vt}, 0
global_load_dword v{vt}, v{vt}, {base} offset:{off} sc1
s_waitcnt vmcnt(0)
v_readfirstlane_b32 s27, v{vt}
s_cmp_lt_u32 s59, {SPIN}
s_cbranch_scc1 {lbl}_l
{lbl}_d:
""")
def own_line():
    a(f"""
s_lshl_b32 s13, s2, 7
s_add_u32 s13, s13, {FL}
s_add_u32 s28, s40, s13
s_addc_u32 s29, s41, 0
""")
def hsig_addr(v):
    a(f"""
s_lshl_b32 s13, s10, 1
s_and_b32 s58, s13, 3
s_lshl_b32 s58, s58, 3
s_lshr_b32 s13, s13, 2
s_add_u32 s13, s13, s58
s_lshl_b32 s13, s13, 7
s_add_u32 s13, s13, {FL}
v_lshrrev_b32 v{v}, 1, v1
v_lshlrev_b32 v{v}, 12, v{v}
v_and_b32 v{v+1}, 1, v1
v_lshl_add_u32 v{v}, v{v+1}, 10, v{v}
v_add_u32 v{v}, s13, v{v}
""")
def last_of4(lbl, cntoff, vt, body):
    a(f"""
v_mov_b32 v{vt}, {CNT+cntoff}
v_mov_b32 v{vt+1}, 1
s_mov_b64 exec, 1
ds_add_rtn_u32 v{vt+2}, v{vt}, v{vt+1}
s_waitcnt lgkmcnt(0)
v_readfirstlane_b32 s58, v{vt+2}
s_mov_b64 exec, -1
s_cmp_eq_u32 s58, 3
s_cbranch_scc0 {lbl}
""")
    body()

Z = lambda k: 20 + 2*k
Wp = lambda k: 50 + 2*k
E = lambda k: 68 + 2*k
Y_ = {1: 84, 2: 86, 4: 88, 8: 90}
T = lambda k: 92 + 2*k
CV = lambda k: 108 + (k & 7)
FE, FX0, FX1 = 116, 132, 148
PR = 176
vy = VM()
XV = 212
a(f"""
s_lshr_b32 s14, s7, 1
s_lshl_b32 s60, s2, 1
s_add_u32 s60, s60, s14              ; channel
s_lshl_b32 s13, s60, 9
s_and_b32 s14, s7, 1
s_lshl_b32 s14, s14, 7
s_add_u32 s13, s13, s14
s_lshr_b32 s14, s3, 2
s_lshl_b32 s14, s14, 8
s_add_u32 s13, s13, s14
v_lshl_add_u32 v8, v1, 1, s13
s_lshl_b32 s14, s60, 1
v_mov_b32 v9, s14
""")
P7 = [17, 11, 12, 216, 217, 6, 16]
for r in P7: a(f"v_mov_b32 v{r}, 0")
a(f"""
v_xor_b32 v23, v22, v21
v_xor_b32 v24, 4, v23
s_lshl_b32 s13, s7, 5
v_add_u32 v25, s13, v20
v_mul_u32_u24 v25, 896, v25
v_lshl_add_u32 v{XV}, v23, 4, v25
v_lshl_add_u32 v{XV+1}, v24, 4, v25
v_add_u32 v{XV+1}, 6144, v{XV+1}
v_add_u32 v{XV+2}, 12288, v{XV}
v_add_u32 v{XV+3}, 12288, v{XV+1}
s_lshl_b32 s14, s7, 12
s_lshl_b32 s56, s42, 7
s_mul_i32 s57, s42, 229376
s_mul_i32 s13, s10, 114688
s_mov_b32 s46, 114688
s_mov_b32 s47, 0x20000
s_mul_i32 s63, s3, 4608              ; scratch base
s_waitcnt lgkmcnt(0)
""")
stamp(1)
a("global_load_short_d16_hi v16, v9, s[30:31]")
for r, p in zip(P7[:6], range(18, 30, 2)):
    a(f"global_load_short_d16_hi v{r}, v8, s[{p}:{p+1}] {OPT['ntp']}")
a("""
s_mov_b32 s48, s32
s_mov_b32 s49, s33
s_mov_b32 s52, s34
s_mov_b32 s53, s35
s_add_u32 s44, s16, s13
s_addc_u32 s45, s17, 0
s_cmp_lt_u32 s3, 4
s_cbranch_scc1 k_x0
""")
dmaw(vy, 0); dmax(vy, 0)
a("""
s_waitcnt vmcnt(8)
s_branch k_kg
k_x0:
""")
for r in range(4): a(f"v_mov_b32 v{KA+r}, 0")
a(f"""
s_mul_i32 s13, s2, 896
s_add_u32 s13, s13, {FL}
v_min_u32 v13, 880, v10
v_add_u32 v13, s13, v13
s_lshl_b32 s13, s7, 8
s_add_u32 s61, s2, s13
s_load_dwordx2 s[4:5], s[0:1], 64
s_add_u32 s57, s42, 1
s_cmp_eq_u32 s57, 7
s_cselect_b32 s57, 0, s57
s_lshl_b32 s56, s57, 7
s_mul_i32 s57, s57, 229376
s_cmp_lt_u32 s61, 32
s_cbranch_scc0 k_x1
global_store_dwordx4 v13, {vr(KA,4)}, s[40:41] sc1
v_mov_b32 v7, 1
s_waitcnt vmcnt(0)
s_mov_b64 exec, 1
global_atomic_add v{KA}, v7, s[98:99] sc1
s_mov_b64 exec, -1
s_branch k_x2
k_x1:
s_waitcnt vmcnt(0)
k_x2:
s_waitcnt lgkmcnt(0)
k_kg:
""")
a.reset()
stamp(2)
a(f"""
s_mov_b32 m0, s63
v_mul_f32 v16, {fbits(LOG2E)}, v16
v_exp_f32 v16, v16
v_and_b32 v18, 15, v1
v_mul_u32_u24 v18, 288, v18
v_and_b32 v19, 48, v1
v_add3_u32 v18, v18, v19, s63
v_add_u32 v19, s63, v10
v_cvt_pk_bf16_f32 v16, v16, v16
v_and_b32 v16, 0xffff0000, v16
v_mul_f32 v8, {fbits(LOG2E)}, v16
v_mul_f32 v9, 0.15915494, v16
v_mul_f32 v17, v17, v8
v_mul_f32 v11, v11, v9
v_mul_f32 v12, v12, v16
v_mul_f32 v216, v216, v16
v_mul_f32 v{E(0)}, v217, v12
v_mul_f32 v{E(0)+1}, v217, v216
v_fma_f32 v{E(0)}, -v6, v216, v{E(0)}
v_fma_f32 v{E(0)+1}, -v6, v12, -v{E(0)+1}
""")
ydn = [0]
def ydma(fn):
    ydn[0] += 1
    a(f"s_cmp_lt_u32 s3, 4\ns_cbranch_scc1 k_yd{ydn[0]}")
    fn()
    a(f"s_mov_b32 m0, s63\nk_yd{ydn[0]}:")
anc = [(Y_[1], 16.0, True), (Z(1), 1.0, False), (Wp(1), 256.0, False)]
for n, (d, p, cj) in enumerate(anc):
    if p != 1.0: a(f"v_mul_f32 v{T(n)}, {fbits(p)}, v17\nv_mul_f32 v{T(n)+1}, {fbits(p)}, v11")
for n, (d, p, cj) in enumerate(anc):
    if p == 1.0: a(f"v_exp_f32 v{T(n)}, v17\nv_fract_f32 v{T(n)+1}, v11")
    else: a(f"v_exp_f32 v{T(n)}, v{T(n)}\nv_fract_f32 v{T(n)+1}, v{T(n)+1}")
for n, (d, p, cj) in enumerate(anc):
    a(f"v_cos_f32 v{d}, v{T(n)+1}\nv_sin_f32 v{d+1}, v{T(n)+1}")
for n, (d, p, cj) in enumerate(anc):
    a(f"v_pk_mul_f32 {vr(d,2)}, {vr(d,2)}, {vr(T(n),2)} op_sel_hi:[1,0]" + (" neg_hi:[1,0]" if cj else ""))
cnt = [0]
def puts(lst):
    cs = []
    for row, src in lst:
        c = CV(cnt[0]); cnt[0] += 1; cs.append(c)
        if src is None: a(f"v_mov_b32 v{c}, 0x3f80")
        else: a(f"v_cvt_pk_bf16_f32 v{c}, v{src}, v{src+1}")
    for (row, src), c in zip(lst, cs):
        a(f"ds_write_addtid_b32 v{c} offset:{row*288}")
def putl(lst):
    for i in range(0, len(lst), 4): puts(lst[i:i+4])
def frags(F):
    for s in range(4): a(f"ds_read_b128 {vr(F+4*s,4)}, v18 offset:{s*64}")
def mf(tau, F):
    for s in range(4):
        a(f"v_mfma_f32_16x16x32_bf16 {vr(KA+4*tau,4)}, {vr(F+4*s,4)}, {vr(FE+4*s,4)}, " + ("0" if s == 0 else vr(KA+4*tau,4)))
Y = Y_
cmuls([(Y[2], Y[1], Y[1]), (E(1), E(0), Y[1]), (Z(2), Z(1), Z(1)), (Wp(2), Wp(1), Wp(1))])
cmuls([(Y[4], Y[2], Y[2]), (E(2), E(0), Y[2]), (E(3), E(1), Y[2]), (Z(3), Z(2), Z(1)), (Z(4), Z(2), Z(2)), (Wp(3), Wp(2), Wp(1)), (Wp(4), Wp(2), Wp(2))])
putl([(i, E(i)) for i in range(4)])
cmuls([(Y[8], Y[4], Y[4])] + [(E(4+i), E(i), Y[4]) for i in range(4)])
putl([(i, E(i)) for i in range(4, 8)])
cmuls([(T(i), E(i), Y[8]) for i in range(4)])
putl([(8+i, T(i)) for i in range(4)])
cmuls([(T(i), E(i), Y[8]) for i in range(4, 8)])
putl([(8+i, T(i)) for i in range(4, 8)])
frags(FE)
putl([(0, None)] + [(i, Z(i)) for i in range(1, 4)])
cmuls([(Z(5), Z(4), Z(1)), (Z(6), Z(4), Z(2)), (Z(7), Z(4), Z(3)), (Z(8), Z(4), Z(4))])
putl([(i, Z(i)) for i in range(4, 8)])
cmuls([(Z(8+i), Z(8), Z(i)) for i in range(1, 4)])
putl([(i, Z(i)) for i in range(8, 12)])
cmuls([(Z(8+i), Z(8), Z(i)) for i in range(4, 8)])
putl([(i, Z(i)) for i in range(12, 16)])
frags(FX0)
cmuls([(T(r), Wp(1), Z(2*r)) for r in range(1, 4)])
putl([(0, Wp(1))] + [(r, T(r)) for r in range(1, 4)])
cmuls([(T(r), Wp(1), Z(2*r)) for r in range(4, 8)])
putl([(r, T(r)) for r in range(4, 8)])
cmuls([(T(j-1), Wp(2), Z(4*j)) for j in (1, 2, 3)])
a("s_waitcnt lgkmcnt(8)")
mf(0, FX0)
putl([(8, Wp(2))] + [(8+j, T(j-1)) for j in (1, 2, 3)])
cmuls([(T(2+j), Wp(3), Z(4*j)) for j in (1, 2, 3)])
putl([(12, Wp(3))] + [(12+j, T(2+j)) for j in (1, 2, 3)])
frags(FX1)
cmuls([(Wp(5), Wp(4), Wp(1)), (Wp(6), Wp(4), Wp(2)), (Wp(7), Wp(4), Wp(3)), (Wp(8), Wp(4), Wp(4))])
putl([(2*h, Wp(4+h)) for h in range(5)])
cmuls([(T(h), Wp(4+h), Z(8)) for h in range(4)])
putl([(2*h+1, T(h)) for h in range(4)])
frags(FX0)
a("s_waitcnt lgkmcnt(13)")
mf(1, FX1)
pass_addrs()
a("s_waitcnt lgkmcnt(0)")
mf(2, FX0)
a("""
v_lshrrev_b32 v20, 3, v1
v_lshrrev_b32 v21, 4, v1
v_and_b32 v22, 7, v1
s_xor_b32 s13, s7, 1
s_mul_i32 s13, s13, 4608
v_add_u32 v13, s13, v10
""")
for t in range(3): a(f"ds_write_b128 v19, {vr(KA+4*t,4)} offset:{t*1024}")
a("""
s_cmp_ge_u32 s3, 4
s_cbranch_scc1 k_y
""")
vx = VM()
stamp(3)
dmaw(vx, 1); dmax(vx, 1)
a("s_mov_b32 s26, s57")
dmaw(vx, 2); dmax(vx, 2); dmax(vx, 3)
a("s_mov_b32 s57, s26")
h_addr(0)
own_line()
a("v_mov_b32 v218, v19\ns_waitcnt lgkmcnt(0)")
stamp(1)
a("s_barrier")
stamp(4)
def x_start():
    for t in range(3): a(f"ds_read_b128 {vr(176+4*t,4)}, v13 offset:{t*1024}")
    for t in range(3): a(f"ds_read_b128 {vr(188+4*t,4)}, v13 offset:{4*4608+t*1024}")
    for t in range(3): a(f"ds_read_b128 {vr(200+4*t,4)}, v218 offset:{4*4608+t*1024}")
gpass(0, {"start": x_start, ("pre", 1): lambda: vx.wait("X1"), ("pre", 2): lambda: vx.wait("X2"), ("pre", 3): lambda: vx.wait("X3"), ("post", 4): lambda: stamp(5), ("post", 7): lambda: stamp(6)})
dmaw(vx, 9)
epi(vx, 0, "st")
a("s_barrier")
dmaw(vx, 10); dmaw(vx, 11)
epi(vx, 1, "st")
vx.wait("W9")
a("s_barrier")
dmaw(vx, 12); dmaw(vx, 13)
pre_poll("s[28:29]", 0)
epi(vx, 2, "st")
a(f"""
s_lshr_b32 s13, s7, 1
s_mul_i32 s14, s13, {CS[1]-CS[0]}
s_add_u32 s14, s14, {CS[0]}
s_and_b32 s61, s7, 1                 ; parity
s_mul_i32 s13, s60, {UTP}
s_lshl_b32 s24, s61, 11
s_add_u32 s13, s13, s24
s_add_u32 s13, s13, {UT}
v_add_u32 v16, s13, v10
s_lshl_b32 s13, s60, 1
v_mov_b32 v18, s13
v_mov_b32 v19, 0
""")
vx.wait("W10")
a("s_barrier")
a(f"""
v_mov_b32 v40, 0
v_mov_b32 v41, 0
v_mov_b32 v42, 0
v_mov_b32 v43, 0
v_mov_b32 v50, {CNT}
ds_write_b128 v50, v[40:43]
ds_write_b64 v50, v[40:41] offset:16
""")
epi(vx, 3, "st3")
vx.wait("W13", extra=" lgkmcnt(0)")
stamp(7)
a("s_barrier")
stamp(8)
check("k_c1", "s[28:29]", 0, 32, 13)
vx.op("global_load_dwordx4 v[32:35], v16, s[40:41] sc1", "u")
vx.op("global_load_dwordx4 v[36:39], v16, s[40:41] offset:1024 sc1", "u")
vx.op("global_load_short_d16_hi v19, v18, s[4:5]", "u")
hsig_addr(26)
vx.wait("st3")
def sig2():
    a("s_mov_b64 exec, 0x3fff\nglobal_atomic_add v26, v29, s[40:41] offset:4 sc1\ns_mov_b64 exec, -1")
last_of4("k_s2", 0, 28, sig2)
a.label("k_s2")
for i in range(0, 12, 2): a(f"v_pk_add_f32 {vr(KA+i,2)}, {vr(KA+i,2)}, {vr(176+i,2)}")
for i in range(0, 12, 2): a(f"v_pk_add_f32 {vr(188+i,2)}, {vr(188+i,2)}, {vr(200+i,2)}")
for i in range(0, 12, 2): a(f"v_pk_add_f32 {vr(KA+i,2)}, {vr(KA+i,2)}, {vr(188+i,2)}")
for i in range(12): a(f"v_cvt_pk_bf16_f32 v{KA+i}, v{KA+i}, v{KA+i}")
a(f"""
s_add_u32 s13, s14, s24
v_add_u32 v17, s13, v10
v_and_b32 v20, 15, v1                ; c
v_lshrrev_b32 v21, 4, v1             ; g
v_lshlrev_b32 v22, 2, v21
v_lshlrev_b32 v23, 6, v21
v_lshl_add_u32 v24, v20, 4, v22
v_lshl_add_u32 v25, v20, 3, v22
v_lshl_add_u32 v26, v20, 2, v23
v_cmp_gt_u32 vcc, 2, v21
v_cndmask_b32 v25, v26, v25, vcc
v_lshl_add_u32 v26, v20, 1, v23
v_lshl_add_u32 v24, v24, 2, s14
v_lshl_add_u32 v25, v25, 2, s14
v_lshl_add_u32 v26, v26, 2, s14
ds_write_b128 v24, {vr(KA,4)} offset:{TABO}
ds_write_b128 v25, {vr(KA+4,4)} offset:{TABO+1024}
ds_write_b64 v26, {vr(KA+8,2)} offset:{TABO+2048}
ds_write_b64 v26, {vr(KA+10,2)} offset:{TABO+2048+128}
v_min_u32 v48, 43, v1
v_lshlrev_b32 v48, 4, v48
v_add_u32 v49, 8256, v48
v_add_u32 v50, {4096-36*16}, v48
v_cmp_gt_u32 vcc, 36, v1
v_cndmask_b32 v49, v50, v49, vcc
v_add_u32 v50, {12928-40*16}, v48
v_cmp_gt_u32 vcc, 40, v1
v_cndmask_b32 v49, v50, v49, vcc
v_add_u32 v49, s14, v49
ds_write_b128 v49, v[40:43]
v_add_u32 v27, s14, v10
v_lshl_add_u32 v28, v1, 3, s14
v_lshl_add_u32 v29, v1, 2, s14
ds_read_b128 v[52:55], v27 offset:{TABO}
ds_read_b32 v51, v27 offset:{TABO-4}
ds_read_b64 v[56:57], v28 offset:{TABO+1024}
ds_read_b32 v58, v28 offset:{TABO+1032}
ds_read_b32 v59, v28 offset:{TABO+1020}
ds_read_b64 v[60:61], v28 offset:{TABO+1536}
ds_read_b32 v62, v28 offset:{TABO+1544}
v_add_u32 v29, {TABO+2048}, v29
ds_read2_b32 v[64:65], v29 offset0:0 offset1:1
ds_read2_b32 v[66:67], v29 offset0:64 offset1:65
s_mov_b32 s20, 0xffff
v_and_b32 v44, 1, v1
v_cmp_eq_u32 vcc, 0, v44
v_mov_b32 v45, s20
v_cndmask_b32 v46, -1, v45, vcc      ; maskE
v_cndmask_b32 v47, v45, v40, vcc     ; maskO
s_mul_i32 s13, s61, 4160
s_add_u32 s13, s13, s14
v_lshlrev_b32 v30, 3, v1
v_sub_u32 v30, s13, v30
v_sub_u32 v31, s13, v10
v_or_b32 v24, 1, v20
v_lshlrev_b32 v25, 3, v21
v_sub_u32 v24, v25, v24
v_lshlrev_b32 v24, 1, v24
v_mul_u32_u24 v25, 4160, v44
v_sub_u32 v24, v24, v25
v_add_u32 v24, s14, v24
v_add_u32 v76, {4160+2*2031-512}, v24
v_add_u32 v77, {4160+2*2031-512*3}, v24
v_add_u32 v78, {4160+2*2031-512*5}, v24
v_add_u32 v79, {4160+2*2031-512*7}, v24
v_lshlrev_b32 v22, 5, v20
v_lshl_add_u32 v23, v21, 3, v22
v_lshl_add_u32 v22, v21, 4, v22
v_add_u32 v22, s14, v22
v_add_u32 v22, {8832-32}, v22
s_waitcnt lgkmcnt(0)
s_cmp_eq_u32 s61, 0
s_cbranch_scc0 k_eo
v_bfi_b32 v68, s20, v55, v54
v_bfi_b32 v69, s20, v53, v52
v_bfi_b32 v70, s20, v58, v57
v_mov_b32 v71, v56
v_mov_b32 v72, v62
v_mov_b32 v73, v61
v_bfi_b32 v74, s20, v61, v60
v_mov_b32 v75, v60
v_bfi_b32 v81, v46, v65, v64
v_bfi_b32 v85, v46, v67, v66
s_branch k_ew
k_eo:
v_cmp_eq_u32 vcc, 0, v1
v_bfi_b32 v68, s20, v54, v53
v_bfi_b32 v69, s20, v52, v51
v_bfi_b32 v70, s20, v57, v56
v_bfi_b32 v71, s20, v56, v59
v_cndmask_b32 v71, v56, v71, vcc
v_bfi_b32 v72, s20, v62, v61
v_mov_b32 v73, v61
v_mov_b32 v74, v60
v_mov_b32 v75, v60
v_bfi_b32 v81, v47, v65, v64
v_bfi_b32 v85, v47, v67, v66
k_ew:
v_mov_b32 v80, v65
v_mov_b32 v82, v64
v_mov_b32 v83, v64
v_mov_b32 v84, v67
v_mov_b32 v86, v66
v_mov_b32 v87, v66
ds_write_b64 v30, v[68:69] offset:4088
ds_write_b64 v30, v[70:71] offset:{4088-512}
ds_write_b128 v31, v[72:75] offset:{4080-1024}
ds_write_b128 v31, v[80:83] offset:{4080-2048}
ds_write_b128 v31, v[84:87] offset:{4080-3072}
""")
CA = 48
for r in range(CA, CA+16): a(f"v_mov_b32 v{r}, 0")
vx.wait("u")
a(f"""
ds_write_b128 v17, v[32:35] offset:8832
ds_write_b128 v17, v[36:39] offset:{8832+1024}
s_and_b32 s13, s7, 2
s_lshl_b32 s13, s13, 1
s_add_u32 s13, s13, {CNT+16}
v_mov_b32 v28, s13
v_mov_b32 v29, 1
s_mov_b64 exec, 1
ds_add_u32 v28, v29
s_mov_b64 exec, -1
s_mov_b32 s59, {SPIN}
k_ps:
ds_read_b32 v30, v28
s_waitcnt lgkmcnt(0)
v_readfirstlane_b32 s58, v30
s_cmp_eq_u32 s58, 2
s_cbranch_scc1 k_psd
s_sub_u32 s59, s59, 1
s_cmp_lg_u32 s59, 0
s_cbranch_scc1 k_ps
k_psd:
""")
stamp(9)
if OPT["cprio"]: a(f"s_setprio {OPT['cprio']}")
a("""
s_cmp_eq_u32 s61, 0
s_cbranch_scc0 k_set1
""")
FBUF = [88, 152]
def creads(F, amax):
    out = []
    for i in range(amax+1):
        o = 0 if (i & 1) else 128
        out.append(f"ds_read_b128 {vr(F+32+4*i,4)}, v22 offset:{512*i}")
        out.append(f"ds_read2_b32 {vr(F+4*i,2)}, v{76+(i>>1)} offset0:{o} offset1:{o+1}")
        out.append(f"ds_read2_b32 {vr(F+4*i+2,2)}, v{76+(i>>1)} offset0:{o+2} offset1:{o+3}")
    out += [f"v_subrev_u32 v{r}, 64, v{r}" for r in (76, 77, 78, 79, 22)]
    return out
for sidx, cbs in enumerate(((0, 3, 4, 7), (1, 2, 5, 6))):
    if sidx == 1:
        a.label("k_set1"); a.reset()
    amax = max(cbs)
    for x in creads(FBUF[0], amax): a(x)
    a("s_mov_b32 s21, 4")
    a.label(f"k_cl{sidx}")
    for half in range(2):
        F = FBUF[half]
        a("s_waitcnt lgkmcnt(0)")
        lists = [[(n, aa, cb-aa) for aa in range(cb+1)] for n, cb in enumerate(cbs)]
        order = []
        while any(lists):
            for L in sorted(lists, key=lambda L: -len(L)):
                if L: order.append(L.pop(0))
        fill = creads(FBUF[half ^ 1], amax)
        for k, (n, aa, bb) in enumerate(order):
            d = vr(CA+4*n, 4)
            a(f"v_mfma_f32_16x16x32_bf16 {d}, {vr(F+4*aa,4)}, {vr(F+32+4*bb,4)}, {d}")
            for _ in range(2):
                if fill: a(fill.pop(0))
        for x in fill: a(x)
    a(f"""
s_sub_u32 s21, s21, 1
s_cmp_lg_u32 s21, 0
s_cbranch_scc1 k_cl{sidx}
v_add_u32 v26, s14, v23
""")
    stamp(10)
    for n, cb in enumerate(cbs): a(f"ds_read_b64 {vr(32+2*n,2)}, v26 offset:{8832+512*cb}")
    a(f"""
s_mul_i32 s15, s60, {UTP}
s_add_u32 s15, s15, {AT}
v_add_u32 v27, s15, v23
s_waitcnt lgkmcnt(0)
""")
    for n, cb in enumerate(cbs):
        R = CA+4*n
        a(f"""
v_lshlrev_b32 v40, 16, v{32+2*n}
v_and_b32 v41, 0xffff0000, v{32+2*n}
v_lshlrev_b32 v42, 16, v{33+2*n}
v_and_b32 v43, 0xffff0000, v{33+2*n}
v_fmac_f32 v{R}, v40, v19
v_fmac_f32 v{R+1}, v41, v19
v_fmac_f32 v{R+2}, v42, v19
v_fmac_f32 v{R+3}, v43, v19
v_cvt_pk_bf16_f32 v{R}, v{R}, v{R+1}
v_cvt_pk_bf16_f32 v{R+1}, v{R+2}, v{R+3}
global_store_dwordx2 v27, {vr(R,2)}, s[40:41] offset:{512*cb} sc1
""")
    if sidx == 0: a("s_branch k_pub")
a.label("k_pub"); a.reset()
a(f"""
s_setprio 0
s_lshr_b32 s15, s2, 5
s_lshl_b32 s15, s15, 12
s_add_u32 s15, s15, {FL}
v_lshl_add_u32 v26, v1, 7, s15
s_waitcnt vmcnt(0)
""")
stamp(11)
def sig4():
    a(f"""
s_mov_b32 exec_hi, 0
global_atomic_add v26, v29, s[40:41] offset:12 sc1
s_mov_b64 exec, -1
v_lshrrev_b32 v14, 3, v1
v_and_b32 v15, 7, v1
v_lshlrev_b32 v15, 4, v15
v_mul_u32_u24 v16, {UTP}, v14
v_mul_u32_u24 v17, {ATPI}, v14
s_mul_i32 s15, s12, {64*UTP}
s_and_b32 s13, s2, 7
s_lshl_b32 s13, s13, 2
s_add_u32 s13, s13, s8
s_lshl_b32 s13, s13, 7
s_add_u32 s15, s15, s13
s_add_u32 s15, s15, {AT}
v_add3_u32 v16, v16, v15, s15
v_add_u32 v17, v17, v15
v_add_u32 v17, {CS[0]}, v17
s_mov_b32 s27, 0
""")
    check("k_c4", "s[28:29]", 12, 32, 13, sleep=2)
    stamp(12)
    for i in range(8):
        a(f"global_load_dwordx4 {vr(32+4*i,4)}, v16, s[40:41] sc1")
        if i < 7: a(f"v_add_u32 v16, {8*UTP}, v16")
    for i in range(8):
        a(f"s_waitcnt vmcnt({7-i})")
        a(f"ds_write_b128 v17, {vr(32+4*i,4)} offset:{8*i*ATPI}")
last_of4("k_final", 12, 28, sig4)
a("s_branch k_final")

a.label("k_spare"); a.reset()
if OPT["spare"]:
    a(f"""
s_sub_u32 s13, s2, 224
s_lshl_b32 s13, s13, 3
s_add_u32 s13, s13, s3               ; u 0..255
v_min_u32 v5, 48, v1
s_lshr_b32 s14, s13, 1
s_mul_i32 s14, s14, 49
v_add_lshl_u32 v2, v5, s14, 8
s_mul_i32 s14, s13, 49
v_add_lshl_u32 v3, v5, s14, 7
s_and_b32 s13, s13, 1
s_cmp_eq_u32 s13, 0
s_waitcnt lgkmcnt(0)
s_cselect_b32 s44, s32, s34
s_cselect_b32 s45, s33, s35
""")
    if OPT["spare"] == 3: a("global_load_dword v0, v3, s[16:17]\ns_waitcnt vmcnt(0)")
    a("global_load_dword v0, v2, s[44:45]")
    if OPT["spare"] == 2: a("s_waitcnt vmcnt(0)")
    a("global_load_dword v0, v2, s[44:45] offset:128")
    a("s_waitcnt vmcnt(0)")
    stamp(1)
    a("global_load_dword v0, v3, s[36:37]")
    stamps_out(15)
a("s_endpgm")

a.label("k_y"); a.reset()
stamp(1)
a(f"""
v_and_b32 v48, 3, v1
v_lshrrev_b32 v49, 5, v1
v_lshl_add_u32 v48, v49, 2, v48
v_bfe_u32 v49, v1, 2, 2
v_lshl_add_u32 v48, v48, 3, v49      ; t (hh=0)
v_bfe_u32 v49, v48, 1, 3
s_lshl_b32 s13, s7, 1
v_xor_b32 v49, s13, v49
v_lshlrev_b32 v48, 7, v48
v_lshl_add_u32 v48, v49, 4, v48
v_bfe_u32 v49, v1, 4, 1
v_lshl_add_u32 v48, v49, 3, v48
s_lshl_b32 s13, s9, 13
s_add_u32 s13, s13, {XA[0]}
v_add_u32 v64, s13, v48
v_xor_b32 v65, 32, v64
v_xor_b32 v66, 16, v64
v_xor_b32 v67, 48, v64
v_and_b32 v49, 4, v1
v_lshlrev_b32 v49, 3, v49
v_and_b32 v50, 32, v1
v_lshrrev_b32 v50, 1, v50
v_and_b32 v51, 3, v1
v_lshlrev_b32 v51, 2, v51
v_add3_u32 v49, v49, v50, v51
v_bfe_u32 v50, v1, 3, 2
v_add_lshl_u32 v49, v49, v50, 2
s_lshl_b32 s13, s42, 6
s_lshl_b32 s58, s7, 4
s_add_u32 s13, s13, s58
v_add_u32 v50, s13, v20
v_mul_u32_u24 v50, {UTP}, v50
v_lshl_add_u32 v50, v22, 4, v50
s_lshl_b32 s13, s10, 8
s_lshl_b32 s58, s9, 7
s_add_u32 s13, s13, s58
s_add_u32 s13, s13, {UT}
v_add_u32 v50, s13, v50
v_add_u32 v51, {8*UTP}, v50
""")
a("""
; advance DMA state: W -> stage 3, x -> stage 4
s_add_u32 s57, s42, 3
s_sub_u32 s13, s57, 7
s_cmp_ge_u32 s57, 7
s_cselect_b32 s57, s13, s57
s_add_u32 s56, s57, 1
s_cmp_eq_u32 s56, 7
s_cselect_b32 s56, 0, s56
s_lshl_b32 s56, s56, 7
s_mul_i32 s57, s57, 229376
""")
vy.wait("X0", extra=" lgkmcnt(0)")
stamp(3)
a("s_barrier")
stamp(4)
a("""
ds_read_b64_tr_b16 v[68:69], v64
ds_read_b64_tr_b16 v[70:71], v65 offset:512
ds_read_b64_tr_b16 v[72:73], v66
ds_read_b64_tr_b16 v[74:75], v67 offset:512
s_waitcnt lgkmcnt(0)
""")
for i in range(8): a(f"ds_bpermute_b32 v{76+i}, v49, v{68+i}")
a(f"""
; gate: rows 8*(((xcd&1)*2+fbl)*4+q) + (l>>3), valid for fbl<2
s_lshl_b32 s13, s9, 1
s_add_u32 s13, s13, s12
s_lshl_b32 s13, s13, 2
s_add_u32 s13, s13, s7
s_and_b32 s13, s13, 15
s_lshl_b32 s13, s13, 3
v_add_u32 v54, s13, v20
v_bfe_u32 v55, v54, 1, 3
v_xor_b32 v55, v55, v22
v_lshlrev_b32 v55, 4, v55
s_lshl_b32 s13, s13, 7
v_add_u32 v56, s13, v10
v_add_u32 v57, 65536, v56
s_mov_b32 s20, s38
s_mov_b32 s21, s39
s_mov_b32 s22, 896
s_mov_b32 s23, 0x20000
s_lshl_b32 s13, s42, 12
s_add_u32 s13, s13, {FL}
v_lshl_add_u32 v58, v1, 7, s13
v_mov_b32 v59, 1
s_waitcnt lgkmcnt(0)
""")
vy.op("global_store_dwordx4 v50, v[76:79], s[40:41] sc1", "ut")
vy.op("global_store_dwordx4 v51, v[80:83], s[40:41] sc1", "ut")
a("v_mov_b32 v52, 0")
vy.op("global_load_dword v53, v52, s[98:99] sc1", "ut")
a("s_barrier")
dmaw(vy, 3); dmax(vy, 4)
h_addr(1)
own_line()
vy.wait("ut")
a("s_barrier")
a("""
s_cmp_eq_u32 s7, 0
s_cbranch_scc0 k_y1
""")
a(f"""
s_mov_b32 s59, {SPIN}
k_c0_l:
v_readfirstlane_b32 s58, v53
s_cmp_eq_u32 s58, 32
s_cbranch_scc1 k_c0_d
s_sub_u32 s59, s59, 1
s_cmp_eq_u32 s59, 0
s_cbranch_scc1 k_c0_d
s_sleep 4
global_load_dword v53, v52, s[98:99] sc1
s_waitcnt vmcnt(0)
s_branch k_c0_l
k_c0_d:
""")
a("""
s_mov_b32 exec_hi, 0
global_atomic_add v58, v59, s[40:41] sc1
s_mov_b64 exec, -1
k_y1:
""")
dmaw(vy, 4); dmax(vy, 5)
vy.wait("W3")
a("s_barrier")
dmaw(vy, 5); dmax(vy, 6)
a("s_lshl_b32 s60, s42, 7")
for s in range(7):
    vy.op(f"buffer_load_dwordx4 {vr(96+4*s,4)}, v55, s[20:23], s60 offen", "gw")
    if s < 6: a("s_add_u32 s60, s60, 128\ns_cmp_eq_u32 s60, 896\ns_cselect_b32 s60, 0, s60")
vy.wait("W4")
a("s_barrier")
stamp(5)
dmaw(vy, 6)
vy.wait("W5")
a("s_barrier")
dmaw(vy, 7)
def gread(s): a(f"ds_read_b128 {vr(128+4*s,4)}, v{56 if XA[s] < 65536 else 57} offset:{XA[s] % 65536}")
for s in range(6): gread(s)
a("v_mov_b32 v60, 0\nv_mov_b32 v61, 0")
vy.wait("gw", extra=" lgkmcnt(0)")
for s in range(6):
    for q in range(4): a(f"v_dot2c_f32_bf16 v{60+(q&1)}, v{128+4*s+q}, v{96+4*s+q}")
vy.wait("W6")
a("s_barrier")
gread(6)
dmaw(vy, 8)
a("""
s_cmp_lt_u32 s12, 2
s_cbranch_scc0 k_y2
s_waitcnt lgkmcnt(0)
""")
for q in range(4): a(f"v_dot2c_f32_bf16 v{60+(q&1)}, v{152+q}, v{120+q}")
a(f"""
v_add_f32 v60, v60, v61
v_add_f32_dpp v60, v60, v60 quad_perm:[1,0,3,2] row_mask:0xf bank_mask:0xf
v_add_f32_dpp v60, v60, v60 quad_perm:[2,3,0,1] row_mask:0xf bank_mask:0xf
v_add_f32_dpp v60, v60, v60 row_half_mirror row_mask:0xf bank_mask:0xf
v_cvt_pk_bf16_f32 v60, v60, v60
v_and_b32 v60, 0xffff0000, v60
v_mul_f32 v60, {fbits(-LOG2E)}, v60
v_exp_f32 v60, v60
v_add_f32 v60, 1.0, v60
v_rcp_f32 v60, v60
v_cvt_pk_bf16_f32 v60, v60, v60
v_and_b32 v60, 0xffff0000, v60
v_sub_f32 v61, 1.0, v60
v_cvt_pk_bf16_f32 v60, v60, v61
s_lshl_b32 s13, s10, 9
s_add_u32 s13, s13, {GG}
v_lshl_add_u32 v54, v54, 2, s13
global_store_dword v54, v60, s[40:41] sc1
k_y2:
v_mul_u32_u24 v160, 896, v20
v_and_b32 v161, 6, v20
v_xor_b32 v161, v161, v22
v_lshl_add_u32 v160, v161, 4, v160
v_add_u32 v161, 6144, v160
v_add_u32 v162, 12288, v160
v_add_u32 v163, 18432, v160
v_lshrrev_b32 v164, 2, v1
v_lshlrev_b32 v164, 7, v164
v_bfe_u32 v165, v1, 3, 2
v_lshl_add_u32 v164, v165, 5, v164
v_and_b32 v165, 3, v1
v_lshl_add_u32 v164, v165, 3, v164
v_add_u32 v164, s14, v164
v_xor_b32 v165, 32, v164
v_xor_b32 v166, 64, v164
v_xor_b32 v167, 96, v164
s_and_b32 s24, s2, 7
s_lshl_b32 s24, s24, 2
s_add_u32 s24, s24, s8               ; rb64
s_mul_i32 s13, s24, 229376
s_mul_i32 s58, s7, 28672
s_add_u32 s13, s13, s58
s_add_u32 s16, s40, s13
s_addc_u32 s17, s41, 0
s_mov_b32 s18, {114688+28672}
s_mov_b32 s19, 0x20000
s_mov_b32 s20, s36
s_mov_b32 s21, s37
s_mov_b32 s22, 1605632
s_mul_i32 s25, s7, 7
s_lshl_b32 s26, s12, 7               ; cb*128
""")
a(f"s_waitcnt vmcnt({vy.n_for('W7')}) lgkmcnt(0)")
a("s_barrier")
stamp(6)
vg = VM()
def ldw(n):
    p, i = divmod(n, 7)
    a(f"""
s_add_u32 s58, s25, {i}
s_lshr_b32 s59, s58, 1
s_mul_i32 s59, s59, 114688
s_and_b32 s58, s58, 1
s_mul_i32 s58, s58, 28672
s_add_u32 s58, s58, s59
s_add_u32 m0, s14, {RSL[n % 7]}
s_add_u32 s58, s58, s26
""")
    if p: a("s_add_u32 s58, s58, 57344")
    for k in range(4): vg.op(f"buffer_load_dwordx4 v{160+k}, s[20:23], s58 offen offset:{k*1024} lds", f"w{n}")
def y_post11():
    stamp(7)
    if OPT["yprio"]: a(f"s_setprio {OPT['yprio']}")
    ldw(0); ldw(1)
def y_at14():
    a(f"""
v_mov_b32 v168, {CNT+4}
v_mov_b32 v169, 1
s_mov_b64 exec, 1
ds_add_u32 v168, v169
s_mov_b64 exec, -1
""")
gpass(1, {("pre", 8): lambda: a("s_waitcnt vmcnt(0)"), ("post", 11): y_post11, ("at", 14): y_at14})
stamp(8)
epi(vg, 0, "st"); epi(vg, 1, "st")
a("ds_read_b32 v170, v168")
epi(vg, 2, "st")
a(f"""
s_mov_b32 s59, {SPIN}
k_ys:
s_waitcnt lgkmcnt(0)
v_readfirstlane_b32 s58, v170
s_cmp_eq_u32 s58, 4
s_cbranch_scc1 k_ysd
ds_read_b32 v170, v168
s_sub_u32 s59, s59, 1
s_cmp_lg_u32 s59, 0
s_cbranch_scc1 k_ys
k_ysd:
""")
ldw(2); ldw(3)
pre_poll("s[28:29]", 4)
epi(vg, 3, "st3")
stamp(9)
ACC2 = 16; AF = [172, 188]; RING = [80, 96, 112, 204, 220, 236, 144]
hsig_addr(6)
a("""
v_min_u32 v8, 31, v1
v_mul_u32_u24 v8, 896, v8
""")
check("k_c2", "s[28:29]", 4, 14, 13)
stamp(10)
def ldh(n):
    p, i = divmod(n, 7)
    a(f"s_mov_b32 s58, {p*114688+i*4096}")
    for k in range(4): vg.op(f"buffer_load_dwordx4 {vr(RING[n % 7]+4*k,4)}, v10, s[16:19], s58 offen offset:{k*1024} sc1", f"h{n}")
vg.op("buffer_load_dword v0, v8, s[16:19], s26 offen sc1", "t")
ldh(0); ldh(1)
vg.wait("st3")
def sig3():
    a("s_mov_b64 exec, 0x3fff\nglobal_atomic_add v6, v3, s[40:41] offset:8 sc1\ns_mov_b64 exec, -1")
last_of4("k_s3", 8, 2, sig3)
a.label("k_s3")
a(f"""
s_lshl_b32 s13, s24, 8
s_lshl_b32 s58, s7, 6
s_add_u32 s13, s13, s58
s_add_u32 s13, s13, {GG}
v_and_b32 v4, 15, v1
v_lshlrev_b32 v4, 2, v4
v_add_u32 v5, s13, v4
s_add_u32 s58, s58, {GL}
v_add_u32 v4, s58, v4
""")
vg.op("global_load_dword v9, v5, s[40:41] sc1", "g")
ldh(2); ldh(3)
def rda(n):
    F = AF[n & 1]
    out = [f"v_add_u32 v{128+db}, {RSL[n % 7]}, v{164+db}" for db in range(4)]
    return out + [f"ds_read_b64_tr_b16 {vr(F+4*db+2*hh,2)}, v{128+db} offset:{hh*2048}" for db in range(4) for hh in range(2)]
for x in rda(0): a(x)
wi, hi_ = 4, 4
CK = OPT["CK"]
for n in range(14):
    F = AF[n & 1]; S = RING[n % 7]
    if n < 3:
        ldw(wi); wi += 1
        ldh(hi_); hi_ += 1
    if n == CK:
        check("k_c3", "s[28:29]", 8, 14, 13)
        stamp(11)
        a("s_add_u32 s59, s26, 114688")
        vg.op("buffer_load_dword v0, v8, s[16:19], s59 offen sc1", "t")
    if n >= CK:
        while hi_ < min(14, n+7): ldh(hi_); hi_ += 1
    tags = [f"h{n}"] + ([f"w{n+1}"] if n+1 < 14 else [])
    vg.wait(*tags, extra=" lgkmcnt(0)")
    if n == 2: a("ds_write_b32 v4, v9")
    fill = rda(n+1) if n+1 < 14 else []
    if n == CK-1: pre_poll("s[28:29]", 8)
    for db in range(4):
        for tb in range(4):
            d = vr(ACC2+16*db+4*tb, 4)
            a(f"v_mfma_f32_16x16x32_bf16 {d}, {vr(F+4*db,4)}, {vr(S+4*tb,4)}, " + ("0" if n == 0 else d))
            if fill: a(fill.pop(0))
    if wi < 14 and wi <= n+7 and n >= 0 and wi >= 7:
        ldw(wi); wi += 1
stamp(12)
a("""
v_and_b32 v2, 15, v1
v_lshrrev_b32 v3, 4, v1
v_xor_b32 v3, v3, v2
v_lshlrev_b32 v3, 4, v3
v_lshl_add_u32 v2, v2, 8, v3
v_add_u32 v2, s14, v2
""")
for tb in range(4):
    for db in range(4):
        a(f"v_xor_b32 v3, {db*64}, v2")
        a(f"v_add_u32 v3, {RSL[tb]}, v3")
        a(f"ds_write_b128 v3, {vr(ACC2+16*db+4*tb,4)}")

a.label("k_final"); a.reset()
a(f"""
s_lshr_b32 s13, s3, 1                ; tb
s_and_b32 s58, s3, 1
s_lshl_b32 s58, s58, 2
v_and_b32 v2, 15, v1
v_lshrrev_b32 v3, 4, v1
v_add_u32 v3, s58, v3                ; dg
s_mov_b32 s59, {RSL[0]}
s_cmp_eq_u32 s13, 1
s_cselect_b32 s59, {RSL[1]}, s59
s_cmp_eq_u32 s13, 2
s_cselect_b32 s59, {RSL[2]}, s59
s_cmp_eq_u32 s13, 3
s_cselect_b32 s59, {RSL[3]}, s59
v_lshlrev_b32 v5, 1, v3
v_xor_b32 v5, v5, v2
v_lshlrev_b32 v5, 4, v5
v_lshl_add_u32 v5, v2, 8, v5
v_add_u32 v5, s59, v5
v_xor_b32 v6, 16, v5
s_lshl_b32 s13, s13, 4
v_add_u32 v2, s13, v2
v_lshlrev_b32 v7, 2, v2
v_add_u32 v7, {GL}, v7
s_and_b32 s58, s2, 7
s_lshl_b32 s58, s58, 2
s_add_u32 s58, s58, s8
s_lshl_b32 s58, s58, 6
v_add_u32 v4, s58, v2
v_mul_u32_u24 v4, 896, v4
v_lshl_add_u32 v4, v3, 4, v4
s_lshl_b32 s58, s12, 7
v_add_u32 v4, s58, v4
v_bfe_u32 v8, v1, 2, 2
v_lshl_add_u32 v8, v3, 3, v8
v_mul_u32_u24 v8, {ATPI}, v8
v_and_b32 v9, 3, v1
v_lshl_add_u32 v8, v9, 3, v8
s_lshl_b32 s13, s13, 1
s_add_u32 s13, s13, {CS[0]}
v_add_u32 v8, s13, v8
s_waitcnt lgkmcnt(0)
""")
stamp(13)
a("s_barrier")
stamp(14)
for w in range(4):
    a(f"ds_read_b128 {vr(16+8*w,4)}, v5 offset:{w*4096}")
    a(f"ds_read_b128 {vr(20+8*w,4)}, v6 offset:{w*4096}")
a(f"""
ds_read_b64_tr_b16 v[48:49], v8
ds_read_b64_tr_b16 v[50:51], v8 offset:{4*ATPI}
ds_read_b32 v52, v7
s_waitcnt lgkmcnt(7)
""")
for i in range(0, 8, 2): a(f"v_pk_add_f32 {vr(16+i,2)}, {vr(16+i,2)}, {vr(24+i,2)}")
a("s_waitcnt lgkmcnt(3)")
for i in range(0, 8, 2): a(f"v_pk_add_f32 {vr(32+i,2)}, {vr(32+i,2)}, {vr(40+i,2)}")
for i in range(0, 8, 2): a(f"v_pk_add_f32 {vr(16+i,2)}, {vr(16+i,2)}, {vr(32+i,2)}")
a("s_waitcnt lgkmcnt(0)\nv_lshlrev_b32 v54, 16, v52\nv_and_b32 v55, 0xffff0000, v52")
for i in range(4):
    a(f"v_lshlrev_b32 v{24+2*i}, 16, v{48+i}\nv_and_b32 v{25+2*i}, 0xffff0000, v{48+i}")
for i in range(0, 8, 2): a(f"v_pk_mul_f32 {vr(16+i,2)}, {vr(16+i,2)}, v[54:55] op_sel:[0,1] op_sel_hi:[1,1]")
for i in range(0, 8, 2): a(f"v_pk_fma_f32 {vr(16+i,2)}, {vr(24+i,2)}, v[54:55], {vr(16+i,2)} op_sel_hi:[1,0,1]")
for i in range(4): a(f"v_cvt_pk_bf16_f32 v{32+i}, v{16+2*i}, v{17+2*i}")
a("global_store_dwordx4 v4, v[32:35], s[96:97]")
stamps_out(15)
a.label("k_end")
a("s_endpgm")
a.label("code_end")

hdr = open("cdna_kernels/%s.s.ref" % NAME).read().split("; Override launch")[0]
out = hdr + f"; @launch grid=(256,1,1) block=(512,1,1) lds={LDS}\n"
out += '.amdgcn_target "amdgcn-amd-amdhsa--gfx950"\n' + a.text()
out += f""".section .rodata,"a"
.p2align 6
.amdhsa_kernel {KN}
  .amdhsa_next_free_vgpr 256
  .amdhsa_next_free_sgpr 102
  .amdhsa_accum_offset 256
  .amdhsa_group_segment_fixed_size 0
  .amdhsa_kernarg_size 136
  .amdhsa_user_sgpr_count 2
  .amdhsa_user_sgpr_kernarg_segment_ptr 1
  .amdhsa_system_sgpr_workgroup_id_x 1
.end_amdhsa_kernel
"""
open(sys.argv[1], "w").write(out)
print("written", sys.argv[1], "lines", len(a.lines), "nops", a.nops, "wi,hi", wi, hi_)
```

```python
import sys, math, struct
from asm import *

NAME = "gated_mix__ssm_conv_s4__swiglu_ffn__prompt"
KN = NAME + "_kernel"
HP, UT, AT, GG, FL = 0, 0xA00000, 0xE00000, 0x1000000, 0x1010000
UTP = 4224
def fbits(x): return "0x%08x" % struct.unpack("<I", struct.pack("<f", x))[0]
LOG2E = 1.4426950408889634
OPT = dict(ntx="", ntw="", ntp="", stamp=0, CK=6, spare=1, xwd=0, cprio=0, pdelay=2, yprio=2)
for a_ in sys.argv[2:]:
    k, v = a_.split("="); OPT[k] = int(v) if v.lstrip("-").isdigit() else v
a = Asm()
SPIN = 40000

def cmuls(lst):
    for d, x, y in lst:
        assert d != x and d != y
        a(f"v_pk_mul_f32 {vr(d,2)}, {vr(x,2)}, {vr(y,2)} op_sel_hi:[1,0]")
    for d, x, y in lst:
        a(f"v_pk_fma_f32 {vr(d,2)}, {vr(x,2)}, {vr(y,2)}, {vr(d,2)} op_sel:[1,1,0] op_sel_hi:[0,1,1] neg_lo:[1,0,0]")
def stamp(idx):
    if OPT["stamp"]: a(f"{'s_memtime' if OPT['stamp']==2 else 's_memrealtime'} s[{64+2*idx}:{65+2*idx}]")
def stamps_out(idx):
    if not OPT["stamp"]: return
    a("s_waitcnt vmcnt(0)")
    stamp(idx)
    a("s_waitcnt lgkmcnt(0)")
    for i in range(16): a(f"v_writelane_b32 v250, s{64+2*i}, {i}")
    a(f"""s_lshl_b32 s64, s2, 3
s_add_u32 s64, s64, s3
s_lshl_b32 s64, s64, 6
s_add_u32 s64, s64, 0x2000000
v_lshl_add_u32 v251, v1, 2, s64
s_mov_b64 exec, 0xffff
global_store_dword v251, v250, s[40:41]""")
    if OPT.get("dbgout"):
        a(f"""
s_lshl_b32 s65, s2, 3
s_add_u32 s65, s65, s3
s_cmp_eq_u32 s65, {OPT['dbgout']}
s_cbranch_scc0 k_end
v_readlane_b32 s65, v250, 0
v_subrev_u32 v250, s65, v250
v_lshlrev_b32 v251, 2, v1
s_mov_b64 exec, 0xfffe
global_store_dword v251, v250, s[98:99]""")
def stamps_init():
    if OPT["stamp"]:
        for i in range(1,16): a(f"s_mov_b32 s{64+2*i}, 0")
        stamp(0)

class VM:
    def __init__(self): self.q = []
    def op(self, text, tag):
        a(text); self.q.append(tag)
    def n_for(self, *tags):
        idx = max(i for i, t in enumerate(self.q) if t in tags)
        return len(self.q) - 1 - idx
    def wait(self, *tags, extra=""):
        n = self.n_for(*tags); assert n <= 63
        a(f"s_waitcnt vmcnt({n}){extra}")

XA = [98304, 49152, 65536, 81920, 32768, 0, 16384]
WR = [114688, 131072, 147456]
WA = [WR[s % 3] for s in range(10)] + [WR[1], XA[0], WR[2], XA[1]]
CS = [XA[2], WR[0]]
RSL = [XA[3], WR[1], XA[4], XA[5], XA[6], XA[0], XA[1]]
TABO = 12992
CNT = CS[0] + 16064
GL = CS[1] + 16064
ATPI = 144
LDS = 163840

a.raw(f".text\n.globl {KN}\n.p2align 8\n.type {KN},@function\n{KN}:")
a("""
s_cmp_ge_u32 s2, 256
s_cbranch_scc1 k_end
""")
stamps_init()
a("""
s_load_dwordx16 s[16:31], s[0:1], 0
s_load_dwordx8 s[32:39], s[0:1], 80
s_load_dwordx2 s[40:41], s[0:1], 128
s_load_dwordx4 s[96:99], s[0:1], 112
s_getpc_b64 s[4:5]
k_pc:
v_lshrrev_b32 v2, 6, v0
v_and_b32 v1, 63, v0
v_readfirstlane_b32 s3, v2
s_lshr_b32 s6, s2, 3                 ; j
s_and_b32 s8, s6, 3                  ; rbl
; code prefetch into L2: line = rbl*56 + wave*7 + min(lane,6)
s_mul_i32 s7, s8, 7168
v_min_u32 v3, 6, v1
v_mad_u32_u24 v3, v2, 7, v3
v_lshlrev_b32 v3, 7, v3
v_add_u32 v3, s7, v3
v_min_u32 v3, code_end-k_pc-4, v3
global_load_dword v0, v3, s[4:5]
s_and_b32 s10, s2, 6
s_lshl_b32 s10, s10, 1
s_add_u32 s10, s10, s8               ; rb128
s_and_b32 s9, s2, 1
s_mul_i32 s11, s9, 7
s_lshr_b32 s12, s6, 2                ; fbl (7 = spare WG)
s_add_u32 s11, s11, s12              ; fb128
s_and_b32 s7, s3, 3
v_lshlrev_b32 v10, 4, v1
s_lshl_b32 s42, s8, 1
s_add_u32 s42, s42, s12
s_sub_u32 s43, s42, 7
s_cmp_ge_u32 s42, 7
s_cselect_b32 s42, s43, s42          ; rot
v_lshrrev_b32 v20, 3, v1
v_lshrrev_b32 v21, 4, v1
v_and_b32 v22, 7, v1
s_lshl_b32 s13, s7, 4
v_add_u32 v25, s13, v20
v_mul_u32_u24 v25, 3584, v25
s_lshl_b32 s13, s11, 8
v_add_u32 v25, s13, v25
v_and_b32 v26, 1, v21
v_lshlrev_b32 v26, 1, v26
v_xor_b32 v26, v22, v26
v_lshl_add_u32 v14, v26, 4, v25
v_xor_b32 v26, 4, v26
v_lshl_add_u32 v15, v26, 4, v25
v_add_u32 v15, 27648, v15
s_lshl_b32 s15, s7, 11
s_mov_b32 s50, 1605632
s_mov_b32 s51, 0x20000
s_mov_b32 s54, 1605632
s_mov_b32 s55, 0x20000
s_cmp_eq_u32 s12, 7
s_cbranch_scc1 k_spare
""")
def dmaw(vm, st):
    a(f"s_add_u32 m0, s15, {WA[st]}")
    if st >= 7: a("s_add_u32 s58, s57, 128")
    else: a("s_mov_b32 s58, s57")
    for i in range(2): vm.op(f"buffer_load_dwordx4 v{14+i}, s[48:51], s58 offen offset:{i*1024} {OPT['ntw']} lds", f"W{st}")
    a(f"s_add_u32 m0, s15, {WA[st]+8192}\ns_add_u32 s57, s57, 229376")
    for i in range(2): vm.op(f"buffer_load_dwordx4 v{14+i}, s[52:55], s58 offen offset:{i*1024} {OPT['ntw']} lds", f"W{st}")
    a("s_cmp_eq_u32 s57, 1605632\ns_cselect_b32 s57, 0, s57")
def dmax(vm, st):
    a(f"s_add_u32 m0, s14, {XA[st]}\ns_mov_b32 s58, s56")
    for i in range(4): vm.op(f"buffer_load_dwordx4 v{212+i}, s[44:47], s58 offen offset:{i*1024} {OPT['ntx']} lds", f"X{st}")
    a("s_add_u32 s56, s56, 128\ns_cmp_eq_u32 s56, 896\ns_cselect_b32 s56, 0, s56")

FB = [16, 48]; ACC = 80; TM = 144; KA = 164
def pass_addrs():
    a(f"""
v_and_b32 v6, 15, v1
v_lshrrev_b32 v7, 4, v1
v_bfe_u32 v8, v1, 1, 3
v_xor_b32 v7, v7, v8
v_lshlrev_b32 v7, 4, v7
v_lshl_add_u32 v6, v6, 7, v7
s_lshr_b32 s13, s7, 1
s_lshl_b32 s13, s13, 13
v_add_u32 v2, s13, v6
v_xor_b32 v3, 64, v2
v_lshlrev_b32 v6, 6, v1
v_and_b32 v6, 0xc00, v6
v_lshlrev_b32 v7, 5, v1
v_and_b32 v7, 0x180, v7
v_and_b32 v8, 3, v1
v_lshlrev_b32 v8, 3, v8
v_add3_u32 v6, v6, v7, v8
v_bfe_u32 v7, v1, 3, 2
s_and_b32 s13, s7, 1
s_lshl_b32 s13, s13, 1
v_xor_b32 v7, s13, v7
v_lshl_add_u32 v4, v7, 5, v6
v_xor_b32 v5, 32, v4
""")
def h_addr(p):
    a(f"""
s_lshl_b32 s13, s10, 1
s_lshr_b32 s58, s7, 1
s_add_u32 s13, s13, s58
s_mul_i32 s13, s13, 56
s_lshl_b32 s58, s11, 1
s_add_u32 s13, s13, s58
s_and_b32 s58, s7, 1
s_add_u32 s13, s13, s58
s_add_u32 s13, s13, {28*p}
s_lshl_b32 s13, s13, 12
v_add_u32 v11, s13, v10
s_mov_b32 s62, {fbits(-LOG2E)}
""")
def setaddr(st):
    return [f"v_add_u32 v6, {XA[st % 7]}, v2", f"v_add_u32 v7, {XA[st % 7]}, v3", f"v_add_u32 v8, {WA[st]}, v4", f"v_add_u32 v9, {WA[st]}, v5"]
def reads(ks, F):
    A_ = lambda fa, mat, hh: f"ds_read_b64_tr_b16 {vr(F+8*fa+4*mat+2*hh,2)}, v{8+fa} offset:{mat*8192+ks*4096+hh*512}"
    B_ = lambda tb: f"ds_read_b128 {vr(F+16+4*tb,4)}, v{6+ks} offset:{tb*2048}"
    return [A_(fa,mat,hh) for fa in range(2) for mat in range(2) for hh in range(2)] + [B_(tb) for tb in range(4)]
def acc(tb, am): return ACC + 16*tb + 4*am
def gpass(p, hooks):
    s0 = 7*p
    for x in setaddr(s0): a(x)
    for r in reads(0, FB[0]): a(r)
    if "start" in hooks: hooks["start"]()
    for step in range(14):
        st, ks = s0 + step//2, step & 1
        F = FB[step & 1]; Fn = FB[(step+1) & 1]
        a("s_waitcnt lgkmcnt(0)")
        mm = []
        for tb in range(4):
            for am in range(4):
                d = vr(acc(tb, am), 4)
                mm.append(f"v_mfma_f32_16x16x32_bf16 {d}, {vr(F+4*am,4)}, {vr(F+16+4*tb,4)}, " + ("0" if step == 0 else d))
        fill = []
        if ks == 0:
            fill = reads(1, Fn)
            if step < 12: fill += setaddr(st+1)
        else:
            nb = st+1
            if nb <= 11:
                a(mm.pop(0))
                if ("pre", nb) in hooks: hooks[("pre", nb)]()
                a("s_barrier")
                if ("post", nb) in hooks: hooks[("post", nb)]()
            elif ("at", nb) in hooks: hooks[("at", nb)]()
            if step < 13: fill = reads(0, Fn)
        for i, m in enumerate(mm):
            a(m)
            if i < len(fill): a(fill[i])
        for x in fill[len(mm):]: a(x)
def epi(vm, tb, tag):
    Tm = TM + 8*(tb & 1)
    G = [acc(tb,0), acc(tb,0)+2, acc(tb,2), acc(tb,2)+2]
    U = [acc(tb,1), acc(tb,1)+2, acc(tb,3), acc(tb,3)+2]
    for i in range(4): a(f"v_pk_mul_f32 {vr(Tm+2*i,2)}, {vr(G[i],2)}, s[62:63] op_sel_hi:[1,0]")
    for i in range(8): a(f"v_exp_f32 v{Tm+i}, v{Tm+i}")
    for i in range(4): a(f"v_pk_mul_f32 {vr(G[i],2)}, {vr(G[i],2)}, {vr(U[i],2)}")
    for i in range(4): a(f"v_pk_add_f32 {vr(Tm+2*i,2)}, {vr(Tm+2*i,2)}, 1.0 op_sel_hi:[1,0]")
    for i in range(8): a(f"v_rcp_f32 v{Tm+i}, v{Tm+i}")
    for i in range(4): a(f"v_pk_mul_f32 {vr(G[i],2)}, {vr(G[i],2)}, {vr(Tm+2*i,2)}")
    for i in range(4): a(f"v_cvt_pk_bf16_f32 v{acc(tb,1)+i}, v{G[i]}, v{G[i]+1}")
    vm.op(f"global_store_dwordx4 v11, {vr(acc(tb,1),4)}, s[40:41] offset:{tb*1024} sc1", tag)
def pre_poll(base, off):
    a(f"s_load_dword s27, {base}, {off} glc")
def check(lbl, base, off, target, vt, sleep=1):
    a(f"""
s_mov_b32 s59, 0
{lbl}_l:
s_waitcnt lgkmcnt(0)
s_cmp_eq_u32 s27, {target}
s_cbranch_scc1 {lbl}_d
s_add_u32 s59, s59, 1
s_sleep {sleep}
s_cmp_lt_u32 s59, 256
s_cbranch_scc0 {lbl}_v
s_load_dword s27, {base}, {off} glc
s_branch {lbl}_l
{lbl}_v:
v_mov_b32 v{vt}, 0
global_load_dword v{vt}, v{vt}, {base} offset:{off} sc1
s_waitcnt vmcnt(0)
v_readfirstlane_b32 s27, v{vt}
s_cmp_lt_u32 s59, {SPIN}
s_cbranch_scc1 {lbl}_l
{lbl}_d:
""")
def own_line():
    a(f"""
s_lshl_b32 s13, s2, 7
s_add_u32 s13, s13, {FL}
s_add_u32 s28, s40, s13
s_addc_u32 s29, s41, 0
""")
def hsig_addr(v):
    a(f"""
s_lshl_b32 s13, s10, 1
s_and_b32 s58, s13, 3
s_lshl_b32 s58, s58, 3
s_lshr_b32 s13, s13, 2
s_add_u32 s13, s13, s58
s_lshl_b32 s13, s13, 7
s_add_u32 s13, s13, {FL}
v_lshrrev_b32 v{v}, 1, v1
v_lshlrev_b32 v{v}, 12, v{v}
v_and_b32 v{v+1}, 1, v1
v_lshl_add_u32 v{v}, v{v+1}, 10, v{v}
v_add_u32 v{v}, s13, v{v}
""")
def last_of4(lbl, cntoff, vt, body):
    a(f"""
v_mov_b32 v{vt}, {CNT+cntoff}
v_mov_b32 v{vt+1}, 1
s_mov_b64 exec, 1
ds_add_rtn_u32 v{vt+2}, v{vt}, v{vt+1}
s_waitcnt lgkmcnt(0)
v_readfirstlane_b32 s58, v{vt+2}
s_mov_b64 exec, -1
s_cmp_eq_u32 s58, 3
s_cbranch_scc0 {lbl}
""")
    body()

Z = lambda k: 20 + 2*k
Wp = lambda k: 50 + 2*k
E = lambda k: 68 + 2*k
Y_ = {1: 84, 2: 86, 4: 88, 8: 90}
T = lambda k: 92 + 2*k
CV = lambda k: 108 + (k & 7)
FE, FX0, FX1 = 116, 132, 148
PR = 176
vy = VM()
XV = 212
a(f"""
s_lshr_b32 s14, s7, 1
s_lshl_b32 s60, s2, 1
s_add_u32 s60, s60, s14              ; channel
s_lshl_b32 s13, s60, 9
s_and_b32 s14, s7, 1
s_lshl_b32 s14, s14, 7
s_add_u32 s13, s13, s14
s_lshr_b32 s14, s3, 2
s_lshl_b32 s14, s14, 8
s_add_u32 s13, s13, s14
v_lshl_add_u32 v8, v1, 1, s13
s_lshl_b32 s14, s60, 1
v_mov_b32 v9, s14
""")
P7 = [17, 11, 12, 216, 217, 6, 16]
for r in P7: a(f"v_mov_b32 v{r}, 0")
a(f"""
v_xor_b32 v23, v22, v21
v_xor_b32 v24, 4, v23
s_lshl_b32 s13, s7, 5
v_add_u32 v25, s13, v20
v_mul_u32_u24 v25, 896, v25
v_lshl_add_u32 v{XV}, v23, 4, v25
v_lshl_add_u32 v{XV+1}, v24, 4, v25
v_add_u32 v{XV+1}, 6144, v{XV+1}
v_add_u32 v{XV+2}, 12288, v{XV}
v_add_u32 v{XV+3}, 12288, v{XV+1}
s_lshl_b32 s14, s7, 12
s_lshl_b32 s56, s42, 7
s_mul_i32 s57, s42, 229376
s_mul_i32 s13, s10, 114688
s_mov_b32 s46, 114688
s_mov_b32 s47, 0x20000
s_mul_i32 s63, s3, 4608              ; scratch base
s_waitcnt lgkmcnt(0)
""")
stamp(1)
a("global_load_short_d16_hi v16, v9, s[30:31]")
for r, p in zip(P7[:6], range(18, 30, 2)):
    a(f"global_load_short_d16_hi v{r}, v8, s[{p}:{p+1}] {OPT['ntp']}")
a("""
s_mov_b32 s48, s32
s_mov_b32 s49, s33
s_mov_b32 s52, s34
s_mov_b32 s53, s35
s_add_u32 s44, s16, s13
s_addc_u32 s45, s17, 0
s_cmp_lt_u32 s3, 4
s_cbranch_scc1 k_x0
""")
dmaw(vy, 0); dmax(vy, 0)
a("""
s_waitcnt vmcnt(8)
s_branch k_kg
k_x0:
""")
for r in range(4): a(f"v_mov_b32 v{KA+r}, 0")
a(f"""
s_mul_i32 s13, s2, 896
s_add_u32 s13, s13, {FL}
v_min_u32 v13, 880, v10
v_add_u32 v13, s13, v13
s_lshl_b32 s13, s7, 8
s_add_u32 s61, s2, s13
s_load_dwordx2 s[4:5], s[0:1], 64
s_add_u32 s57, s42, 1
s_cmp_eq_u32 s57, 7
s_cselect_b32 s57, 0, s57
s_lshl_b32 s56, s57, 7
s_mul_i32 s57, s57, 229376
s_cmp_lt_u32 s61, 32
s_cbranch_scc0 k_x1
global_store_dwordx4 v13, {vr(KA,4)}, s[40:41] sc1
v_mov_b32 v7, 1
s_waitcnt vmcnt(0)
s_mov_b64 exec, 1
global_atomic_add v{KA}, v7, s[98:99] sc1
s_mov_b64 exec, -1
s_branch k_x2
k_x1:
s_waitcnt vmcnt(0)
k_x2:
s_waitcnt lgkmcnt(0)
k_kg:
""")
a.reset()
stamp(2)
a(f"""
s_mov_b32 m0, s63
v_mul_f32 v16, {fbits(LOG2E)}, v16
v_exp_f32 v16, v16
v_and_b32 v18, 15, v1
v_mul_u32_u24 v18, 288, v18
v_and_b32 v19, 48, v1
v_add3_u32 v18, v18, v19, s63
v_add_u32 v19, s63, v10
v_cvt_pk_bf16_f32 v16, v16, v16
v_and_b32 v16, 0xffff0000, v16
v_mul_f32 v8, {fbits(LOG2E)}, v16
v_mul_f32 v9, 0.15915494, v16
v_mul_f32 v17, v17, v8
v_mul_f32 v11, v11, v9
v_mul_f32 v12, v12, v16
v_mul_f32 v216, v216, v16
v_mul_f32 v{E(0)}, v217, v12
v_mul_f32 v{E(0)+1}, v217, v216
v_fma_f32 v{E(0)}, -v6, v216, v{E(0)}
v_fma_f32 v{E(0)+1}, -v6, v12, -v{E(0)+1}
""")
ydn = [0]
def ydma(fn):
    ydn[0] += 1
    a(f"s_cmp_lt_u32 s3, 4\ns_cbranch_scc1 k_yd{ydn[0]}")
    fn()
    a(f"s_mov_b32 m0, s63\nk_yd{ydn[0]}:")
anc = [(Y_[1], 16.0, True), (Z(1), 1.0, False), (Wp(1), 256.0, False)]
for n, (d, p, cj) in enumerate(anc):
    if p != 1.0: a(f"v_mul_f32 v{T(n)}, {fbits(p)}, v17\nv_mul_f32 v{T(n)+1}, {fbits(p)}, v11")
for n, (d, p, cj) in enumerate(anc):
    if p == 1.0: a(f"v_exp_f32 v{T(n)}, v17\nv_fract_f32 v{T(n)+1}, v11")
    else: a(f"v_exp_f32 v{T(n)}, v{T(n)}\nv_fract_f32 v{T(n)+1}, v{T(n)+1}")
for n, (d, p, cj) in enumerate(anc):
    a(f"v_cos_f32 v{d}, v{T(n)+1}\nv_sin_f32 v{d+1}, v{T(n)+1}")
for n, (d, p, cj) in enumerate(anc):
    a(f"v_pk_mul_f32 {vr(d,2)}, {vr(d,2)}, {vr(T(n),2)} op_sel_hi:[1,0]" + (" neg_hi:[1,0]" if cj else ""))
cnt = [0]
def puts(lst):
    cs = []
    for row, src in lst:
        c = CV(cnt[0]); cnt[0] += 1; cs.append(c)
        if src is None: a(f"v_mov_b32 v{c}, 0x3f80")
        else: a(f"v_cvt_pk_bf16_f32 v{c}, v{src}, v{src+1}")
    for (row, src), c in zip(lst, cs):
        a(f"ds_write_addtid_b32 v{c} offset:{row*288}")
def putl(lst):
    for i in range(0, len(lst), 4): puts(lst[i:i+4])
def frags(F):
    for s in range(4): a(f"ds_read_b128 {vr(F+4*s,4)}, v18 offset:{s*64}")
def mf(tau, F):
    for s in range(4):
        a(f"v_mfma_f32_16x16x32_bf16 {vr(KA+4*tau,4)}, {vr(F+4*s,4)}, {vr(FE+4*s,4)}, " + ("0" if s == 0 else vr(KA+4*tau,4)))
Y = Y_
cmuls([(Y[2], Y[1], Y[1]), (E(1), E(0), Y[1]), (Z(2), Z(1), Z(1)), (Wp(2), Wp(1), Wp(1))])
cmuls([(Y[4], Y[2], Y[2]), (E(2), E(0), Y[2]), (E(3), E(1), Y[2]), (Z(3), Z(2), Z(1)), (Z(4), Z(2), Z(2)), (Wp(3), Wp(2), Wp(1)), (Wp(4), Wp(2), Wp(2))])
putl([(i, E(i)) for i in range(4)])
cmuls([(Y[8], Y[4], Y[4])] + [(E(4+i), E(i), Y[4]) for i in range(4)])
putl([(i, E(i)) for i in range(4, 8)])
cmuls([(T(i), E(i), Y[8]) for i in range(4)])
putl([(8+i, T(i)) for i in range(4)])
cmuls([(T(i), E(i), Y[8]) for i in range(4, 8)])
putl([(8+i, T(i)) for i in range(4, 8)])
frags(FE)
putl([(0, None)] + [(i, Z(i)) for i in range(1, 4)])
cmuls([(Z(5), Z(4), Z(1)), (Z(6), Z(4), Z(2)), (Z(7), Z(4), Z(3)), (Z(8), Z(4), Z(4))])
putl([(i, Z(i)) for i in range(4, 8)])
cmuls([(Z(8+i), Z(8), Z(i)) for i in range(1, 4)])
putl([(i, Z(i)) for i in range(8, 12)])
cmuls([(Z(8+i), Z(8), Z(i)) for i in range(4, 8)])
putl([(i, Z(i)) for i in range(12, 16)])
frags(FX0)
cmuls([(T(r), Wp(1), Z(2*r)) for r in range(1, 4)])
putl([(0, Wp(1))] + [(r, T(r)) for r in range(1, 4)])
cmuls([(T(r), Wp(1), Z(2*r)) for r in range(4, 8)])
putl([(r, T(r)) for r in range(4, 8)])
cmuls([(T(j-1), Wp(2), Z(4*j)) for j in (1, 2, 3)])
a("s_waitcnt lgkmcnt(8)")
mf(0, FX0)
putl([(8, Wp(2))] + [(8+j, T(j-1)) for j in (1, 2, 3)])
cmuls([(T(2+j), Wp(3), Z(4*j)) for j in (1, 2, 3)])
putl([(12, Wp(3))] + [(12+j, T(2+j)) for j in (1, 2, 3)])
frags(FX1)
cmuls([(Wp(5), Wp(4), Wp(1)), (Wp(6), Wp(4), Wp(2)), (Wp(7), Wp(4), Wp(3)), (Wp(8), Wp(4), Wp(4))])
putl([(2*h, Wp(4+h)) for h in range(5)])
cmuls([(T(h), Wp(4+h), Z(8)) for h in range(4)])
putl([(2*h+1, T(h)) for h in range(4)])
frags(FX0)
a("s_waitcnt lgkmcnt(13)")
mf(1, FX1)
pass_addrs()
a("s_waitcnt lgkmcnt(0)")
mf(2, FX0)
a("""
v_lshrrev_b32 v20, 3, v1
v_lshrrev_b32 v21, 4, v1
v_and_b32 v22, 7, v1
s_xor_b32 s13, s7, 1
s_mul_i32 s13, s13, 4608
v_add_u32 v13, s13, v10
""")
for t in range(3): a(f"ds_write_b128 v19, {vr(KA+4*t,4)} offset:{t*1024}")
a("""
s_cmp_ge_u32 s3, 4
s_cbranch_scc1 k_y
""")
vx = VM()
stamp(3)
dmaw(vx, 1); dmax(vx, 1)
a("s_mov_b32 s26, s57")
dmaw(vx, 2); dmax(vx, 2); dmax(vx, 3)
a("s_mov_b32 s57, s26")
h_addr(0)
own_line()
a("v_mov_b32 v218, v19\ns_waitcnt lgkmcnt(0)")
stamp(1)
a("s_barrier")
stamp(4)
def x_start():
    for t in range(3): a(f"ds_read_b128 {vr(176+4*t,4)}, v13 offset:{t*1024}")
    for t in range(3): a(f"ds_read_b128 {vr(188+4*t,4)}, v13 offset:{4*4608+t*1024}")
    for t in range(3): a(f"ds_read_b128 {vr(200+4*t,4)}, v218 offset:{4*4608+t*1024}")
gpass(0, {"start": x_start, ("pre", 1): lambda: vx.wait("X1"), ("pre", 2): lambda: vx.wait("X2"), ("pre", 3): lambda: vx.wait("X3"), ("post", 4): lambda: stamp(5), ("post", 7): lambda: stamp(6)})
dmaw(vx, 9)
epi(vx, 0, "st")
a("s_barrier")
dmaw(vx, 10); dmaw(vx, 11)
epi(vx, 1, "st")
vx.wait("W9")
a("s_barrier")
dmaw(vx, 12); dmaw(vx, 13)
pre_poll("s[28:29]", 0)
epi(vx, 2, "st")
a(f"""
s_lshr_b32 s13, s7, 1
s_mul_i32 s14, s13, {CS[1]-CS[0]}
s_add_u32 s14, s14, {CS[0]}
s_and_b32 s61, s7, 1                 ; parity
s_mul_i32 s13, s60, {UTP}
s_lshl_b32 s24, s61, 11
s_add_u32 s13, s13, s24
s_add_u32 s13, s13, {UT}
v_add_u32 v16, s13, v10
s_lshl_b32 s13, s60, 1
v_mov_b32 v18, s13
v_mov_b32 v19, 0
""")
vx.wait("W10")
a("s_barrier")
a(f"""
v_mov_b32 v40, 0
v_mov_b32 v41, 0
v_mov_b32 v42, 0
v_mov_b32 v43, 0
v_mov_b32 v50, {CNT}
ds_write_b128 v50, v[40:43]
ds_write_b64 v50, v[40:41] offset:16
""")
epi(vx, 3, "st3")
vx.wait("W13", extra=" lgkmcnt(0)")
stamp(7)
a("s_barrier")
stamp(8)
check("k_c1", "s[28:29]", 0, 32, 13)
vx.op("global_load_dwordx4 v[32:35], v16, s[40:41] sc1", "u")
vx.op("global_load_dwordx4 v[36:39], v16, s[40:41] offset:1024 sc1", "u")
vx.op("global_load_short_d16_hi v19, v18, s[4:5]", "u")
hsig_addr(26)
vx.wait("st3")
def sig2():
    a("s_mov_b64 exec, 0x3fff\nglobal_atomic_add v26, v29, s[40:41] offset:4 sc1\ns_mov_b64 exec, -1")
last_of4("k_s2", 0, 28, sig2)
a.label("k_s2")
for i in range(0, 12, 2): a(f"v_pk_add_f32 {vr(KA+i,2)}, {vr(KA+i,2)}, {vr(176+i,2)}")
for i in range(0, 12, 2): a(f"v_pk_add_f32 {vr(188+i,2)}, {vr(188+i,2)}, {vr(200+i,2)}")
for i in range(0, 12, 2): a(f"v_pk_add_f32 {vr(KA+i,2)}, {vr(KA+i,2)}, {vr(188+i,2)}")
for i in range(12): a(f"v_cvt_pk_bf16_f32 v{KA+i}, v{KA+i}, v{KA+i}")
a(f"""
s_add_u32 s13, s14, s24
v_add_u32 v17, s13, v10
v_and_b32 v20, 15, v1                ; c
v_lshrrev_b32 v21, 4, v1             ; g
v_lshlrev_b32 v22, 2, v21
v_lshlrev_b32 v23, 6, v21
v_lshl_add_u32 v24, v20, 4, v22
v_lshl_add_u32 v25, v20, 3, v22
v_lshl_add_u32 v26, v20, 2, v23
v_cmp_gt_u32 vcc, 2, v21
v_cndmask_b32 v25, v26, v25, vcc
v_lshl_add_u32 v26, v20, 1, v23
v_lshl_add_u32 v24, v24, 2, s14
v_lshl_add_u32 v25, v25, 2, s14
v_lshl_add_u32 v26, v26, 2, s14
ds_write_b128 v24, {vr(KA,4)} offset:{TABO}
ds_write_b128 v25, {vr(KA+4,4)} offset:{TABO+1024}
ds_write_b64 v26, {vr(KA+8,2)} offset:{TABO+2048}
ds_write_b64 v26, {vr(KA+10,2)} offset:{TABO+2048+128}
v_min_u32 v48, 43, v1
v_lshlrev_b32 v48, 4, v48
v_add_u32 v49, 8256, v48
v_add_u32 v50, {4096-36*16}, v48
v_cmp_gt_u32 vcc, 36, v1
v_cndmask_b32 v49, v50, v49, vcc
v_add_u32 v50, {12928-40*16}, v48
v_cmp_gt_u32 vcc, 40, v1
v_cndmask_b32 v49, v50, v49, vcc
v_add_u32 v49, s14, v49
ds_write_b128 v49, v[40:43]
v_add_u32 v27, s14, v10
v_lshl_add_u32 v28, v1, 3, s14
v_lshl_add_u32 v29, v1, 2, s14
ds_read_b128 v[52:55], v27 offset:{TABO}
ds_read_b32 v51, v27 offset:{TABO-4}
ds_read_b64 v[56:57], v28 offset:{TABO+1024}
ds_read_b32 v58, v28 offset:{TABO+1032}
ds_read_b32 v59, v28 offset:{TABO+1020}
ds_read_b64 v[60:61], v28 offset:{TABO+1536}
ds_read_b32 v62, v28 offset:{TABO+1544}
v_add_u32 v29, {TABO+2048}, v29
ds_read2_b32 v[64:65], v29 offset0:0 offset1:1
ds_read2_b32 v[66:67], v29 offset0:64 offset1:65
s_mov_b32 s20, 0xffff
v_and_b32 v44, 1, v1
v_cmp_eq_u32 vcc, 0, v44
v_mov_b32 v45, s20
v_cndmask_b32 v46, -1, v45, vcc      ; maskE
v_cndmask_b32 v47, v45, v40, vcc     ; maskO
s_mul_i32 s13, s61, 4160
s_add_u32 s13, s13, s14
v_lshlrev_b32 v30, 3, v1
v_sub_u32 v30, s13, v30
v_sub_u32 v31, s13, v10
v_or_b32 v24, 1, v20
v_lshlrev_b32 v25, 3, v21
v_sub_u32 v24, v25, v24
v_lshlrev_b32 v24, 1, v24
v_mul_u32_u24 v25, 4160, v44
v_sub_u32 v24, v24, v25
v_add_u32 v24, s14, v24
v_add_u32 v76, {4160+2*2031-512}, v24
v_add_u32 v77, {4160+2*2031-512*3}, v24
v_add_u32 v78, {4160+2*2031-512*5}, v24
v_add_u32 v79, {4160+2*2031-512*7}, v24
v_lshlrev_b32 v22, 5, v20
v_lshl_add_u32 v23, v21, 3, v22
v_lshl_add_u32 v22, v21, 4, v22
v_add_u32 v22, s14, v22
v_add_u32 v22, {8832-32}, v22
s_waitcnt lgkmcnt(0)
s_cmp_eq_u32 s61, 0
s_cbranch_scc0 k_eo
v_bfi_b32 v68, s20, v55, v54
v_bfi_b32 v69, s20, v53, v52
v_bfi_b32 v70, s20, v58, v57
v_mov_b32 v71, v56
v_mov_b32 v72, v62
v_mov_b32 v73, v61
v_bfi_b32 v74, s20, v61, v60
v_mov_b32 v75, v60
v_bfi_b32 v81, v46, v65, v64
v_bfi_b32 v85, v46, v67, v66
s_branch k_ew
k_eo:
v_cmp_eq_u32 vcc, 0, v1
v_bfi_b32 v68, s20, v54, v53
v_bfi_b32 v69, s20, v52, v51
v_bfi_b32 v70, s20, v57, v56
v_bfi_b32 v71, s20, v56, v59
v_cndmask_b32 v71, v56, v71, vcc
v_bfi_b32 v72, s20, v62, v61
v_mov_b32 v73, v61
v_mov_b32 v74, v60
v_mov_b32 v75, v60
v_bfi_b32 v81, v47, v65, v64
v_bfi_b32 v85, v47, v67, v66
k_ew:
v_mov_b32 v80, v65
v_mov_b32 v82, v64
v_mov_b32 v83, v64
v_mov_b32 v84, v67
v_mov_b32 v86, v66
v_mov_b32 v87, v66
ds_write_b64 v30, v[68:69] offset:4088
ds_write_b64 v30, v[70:71] offset:{4088-512}
ds_write_b128 v31, v[72:75] offset:{4080-1024}
ds_write_b128 v31, v[80:83] offset:{4080-2048}
ds_write_b128 v31, v[84:87] offset:{4080-3072}
""")
CA = 48
for r in range(CA, CA+16): a(f"v_mov_b32 v{r}, 0")
vx.wait("u")
a(f"""
ds_write_b128 v17, v[32:35] offset:8832
ds_write_b128 v17, v[36:39] offset:{8832+1024}
s_and_b32 s13, s7, 2
s_lshl_b32 s13, s13, 1
s_add_u32 s13, s13, {CNT+16}
v_mov_b32 v28, s13
v_mov_b32 v29, 1
s_mov_b64 exec, 1
ds_add_u32 v28, v29
s_mov_b64 exec, -1
s_mov_b32 s59, {SPIN}
k_ps:
ds_read_b32 v30, v28
s_waitcnt lgkmcnt(0)
v_readfirstlane_b32 s58, v30
s_cmp_eq_u32 s58, 2
s_cbranch_scc1 k_psd
s_sub_u32 s59, s59, 1
s_cmp_lg_u32 s59, 0
s_cbranch_scc1 k_ps
k_psd:
""")
stamp(9)
if OPT["cprio"]: a(f"s_setprio {OPT['cprio']}")
a("""
s_cmp_eq_u32 s61, 0
s_cbranch_scc0 k_set1
""")
FBUF = [88, 152]
def creads(F, amax):
    out = []
    for i in range(amax+1):
        o = 0 if (i & 1) else 128
        out.append(f"ds_read_b128 {vr(F+32+4*i,4)}, v22 offset:{512*i}")
        out.append(f"ds_read2_b32 {vr(F+4*i,2)}, v{76+(i>>1)} offset0:{o} offset1:{o+1}")
        out.append(f"ds_read2_b32 {vr(F+4*i+2,2)}, v{76+(i>>1)} offset0:{o+2} offset1:{o+3}")
    out += [f"v_subrev_u32 v{r}, 64, v{r}" for r in (76, 77, 78, 79, 22)]
    return out
for sidx, cbs in enumerate(((0, 3, 4, 7), (1, 2, 5, 6))):
    if sidx == 1:
        a.label("k_set1"); a.reset()
    amax = max(cbs)
    for x in creads(FBUF[0], amax): a(x)
    a("s_mov_b32 s21, 4")
    a.label(f"k_cl{sidx}")
    for half in range(2):
        F = FBUF[half]
        a("s_waitcnt lgkmcnt(0)")
        lists = [[(n, aa, cb-aa) for aa in range(cb+1)] for n, cb in enumerate(cbs)]
        order = []
        while any(lists):
            for L in sorted(lists, key=lambda L: -len(L)):
                if L: order.append(L.pop(0))
        fill = creads(FBUF[half ^ 1], amax)
        for k, (n, aa, bb) in enumerate(order):
            d = vr(CA+4*n, 4)
            a(f"v_mfma_f32_16x16x32_bf16 {d}, {vr(F+4*aa,4)}, {vr(F+32+4*bb,4)}, {d}")
            for _ in range(2):
                if fill: a(fill.pop(0))
        for x in fill: a(x)
    a(f"""
s_sub_u32 s21, s21, 1
s_cmp_lg_u32 s21, 0
s_cbranch_scc1 k_cl{sidx}
v_add_u32 v26, s14, v23
""")
    stamp(10)
    for n, cb in enumerate(cbs): a(f"ds_read_b64 {vr(32+2*n,2)}, v26 offset:{8832+512*cb}")
    a(f"""
s_mul_i32 s15, s60, {UTP}
s_add_u32 s15, s15, {AT}
v_add_u32 v27, s15, v23
s_waitcnt lgkmcnt(0)
""")
    for n, cb in enumerate(cbs):
        R = CA+4*n
        a(f"""
v_lshlrev_b32 v40, 16, v{32+2*n}
v_and_b32 v41, 0xffff0000, v{32+2*n}
v_lshlrev_b32 v42, 16, v{33+2*n}
v_and_b32 v43, 0xffff0000, v{33+2*n}
v_fmac_f32 v{R}, v40, v19
v_fmac_f32 v{R+1}, v41, v19
v_fmac_f32 v{R+2}, v42, v19
v_fmac_f32 v{R+3}, v43, v19
v_cvt_pk_bf16_f32 v{R}, v{R}, v{R+1}
v_cvt_pk_bf16_f32 v{R+1}, v{R+2}, v{R+3}
global_store_dwordx2 v27, {vr(R,2)}, s[40:41] offset:{512*cb} sc1
""")
    if sidx == 0: a("s_branch k_pub")
a.label("k_pub"); a.reset()
a(f"""
s_setprio 0
s_lshr_b32 s15, s2, 5
s_lshl_b32 s15, s15, 12
s_add_u32 s15, s15, {FL}
v_lshl_add_u32 v26, v1, 7, s15
s_waitcnt vmcnt(0)
""")
stamp(11)
def sig4():
    a(f"""
s_mov_b32 exec_hi, 0
global_atomic_add v26, v29, s[40:41] offset:12 sc1
s_mov_b64 exec, -1
v_lshrrev_b32 v14, 3, v1
v_and_b32 v15, 7, v1
v_lshlrev_b32 v15, 4, v15
v_mul_u32_u24 v16, {UTP}, v14
v_mul_u32_u24 v17, {ATPI}, v14
s_mul_i32 s15, s12, {64*UTP}
s_and_b32 s13, s2, 7
s_lshl_b32 s13, s13, 2
s_add_u32 s13, s13, s8
s_lshl_b32 s13, s13, 7
s_add_u32 s15, s15, s13
s_add_u32 s15, s15, {AT}
v_add3_u32 v16, v16, v15, s15
v_add_u32 v17, v17, v15
v_add_u32 v17, {CS[0]}, v17
s_mov_b32 s27, 0
""")
    check("k_c4", "s[28:29]", 12, 32, 13, sleep=2)
    stamp(12)
    for i in range(8):
        a(f"global_load_dwordx4 {vr(32+4*i,4)}, v16, s[40:41] sc1")
        if i < 7: a(f"v_add_u32 v16, {8*UTP}, v16")
    for i in range(8):
        a(f"s_waitcnt vmcnt({7-i})")
        a(f"ds_write_b128 v17, {vr(32+4*i,4)} offset:{8*i*ATPI}")
last_of4("k_final", 12, 28, sig4)
a("s_branch k_final")

a.label("k_spare"); a.reset()
if OPT["spare"]:
    a(f"""
s_sub_u32 s13, s2, 224
s_lshl_b32 s13, s13, 3
s_add_u32 s13, s13, s3               ; u 0..255
v_min_u32 v5, 48, v1
s_lshr_b32 s14, s13, 1
s_mul_i32 s14, s14, 49
v_add_lshl_u32 v2, v5, s14, 8
s_mul_i32 s14, s13, 49
v_add_lshl_u32 v3, v5, s14, 7
s_and_b32 s13, s13, 1
s_cmp_eq_u32 s13, 0
s_waitcnt lgkmcnt(0)
s_cselect_b32 s44, s32, s34
s_cselect_b32 s45, s33, s35
""")
    if OPT["spare"] == 3: a("global_load_dword v0, v3, s[16:17]\ns_waitcnt vmcnt(0)")
    a("global_load_dword v0, v2, s[44:45]")
    if OPT["spare"] == 2: a("s_waitcnt vmcnt(0)")
    a("global_load_dword v0, v2, s[44:45] offset:128")
    a("s_waitcnt vmcnt(0)")
    stamp(1)
    a("global_load_dword v0, v3, s[36:37]")
    stamps_out(15)
a("s_endpgm")

a.label("k_y"); a.reset()
stamp(1)
a(f"""
v_and_b32 v48, 3, v1
v_lshrrev_b32 v49, 5, v1
v_lshl_add_u32 v48, v49, 2, v48
v_bfe_u32 v49, v1, 2, 2
v_lshl_add_u32 v48, v48, 3, v49      ; t (hh=0)
v_bfe_u32 v49, v48, 1, 3
s_lshl_b32 s13, s7, 1
v_xor_b32 v49, s13, v49
v_lshlrev_b32 v48, 7, v48
v_lshl_add_u32 v48, v49, 4, v48
v_bfe_u32 v49, v1, 4, 1
v_lshl_add_u32 v48, v49, 3, v48
s_lshl_b32 s13, s9, 13
s_add_u32 s13, s13, {XA[0]}
v_add_u32 v64, s13, v48
v_xor_b32 v65, 32, v64
v_xor_b32 v66, 16, v64
v_xor_b32 v67, 48, v64
v_and_b32 v49, 4, v1
v_lshlrev_b32 v49, 3, v49
v_and_b32 v50, 32, v1
v_lshrrev_b32 v50, 1, v50
v_and_b32 v51, 3, v1
v_lshlrev_b32 v51, 2, v51
v_add3_u32 v49, v49, v50, v51
v_bfe_u32 v50, v1, 3, 2
v_add_lshl_u32 v49, v49, v50, 2
s_lshl_b32 s13, s42, 6
s_lshl_b32 s58, s7, 4
s_add_u32 s13, s13, s58
v_add_u32 v50, s13, v20
v_mul_u32_u24 v50, {UTP}, v50
v_lshl_add_u32 v50, v22, 4, v50
s_lshl_b32 s13, s10, 8
s_lshl_b32 s58, s9, 7
s_add_u32 s13, s13, s58
s_add_u32 s13, s13, {UT}
v_add_u32 v50, s13, v50
v_add_u32 v51, {8*UTP}, v50
""")
a("""
; advance DMA state: W -> stage 3, x -> stage 4
s_add_u32 s57, s42, 3
s_sub_u32 s13, s57, 7
s_cmp_ge_u32 s57, 7
s_cselect_b32 s57, s13, s57
s_add_u32 s56, s57, 1
s_cmp_eq_u32 s56, 7
s_cselect_b32 s56, 0, s56
s_lshl_b32 s56, s56, 7
s_mul_i32 s57, s57, 229376
""")
vy.wait("X0", extra=" lgkmcnt(0)")
stamp(3)
a("s_barrier")
stamp(4)
a("""
ds_read_b64_tr_b16 v[68:69], v64
ds_read_b64_tr_b16 v[70:71], v65 offset:512
ds_read_b64_tr_b16 v[72:73], v66
ds_read_b64_tr_b16 v[74:75], v67 offset:512
s_waitcnt lgkmcnt(0)
""")
for i in range(8): a(f"ds_bpermute_b32 v{76+i}, v49, v{68+i}")
a(f"""
; gate: rows 8*(((xcd&1)*2+fbl)*4+q) + (l>>3), valid for fbl<2
s_lshl_b32 s13, s9, 1
s_add_u32 s13, s13, s12
s_lshl_b32 s13, s13, 2
s_add_u32 s13, s13, s7
s_and_b32 s13, s13, 15
s_lshl_b32 s13, s13, 3
v_add_u32 v54, s13, v20
v_bfe_u32 v55, v54, 1, 3
v_xor_b32 v55, v55, v22
v_lshlrev_b32 v55, 4, v55
s_lshl_b32 s13, s13, 7
v_add_u32 v56, s13, v10
v_add_u32 v57, 65536, v56
s_mov_b32 s20, s38
s_mov_b32 s21, s39
s_mov_b32 s22, 896
s_mov_b32 s23, 0x20000
s_lshl_b32 s13, s42, 12
s_add_u32 s13, s13, {FL}
v_lshl_add_u32 v58, v1, 7, s13
v_mov_b32 v59, 1
s_waitcnt lgkmcnt(0)
""")
vy.op("global_store_dwordx4 v50, v[76:79], s[40:41] sc1", "ut")
vy.op("global_store_dwordx4 v51, v[80:83], s[40:41] sc1", "ut")
a("v_mov_b32 v52, 0")
vy.op("global_load_dword v53, v52, s[98:99] sc1", "ut")
a("s_barrier")
dmaw(vy, 3); dmax(vy, 4)
h_addr(1)
own_line()
vy.wait("ut")
a("s_barrier")
a("""
s_cmp_eq_u32 s7, 0
s_cbranch_scc0 k_y1
""")
a(f"""
s_mov_b32 s59, {SPIN}
k_c0_l:
v_readfirstlane_b32 s58, v53
s_cmp_ge_u32 s58, 32
s_cbranch_scc1 k_c0_d
s_sub_u32 s59, s59, 1
s_cmp_eq_u32 s59, 0
s_cbranch_scc1 k_c0_d
s_sleep 4
global_load_dword v53, v52, s[98:99] sc1
s_waitcnt vmcnt(0)
s_branch k_c0_l
k_c0_d:
""")
a("""
s_mov_b32 exec_hi, 0
global_atomic_add v58, v59, s[40:41] sc1
s_mov_b64 exec, -1
k_y1:
""")
dmaw(vy, 4); dmax(vy, 5)
vy.wait("W3")
a("s_barrier")
dmaw(vy, 5); dmax(vy, 6)
a("s_lshl_b32 s60, s42, 7")
for s in range(7):
    vy.op(f"buffer_load_dwordx4 {vr(96+4*s,4)}, v55, s[20:23], s60 offen", "gw")
    if s < 6: a("s_add_u32 s60, s60, 128\ns_cmp_eq_u32 s60, 896\ns_cselect_b32 s60, 0, s60")
vy.wait("W4")
a("s_barrier")
stamp(5)
dmaw(vy, 6)
vy.wait("W5")
a("s_barrier")
dmaw(vy, 7)
def gread(s): a(f"ds_read_b128 {vr(128+4*s,4)}, v{56 if XA[s] < 65536 else 57} offset:{XA[s] % 65536}")
for s in range(6): gread(s)
a("v_mov_b32 v60, 0\nv_mov_b32 v61, 0")
vy.wait("gw", extra=" lgkmcnt(0)")
for s in range(6):
    for q in range(4): a(f"v_dot2c_f32_bf16 v{60+(q&1)}, v{128+4*s+q}, v{96+4*s+q}")
vy.wait("W6")
a("s_barrier")
gread(6)
dmaw(vy, 8)
a("""
s_cmp_lt_u32 s12, 2
s_cbranch_scc0 k_y2
s_waitcnt lgkmcnt(0)
""")
for q in range(4): a(f"v_dot2c_f32_bf16 v{60+(q&1)}, v{152+q}, v{120+q}")
a(f"""
v_add_f32 v60, v60, v61
v_add_f32_dpp v60, v60, v60 quad_perm:[1,0,3,2] row_mask:0xf bank_mask:0xf
v_add_f32_dpp v60, v60, v60 quad_perm:[2,3,0,1] row_mask:0xf bank_mask:0xf
v_add_f32_dpp v60, v60, v60 row_half_mirror row_mask:0xf bank_mask:0xf
v_cvt_pk_bf16_f32 v60, v60, v60
v_and_b32 v60, 0xffff0000, v60
v_mul_f32 v60, {fbits(-LOG2E)}, v60
v_exp_f32 v60, v60
v_add_f32 v60, 1.0, v60
v_rcp_f32 v60, v60
v_cvt_pk_bf16_f32 v60, v60, v60
v_and_b32 v60, 0xffff0000, v60
v_sub_f32 v61, 1.0, v60
v_cvt_pk_bf16_f32 v60, v60, v61
s_lshl_b32 s13, s10, 9
s_add_u32 s13, s13, {GG}
v_lshl_add_u32 v54, v54, 2, s13
global_store_dword v54, v60, s[40:41] sc1
k_y2:
v_mul_u32_u24 v160, 896, v20
v_and_b32 v161, 6, v20
v_xor_b32 v161, v161, v22
v_lshl_add_u32 v160, v161, 4, v160
v_add_u32 v161, 6144, v160
v_add_u32 v162, 12288, v160
v_add_u32 v163, 18432, v160
v_lshrrev_b32 v164, 2, v1
v_lshlrev_b32 v164, 7, v164
v_bfe_u32 v165, v1, 3, 2
v_lshl_add_u32 v164, v165, 5, v164
v_and_b32 v165, 3, v1
v_lshl_add_u32 v164, v165, 3, v164
v_add_u32 v164, s14, v164
v_xor_b32 v165, 32, v164
v_xor_b32 v166, 64, v164
v_xor_b32 v167, 96, v164
s_and_b32 s24, s2, 7
s_lshl_b32 s24, s24, 2
s_add_u32 s24, s24, s8               ; rb64
s_mul_i32 s13, s24, 229376
s_mul_i32 s58, s7, 28672
s_add_u32 s13, s13, s58
s_add_u32 s16, s40, s13
s_addc_u32 s17, s41, 0
s_mov_b32 s18, {114688+28672}
s_mov_b32 s19, 0x20000
s_mov_b32 s20, s36
s_mov_b32 s21, s37
s_mov_b32 s22, 1605632
s_mul_i32 s25, s7, 7
s_lshl_b32 s26, s12, 7               ; cb*128
""")
a(f"s_waitcnt vmcnt({vy.n_for('W7')}) lgkmcnt(0)")
a("s_barrier")
stamp(6)
vg = VM()
def ldw(n):
    p, i = divmod(n, 7)
    a(f"""
s_add_u32 s58, s25, {i}
s_lshr_b32 s59, s58, 1
s_mul_i32 s59, s59, 114688
s_and_b32 s58, s58, 1
s_mul_i32 s58, s58, 28672
s_add_u32 s58, s58, s59
s_add_u32 m0, s14, {RSL[n % 7]}
s_add_u32 s58, s58, s26
""")
    if p: a("s_add_u32 s58, s58, 57344")
    for k in range(4): vg.op(f"buffer_load_dwordx4 v{160+k}, s[20:23], s58 offen offset:{k*1024} lds", f"w{n}")
def y_post11():
    stamp(7)
    if OPT["yprio"]: a(f"s_setprio {OPT['yprio']}")
    ldw(0); ldw(1)
def y_at14():
    a(f"""
v_mov_b32 v168, {CNT+4}
v_mov_b32 v169, 1
s_mov_b64 exec, 1
ds_add_u32 v168, v169
s_mov_b64 exec, -1
""")
gpass(1, {("pre", 8): lambda: a("s_waitcnt vmcnt(0)"), ("post", 11): y_post11, ("at", 14): y_at14})
stamp(8)
epi(vg, 0, "st"); epi(vg, 1, "st")
a("ds_read_b32 v170, v168")
epi(vg, 2, "st")
a(f"""
s_mov_b32 s59, {SPIN}
k_ys:
s_waitcnt lgkmcnt(0)
v_readfirstlane_b32 s58, v170
s_cmp_eq_u32 s58, 4
s_cbranch_scc1 k_ysd
ds_read_b32 v170, v168
s_sub_u32 s59, s59, 1
s_cmp_lg_u32 s59, 0
s_cbranch_scc1 k_ys
k_ysd:
""")
ldw(2); ldw(3)
pre_poll("s[28:29]", 4)
epi(vg, 3, "st3")
stamp(9)
ACC2 = 16; AF = [172, 188]; RING = [80, 96, 112, 204, 220, 236, 144]
hsig_addr(6)
a("""
v_min_u32 v8, 31, v1
v_mul_u32_u24 v8, 896, v8
""")
check("k_c2", "s[28:29]", 4, 14, 13)
stamp(10)
def ldh(n):
    p, i = divmod(n, 7)
    a(f"s_mov_b32 s58, {p*114688+i*4096}")
    for k in range(4): vg.op(f"buffer_load_dwordx4 {vr(RING[n % 7]+4*k,4)}, v10, s[16:19], s58 offen offset:{k*1024} sc1", f"h{n}")
vg.op("buffer_load_dword v0, v8, s[16:19], s26 offen sc1", "t")
ldh(0); ldh(1)
vg.wait("st3")
def sig3():
    a("s_mov_b64 exec, 0x3fff\nglobal_atomic_add v6, v3, s[40:41] offset:8 sc1\ns_mov_b64 exec, -1")
last_of4("k_s3", 8, 2, sig3)
a.label("k_s3")
a(f"""
s_lshl_b32 s13, s24, 8
s_lshl_b32 s58, s7, 6
s_add_u32 s13, s13, s58
s_add_u32 s13, s13, {GG}
v_and_b32 v4, 15, v1
v_lshlrev_b32 v4, 2, v4
v_add_u32 v5, s13, v4
s_add_u32 s58, s58, {GL}
v_add_u32 v4, s58, v4
""")
vg.op("global_load_dword v9, v5, s[40:41] sc1", "g")
ldh(2); ldh(3)
def rda(n):
    F = AF[n & 1]
    out = [f"v_add_u32 v{128+db}, {RSL[n % 7]}, v{164+db}" for db in range(4)]
    return out + [f"ds_read_b64_tr_b16 {vr(F+4*db+2*hh,2)}, v{128+db} offset:{hh*2048}" for db in range(4) for hh in range(2)]
for x in rda(0): a(x)
wi, hi_ = 4, 4
CK = OPT["CK"]
for n in range(14):
    F = AF[n & 1]; S = RING[n % 7]
    if n < 3:
        ldw(wi); wi += 1
        ldh(hi_); hi_ += 1
    if n == CK:
        check("k_c3", "s[28:29]", 8, 14, 13)
        stamp(11)
        a("s_add_u32 s59, s26, 114688")
        vg.op("buffer_load_dword v0, v8, s[16:19], s59 offen sc1", "t")
    if n >= CK:
        while hi_ < min(14, n+7): ldh(hi_); hi_ += 1
    tags = [f"h{n}"] + ([f"w{n+1}"] if n+1 < 14 else [])
    vg.wait(*tags, extra=" lgkmcnt(0)")
    if n == 2: a("ds_write_b32 v4, v9")
    fill = rda(n+1) if n+1 < 14 else []
    if n == CK-1: pre_poll("s[28:29]", 8)
    for db in range(4):
        for tb in range(4):
            d = vr(ACC2+16*db+4*tb, 4)
            a(f"v_mfma_f32_16x16x32_bf16 {d}, {vr(F+4*db,4)}, {vr(S+4*tb,4)}, " + ("0" if n == 0 else d))
            if fill: a(fill.pop(0))
    if wi < 14 and wi <= n+7 and n >= 0 and wi >= 7:
        ldw(wi); wi += 1
stamp(12)
a("""
v_and_b32 v2, 15, v1
v_lshrrev_b32 v3, 4, v1
v_xor_b32 v3, v3, v2
v_lshlrev_b32 v3, 4, v3
v_lshl_add_u32 v2, v2, 8, v3
v_add_u32 v2, s14, v2
""")
for tb in range(4):
    for db in range(4):
        a(f"v_xor_b32 v3, {db*64}, v2")
        a(f"v_add_u32 v3, {RSL[tb]}, v3")
        a(f"ds_write_b128 v3, {vr(ACC2+16*db+4*tb,4)}")

a.label("k_final"); a.reset()
a(f"""
s_lshr_b32 s13, s3, 1                ; tb
s_and_b32 s58, s3, 1
s_lshl_b32 s58, s58, 2
v_and_b32 v2, 15, v1
v_lshrrev_b32 v3, 4, v1
v_add_u32 v3, s58, v3                ; dg
s_mov_b32 s59, {RSL[0]}
s_cmp_eq_u32 s13, 1
s_cselect_b32 s59, {RSL[1]}, s59
s_cmp_eq_u32 s13, 2
s_cselect_b32 s59, {RSL[2]}, s59
s_cmp_eq_u32 s13, 3
s_cselect_b32 s59, {RSL[3]}, s59
v_lshlrev_b32 v5, 1, v3
v_xor_b32 v5, v5, v2
v_lshlrev_b32 v5, 4, v5
v_lshl_add_u32 v5, v2, 8, v5
v_add_u32 v5, s59, v5
v_xor_b32 v6, 16, v5
s_lshl_b32 s13, s13, 4
v_add_u32 v2, s13, v2
v_lshlrev_b32 v7, 2, v2
v_add_u32 v7, {GL}, v7
s_and_b32 s58, s2, 7
s_lshl_b32 s58, s58, 2
s_add_u32 s58, s58, s8
s_lshl_b32 s58, s58, 6
v_add_u32 v4, s58, v2
v_mul_u32_u24 v4, 896, v4
v_lshl_add_u32 v4, v3, 4, v4
s_lshl_b32 s58, s12, 7
v_add_u32 v4, s58, v4
v_bfe_u32 v8, v1, 2, 2
v_lshl_add_u32 v8, v3, 3, v8
v_mul_u32_u24 v8, {ATPI}, v8
v_and_b32 v9, 3, v1
v_lshl_add_u32 v8, v9, 3, v8
s_lshl_b32 s13, s13, 1
s_add_u32 s13, s13, {CS[0]}
v_add_u32 v8, s13, v8
s_waitcnt lgkmcnt(0)
""")
stamp(13)
a("s_barrier")
stamp(14)
for w in range(4):
    a(f"ds_read_b128 {vr(16+8*w,4)}, v5 offset:{w*4096}")
    a(f"ds_read_b128 {vr(20+8*w,4)}, v6 offset:{w*4096}")
a(f"""
ds_read_b64_tr_b16 v[48:49], v8
ds_read_b64_tr_b16 v[50:51], v8 offset:{4*ATPI}
ds_read_b32 v52, v7
s_waitcnt lgkmcnt(7)
""")
for i in range(0, 8, 2): a(f"v_pk_add_f32 {vr(16+i,2)}, {vr(16+i,2)}, {vr(24+i,2)}")
a("s_waitcnt lgkmcnt(3)")
for i in range(0, 8, 2): a(f"v_pk_add_f32 {vr(32+i,2)}, {vr(32+i,2)}, {vr(40+i,2)}")
for i in range(0, 8, 2): a(f"v_pk_add_f32 {vr(16+i,2)}, {vr(16+i,2)}, {vr(32+i,2)}")
a("s_waitcnt lgkmcnt(0)\nv_lshlrev_b32 v54, 16, v52\nv_and_b32 v55, 0xffff0000, v52")
for i in range(4):
    a(f"v_lshlrev_b32 v{24+2*i}, 16, v{48+i}\nv_and_b32 v{25+2*i}, 0xffff0000, v{48+i}")
for i in range(0, 8, 2): a(f"v_pk_mul_f32 {vr(16+i,2)}, {vr(16+i,2)}, v[54:55] op_sel:[0,1] op_sel_hi:[1,1]")
for i in range(0, 8, 2): a(f"v_pk_fma_f32 {vr(16+i,2)}, {vr(24+i,2)}, v[54:55], {vr(16+i,2)} op_sel_hi:[1,0,1]")
for i in range(4): a(f"v_cvt_pk_bf16_f32 v{32+i}, v{16+2*i}, v{17+2*i}")
a("global_store_dwordx4 v4, v[32:35], s[96:97]")
stamps_out(15)
a.label("k_end")
a("s_endpgm")
a.label("code_end")

hdr = open("cdna_kernels/%s.s.ref" % NAME).read().split("; Override launch")[0]
out = hdr + f"; @launch grid=(256,1,1) block=(512,1,1) lds={LDS}\n"
out += '.amdgcn_target "amdgcn-amd-amdhsa--gfx950"\n' + a.text()
out += f""".section .rodata,"a"
.p2align 6
.amdhsa_kernel {KN}
  .amdhsa_next_free_vgpr 256
  .amdhsa_next_free_sgpr 102
  .amdhsa_accum_offset 256
  .amdhsa_group_segment_fixed_size 0
  .amdhsa_kernarg_size 136
  .amdhsa_user_sgpr_count 2
  .amdhsa_user_sgpr_kernarg_segment_ptr 1
  .amdhsa_system_sgpr_workgroup_id_x 1
.end_amdhsa_kernel
"""
open(sys.argv[1], "w").write(out)
print("written", sys.argv[1], "lines", len(a.lines), "nops", a.nops, "wi,hi", wi, hi_)
```

```python
import sys, math, struct
from asm import *

NAME = "gated_mix__ssm_conv_s4__swiglu_ffn__prompt"
KN = NAME + "_kernel"
WDP = 0x800000
HP, UT, AT, GG, FL = 0, 0xA00000, 0xE00000, 0x1000000, 0x1010000
UTP = 4224
def fbits(x): return "0x%08x" % struct.unpack("<I", struct.pack("<f", x))[0]
LOG2E = 1.4426950408889634
OPT = dict(ntx="", ntw="", ntp="nt", stamp=0, cprio=0, yprio=1, warm=0, fwarm=0, rpg=2, w1=1, sw=0, wsig=1, xt=1, xwd=0, rot2=1, ht=0, xs1=26, xs2=26, xs3=56, vgap=9, HD=3, CK=6, xprio=2)
for a_ in sys.argv[2:]:
    k, v = a_.split("="); OPT[k] = int(v) if v.lstrip("-").isdigit() else v
a = Asm()
SPIN = 40000
HT = 56 if OPT["wsig"] else 14

def cmuls(lst):
    for d, x, y in lst:
        assert d != x and d != y
        a(f"v_pk_mul_f32 {vr(d,2)}, {vr(x,2)}, {vr(y,2)} op_sel_hi:[1,0]")
    for d, x, y in lst:
        a(f"v_pk_fma_f32 {vr(d,2)}, {vr(x,2)}, {vr(y,2)}, {vr(d,2)} op_sel:[1,1,0] op_sel_hi:[0,1,1] neg_lo:[1,0,0]")
def bar(n):
    k = (n - 1) if n < 8 else (n - 8)
    if OPT["sw"] == 1 and n >= 1: stamp(1+2*k, True)
    a("s_barrier")
    if OPT["sw"] == 1 and n >= 1: stamp(2+2*k, True)
def stamp(idx, force=False):
    if OPT["sw"] and not force and idx not in (0, 15): return
    if OPT["stamp"]: a(f"{'s_memtime' if OPT['stamp']==2 else 's_memrealtime'} s[{64+2*idx}:{65+2*idx}]")
def stamps_out(idx):
    if not OPT["stamp"]: return
    a("s_waitcnt vmcnt(0)")
    stamp(idx)
    a("s_waitcnt lgkmcnt(0)")
    for i in range(16): a(f"v_writelane_b32 v250, s{64+2*i}, {i}")
    a(f"""s_lshl_b32 s64, s2, 3
s_add_u32 s64, s64, s3
s_lshl_b32 s64, s64, 6
s_add_u32 s64, s64, 0x2000000
v_lshl_add_u32 v251, v1, 2, s64
s_mov_b64 exec, 0xffff
global_store_dword v251, v250, s[40:41]""")
    if OPT.get("dbgout"):
        a(f"""
s_lshl_b32 s65, s2, 3
s_add_u32 s65, s65, s3
s_cmp_eq_u32 s65, {OPT['dbgout']}
s_cbranch_scc0 k_end
v_readlane_b32 s65, v250, 0
v_subrev_u32 v250, s65, v250
v_lshlrev_b32 v251, 2, v1
s_mov_b64 exec, 0xfffe
global_store_dword v251, v250, s[98:99]""")
def stamps_init():
    if OPT["stamp"]:
        for i in range(1,16): a(f"s_mov_b32 s{64+2*i}, 0")
        stamp(0)

class VM:
    def __init__(self): self.q = []
    def op(self, text, tag):
        a(text); self.q.append(tag)
    def n_for(self, *tags):
        idx = max(i for i, t in enumerate(self.q) if t in tags)
        return len(self.q) - 1 - idx
    def wait(self, *tags, extra=""):
        n = self.n_for(*tags); assert n <= 63
        a(f"s_waitcnt vmcnt({n}){extra}")

XA = [98304, 49152, 65536, 81920, 32768, 0, 16384]
WR = [114688, 131072, 147456]
WA = [WR[s % 3] for s in range(10)] + [WR[1], XA[0], WR[2], XA[1]]
CS = [XA[2], WR[0]]
RSL = [XA[3], WR[1], XA[4], XA[5], XA[6], XA[0], XA[1]]
TABO = 12992
CNT = CS[0] + 16064
GL = CS[1] + 16064
ATPI = 144
LDS = 163840

a.raw(f".text\n.globl {KN}\n.p2align 8\n.type {KN},@function\n{KN}:")
a("""
s_cmp_ge_u32 s2, 256
s_cbranch_scc1 k_end
s_add_u32 s2, s2, 224
s_and_b32 s2, s2, 255
""")
stamps_init()
a("""
s_load_dwordx16 s[16:31], s[0:1], 0
s_load_dwordx8 s[32:39], s[0:1], 80
s_load_dwordx2 s[40:41], s[0:1], 128
s_load_dwordx4 s[96:99], s[0:1], 112
s_getpc_b64 s[4:5]
k_pc:
v_lshrrev_b32 v2, 6, v0
v_and_b32 v1, 63, v0
v_readfirstlane_b32 s3, v2
s_lshr_b32 s6, s2, 3                 ; j
s_and_b32 s8, s6, 3                  ; rbl
s_mul_i32 s7, s8, 5120
v_min_u32 v3, 4, v1
v_mad_u32_u24 v3, v2, 5, v3
v_lshlrev_b32 v3, 7, v3
v_add_u32 v3, s7, v3
v_min_u32 v3, code_end-k_pc-4, v3
global_load_dword v0, v3, s[4:5]
s_and_b32 s10, s2, 6
s_lshl_b32 s10, s10, 1
s_add_u32 s10, s10, s8               ; rb128
s_and_b32 s9, s2, 1
s_mul_i32 s11, s9, 7
s_lshr_b32 s12, s6, 2
s_add_u32 s11, s11, s12              ; fb128
s_and_b32 s7, s3, 3
v_lshlrev_b32 v10, 4, v1
s_lshl_b32 s42, s8, 1
s_add_u32 s42, s42, s12
s_sub_u32 s43, s42, 7
s_cmp_ge_u32 s42, 7
s_cselect_b32 s42, s43, s42          ; rot
v_lshrrev_b32 v20, 3, v1
v_lshrrev_b32 v21, 4, v1
v_and_b32 v22, 7, v1
s_lshl_b32 s13, s7, 4
v_add_u32 v25, s13, v20
v_mul_u32_u24 v25, 3584, v25
s_lshl_b32 s13, s11, 8
v_add_u32 v25, s13, v25
v_and_b32 v26, 1, v21
v_lshlrev_b32 v26, 1, v26
v_xor_b32 v26, v22, v26
v_lshl_add_u32 v240, v26, 4, v25
v_add_u32 v241, 27648, v240
v_xor_b32 v26, 4, v26
v_lshl_add_u32 v242, v26, 4, v25
v_add_u32 v243, 27648, v242
s_lshl_b32 s15, s7, 11
s_mov_b32 s50, 1605632
s_mov_b32 s51, 0x20000
s_mov_b32 s54, 1605632
s_mov_b32 s55, 0x20000
s_cmp_eq_u32 s12, 7
s_cbranch_scc1 k_spare
""")
def dmaw(vm, st):
    a(f"s_add_u32 m0, s15, {WA[st]}")
    if st >= 7: a("s_add_u32 s58, s57, 128")
    else: a("s_mov_b32 s58, s57")
    for i in range(2): vm.op(f"buffer_load_dwordx4 v{240+i}, s[48:51], s58 offen offset:{i*1024} {OPT['ntw']} lds", f"W{st}")
    a(f"s_add_u32 m0, s15, {WA[st]+8192}\ns_add_u32 s57, s57, 229376")
    for i in range(2): vm.op(f"buffer_load_dwordx4 v{242+i}, s[52:55], s58 offen offset:{i*1024} {OPT['ntw']} lds", f"W{st}")
    a("s_cmp_eq_u32 s57, 1605632\ns_cselect_b32 s57, 0, s57")
def dmax(vm, st):
    a(f"s_add_u32 m0, s14, {XA[st]}\ns_mov_b32 s58, s56")
    for i in range(4): vm.op(f"buffer_load_dwordx4 v{232+i}, s[44:47], s58 offen offset:{i*1024} {OPT['ntx']} lds", f"X{st}")
    a("s_add_u32 s56, s56, 128\ns_cmp_eq_u32 s56, 896\ns_cselect_b32 s56, 0, s56")

FB = [16, 48]; ACC = 80; TM = 144; KA = 164
def pass_addrs():
    a(f"""
v_and_b32 v6, 31, v1
v_lshrrev_b32 v7, 5, v1
v_bfe_u32 v4, v1, 1, 3
v_xor_b32 v7, v7, v4
v_lshlrev_b32 v7, 4, v7
v_lshl_add_u32 v6, v6, 7, v7
s_lshr_b32 s13, s7, 1
s_lshl_b32 s13, s13, 13
v_add_u32 v2, s13, v6
v_lshlrev_b32 v6, 9, v1
v_and_b32 v6, 0x2000, v6
v_lshlrev_b32 v7, 5, v1
v_and_b32 v7, 0x580, v7
v_and_b32 v4, 3, v1
v_lshlrev_b32 v4, 3, v4
v_add3_u32 v6, v6, v7, v4
v_bfe_u32 v7, v1, 3, 2
s_and_b32 s13, s7, 1
s_lshl_b32 s13, s13, 1
v_xor_b32 v7, s13, v7
v_lshl_add_u32 v3, v7, 5, v6
""")
def h_addr(p):
    a(f"""
s_lshl_b32 s13, s10, 1
s_lshr_b32 s58, s7, 1
s_add_u32 s13, s13, s58
s_mul_i32 s13, s13, 56
s_lshl_b32 s58, s11, 1
s_add_u32 s13, s13, s58
s_and_b32 s58, s7, 1
s_add_u32 s13, s13, s58
s_lshr_b32 s58, s3, 2
s_mul_i32 s58, s58, 28
s_add_u32 s13, s13, s58
s_lshl_b32 s13, s13, 12
v_and_b32 v14, 15, v1
v_lshl_add_u32 v14, v14, 4, s13
v_bfe_u32 v15, v1, 4, 1
v_lshl_add_u32 v14, v15, 10, v14
v_lshrrev_b32 v15, 5, v1
v_lshl_add_u32 v14, v15, 8, v14
s_mov_b32 s62, {fbits(-LOG2E)}
""")
def nib(lst):
    v = 0
    for i, x in enumerate(lst): v |= (x // 16384) << (4*i)
    return "0x%x" % v
VADDR = lambda xs, ws: [f"v_add_u32 v6, {xs}, v2", f"v_add_u32 v4, {ws}, v3", "v_xor_b32 v7, 32, v6", "v_xor_b32 v5, 32, v4", "v_xor_b32 v8, 64, v6", "v_xor_b32 v9, 96, v6"]
SETA = ["s_and_b32 s13, s30, 15", "s_lshl_b32 s13, s13, 14", "s_lshr_b32 s30, s30, 4", "s_and_b32 s58, s31, 15", "s_lshl_b32 s58, s58, 14", "s_lshr_b32 s31, s31, 4"] + VADDR("s13", "s58")
def reads(hs, F):
    out = []
    for k2 in range(2):
        ks = 2*hs + k2
        A_ = lambda fa, hh: f"ds_read_b64_tr_b16 {vr(F+16*k2+4*fa+2*hh,2)}, v{4+fa} offset:{ks*2048+hh*512}"
        B_ = lambda tb: f"ds_read_b128 {vr(F+16*k2+8+4*tb,4)}, v{6+ks} offset:{tb*4096}"
        out += [A_(0,0), A_(0,1), B_(0), B_(1), A_(1,0), A_(1,1)]
    return out
def acc(n): return ACC + 16*n
def pass_resume(iters):
    a(f"s_mov_b32 s59, {iters}\ns_call_b64 s[100:101], k_pl")
    a.reset()
def pass_call(p, nbar, iters):
    a(f"""
s_mov_b32 s30, {nib(XA[1:]+[0])}
s_mov_b32 s31, {nib(WA[7*p+1:7*p+7]+[0])}
s_mov_b32 s43, {nbar}
s_mov_b32 s59, {iters}
s_call_b64 s[100:101], k_pass
""")
    a.reset()
def pass_first_addr(p):
    for x in VADDR(XA[0], WA[7*p]): a(x)
def emit_pass():
    def half(hs, first):
        F = FB[hs]; Fn = FB[hs ^ 1]
        mm = []
        for k2 in range(2):
            for fa in range(2):
                for tb in range(2):
                    d = vr(acc(2*fa+tb), 16)
                    mm.append(f"v_mfma_f32_32x32x16_bf16 {d}, {vr(F+16*k2+4*fa,4)}, {vr(F+16*k2+8+4*tb,4)}, " + ("0" if first and k2 == 0 else d))
        if first: a("s_waitcnt lgkmcnt(6)")
        else: a("s_waitcnt lgkmcnt(0)")
        if hs == 0:
            fill = reads(1, Fn) + SETA + ["s_cmp_eq_u32 s43, 0"]
        else:
            a(mm.pop(0))
            a("s_cbranch_scc1 k_pnb\ns_waitcnt vmcnt(0)\ns_barrier\ns_sub_u32 s43, s43, 1\nk_pnb:")
            fill = reads(0, Fn) + ["s_sub_u32 s59, s59, 1", "s_cmp_lg_u32 s59, 0"]
        for i, m in enumerate(mm):
            if first and i == 4: a("s_waitcnt lgkmcnt(12)")
            a(m)
            for _ in range(3 if (i < 4) else 4):
                if fill: a(fill.pop(0))
        for x in fill: a(x)
    a.raw(".p2align 6")
    a.label("k_pass"); a.reset()
    for r in reads(0, FB[0]): a(r)
    half(0, True)
    a("s_branch k_pm")
    a.raw(".p2align 6")
    a.label("k_pl")
    half(0, False)
    a.label("k_pm")
    half(1, False)
    a("s_cbranch_scc1 k_pl\ns_setpc_b64 s[100:101]")
def epi_list(n):
    Tm = TM + 8*(n & 1); R = acc(n); o = []
    for i in range(8): o.append(f"v_mul_f32 v{Tm+i}, s62, v{R+i}")
    for i in range(8): o += [f"v_exp_f32 v{Tm+i}, v{Tm+i}", f"v_mul_f32 v{R+i}, v{R+i}, v{R+8+i}"]
    for i in range(8): o.append(f"v_add_f32 v{Tm+i}, 1.0, v{Tm+i}")
    for i in range(8):
        o.append(f"v_rcp_f32 v{Tm+i}, v{Tm+i}")
        if i >= 2: o.append(f"v_mul_f32 v{R+i-2}, v{R+i-2}, v{Tm+i-2}")
    for i in (6, 7): o.append(f"v_mul_f32 v{R+i}, v{R+i}, v{Tm+i}")
    for i in range(4): o.append(f"v_cvt_pk_bf16_f32 v{R+8+i}, v{R+2*i}, v{R+2*i+1}")
    o.append(("st", n))
    return o
def hst(vm, n, tag):
    vm.op(f"global_store_dwordx4 v14, {vr(acc(n)+8,4)}, s[40:41] offset:{(n&1)*2048+(n>>1)*512} sc1", tag)
def run_epi(vm, lst, count):
    for _ in range(count):
        if not lst: return
        x = lst.pop(0)
        if isinstance(x, tuple): hst(vm, x[1], "st")
        else: a(x)
def pre_poll(base, off):
    a(f"s_load_dword s27, {base}, {off} glc")
def check(lbl, base, off, target, vt, sleep=1):
    a(f"""
s_mov_b32 s59, 0
{lbl}_l:
s_waitcnt lgkmcnt(0)
s_cmp_eq_u32 s27, {target}
s_cbranch_scc1 {lbl}_d
s_add_u32 s59, s59, 1
s_sleep {sleep}
s_cmp_lt_u32 s59, 256
s_cbranch_scc0 {lbl}_v
s_load_dword s27, {base}, {off} glc
s_branch {lbl}_l
{lbl}_v:
v_mov_b32 v{vt}, 0
global_load_dword v{vt}, v{vt}, {base} offset:{off} sc1
s_waitcnt vmcnt(0)
v_readfirstlane_b32 s27, v{vt}
s_cmp_lt_u32 s59, {SPIN}
s_cbranch_scc1 {lbl}_l
{lbl}_d:
""")
def own_line():
    a(f"""
s_lshl_b32 s13, s2, 7
s_add_u32 s13, s13, {FL}
s_add_u32 s28, s40, s13
s_addc_u32 s29, s41, 0
""")
def hsig_addr(v):
    a(f"""
s_lshl_b32 s13, s10, 1
s_and_b32 s58, s13, 3
s_lshl_b32 s58, s58, 3
s_lshr_b32 s13, s13, 2
s_add_u32 s13, s13, s58
s_lshl_b32 s13, s13, 7
s_add_u32 s13, s13, {FL}
v_lshrrev_b32 v{v}, 1, v1
v_lshlrev_b32 v{v}, 12, v{v}
v_and_b32 v{v+1}, 1, v1
v_lshl_add_u32 v{v}, v{v+1}, 10, v{v}
v_add_u32 v{v}, s13, v{v}
""")
def last_of4(lbl, cntoff, vt, body):
    a(f"""
v_mov_b32 v{vt}, {CNT+cntoff}
v_mov_b32 v{vt+1}, 1
s_mov_b64 exec, 1
ds_add_rtn_u32 v{vt+2}, v{vt}, v{vt+1}
s_waitcnt lgkmcnt(0)
v_readfirstlane_b32 s58, v{vt+2}
s_mov_b64 exec, -1
s_cmp_eq_u32 s58, 3
s_cbranch_scc0 {lbl}
""")
    body()

Z = lambda k: 20 + 2*k
Wp = lambda k: 50 + 2*k
E = lambda k: 68 + 2*k
Y_ = {1: 84, 2: 86, 4: 88, 8: 90}
T = lambda k: 92 + 2*k
CV = lambda k: 108 + (k & 7)
FE, FX0, FX1 = 116, 132, 148
PR = 176
vy = VM()
XV = 232
a(f"""
s_lshr_b32 s14, s7, 1
s_lshl_b32 s60, s2, 1
s_add_u32 s60, s60, s14              ; channel
s_lshl_b32 s13, s60, 9
s_and_b32 s14, s7, 1
s_lshl_b32 s14, s14, 7
s_add_u32 s13, s13, s14
s_lshr_b32 s14, s3, 2
s_lshl_b32 s14, s14, 8
s_add_u32 s13, s13, s14
v_lshl_add_u32 v8, v1, 1, s13
s_lshl_b32 s14, s60, 1
v_mov_b32 v9, s14
""")
P7 = [239, 11, 12, 216, 217, 218, 238]
for r in P7: a(f"v_mov_b32 v{r}, 0")
a(f"""
v_xor_b32 v23, v22, v21
v_xor_b32 v24, 4, v23
s_lshl_b32 s13, s7, 5
v_add_u32 v25, s13, v20
v_mul_u32_u24 v25, 896, v25
v_lshl_add_u32 v{XV}, v23, 4, v25
v_lshl_add_u32 v{XV+1}, v24, 4, v25
v_add_u32 v{XV+1}, 6144, v{XV+1}
v_add_u32 v{XV+2}, 12288, v{XV}
v_add_u32 v{XV+3}, 12288, v{XV+1}
s_lshl_b32 s14, s7, 12
s_lshl_b32 s56, s42, 7
s_mul_i32 s57, s42, 229376
s_mul_i32 s13, s10, 114688
s_mov_b32 s46, 114688
s_mov_b32 s47, 0x20000
s_mul_i32 s63, s3, 4608
s_waitcnt lgkmcnt(0)
""")
stamp(1)
a("global_load_short_d16_hi v238, v9, s[30:31]")
for r, p in zip(P7[:6], range(18, 30, 2)):
    a(f"global_load_short_d16_hi v{r}, v8, s[{p}:{p+1}] {OPT['ntp']}")
a("""
s_mov_b32 s48, s32
s_mov_b32 s49, s33
s_mov_b32 s52, s34
s_mov_b32 s53, s35
s_add_u32 s44, s16, s13
s_addc_u32 s45, s17, 0
s_cmp_lt_u32 s3, 4
s_cbranch_scc1 k_x0
""")
dmaw(vy, 0); dmax(vy, 0)
if OPT["w1"]: dmaw(vy, 1)
a("""
s_branch k_w0
k_x0:
s_load_dwordx2 s[4:5], s[0:1], 64
s_add_u32 s57, s42, 2
s_sub_u32 s13, s57, 7
s_cmp_ge_u32 s57, 7
s_cselect_b32 s57, s13, s57
s_mul_i32 s57, s57, 229376
k_w0:
v_and_b32 v4, 15, v1                 ; c
v_lshlrev_b32 v5, 2, v21             ; 4g
v_lshlrev_b32 v6, 6, v21             ; 64g
v_lshl_add_u32 v247, v4, 4, v5
v_lshl_add_u32 v248, v4, 3, v5
v_lshl_add_u32 v249, v4, 2, v6
v_cmp_gt_u32 vcc, 2, v21
v_cndmask_b32 v248, v249, v248, vcc
v_lshl_add_u32 v249, v4, 1, v6
v_lshl_add_u32 v247, v247, 2, s63
v_lshl_add_u32 v248, v248, 2, s63
v_lshl_add_u32 v249, v249, 2, s63
""")
pass_addrs()
h_addr(0)
own_line()
if OPT["warm"]:
    a("s_mov_b64 exec, 0")
    for w in range(1, 8): a(f"s_cmp_eq_u32 s3, {w}\ns_cbranch_scc1 k_sec{w}")
    a("s_branch k_kg\nk_wd:")
    for w in range(4):
        a(f"s_cmp_eq_u32 s3, {w}\ns_cbranch_scc0 k_we{w}\ns_call_b64 s[100:101], k_epi{w}\nk_we{w}:")
    a("s_cmp_eq_u32 s3, 3\ns_cbranch_scc0 k_wp\ns_mov_b32 s43, 0\ns_mov_b32 s59, 1\ns_call_b64 s[100:101], k_pass\nk_wp:")
    a("s_mov_b64 exec, -1")
a("""
s_cmp_lt_u32 s3, 4
s_cbranch_scc1 k_x1
s_waitcnt vmcnt(XXN)
s_branch k_kg
k_x1:
v_mov_b32 v244, 0
s_waitcnt lgkmcnt(0)
global_load_short_d16_hi v244, v9, s[4:5]
XTOUCH
k_kg:
""".replace("XXN", str(len(vy.q))).replace("XTOUCH", ["s_waitcnt vmcnt(1)",
"""s_lshl_b32 s13, s2, 1
s_lshr_b32 s58, s7, 1
s_add_u32 s13, s13, s58
s_mul_i32 s13, s13, 14
v_min_u32 v4, 13, v1
v_add_lshl_u32 v4, v4, s13, 8
s_bitcmp1_b32 s7, 0
s_cselect_b32 s58, s34, s32
s_cselect_b32 s59, s35, s33
global_load_dword v0, v4, s[58:59] offset:128
s_waitcnt vmcnt(2)"""][OPT["xt"]]))
secn = [0]
def sec():
    if OPT["warm"]:
        secn[0] += 1
        a("s_cbranch_execz k_wd")
        if secn[0] < 8: a.label(f"k_sec{secn[0]}")
a.reset()
stamp(2)
a(f"""
s_mov_b32 m0, s63
v_mul_f32 v16, {fbits(LOG2E)}, v238
v_exp_f32 v16, v16
v_and_b32 v18, 15, v1
v_mul_u32_u24 v18, 288, v18
v_and_b32 v19, 48, v1
v_add3_u32 v18, v18, v19, s63
v_cvt_pk_bf16_f32 v16, v16, v16
v_and_b32 v16, 0xffff0000, v16
v_mul_f32 v8, {fbits(LOG2E)}, v16
v_mul_f32 v9, 0.15915494, v16
v_mul_f32 v17, v239, v8
v_mul_f32 v11, v11, v9
v_mul_f32 v12, v12, v16
v_mul_f32 v216, v216, v16
v_mul_f32 v{E(0)}, v217, v12
v_mul_f32 v{E(0)+1}, v217, v216
v_fma_f32 v{E(0)}, -v218, v216, v{E(0)}
v_fma_f32 v{E(0)+1}, -v218, v12, -v{E(0)+1}
""")
ydn = [0]
def ydma(fn):
    ydn[0] += 1
    a(f"s_cmp_lt_u32 s3, 4\ns_cbranch_scc1 k_yd{ydn[0]}")
    fn()
    a(f"s_mov_b32 m0, s63\nk_yd{ydn[0]}:")
anc = [(Y_[1], 16.0, True), (Z(1), 1.0, False), (Wp(1), 256.0, False)]
for n, (d, p, cj) in enumerate(anc):
    if p != 1.0: a(f"v_mul_f32 v{T(n)}, {fbits(p)}, v17\nv_mul_f32 v{T(n)+1}, {fbits(p)}, v11")
for n, (d, p, cj) in enumerate(anc):
    if p == 1.0: a(f"v_exp_f32 v{T(n)}, v17\nv_fract_f32 v{T(n)+1}, v11")
    else: a(f"v_exp_f32 v{T(n)}, v{T(n)}\nv_fract_f32 v{T(n)+1}, v{T(n)+1}")
for n, (d, p, cj) in enumerate(anc):
    a(f"v_cos_f32 v{d}, v{T(n)+1}\nv_sin_f32 v{d+1}, v{T(n)+1}")
for n, (d, p, cj) in enumerate(anc):
    a(f"v_pk_mul_f32 {vr(d,2)}, {vr(d,2)}, {vr(T(n),2)} op_sel_hi:[1,0]" + (" neg_hi:[1,0]" if cj else ""))
cnt = [0]
def puts(lst):
    cs = []
    for row, src in lst:
        c = CV(cnt[0]); cnt[0] += 1; cs.append(c)
        if src is None: a(f"v_mov_b32 v{c}, 0x3f80")
        else: a(f"v_cvt_pk_bf16_f32 v{c}, v{src}, v{src+1}")
    for (row, src), c in zip(lst, cs):
        a(f"ds_write_addtid_b32 v{c} offset:{row*288}")
def putl(lst):
    for i in range(0, len(lst), 4): puts(lst[i:i+4])
def frags(F):
    for s in range(4): a(f"ds_read_b128 {vr(F+4*s,4)}, v18 offset:{s*64}")
def mf(tau, F):
    for s in range(4):
        a(f"v_mfma_f32_16x16x32_bf16 {vr(KA+4*tau,4)}, {vr(F+4*s,4)}, {vr(FE+4*s,4)}, " + ("0" if s == 0 else vr(KA+4*tau,4)))
Y = Y_
cmuls([(Y[2], Y[1], Y[1]), (E(1), E(0), Y[1]), (Z(2), Z(1), Z(1)), (Wp(2), Wp(1), Wp(1))])
cmuls([(Y[4], Y[2], Y[2]), (E(2), E(0), Y[2]), (E(3), E(1), Y[2]), (Z(3), Z(2), Z(1)), (Z(4), Z(2), Z(2)), (Wp(3), Wp(2), Wp(1)), (Wp(4), Wp(2), Wp(2))])
sec()
putl([(i, E(i)) for i in range(4)])
cmuls([(Y[8], Y[4], Y[4])] + [(E(4+i), E(i), Y[4]) for i in range(4)])
putl([(i, E(i)) for i in range(4, 8)])
cmuls([(T(i), E(i), Y[8]) for i in range(4)])
sec()
putl([(8+i, T(i)) for i in range(4)])
cmuls([(T(i), E(i), Y[8]) for i in range(4, 8)])
putl([(8+i, T(i)) for i in range(4, 8)])
frags(FE)
sec()
putl([(0, None)] + [(i, Z(i)) for i in range(1, 4)])
cmuls([(Z(5), Z(4), Z(1)), (Z(6), Z(4), Z(2)), (Z(7), Z(4), Z(3)), (Z(8), Z(4), Z(4))])
putl([(i, Z(i)) for i in range(4, 8)])
cmuls([(Z(8+i), Z(8), Z(i)) for i in range(1, 4)])
sec()
putl([(i, Z(i)) for i in range(8, 12)])
cmuls([(Z(8+i), Z(8), Z(i)) for i in range(4, 8)])
putl([(i, Z(i)) for i in range(12, 16)])
frags(FX0)
sec()
cmuls([(T(r), Wp(1), Z(2*r)) for r in range(1, 4)])
putl([(0, Wp(1))] + [(r, T(r)) for r in range(1, 4)])
cmuls([(T(r), Wp(1), Z(2*r)) for r in range(4, 8)])
putl([(r, T(r)) for r in range(4, 8)])
sec()
cmuls([(T(j-1), Wp(2), Z(4*j)) for j in (1, 2, 3)])
a("s_waitcnt lgkmcnt(8)")
mf(0, FX0)
putl([(8, Wp(2))] + [(8+j, T(j-1)) for j in (1, 2, 3)])
cmuls([(T(2+j), Wp(3), Z(4*j)) for j in (1, 2, 3)])
putl([(12, Wp(3))] + [(12+j, T(2+j)) for j in (1, 2, 3)])
frags(FX1)
sec()
cmuls([(Wp(5), Wp(4), Wp(1)), (Wp(6), Wp(4), Wp(2)), (Wp(7), Wp(4), Wp(3)), (Wp(8), Wp(4), Wp(4))])
putl([(2*h, Wp(4+h)) for h in range(5)])
cmuls([(T(h), Wp(4+h), Z(8)) for h in range(4)])
putl([(2*h+1, T(h)) for h in range(4)])
frags(FX0)
a("s_waitcnt lgkmcnt(13)")
mf(1, FX1)
a("s_waitcnt lgkmcnt(0)")
mf(2, FX0)
a(f"""
ds_write_b128 v247, {vr(KA,4)} offset:64
ds_write_b128 v248, {vr(KA+4,4)} offset:{64+1024}
s_lshr_b32 s13, s7, 1
s_mul_i32 s24, s13, {CS[1]-CS[0]}
s_add_u32 s24, s24, {CS[0]}
s_and_b32 s61, s7, 1                 ; parity
ds_write_b64 v249, {vr(KA+8,2)} offset:{64+2048}
ds_write_b64 v249, {vr(KA+10,2)} offset:{64+2048+128}
""")
sec()
a("""
s_cmp_ge_u32 s3, 4
s_cbranch_scc1 k_y
""")
vx = VM()
stamp(3)
a(f"""
s_mov_b32 s14, s24
v_and_b32 v20, 15, v1
v_lshrrev_b32 v21, 4, v1
v_or_b32 v24, 1, v20
v_lshlrev_b32 v25, 3, v21
v_sub_u32 v24, v25, v24
v_lshlrev_b32 v24, 1, v24
v_and_b32 v25, 1, v1
v_mul_u32_u24 v25, 4160, v25
v_sub_u32 v24, v24, v25
v_add_u32 v24, s14, v24
v_add_u32 v216, {4160+2*2031-512}, v24
v_add_u32 v217, {4160+2*2031-512*3}, v24
v_add_u32 v218, {4160+2*2031-512*5}, v24
v_add_u32 v219, {4160+2*2031-512*7}, v24
v_lshlrev_b32 v22, 5, v20
v_lshl_add_u32 v221, v21, 3, v22     ; 32j+8g
v_lshl_add_u32 v22, v21, 4, v22
v_add_u32 v22, s14, v22
v_add_u32 v220, {8832-32}, v22       ; B addr
s_mul_i32 s13, s60, {UTP}
s_add_u32 s13, s13, {UT}
v_add_u32 v222, s13, v10
v_add_u32 v223, s14, v10
s_and_b32 s13, s2, 7
s_lshl_b32 s13, s13, 2
s_add_u32 s13, s13, s8
s_lshl_b32 s13, s13, 8
s_lshl_b32 s58, s7, 6
s_add_u32 s13, s13, s58
s_add_u32 s13, s13, {GG}
v_lshlrev_b32 v225, 2, v20
v_add_u32 v224, s13, v225            ; g global
s_add_u32 s58, s58, {GL}
v_add_u32 v225, s58, v225            ; g LDS
""")
hsig_addr(226)
a("v_mov_b32 v227, 1")
pass_first_addr(0)
a("s_waitcnt lgkmcnt(0)")
stamp(1)
bar(0)
stamp(4)
pass_call(0, 7, 7)
stamp(6)
dmaw(vx, 9)
CA = 48
a("s_waitcnt lgkmcnt(0)")
for r in range(CA, CA+16): a(f"v_mov_b32 v{r}, 0")
EL = epi_list(0) + epi_list(1) + epi_list(2) + epi_list(3)
bar(8)
dmaw(vx, 10)
run_epi(vx, EL, OPT["xs1"])
dmaw(vx, 11)
vx.wait("W9")
bar(9)
dmaw(vx, 12)
run_epi(vx, EL, OPT["xs2"])
dmaw(vx, 13)
vx.wait("W10")
bar(10)
pre_poll("s[28:29]", 0)
run_epi(vx, EL, OPT["xs3"])
a(f"v_mov_b32 v40, {CNT}\nds_write_b128 v40, {vr(CA,4)}")
vx.wait("W13", extra=" lgkmcnt(0)")
stamp(7)
bar(11)
stamp(8)
if OPT["xprio"]: a(f"s_setprio {OPT['xprio']}")
check("k_c1", "s[28:29]", 0, 32, 13)
for i in range(4): vx.op(f"global_load_dwordx4 {vr(16+4*i,4)}, v222, s[40:41] offset:{i*1024} sc1", "u")
vx.op("global_load_dword v15, v224, s[40:41] sc1", "u")
run_epi(vx, EL, 50)
vx.wait("u")
for i in range(4): a(f"ds_write_b128 v223, {vr(16+4*i,4)} offset:{8832+i*1024}")
a("ds_write_b32 v225, v15\nds_read_b32 v41, v40")
run_epi(vx, EL, 999)
a(f"""
s_mov_b32 s59, {SPIN}
k_ps:
s_waitcnt lgkmcnt(0)
v_readfirstlane_b32 s58, v41
s_cmp_eq_u32 s58, 4
s_cbranch_scc1 k_psd
ds_read_b32 v41, v40
s_sub_u32 s59, s59, 1
s_cmp_lg_u32 s59, 0
s_cbranch_scc1 k_ps
k_psd:
s_waitcnt vmcnt(0)
s_mov_b64 exec, 0x3fff
global_atomic_add v226, v227, s[40:41] offset:4 sc1
s_mov_b64 exec, -1
""")
stamp(9)
a(f"s_setprio {OPT['cprio']}")
a("""
s_cmp_eq_u32 s61, 0
s_cbranch_scc0 k_set1
""")
FBUF = [88, 152]
def creads(F, amax):
    out = []
    for i in range(amax+1):
        o = 0 if (i & 1) else 128
        out.append(f"ds_read_b128 {vr(F+32+4*i,4)}, v220 offset:{512*i}")
        out.append(f"ds_read2_b32 {vr(F+4*i,2)}, v{216+(i>>1)} offset0:{o} offset1:{o+1}")
        out.append(f"ds_read2_b32 {vr(F+4*i+2,2)}, v{216+(i>>1)} offset0:{o+2} offset1:{o+3}")
    out += [f"v_subrev_u32 v{r}, 64, v{r}" for r in (216, 217, 218, 219, 220)]
    return out
for sidx, cbs in enumerate(((0, 3, 4, 7), (1, 2, 5, 6))):
    if sidx == 1:
        a.label("k_set1"); a.reset()
    amax = max(cbs)
    for x in creads(FBUF[0], amax): a(x)
    a("s_mov_b32 s21, 4")
    a.label(f"k_cl{sidx}")
    for half in range(2):
        F = FBUF[half]
        a("s_waitcnt lgkmcnt(0)")
        lists = [[(n, aa, cb-aa) for aa in range(cb+1)] for n, cb in enumerate(cbs)]
        order = []
        while any(lists):
            for L in sorted(lists, key=lambda L: -len(L)):
                if L: order.append(L.pop(0))
        fill = creads(FBUF[half ^ 1], amax)
        for k, (n, aa, bb) in enumerate(order):
            d = vr(CA+4*n, 4)
            a(f"v_mfma_f32_16x16x32_bf16 {d}, {vr(F+4*aa,4)}, {vr(F+32+4*bb,4)}, {d}")
            for _ in range(2):
                if fill: a(fill.pop(0))
        for x in fill: a(x)
    a(f"""
s_sub_u32 s21, s21, 1
s_cmp_lg_u32 s21, 0
s_cbranch_scc1 k_cl{sidx}
v_add_u32 v26, s14, v221
""")
    stamp(10)
    for n, cb in enumerate(cbs): a(f"ds_read_b64 {vr(32+2*n,2)}, v26 offset:{8832+512*cb}")
    a(f"""
s_mul_i32 s15, s60, {UTP}
s_add_u32 s15, s15, {AT}
v_add_u32 v27, s15, v221
s_waitcnt lgkmcnt(0)
""")
    for n, cb in enumerate(cbs):
        R = CA+4*n
        a(f"""
v_lshlrev_b32 v40, 16, v{32+2*n}
v_and_b32 v41, 0xffff0000, v{32+2*n}
v_lshlrev_b32 v42, 16, v{33+2*n}
v_and_b32 v43, 0xffff0000, v{33+2*n}
v_fmac_f32 v{R}, v40, v244
v_fmac_f32 v{R+1}, v41, v244
v_fmac_f32 v{R+2}, v42, v244
v_fmac_f32 v{R+3}, v43, v244
v_cvt_pk_bf16_f32 v{R}, v{R}, v{R+1}
v_cvt_pk_bf16_f32 v{R+1}, v{R+2}, v{R+3}
global_store_dwordx2 v27, {vr(R,2)}, s[40:41] offset:{512*cb} sc1
""")
    if sidx == 0: a("s_branch k_pub")
a.label("k_pub"); a.reset()
a(f"""
s_setprio 0
s_lshr_b32 s15, s2, 5
s_lshl_b32 s15, s15, 12
s_add_u32 s15, s15, {FL}
v_lshl_add_u32 v26, v1, 7, s15
s_waitcnt vmcnt(0)
""")
stamp(11)
def sig4():
    a(f"""
s_mov_b32 exec_hi, 0
global_atomic_add v26, v29, s[40:41] offset:12 sc1
s_mov_b64 exec, -1
v_lshrrev_b32 v14, 3, v1
v_and_b32 v15, 7, v1
v_lshlrev_b32 v15, 4, v15
v_mul_u32_u24 v16, {UTP}, v14
v_mul_u32_u24 v17, {ATPI}, v14
s_mul_i32 s15, s12, {64*UTP}
s_and_b32 s13, s2, 7
s_lshl_b32 s13, s13, 2
s_add_u32 s13, s13, s8
s_lshl_b32 s13, s13, 7
s_add_u32 s15, s15, s13
s_add_u32 s15, s15, {AT}
v_add3_u32 v16, v16, v15, s15
v_add_u32 v17, v17, v15
v_add_u32 v17, {CS[0]}, v17
s_mov_b32 s27, 0
""")
    check("k_c4", "s[28:29]", 12, 32, 13, sleep=2)
    stamp(12)
    for i in range(8):
        a(f"global_load_dwordx4 {vr(32+4*i,4)}, v16, s[40:41] sc1")
        if i < 7: a(f"v_add_u32 v16, {8*UTP}, v16")
    for i in range(8):
        a(f"s_waitcnt vmcnt({7-i})")
        a(f"ds_write_b128 v17, {vr(32+4*i,4)} offset:{8*i*ATPI}")
last_of4("k_fw0" if OPT["fwarm"] else "k_final", 12, 28, sig4)
a("s_branch k_final")

a.label("k_spare"); a.reset()
a(f"""
s_sub_u32 s6, s2, 224                ; r
s_lshl_b32 s13, s6, 3
s_add_u32 s13, s13, s3               ; u 0..255
s_mov_b32 s59, s13
s_mul_i32 s60, s13, 7168             ; x rows 8u..8u+7
s_mul_i32 s61, s3, {8*912}
v_min_u32 v5, 48, v1
s_lshr_b32 s14, s13, 1
s_mul_i32 s14, s14, 49
v_add_lshl_u32 v6, v5, s14, 8
s_mul_i32 s14, s13, 49
v_add_lshl_u32 v5, v5, s14, 7
v_mov_b64 v[24:25], 0
v_mov_b64 v[26:27], 0
s_mul_i32 s14, s6, 896
s_add_u32 s14, s14, {FL}
v_min_u32 v13, 880, v10
v_add_u32 v13, s14, v13
v_mov_b32 v7, 1
s_lshl_b32 s13, s8, 3
s_add_u32 s13, s13, s3
s_lshr_b32 s14, s13, 1
s_mul_i32 s14, s14, 28
v_add_u32 v2, s14, v20
v_min_u32 v3, 6, v22
v_lshlrev_b32 v3, 8, v3
s_mul_i32 s14, s9, 1792
s_add_u32 s14, s14, 128
v_add_u32 v3, s14, v3
s_and_b32 s13, s13, 1
s_cmp_eq_u32 s13, 0
s_waitcnt lgkmcnt(0)
s_cselect_b32 s44, s32, s34
s_cselect_b32 s45, s33, s35
s_cmp_eq_u32 s3, 0
s_cbranch_scc0 k_r0
global_store_dwordx4 v13, v[24:27], s[40:41] sc1
s_waitcnt vmcnt(0)
s_mov_b64 exec, 1
global_atomic_add v24, v7, s[98:99] sc1
s_mov_b64 exec, -1
k_r0:
s_mov_b32 s48, s16
s_mov_b32 s49, s17
s_mov_b32 s50, 1835008
s_mov_b32 exec_hi, 0x00ffffff
""")
P = 912
for r in range(8):
    a(f"s_add_u32 m0, s61, {r*P}\ns_add_u32 s58, s60, {r*896}\nbuffer_load_dwordx4 v10, s[48:51], s58 offen lds")
a("s_mov_b32 exec_hi, -1\nv_lshlrev_b32 v30, 4, v22")
for i in range(7): a(f"global_load_dwordx4 {vr(64+4*i,4)}, v30, s[38:39] offset:{i*128}")
ntouch = 0
a(f"""
v_mul_u32_u24 v31, {P}, v20
v_add3_u32 v31, v31, v30, s61
v_and_b32 v48, 3, v1
v_lshrrev_b32 v49, 5, v1
v_lshl_add_u32 v48, v49, 2, v48
v_bfe_u32 v49, v1, 2, 2
v_lshl_add_u32 v48, v48, 3, v49
v_mul_u32_u24 v48, {P}, v48
v_bfe_u32 v49, v1, 4, 1
v_lshl_add_u32 v48, v49, 3, v48
s_mul_i32 s13, s3, 112
v_add_u32 v48, s13, v48
v_and_b32 v49, 4, v1
v_lshlrev_b32 v49, 3, v49
v_and_b32 v50, 32, v1
v_lshrrev_b32 v50, 1, v50
v_and_b32 v51, 3, v1
v_lshlrev_b32 v51, 2, v51
v_add3_u32 v49, v49, v50, v51
v_bfe_u32 v50, v1, 3, 2
v_add_lshl_u32 v49, v49, v50, 2
; store: d = 56w + 8X + (l>>3) ; t0 = 64r
s_mul_i32 s13, s3, 56
v_add_u32 v50, s13, v20
v_mul_u32_u24 v50, {UTP}, v50
s_lshl_b32 s13, s6, 7
s_add_u32 s13, s13, {UT}
v_add3_u32 v50, v50, v30, s13
s_waitcnt vmcnt({ntouch})
""")
for i in range(7): a(f"ds_read_b128 {vr(96+4*i,4)}, v31 offset:{i*128}")
a("s_barrier")
stamp(1)
a("v_mov_b32 v8, v5")
for X in range(7):
    a(f"ds_read_b64_tr_b16 {vr(128+4*X,2)}, v48 offset:{X*16}\nds_read_b64_tr_b16 {vr(130+4*X,2)}, v48 offset:{X*16+4*P}")
a("v_mov_b64 v[60:61], 0\ns_waitcnt lgkmcnt(14)")
for i in range(28): a(f"v_dot2c_f32_bf16 v{60+(i&1)}, v{96+i}, v{64+i}")
a("s_waitcnt lgkmcnt(0)")
for X in range(7):
    for q in range(4): a(f"ds_bpermute_b32 v{160+4*X+q}, v49, v{128+4*X+q}")
    if X >= 2:
        a(f"s_waitcnt lgkmcnt(8)\nglobal_store_dwordx4 v50, {vr(160+4*(X-2),4)}, s[40:41] sc1\nv_add_u32 v50, {8*UTP}, v50")
for X in (5, 6):
    a(f"s_waitcnt lgkmcnt({4*(6-X)})\nglobal_store_dwordx4 v50, {vr(160+4*X,4)}, s[40:41] sc1\nv_add_u32 v50, {8*UTP}, v50")
a(f"""
v_add_f32 v60, v60, v61
v_add_f32_dpp v60, v60, v60 quad_perm:[1,0,3,2] row_mask:0xf bank_mask:0xf
v_add_f32_dpp v60, v60, v60 quad_perm:[2,3,0,1] row_mask:0xf bank_mask:0xf
v_add_f32_dpp v60, v60, v60 row_half_mirror row_mask:0xf bank_mask:0xf
v_cvt_pk_bf16_f32 v60, v60, v60
v_and_b32 v60, 0xffff0000, v60
v_mul_f32 v60, {fbits(-LOG2E)}, v60
v_exp_f32 v60, v60
v_add_f32 v60, 1.0, v60
v_rcp_f32 v60, v60
v_cvt_pk_bf16_f32 v60, v60, v60
v_and_b32 v60, 0xffff0000, v60
v_sub_f32 v61, 1.0, v60
v_cvt_pk_bf16_f32 v60, v60, v61
s_lshl_b32 s13, s59, 5
s_add_u32 s13, s13, {GG}
v_lshl_add_u32 v54, v20, 2, s13
global_store_dword v54, v60, s[40:41] sc1
v_min_u32 v5, 55, v1
s_mul_i32 s13, s7, 56
v_add_lshl_u32 v5, v5, s13, 7
v_add_u32 v5, {FL}, v5
global_load_dword v6, v24, s[98:99] sc1
s_waitcnt vmcnt(0)
s_barrier
""")
stamp(2)
a(f"""
s_cmp_lt_u32 s3, 4
s_cbranch_scc0 k_r2
s_mov_b32 s59, {SPIN}
k_r1:
v_readfirstlane_b32 s58, v6
s_cmp_ge_u32 s58, 32
s_cbranch_scc1 k_r1d
s_sub_u32 s59, s59, 1
s_cmp_eq_u32 s59, 0
s_cbranch_scc1 k_r1d
global_load_dword v6, v24, s[98:99] sc1
s_waitcnt vmcnt(0)
s_branch k_r1
k_r1d:
s_mov_b32 exec_hi, 0x00ffffff
global_atomic_add v5, v7, s[40:41] sc1
s_mov_b32 exec_hi, -1
k_r2:
global_load_dword v0, v8, s[36:37]
""")
stamps_out(15)
a("s_endpgm")

a.label("k_y"); a.reset()
stamp(1)
vy.wait("X0", extra=" lgkmcnt(0)")
stamp(3)
bar(0)
stamp(4)
if not OPT["w1"]: dmaw(vy, 1)
dmax(vy, 1); dmaw(vy, 2); dmax(vy, 2)
a("""
s_and_b32 s13, s7, 2
s_mul_i32 s13, s13, 4608
v_add_u32 v16, s13, v10
v_lshl_add_u32 v17, v1, 3, s13
v_lshl_add_u32 v18, v1, 2, s13
""")
vy.wait("X1")
bar(1)
dmaw(vy, 3)
G = lambda w: 32 + 16*w
def gather(w):
    o = (0, 4608, 18432, 23040)[w] + 64; R = G(w)
    a(f"""
ds_read_b128 {vr(R,4)}, v16 offset:{o}
ds_read_b64 {vr(R+4,2)}, v17 offset:{o+1024}
ds_read_b64 {vr(R+6,2)}, v17 offset:{o+1536}
ds_read_b32 v{R+8}, v16 offset:{o-4}
ds_read_b32 v{R+9}, v17 offset:{o+1032}
ds_read_b32 v{R+10}, v17 offset:{o+1020}
ds_read_b32 v{R+11}, v17 offset:{o+1544}
ds_read_b32 v{R+12}, v18 offset:{o+2048}
ds_read_b32 v{R+13}, v18 offset:{o+2052}
ds_read_b32 v{R+14}, v18 offset:{o+2304}
ds_read_b32 v{R+15}, v18 offset:{o+2308}
""")
gather(3); gather(2)
dmax(vy, 3)
vy.wait("X2", extra=" lgkmcnt(0)")
bar(2)
dmaw(vy, 4)
gather(0); gather(1)
dmax(vy, 4)
vy.wait("X3", extra=" lgkmcnt(0)")
bar(3)
dmaw(vy, 5)
for i in range(16): a(f"v_add_f32 v{G(0)+i}, v{G(0)+i}, v{G(1)+i}\nv_add_f32 v{G(2)+i}, v{G(2)+i}, v{G(3)+i}")
dmax(vy, 5)
vy.wait("X4")
bar(4)
stamp(5)
dmaw(vy, 6)
for i in range(16): a(f"v_add_f32 v{G(0)+i}, v{G(0)+i}, v{G(2)+i}")
k0,k1,k2,k3,a1,b1,a2,b2,km,c1,pp,c2,a3,b3,a4,b4 = range(32, 48)
EW = 204
def cv(i, lo, hi): a(f"v_cvt_pk_bf16_f32 v{EW+i}, v{lo}, v{hi}")
a(f"""
v_and_b32 v19, 1, v1
v_cmp_eq_u32 vcc, 0, v19
v_cndmask_b32 v48, v{b3}, v{a3}, vcc
v_cndmask_b32 v49, v{b4}, v{a4}, vcc
v_cmp_ne_u32 vcc, 0, v1
v_cndmask_b32 v{km}, 0, v{km}, vcc
v_cndmask_b32 v{pp}, v{pp}, v{a1}, vcc
""")
dmax(vy, 6)
a("s_load_dword s27, s[98:99], 0")
vy.wait("X5")
bar(5)
dmaw(vy, 7)
cv(5, b2, b2); cv(7, a2, a2); cv(8, b3, b3); cv(10, a3, a3); cv(11, a3, a3); cv(12, b4, b4); cv(14, a4, a4); cv(15, a4, a4)
a("s_cmp_eq_u32 s61, 0\ns_cbranch_scc0 k_eo")
cv(0, k3, k2); cv(1, k1, k0); cv(2, c1, b1); cv(3, a1, a1); cv(4, c2, c2); cv(6, b2, a2); cv(9, b3, 48); cv(13, b4, 49)
a("s_branch k_ew\nk_eo:")
cv(0, k2, k1); cv(1, k0, km); cv(2, b1, a1); cv(3, a1, pp); cv(4, c2, b2); cv(6, a2, a2); cv(9, 48, a3); cv(13, 49, a4)
a("k_ew:")
pass_first_addr(1)
a(f"""
v_lshrrev_b32 v20, 3, v1
v_and_b32 v22, 7, v1
v_mul_u32_u24 v160, 896, v20
v_and_b32 v161, 6, v20
v_xor_b32 v161, v161, v22
v_lshl_add_u32 v160, v161, 4, v160
v_add_u32 v161, 6144, v160
v_add_u32 v162, 12288, v160
v_add_u32 v163, 18432, v160
v_bfe_u32 v164, v1, 2, 3
v_lshlrev_b32 v164, 7, v164
v_lshrrev_b32 v165, 5, v1
v_lshl_add_u32 v164, v165, 11, v164
v_bfe_u32 v165, v1, 3, 2
v_lshl_add_u32 v164, v165, 5, v164
v_and_b32 v165, 3, v1
v_lshl_add_u32 v164, v165, 3, v164
v_add_u32 v164, s14, v164
v_xor_b32 v165, 32, v164
v_xor_b32 v166, 64, v164
v_xor_b32 v167, 96, v164
s_and_b32 s9, s2, 7
s_lshl_b32 s9, s9, 2
s_add_u32 s9, s9, s8               ; rb64
s_mul_i32 s13, s9, 229376
s_mul_i32 s58, s7, 28672
s_add_u32 s13, s13, s58
s_add_u32 s16, s40, s13
s_addc_u32 s17, s41, 0
s_mov_b32 s18, {114688+28672}
s_mov_b32 s19, 0x20000
s_mov_b32 s20, s36
s_mov_b32 s21, s37
s_mov_b32 s22, 1605632
s_mov_b32 s23, 0x20000
s_mul_i32 s25, s7, 7
s_lshl_b32 s26, s12, 7               ; cb*128
""")
if not OPT["rot2"]: a("s_mov_b32 s42, 0")
vy.wait("X6", extra=" lgkmcnt(0)")
bar(6)
dmaw(vy, 8)
a(f"""
s_mul_i32 s13, s61, 4160
s_add_u32 s13, s13, s24
v_lshlrev_b32 v220, 3, v1
v_sub_u32 v220, s13, v220
v_sub_u32 v221, s13, v10
v_min_u32 v48, 39, v1
v_lshlrev_b32 v48, 4, v48
v_add_u32 v222, 8256, v48
v_add_u32 v50, {4096-36*16}, v48
v_cmp_gt_u32 vcc, 36, v1
v_cndmask_b32 v222, v50, v222, vcc
v_add_u32 v222, s24, v222
v_mov_b32 v224, 0
v_mov_b32 v225, 0
v_mov_b32 v226, 0
v_mov_b32 v227, 0
v_mov_b32 v52, 0
s_mov_b32 s59, {SPIN}
k_c0_l:
s_cmp_ge_u32 s27, 32
s_cbranch_scc1 k_c0_d
s_sub_u32 s59, s59, 1
s_cmp_eq_u32 s59, 0
s_cbranch_scc1 k_c0_d
s_sleep 4
global_load_dword v53, v52, s[98:99] sc1
s_waitcnt vmcnt(0)
v_readfirstlane_b32 s27, v53
s_branch k_c0_l
k_c0_d:
""")
hsig_addr(12)
a(f"""
v_mov_b32 v168, {CNT}
v_mov_b32 v169, 1
s_add_u32 s61, s26, 57344
""")
vy.wait("W7")
bar(7)
stamp(6)
vg = VM()
ACC2 = 16; AF = [172, 188]; RING = [204, 220, 236, 80, 96, 112, 144]
def rot_(i): return [f"s_add_u32 s58, s42, {i}", "s_sub_u32 s59, s58, 7", "s_min_u32 s58, s58, s59"]
def ldw_l(n):
    p, i = divmod(n, 7)
    o = rot_(i) + ["s_add_u32 s58, s58, s25", "s_lshr_b32 s59, s58, 1", "s_mul_i32 s59, s59, 114688", "s_and_b32 s58, s58, 1", "s_mul_i32 s58, s58, 28672",
         "s_add_u32 s58, s58, s59", f"s_add_u32 m0, s14, {RSL[i]}", f"s_add_u32 s60, s58, s{26 if p == 0 else 61}"]
    return ["\n".join(o)] + [(f"buffer_load_dwordx4 v{160+k}, s[20:23], s60 offen offset:{k*1024} lds", f"w{n}") for k in range(4)]
def ldh_l(n):
    p, i = divmod(n, 7)
    o = rot_(i) + ["s_lshl_b32 s56, s58, 12"] + (["s_add_u32 s56, s56, 114688"] if p else [])
    return ["\n".join(o)] + [(f"buffer_load_dwordx4 {vr(RING[i]+4*k,4)}, v10, s[16:19], s56 offen offset:{k*1024} sc1", f"h{n}") for k in range(4)]
def emit(l):
    for x in l:
        if isinstance(x, tuple): vg.op(*x)
        else: a(x)
pass_call(1, 4, 4)
a(f"""
ds_write_b64 v220, v[204:205] offset:4088
ds_write_b64 v220, v[206:207] offset:{4088-512}
ds_write_b128 v221, v[208:211] offset:{4080-1024}
ds_write_b128 v221, v[212:215] offset:{4080-2048}
ds_write_b128 v221, v[216:219] offset:{4080-3072}
ds_write_b128 v222, v[224:227]
s_mov_b64 exec, 1
ds_add_u32 v168, v169
s_mov_b64 exec, -1
""")
if OPT["yprio"]: a(f"s_setprio {OPT['yprio']}")
pass_resume(1)
stamp(7)
emit(ldw_l(0))
pass_resume(1)
emit(ldw_l(1))
pass_resume(1)
stamp(8)
a("""
s_mov_b64 exec, 1
ds_add_u32 v168, v169 offset:4
s_mov_b64 exec, -1
ds_read_b32 v170, v168 offset:4
s_nop 3
""")
EL = epi_list(0) + epi_list(1) + epi_list(2) + epi_list(3)
run_epi(vg, EL, 20)
a(f"""
s_mov_b32 s59, {SPIN}
k_ys:
s_waitcnt lgkmcnt(0)
v_readfirstlane_b32 s58, v170
s_cmp_eq_u32 s58, 4
s_cbranch_scc1 k_ysd
ds_read_b32 v170, v168 offset:4
s_sub_u32 s59, s59, 1
s_cmp_lg_u32 s59, 0
s_cbranch_scc1 k_ys
k_ysd:
""")
LQ = ldw_l(2) + ldw_l(3) + ldw_l(4) + ldw_l(5) + ["PP"] + ldw_l(6)
while LQ or EL:
    while LQ:
        x = LQ.pop(0)
        if x == "PP": pre_poll("s[28:29]", 4); continue
        emit([x])
        if isinstance(x, tuple): break
    run_epi(vg, EL, OPT["vgap"])
stamp(9)
a("s_setprio 0")
def rda(n):
    F = AF[n & 1]
    out = [f"v_add_u32 v{128+db}, {RSL[n % 7]}, v{164+db}" for db in range(4)]
    return out + [f"ds_read_b64_tr_b16 {vr(F+4*db+2*hh,2)}, v{128+db} offset:{hh*1024}" for db in range(4) for hh in range(2)]
check("k_c2", "s[28:29]", 4, HT, 15); stamp(10)
emit(ldh_l(0)); emit(ldh_l(1))
vg.wait("st")
a("s_mov_b64 exec, 0x3fff")
vg.op("global_atomic_add v12, v169, s[40:41] offset:8 sc1", "at")
a("s_mov_b64 exec, -1")
for x in rda(0): a(x)
emit(ldh_l(2))
wi, hi_ = 7, 3
HD = OPT["HD"]; CK = OPT["CK"]
for n in range(14):
    F = AF[n & 1]; S = RING[n % 7]
    if n == CK:
        check("k_c3", "s[28:29]", 8, HT, 15); stamp(11)
    if hi_ < 7 and hi_ <= n + HD: emit(ldh_l(hi_)); hi_ += 1
    if wi < 14 and wi < n + 7: emit(ldw_l(wi)); wi += 1
    while n >= CK and hi_ < 14 and hi_ <= n + HD: emit(ldh_l(hi_)); hi_ += 1
    vg.wait(f"h{n}", *([f"w{n+1}"] if n < 13 else []), extra=" lgkmcnt(0)")
    if OPT["sw"] == 2: stamp(1+n, True)
    fill = rda(n+1) if n < 13 else []
    if n + 1 == CK: fill.append("s_load_dword s27, s[28:29], 8 glc")
    for db in range(4):
        for tb in range(4):
            d = vr(ACC2+16*db+4*tb, 4)
            a(f"v_mfma_f32_16x16x32_bf16 {d}, {vr(F+4*db,4)}, {vr(S+4*tb,4)}, " + ("0" if n == 0 else d))
            if fill: a(fill.pop(0))
assert wi == 14 and hi_ == 14
stamp(12)
a.label("k_part")
a("""
v_and_b32 v2, 15, v1
v_lshrrev_b32 v3, 4, v1
v_xor_b32 v3, v3, v2
v_lshlrev_b32 v3, 4, v3
v_lshl_add_u32 v2, v2, 8, v3
v_add_u32 v2, s14, v2
v_xor_b32 v3, 64, v2
v_xor_b32 v4, 128, v2
v_xor_b32 v5, 192, v2
""")
for db in range(4):
    for tb in range(4):
        a(f"ds_write_b128 v{2+db}, {vr(ACC2+16*db+4*tb,4)} offset:{tb*16384}")

a.label("k_final"); a.reset()
a(f"""
s_lshr_b32 s13, s3, 1                ; tb
s_and_b32 s58, s3, 1
s_lshl_b32 s58, s58, 2
v_and_b32 v2, 15, v1
v_lshrrev_b32 v3, 4, v1
v_add_u32 v3, s58, v3                ; dg
s_lshl_b32 s59, s13, 14
v_lshlrev_b32 v5, 1, v3
v_xor_b32 v5, v5, v2
v_lshlrev_b32 v5, 4, v5
v_lshl_add_u32 v5, v2, 8, v5
v_add_u32 v5, s59, v5
v_xor_b32 v6, 16, v5
s_lshl_b32 s13, s13, 4
v_add_u32 v2, s13, v2
v_lshlrev_b32 v7, 2, v2
v_add_u32 v7, {GL}, v7
s_and_b32 s58, s2, 7
s_lshl_b32 s58, s58, 2
s_add_u32 s58, s58, s8
s_lshl_b32 s58, s58, 6
v_add_u32 v4, s58, v2
v_mul_u32_u24 v4, 896, v4
v_lshl_add_u32 v4, v3, 4, v4
s_lshl_b32 s58, s12, 7
v_add_u32 v4, s58, v4
v_bfe_u32 v8, v1, 2, 2
v_lshl_add_u32 v8, v3, 3, v8
v_mul_u32_u24 v8, {ATPI}, v8
v_and_b32 v9, 3, v1
v_lshl_add_u32 v8, v9, 3, v8
s_lshl_b32 s13, s13, 1
s_add_u32 s13, s13, {CS[0]}
v_add_u32 v8, s13, v8
s_waitcnt lgkmcnt(0)
""")
if OPT["fwarm"]: a("s_cbranch_execz k_fw")
stamp(13)
a("s_barrier")
stamp(14)
a.label("k_fw")
for w in range(4):
    a(f"ds_read_b128 {vr(16+8*w,4)}, v5 offset:{w*4096}")
    a(f"ds_read_b128 {vr(20+8*w,4)}, v6 offset:{w*4096}")
a(f"""
ds_read_b64_tr_b16 v[48:49], v8
ds_read_b64_tr_b16 v[50:51], v8 offset:{4*ATPI}
ds_read_b32 v52, v7
s_waitcnt lgkmcnt(7)
""")
for i in range(0, 8, 2): a(f"v_pk_add_f32 {vr(16+i,2)}, {vr(16+i,2)}, {vr(24+i,2)}")
a("s_waitcnt lgkmcnt(3)")
for i in range(0, 8, 2): a(f"v_pk_add_f32 {vr(32+i,2)}, {vr(32+i,2)}, {vr(40+i,2)}")
for i in range(0, 8, 2): a(f"v_pk_add_f32 {vr(16+i,2)}, {vr(16+i,2)}, {vr(32+i,2)}")
a("s_waitcnt lgkmcnt(0)\nv_lshlrev_b32 v54, 16, v52\nv_and_b32 v55, 0xffff0000, v52")
for i in range(4):
    a(f"v_lshlrev_b32 v{24+2*i}, 16, v{48+i}\nv_and_b32 v{25+2*i}, 0xffff0000, v{48+i}")
for i in range(0, 8, 2): a(f"v_pk_mul_f32 {vr(16+i,2)}, {vr(16+i,2)}, v[54:55] op_sel:[0,1] op_sel_hi:[1,1]")
for i in range(0, 8, 2): a(f"v_pk_fma_f32 {vr(16+i,2)}, {vr(24+i,2)}, v[54:55], {vr(16+i,2)} op_sel_hi:[1,0,1]")
for i in range(4): a(f"v_cvt_pk_bf16_f32 v{32+i}, v{16+2*i}, v{17+2*i}")
if OPT["fwarm"]: a("s_cbranch_execz k_fw2")
a("global_store_dwordx4 v4, v[32:35], s[96:97]")
stamps_out(15)
a.label("k_end")
a("s_endpgm")
if OPT["fwarm"]: a("k_fw2:\ns_mov_b64 exec, -1\ns_branch k_final\nk_fw0:\ns_mov_b64 exec, 0\ns_branch k_part")
emit_pass()
a.label("code_end")

hdr = open("cdna_kernels/%s.s.ref" % NAME).read().split("; Override launch")[0]
out = hdr + f"; @launch grid=(256,1,1) block=(512,1,1) lds={LDS}\n"
out += '.amdgcn_target "amdgcn-amd-amdhsa--gfx950"\n' + a.text()
out += f""".section .rodata,"a"
.p2align 6
.amdhsa_kernel {KN}
  .amdhsa_next_free_vgpr 256
  .amdhsa_next_free_sgpr 102
  .amdhsa_accum_offset 256
  .amdhsa_group_segment_fixed_size 0
  .amdhsa_kernarg_size 136
  .amdhsa_user_sgpr_count 2
  .amdhsa_user_sgpr_kernarg_segment_ptr 1
  .amdhsa_system_sgpr_workgroup_id_x 1
.end_amdhsa_kernel
"""
open(sys.argv[1], "w").write(out)
print("written", sys.argv[1], "lines", len(a.lines), "nops", a.nops, "")
```

```python
import sys, math, struct
from asm import *

NAME = "gated_mix__ssm_conv_s4__swiglu_ffn__prompt"
KN = NAME + "_kernel"
WDP = 0x800000
HP, UT, AT, GG, FL = 0, 0xA00000, 0xE00000, 0x1000000, 0x1010000
UTP = 4224
def fbits(x): return "0x%08x" % struct.unpack("<I", struct.pack("<f", x))[0]
LOG2E = 1.4426950408889634
OPT = dict(ntx="", ntw="", ntp="nt", stamp=0, cprio=0, yprio=1, warm=0, fwarm=0, rpg=2, w1=1, sw=0, wsig=1, xt=1, xwd=0, rot2=1, ht=0, xs1=26, xs2=26, xs3=56, vgap=9, HD=3, CK=6, xprio=2, one=1)
for a_ in sys.argv[2:]:
    k, v = a_.split("="); OPT[k] = int(v) if v.lstrip("-").isdigit() else v
a = Asm()
SPIN = 40000
HT = 14 if OPT["one"] else 56

def cmuls(lst):
    for d, x, y in lst:
        assert d != x and d != y
        a(f"v_pk_mul_f32 {vr(d,2)}, {vr(x,2)}, {vr(y,2)} op_sel_hi:[1,0]")
    for d, x, y in lst:
        a(f"v_pk_fma_f32 {vr(d,2)}, {vr(x,2)}, {vr(y,2)}, {vr(d,2)} op_sel:[1,1,0] op_sel_hi:[0,1,1] neg_lo:[1,0,0]")
def bar(n):
    k = (n - 1) if n < 8 else (n - 8)
    if OPT["sw"] == 1 and n >= 1: stamp(1+2*k, True)
    a("s_barrier")
    if OPT["sw"] == 1 and n >= 1: stamp(2+2*k, True)
def stamp(idx, force=False):
    if OPT["sw"] and not force and idx not in (0, 15): return
    if OPT["stamp"]: a(f"{'s_memtime' if OPT['stamp']==2 else 's_memrealtime'} s[{64+2*idx}:{65+2*idx}]")
def stamps_out(idx):
    if not OPT["stamp"]: return
    a("s_waitcnt vmcnt(0)")
    stamp(idx)
    a("s_waitcnt lgkmcnt(0)")
    for i in range(16): a(f"v_writelane_b32 v250, s{64+2*i}, {i}")
    a(f"""s_lshl_b32 s64, s2, 3
s_add_u32 s64, s64, s3
s_lshl_b32 s64, s64, 6
s_add_u32 s64, s64, 0x2000000
v_lshl_add_u32 v251, v1, 2, s64
s_mov_b64 exec, 0xffff
global_store_dword v251, v250, s[40:41]""")
    if OPT.get("dbgout"):
        a(f"""
s_lshl_b32 s65, s2, 3
s_add_u32 s65, s65, s3
s_cmp_eq_u32 s65, {OPT['dbgout']}
s_cbranch_scc0 k_end
v_readlane_b32 s65, v250, 0
v_subrev_u32 v250, s65, v250
v_lshlrev_b32 v251, 2, v1
s_mov_b64 exec, 0xfffe
global_store_dword v251, v250, s[98:99]""")
def stamps_init():
    if OPT["stamp"]:
        for i in range(1,16): a(f"s_mov_b32 s{64+2*i}, 0")
        stamp(0)

class VM:
    def __init__(self): self.q = []
    def op(self, text, tag):
        a(text); self.q.append(tag)
    def n_for(self, *tags):
        idx = max(i for i, t in enumerate(self.q) if t in tags)
        return len(self.q) - 1 - idx
    def wait(self, *tags, extra=""):
        n = self.n_for(*tags); assert n <= 63
        a(f"s_waitcnt vmcnt({n}){extra}")

XA = [98304, 49152, 65536, 81920, 32768, 0, 16384]
WR = [114688, 131072, 147456]
WA = [WR[s % 3] for s in range(10)] + [WR[1], XA[0], WR[2], XA[1]]
CS = [XA[2], WR[0]]
RSL = [XA[3], WR[1], XA[4], XA[5], XA[6], XA[0], XA[1]]
TABO = 12992
CNT = CS[0] + 16064
GL = CS[1] + 16064
ATPI = 144
LDS = 163840

a.raw(f".text\n.globl {KN}\n.p2align 8\n.type {KN},@function\n{KN}:")
a("""
s_cmp_ge_u32 s2, 256
s_cbranch_scc1 k_end
s_add_u32 s2, s2, 224
s_and_b32 s2, s2, 255
""")
stamps_init()
a("""
s_load_dwordx16 s[16:31], s[0:1], 0
s_load_dwordx8 s[32:39], s[0:1], 80
s_load_dwordx2 s[40:41], s[0:1], 128
s_load_dwordx4 s[96:99], s[0:1], 112
s_getpc_b64 s[4:5]
k_pc:
v_lshrrev_b32 v2, 6, v0
v_and_b32 v1, 63, v0
v_readfirstlane_b32 s3, v2
s_lshr_b32 s6, s2, 3                 ; j
s_and_b32 s8, s6, 3                  ; rbl
s_mul_i32 s7, s8, 6144
v_min_u32 v3, 5, v1
v_mad_u32_u24 v3, v2, 6, v3
v_lshlrev_b32 v3, 7, v3
v_add_u32 v3, s7, v3
v_min_u32 v3, code_end-k_pc-4, v3
global_load_dword v0, v3, s[4:5]
s_and_b32 s10, s2, 6
s_lshl_b32 s10, s10, 1
s_add_u32 s10, s10, s8               ; rb128
s_and_b32 s9, s2, 1
s_mul_i32 s11, s9, 7
s_lshr_b32 s12, s6, 2
s_add_u32 s11, s11, s12              ; fb128
s_and_b32 s7, s3, 3
v_lshlrev_b32 v10, 4, v1
s_lshl_b32 s42, s8, 1
s_add_u32 s42, s42, s12
s_sub_u32 s43, s42, 7
s_cmp_ge_u32 s42, 7
s_cselect_b32 s42, s43, s42          ; rot
v_lshrrev_b32 v20, 3, v1
v_lshrrev_b32 v21, 4, v1
v_and_b32 v22, 7, v1
s_lshl_b32 s13, s7, 4
v_add_u32 v25, s13, v20
v_mul_u32_u24 v25, 3584, v25
s_lshl_b32 s13, s11, 8
v_add_u32 v25, s13, v25
v_and_b32 v26, 1, v21
v_lshlrev_b32 v26, 1, v26
v_xor_b32 v26, v22, v26
v_lshl_add_u32 v240, v26, 4, v25
v_add_u32 v241, 27648, v240
v_xor_b32 v26, 4, v26
v_lshl_add_u32 v242, v26, 4, v25
v_add_u32 v243, 27648, v242
s_lshl_b32 s15, s7, 11
s_mov_b32 s50, 1605632
s_mov_b32 s51, 0x20000
s_mov_b32 s54, 1605632
s_mov_b32 s55, 0x20000
s_cmp_eq_u32 s12, 7
s_cbranch_scc1 k_spare
""")
def dmaw(vm, st):
    a(f"s_add_u32 m0, s15, {WA[st]}")
    if st >= 7: a("s_add_u32 s58, s57, 128")
    else: a("s_mov_b32 s58, s57")
    for i in range(2): vm.op(f"buffer_load_dwordx4 v{240+i}, s[48:51], s58 offen offset:{i*1024} {OPT['ntw']} lds", f"W{st}")
    a(f"s_add_u32 m0, s15, {WA[st]+8192}\ns_add_u32 s57, s57, 229376")
    for i in range(2): vm.op(f"buffer_load_dwordx4 v{242+i}, s[52:55], s58 offen offset:{i*1024} {OPT['ntw']} lds", f"W{st}")
    a("s_cmp_eq_u32 s57, 1605632\ns_cselect_b32 s57, 0, s57")
def dmax(vm, st):
    a(f"s_add_u32 m0, s14, {XA[st]}\ns_mov_b32 s58, s56")
    for i in range(4): vm.op(f"buffer_load_dwordx4 v{232+i}, s[44:47], s58 offen offset:{i*1024} {OPT['ntx']} lds", f"X{st}")
    a("s_add_u32 s56, s56, 128\ns_cmp_eq_u32 s56, 896\ns_cselect_b32 s56, 0, s56")

FB = [16, 48]; ACC = 80; TM = 144; KA = 164
def pass_addrs():
    a(f"""
v_and_b32 v6, 31, v1
v_lshrrev_b32 v7, 5, v1
v_bfe_u32 v4, v1, 1, 3
v_xor_b32 v7, v7, v4
v_lshlrev_b32 v7, 4, v7
v_lshl_add_u32 v6, v6, 7, v7
s_lshr_b32 s13, s7, 1
s_lshl_b32 s13, s13, 13
v_add_u32 v2, s13, v6
v_lshlrev_b32 v6, 9, v1
v_and_b32 v6, 0x2000, v6
v_lshlrev_b32 v7, 5, v1
v_and_b32 v7, 0x580, v7
v_and_b32 v4, 3, v1
v_lshlrev_b32 v4, 3, v4
v_add3_u32 v6, v6, v7, v4
v_bfe_u32 v7, v1, 3, 2
s_and_b32 s13, s7, 1
s_lshl_b32 s13, s13, 1
v_xor_b32 v7, s13, v7
v_lshl_add_u32 v3, v7, 5, v6
""")
def h_addr(p):
    a(f"""
s_lshl_b32 s13, s10, 1
s_lshr_b32 s58, s7, 1
s_add_u32 s13, s13, s58
s_mul_i32 s13, s13, 56
s_lshl_b32 s58, s11, 1
s_add_u32 s13, s13, s58
s_and_b32 s58, s7, 1
s_add_u32 s13, s13, s58
s_lshr_b32 s58, s3, 2
s_mul_i32 s58, s58, 28
s_add_u32 s13, s13, s58
s_lshl_b32 s13, s13, 12
v_and_b32 v14, 15, v1
v_lshl_add_u32 v14, v14, 4, s13
v_bfe_u32 v15, v1, 4, 1
v_lshl_add_u32 v14, v15, 10, v14
v_lshrrev_b32 v15, 5, v1
v_lshl_add_u32 v14, v15, 8, v14
s_mov_b32 s62, {fbits(-LOG2E)}
""")
def nib(lst):
    v = 0
    for i, x in enumerate(lst): v |= (x // 16384) << (4*i)
    return "0x%x" % v
VADDR = lambda xs, ws: [f"v_add_u32 v6, {xs}, v2", f"v_add_u32 v4, {ws}, v3", "v_xor_b32 v7, 32, v6", "v_xor_b32 v5, 32, v4", "v_xor_b32 v8, 64, v6", "v_xor_b32 v9, 96, v6"]
SETA = ["s_and_b32 s13, s30, 15", "s_lshl_b32 s13, s13, 14", "s_lshr_b32 s30, s30, 4", "s_and_b32 s58, s31, 15", "s_lshl_b32 s58, s58, 14", "s_lshr_b32 s31, s31, 4"] + VADDR("s13", "s58")
def reads(hs, F):
    out = []
    for k2 in range(2):
        ks = 2*hs + k2
        A_ = lambda fa, hh: f"ds_read_b64_tr_b16 {vr(F+16*k2+4*fa+2*hh,2)}, v{4+fa} offset:{ks*2048+hh*512}"
        B_ = lambda tb: f"ds_read_b128 {vr(F+16*k2+8+4*tb,4)}, v{6+ks} offset:{tb*4096}"
        out += [A_(0,0), A_(0,1), B_(0), B_(1), A_(1,0), A_(1,1)]
    return out
def acc(n): return ACC + 16*n
def pass_resume(iters):
    a(f"s_mov_b32 s59, {iters}\ns_call_b64 s[100:101], k_pl")
    a.reset()
def pass_call(p, nbar, iters):
    a(f"""
s_mov_b32 s30, {nib(XA[1:]+[0])}
s_mov_b32 s31, {nib(WA[7*p+1:7*p+7]+[0])}
s_mov_b32 s43, {nbar}
s_mov_b32 s59, {iters}
s_call_b64 s[100:101], k_pass
""")
    a.reset()
def pass_first_addr(p):
    for x in VADDR(XA[0], WA[7*p]): a(x)
def emit_pass():
    def half(hs, first):
        F = FB[hs]; Fn = FB[hs ^ 1]
        mm = []
        for k2 in range(2):
            for fa in range(2):
                for tb in range(2):
                    d = vr(acc(2*fa+tb), 16)
                    mm.append(f"v_mfma_f32_32x32x16_bf16 {d}, {vr(F+16*k2+4*fa,4)}, {vr(F+16*k2+8+4*tb,4)}, " + ("0" if first and k2 == 0 else d))
        if first: a("s_waitcnt lgkmcnt(6)")
        else: a("s_waitcnt lgkmcnt(0)")
        if hs == 0:
            fill = reads(1, Fn) + SETA + ["s_cmp_eq_u32 s43, 0"]
        else:
            a(mm.pop(0))
            a("s_cbranch_scc1 k_pnb\ns_waitcnt vmcnt(0)\ns_barrier\ns_sub_u32 s43, s43, 1\nk_pnb:")
            fill = reads(0, Fn) + ["s_sub_u32 s59, s59, 1", "s_cmp_lg_u32 s59, 0"]
        for i, m in enumerate(mm):
            if first and i == 4: a("s_waitcnt lgkmcnt(12)")
            a(m)
            for _ in range(3 if (i < 4) else 4):
                if fill: a(fill.pop(0))
        for x in fill: a(x)
    a.raw(".p2align 6")
    a.label("k_pass"); a.reset()
    for r in reads(0, FB[0]): a(r)
    half(0, True)
    a("s_branch k_pm")
    a.raw(".p2align 6")
    a.label("k_pl")
    half(0, False)
    a.label("k_pm")
    half(1, False)
    a("s_cbranch_scc1 k_pl\ns_setpc_b64 s[100:101]")
def epi_list(n):
    Tm = TM + 8*(n & 1); R = acc(n); o = []
    for i in range(8): o.append(f"v_mul_f32 v{Tm+i}, s62, v{R+i}")
    for i in range(8): o += [f"v_exp_f32 v{Tm+i}, v{Tm+i}", f"v_mul_f32 v{R+i}, v{R+i}, v{R+8+i}"]
    for i in range(8): o.append(f"v_add_f32 v{Tm+i}, 1.0, v{Tm+i}")
    for i in range(8):
        o.append(f"v_rcp_f32 v{Tm+i}, v{Tm+i}")
        if i >= 2: o.append(f"v_mul_f32 v{R+i-2}, v{R+i-2}, v{Tm+i-2}")
    for i in (6, 7): o.append(f"v_mul_f32 v{R+i}, v{R+i}, v{Tm+i}")
    for i in range(4): o.append(f"v_cvt_pk_bf16_f32 v{R+8+i}, v{R+2*i}, v{R+2*i+1}")
    o.append(("st", n))
    return o
def hst(vm, n, tag):
    vm.op(f"global_store_dwordx4 v14, {vr(acc(n)+8,4)}, s[40:41] offset:{(n&1)*2048+(n>>1)*512} sc1", tag)
def run_epi(vm, lst, count):
    for _ in range(count):
        if not lst: return
        x = lst.pop(0)
        if isinstance(x, tuple): hst(vm, x[1], "st")
        else: a(x)
def pre_poll(base, off):
    a(f"s_load_dword s27, {base}, {off} glc")
def check(lbl, base, off, target, vt, sleep=1):
    a(f"""
s_mov_b32 s59, 0
{lbl}_l:
s_waitcnt lgkmcnt(0)
s_cmp_eq_u32 s27, {target}
s_cbranch_scc1 {lbl}_d
s_add_u32 s59, s59, 1
s_sleep {sleep}
s_cmp_lt_u32 s59, 256
s_cbranch_scc0 {lbl}_v
s_load_dword s27, {base}, {off} glc
s_branch {lbl}_l
{lbl}_v:
v_mov_b32 v{vt}, 0
global_load_dword v{vt}, v{vt}, {base} offset:{off} sc1
s_waitcnt vmcnt(0)
v_readfirstlane_b32 s27, v{vt}
s_cmp_lt_u32 s59, {SPIN}
s_cbranch_scc1 {lbl}_l
{lbl}_d:
""")
def own_line():
    a(f"""
s_lshl_b32 s13, s2, 7
s_add_u32 s13, s13, {FL}
s_add_u32 s28, s40, s13
s_addc_u32 s29, s41, 0
""")
def hsig_addr(v):
    a(f"""
s_lshl_b32 s13, s10, 1
s_and_b32 s58, s13, 3
s_lshl_b32 s58, s58, 3
s_lshr_b32 s13, s13, 2
s_add_u32 s13, s13, s58
s_lshl_b32 s13, s13, 7
s_add_u32 s13, s13, {FL}
v_lshrrev_b32 v{v}, 1, v1
v_lshlrev_b32 v{v}, 12, v{v}
v_and_b32 v{v+1}, 1, v1
v_lshl_add_u32 v{v}, v{v+1}, 10, v{v}
v_add_u32 v{v}, s13, v{v}
""")
def last_of4(lbl, cntoff, vt, body):
    a(f"""
v_mov_b32 v{vt}, {CNT+cntoff}
v_mov_b32 v{vt+1}, 1
s_mov_b64 exec, 1
ds_add_rtn_u32 v{vt+2}, v{vt}, v{vt+1}
s_waitcnt lgkmcnt(0)
v_readfirstlane_b32 s58, v{vt+2}
s_mov_b64 exec, -1
s_cmp_eq_u32 s58, 3
s_cbranch_scc0 {lbl}
""")
    body()

Z = lambda k: 20 + 2*k
Wp = lambda k: 50 + 2*k
E = lambda k: 68 + 2*k
Y_ = {1: 84, 2: 86, 4: 88, 8: 90}
T = lambda k: 92 + 2*k
CV = lambda k: 108 + (k & 7)
FE, FX0, FX1 = 116, 132, 148
PR = 176
vy = VM()
XV = 232
a(f"""
s_lshr_b32 s14, s7, 1
s_lshl_b32 s60, s2, 1
s_add_u32 s60, s60, s14              ; channel
s_lshl_b32 s13, s60, 9
s_and_b32 s14, s7, 1
s_lshl_b32 s14, s14, 7
s_add_u32 s13, s13, s14
s_lshr_b32 s14, s3, 2
s_lshl_b32 s14, s14, 8
s_add_u32 s13, s13, s14
v_lshl_add_u32 v8, v1, 1, s13
s_lshl_b32 s14, s60, 1
v_mov_b32 v9, s14
""")
P7 = [239, 11, 12, 216, 217, 218, 238]
for r in P7: a(f"v_mov_b32 v{r}, 0")
a(f"""
v_xor_b32 v23, v22, v21
v_xor_b32 v24, 4, v23
s_lshl_b32 s13, s7, 5
v_add_u32 v25, s13, v20
v_mul_u32_u24 v25, 896, v25
v_lshl_add_u32 v{XV}, v23, 4, v25
v_lshl_add_u32 v{XV+1}, v24, 4, v25
v_add_u32 v{XV+1}, 6144, v{XV+1}
v_add_u32 v{XV+2}, 12288, v{XV}
v_add_u32 v{XV+3}, 12288, v{XV+1}
s_lshl_b32 s14, s7, 12
s_lshl_b32 s56, s42, 7
s_mul_i32 s57, s42, 229376
s_mul_i32 s13, s10, 114688
s_mov_b32 s46, 114688
s_mov_b32 s47, 0x20000
s_mul_i32 s63, s3, 4608
s_waitcnt lgkmcnt(0)
""")
stamp(1)
a("global_load_short_d16_hi v238, v9, s[30:31]")
for r, p in zip(P7[:6], range(18, 30, 2)):
    a(f"global_load_short_d16_hi v{r}, v8, s[{p}:{p+1}] {OPT['ntp']}")
a("""
s_mov_b32 s48, s32
s_mov_b32 s49, s33
s_mov_b32 s52, s34
s_mov_b32 s53, s35
s_add_u32 s44, s16, s13
s_addc_u32 s45, s17, 0
s_cmp_lt_u32 s3, 4
s_cbranch_scc1 k_x0
""")
dmaw(vy, 0); dmax(vy, 0)
if OPT["w1"]: dmaw(vy, 1)
a("""
s_branch k_w0
k_x0:
s_load_dwordx2 s[4:5], s[0:1], 64
s_add_u32 s57, s42, 2
s_sub_u32 s13, s57, 7
s_cmp_ge_u32 s57, 7
s_cselect_b32 s57, s13, s57
s_mul_i32 s57, s57, 229376
k_w0:
v_and_b32 v4, 15, v1                 ; c
v_lshlrev_b32 v5, 2, v21             ; 4g
v_lshlrev_b32 v6, 6, v21             ; 64g
v_lshl_add_u32 v247, v4, 4, v5
v_lshl_add_u32 v248, v4, 3, v5
v_lshl_add_u32 v249, v4, 2, v6
v_cmp_gt_u32 vcc, 2, v21
v_cndmask_b32 v248, v249, v248, vcc
v_lshl_add_u32 v249, v4, 1, v6
v_lshl_add_u32 v247, v247, 2, s63
v_lshl_add_u32 v248, v248, 2, s63
v_lshl_add_u32 v249, v249, 2, s63
""")
pass_addrs()
h_addr(0)
own_line()
if OPT["warm"]:
    a("s_mov_b64 exec, 0")
    for w in range(1, 8): a(f"s_cmp_eq_u32 s3, {w}\ns_cbranch_scc1 k_sec{w}")
    a("s_branch k_kg\nk_wd:")
    for w in range(4):
        a(f"s_cmp_eq_u32 s3, {w}\ns_cbranch_scc0 k_we{w}\ns_call_b64 s[100:101], k_epi{w}\nk_we{w}:")
    a("s_cmp_eq_u32 s3, 3\ns_cbranch_scc0 k_wp\ns_mov_b32 s43, 0\ns_mov_b32 s59, 1\ns_call_b64 s[100:101], k_pass\nk_wp:")
    a("s_mov_b64 exec, -1")
a("""
s_cmp_lt_u32 s3, 4
s_cbranch_scc1 k_x1
s_waitcnt vmcnt(XXN)
s_branch k_kg
k_x1:
v_mov_b32 v244, 0
s_waitcnt lgkmcnt(0)
global_load_short_d16_hi v244, v9, s[4:5]
XTOUCH
k_kg:
""".replace("XXN", str(len(vy.q))).replace("XTOUCH", ["s_waitcnt vmcnt(1)",
"""s_lshl_b32 s13, s2, 1
s_lshr_b32 s58, s7, 1
s_add_u32 s13, s13, s58
s_mul_i32 s13, s13, 14
v_min_u32 v4, 13, v1
v_add_lshl_u32 v4, v4, s13, 8
s_bitcmp1_b32 s7, 0
s_cselect_b32 s58, s34, s32
s_cselect_b32 s59, s35, s33
global_load_dword v0, v4, s[58:59] offset:128
s_waitcnt vmcnt(2)"""][OPT["xt"]]))
secn = [0]
def sec():
    if OPT["warm"]:
        secn[0] += 1
        a("s_cbranch_execz k_wd")
        if secn[0] < 8: a.label(f"k_sec{secn[0]}")
a.reset()
stamp(2)
a(f"""
s_mov_b32 m0, s63
v_mul_f32 v16, {fbits(LOG2E)}, v238
v_exp_f32 v16, v16
v_and_b32 v18, 15, v1
v_mul_u32_u24 v18, 288, v18
v_and_b32 v19, 48, v1
v_add3_u32 v18, v18, v19, s63
v_cvt_pk_bf16_f32 v16, v16, v16
v_and_b32 v16, 0xffff0000, v16
v_mul_f32 v8, {fbits(LOG2E)}, v16
v_mul_f32 v9, 0.15915494, v16
v_mul_f32 v17, v239, v8
v_mul_f32 v11, v11, v9
v_mul_f32 v12, v12, v16
v_mul_f32 v216, v216, v16
v_mul_f32 v{E(0)}, v217, v12
v_mul_f32 v{E(0)+1}, v217, v216
v_fma_f32 v{E(0)}, -v218, v216, v{E(0)}
v_fma_f32 v{E(0)+1}, -v218, v12, -v{E(0)+1}
""")
ydn = [0]
def ydma(fn):
    ydn[0] += 1
    a(f"s_cmp_lt_u32 s3, 4\ns_cbranch_scc1 k_yd{ydn[0]}")
    fn()
    a(f"s_mov_b32 m0, s63\nk_yd{ydn[0]}:")
anc = [(Y_[1], 16.0, True), (Z(1), 1.0, False), (Wp(1), 256.0, False)]
for n, (d, p, cj) in enumerate(anc):
    if p != 1.0: a(f"v_mul_f32 v{T(n)}, {fbits(p)}, v17\nv_mul_f32 v{T(n)+1}, {fbits(p)}, v11")
for n, (d, p, cj) in enumerate(anc):
    if p == 1.0: a(f"v_exp_f32 v{T(n)}, v17\nv_fract_f32 v{T(n)+1}, v11")
    else: a(f"v_exp_f32 v{T(n)}, v{T(n)}\nv_fract_f32 v{T(n)+1}, v{T(n)+1}")
for n, (d, p, cj) in enumerate(anc):
    a(f"v_cos_f32 v{d}, v{T(n)+1}\nv_sin_f32 v{d+1}, v{T(n)+1}")
for n, (d, p, cj) in enumerate(anc):
    a(f"v_pk_mul_f32 {vr(d,2)}, {vr(d,2)}, {vr(T(n),2)} op_sel_hi:[1,0]" + (" neg_hi:[1,0]" if cj else ""))
cnt = [0]
def puts(lst):
    cs = []
    for row, src in lst:
        c = CV(cnt[0]); cnt[0] += 1; cs.append(c)
        if src is None: a(f"v_mov_b32 v{c}, 0x3f80")
        else: a(f"v_cvt_pk_bf16_f32 v{c}, v{src}, v{src+1}")
    for (row, src), c in zip(lst, cs):
        a(f"ds_write_addtid_b32 v{c} offset:{row*288}")
def putl(lst):
    for i in range(0, len(lst), 4): puts(lst[i:i+4])
def frags(F):
    for s in range(4): a(f"ds_read_b128 {vr(F+4*s,4)}, v18 offset:{s*64}")
def mf(tau, F):
    for s in range(4):
        a(f"v_mfma_f32_16x16x32_bf16 {vr(KA+4*tau,4)}, {vr(F+4*s,4)}, {vr(FE+4*s,4)}, " + ("0" if s == 0 else vr(KA+4*tau,4)))
Y = Y_
cmuls([(Y[2], Y[1], Y[1]), (E(1), E(0), Y[1]), (Z(2), Z(1), Z(1)), (Wp(2), Wp(1), Wp(1))])
cmuls([(Y[4], Y[2], Y[2]), (E(2), E(0), Y[2]), (E(3), E(1), Y[2]), (Z(3), Z(2), Z(1)), (Z(4), Z(2), Z(2)), (Wp(3), Wp(2), Wp(1)), (Wp(4), Wp(2), Wp(2))])
sec()
putl([(i, E(i)) for i in range(4)])
cmuls([(Y[8], Y[4], Y[4])] + [(E(4+i), E(i), Y[4]) for i in range(4)])
putl([(i, E(i)) for i in range(4, 8)])
cmuls([(T(i), E(i), Y[8]) for i in range(4)])
sec()
putl([(8+i, T(i)) for i in range(4)])
cmuls([(T(i), E(i), Y[8]) for i in range(4, 8)])
putl([(8+i, T(i)) for i in range(4, 8)])
frags(FE)
sec()
putl([(0, None)] + [(i, Z(i)) for i in range(1, 4)])
cmuls([(Z(5), Z(4), Z(1)), (Z(6), Z(4), Z(2)), (Z(7), Z(4), Z(3)), (Z(8), Z(4), Z(4))])
putl([(i, Z(i)) for i in range(4, 8)])
cmuls([(Z(8+i), Z(8), Z(i)) for i in range(1, 4)])
sec()
putl([(i, Z(i)) for i in range(8, 12)])
cmuls([(Z(8+i), Z(8), Z(i)) for i in range(4, 8)])
putl([(i, Z(i)) for i in range(12, 16)])
frags(FX0)
sec()
cmuls([(T(r), Wp(1), Z(2*r)) for r in range(1, 4)])
putl([(0, Wp(1))] + [(r, T(r)) for r in range(1, 4)])
cmuls([(T(r), Wp(1), Z(2*r)) for r in range(4, 8)])
putl([(r, T(r)) for r in range(4, 8)])
sec()
cmuls([(T(j-1), Wp(2), Z(4*j)) for j in (1, 2, 3)])
a("s_waitcnt lgkmcnt(8)")
mf(0, FX0)
putl([(8, Wp(2))] + [(8+j, T(j-1)) for j in (1, 2, 3)])
cmuls([(T(2+j), Wp(3), Z(4*j)) for j in (1, 2, 3)])
putl([(12, Wp(3))] + [(12+j, T(2+j)) for j in (1, 2, 3)])
frags(FX1)
sec()
cmuls([(Wp(5), Wp(4), Wp(1)), (Wp(6), Wp(4), Wp(2)), (Wp(7), Wp(4), Wp(3)), (Wp(8), Wp(4), Wp(4))])
putl([(2*h, Wp(4+h)) for h in range(5)])
cmuls([(T(h), Wp(4+h), Z(8)) for h in range(4)])
putl([(2*h+1, T(h)) for h in range(4)])
frags(FX0)
a("s_waitcnt lgkmcnt(13)")
mf(1, FX1)
a("s_waitcnt lgkmcnt(0)")
mf(2, FX0)
a(f"""
ds_write_b128 v247, {vr(KA,4)} offset:64
ds_write_b128 v248, {vr(KA+4,4)} offset:{64+1024}
s_lshr_b32 s13, s7, 1
s_mul_i32 s24, s13, {CS[1]-CS[0]}
s_add_u32 s24, s24, {CS[0]}
s_and_b32 s61, s7, 1                 ; parity
ds_write_b64 v249, {vr(KA+8,2)} offset:{64+2048}
ds_write_b64 v249, {vr(KA+10,2)} offset:{64+2048+128}
""")
sec()
a("""
s_cmp_ge_u32 s3, 4
s_cbranch_scc1 k_y
""")
vx = VM()
stamp(3)
a(f"""
s_mov_b32 s14, s24
v_and_b32 v20, 15, v1
v_lshrrev_b32 v21, 4, v1
v_or_b32 v24, 1, v20
v_lshlrev_b32 v25, 3, v21
v_sub_u32 v24, v25, v24
v_lshlrev_b32 v24, 1, v24
v_and_b32 v25, 1, v1
v_mul_u32_u24 v25, 4160, v25
v_sub_u32 v24, v24, v25
v_add_u32 v24, s14, v24
v_add_u32 v216, {4160+2*2031-512}, v24
v_add_u32 v217, {4160+2*2031-512*3}, v24
v_add_u32 v218, {4160+2*2031-512*5}, v24
v_add_u32 v219, {4160+2*2031-512*7}, v24
v_lshlrev_b32 v22, 5, v20
v_lshl_add_u32 v221, v21, 3, v22     ; 32j+8g
v_lshl_add_u32 v22, v21, 4, v22
v_add_u32 v22, s14, v22
v_add_u32 v220, {8832-32}, v22       ; B addr
s_mul_i32 s13, s60, {UTP}
s_add_u32 s13, s13, {UT}
v_add_u32 v222, s13, v10
v_add_u32 v223, s14, v10
s_and_b32 s13, s2, 7
s_lshl_b32 s13, s13, 2
s_add_u32 s13, s13, s8
s_lshl_b32 s13, s13, 8
s_lshl_b32 s58, s7, 6
s_add_u32 s13, s13, s58
s_add_u32 s13, s13, {GG}
v_lshlrev_b32 v225, 2, v20
v_add_u32 v224, s13, v225            ; g global
s_add_u32 s58, s58, {GL}
v_add_u32 v225, s58, v225            ; g LDS
""")
hsig_addr(226)
a("v_mov_b32 v227, 1")
pass_first_addr(0)
a("s_waitcnt lgkmcnt(0)")
stamp(1)
bar(0)
stamp(4)
pass_call(0, 7, 7)
stamp(6)
dmaw(vx, 9)
CA = 48
a("s_waitcnt lgkmcnt(0)")
for r in range(CA, CA+16): a(f"v_mov_b32 v{r}, 0")
EL = epi_list(0) + epi_list(1) + epi_list(2) + epi_list(3)
bar(8)
dmaw(vx, 10)
run_epi(vx, EL, OPT["xs1"])
dmaw(vx, 11)
vx.wait("W9")
bar(9)
dmaw(vx, 12)
run_epi(vx, EL, OPT["xs2"])
dmaw(vx, 13)
vx.wait("W10")
bar(10)
pre_poll("s[28:29]", 0)
run_epi(vx, EL, OPT["xs3"])
a(f"v_mov_b32 v40, {CNT}\nds_write_b128 v40, {vr(CA,4)}\nds_write_b128 v40, {vr(CA,4)} offset:16")
vx.wait("W13", extra=" lgkmcnt(0)")
stamp(7)
bar(11)
stamp(8)
if OPT["xprio"]: a(f"s_setprio {OPT['xprio']}")
check("k_c1", "s[28:29]", 0, 32, 13)
for i in range(4): vx.op(f"global_load_dwordx4 {vr(16+4*i,4)}, v222, s[40:41] offset:{i*1024} sc1", "u")
vx.op("global_load_dword v15, v224, s[40:41] sc1", "u")
run_epi(vx, EL, 50)
vx.wait("u")
for i in range(4): a(f"ds_write_b128 v223, {vr(16+4*i,4)} offset:{8832+i*1024}")
a("ds_write_b32 v225, v15\nds_read_b32 v41, v40")
run_epi(vx, EL, 999)
a(f"""
s_mov_b32 s59, {SPIN}
k_ps:
s_waitcnt lgkmcnt(0)
v_readfirstlane_b32 s58, v41
s_cmp_eq_u32 s58, 4
s_cbranch_scc1 k_psd
ds_read_b32 v41, v40
s_sub_u32 s59, s59, 1
s_cmp_lg_u32 s59, 0
s_cbranch_scc1 k_ps
k_psd:
s_waitcnt vmcnt(0)
""")
def sigx(): a("s_mov_b64 exec, 0x3fff\nglobal_atomic_add v226, v227, s[40:41] offset:4 sc1\ns_mov_b64 exec, -1")
if OPT["one"]:
    last_of4("k_s2", 8, 42, sigx); a.label("k_s2")
else: sigx()
stamp(9)
a(f"s_setprio {OPT['cprio']}")
a("""
s_cmp_eq_u32 s61, 0
s_cbranch_scc0 k_set1
""")
FBUF = [88, 152]
def creads(F, amax):
    out = []
    for i in range(amax+1):
        o = 0 if (i & 1) else 128
        out.append(f"ds_read_b128 {vr(F+32+4*i,4)}, v220 offset:{512*i}")
        out.append(f"ds_read2_b32 {vr(F+4*i,2)}, v{216+(i>>1)} offset0:{o} offset1:{o+1}")
        out.append(f"ds_read2_b32 {vr(F+4*i+2,2)}, v{216+(i>>1)} offset0:{o+2} offset1:{o+3}")
    out += [f"v_subrev_u32 v{r}, 64, v{r}" for r in (216, 217, 218, 219, 220)]
    return out
for sidx, cbs in enumerate(((0, 3, 4, 7), (1, 2, 5, 6))):
    if sidx == 1:
        a.label("k_set1"); a.reset()
    amax = max(cbs)
    for x in creads(FBUF[0], amax): a(x)
    a("s_mov_b32 s21, 4")
    a.label(f"k_cl{sidx}")
    for half in range(2):
        F = FBUF[half]
        a("s_waitcnt lgkmcnt(0)")
        lists = [[(n, aa, cb-aa) for aa in range(cb+1)] for n, cb in enumerate(cbs)]
        order = []
        while any(lists):
            for L in sorted(lists, key=lambda L: -len(L)):
                if L: order.append(L.pop(0))
        fill = creads(FBUF[half ^ 1], amax)
        for k, (n, aa, bb) in enumerate(order):
            d = vr(CA+4*n, 4)
            a(f"v_mfma_f32_16x16x32_bf16 {d}, {vr(F+4*aa,4)}, {vr(F+32+4*bb,4)}, {d}")
            for _ in range(2):
                if fill: a(fill.pop(0))
        for x in fill: a(x)
    a(f"""
s_sub_u32 s21, s21, 1
s_cmp_lg_u32 s21, 0
s_cbranch_scc1 k_cl{sidx}
v_add_u32 v26, s14, v221
""")
    stamp(10)
    for n, cb in enumerate(cbs): a(f"ds_read_b64 {vr(32+2*n,2)}, v26 offset:{8832+512*cb}")
    a(f"""
s_mul_i32 s15, s60, {UTP}
s_add_u32 s15, s15, {AT}
v_add_u32 v27, s15, v221
s_waitcnt lgkmcnt(0)
""")
    for n, cb in enumerate(cbs):
        R = CA+4*n
        a(f"""
v_lshlrev_b32 v40, 16, v{32+2*n}
v_and_b32 v41, 0xffff0000, v{32+2*n}
v_lshlrev_b32 v42, 16, v{33+2*n}
v_and_b32 v43, 0xffff0000, v{33+2*n}
v_fmac_f32 v{R}, v40, v244
v_fmac_f32 v{R+1}, v41, v244
v_fmac_f32 v{R+2}, v42, v244
v_fmac_f32 v{R+3}, v43, v244
v_cvt_pk_bf16_f32 v{R}, v{R}, v{R+1}
v_cvt_pk_bf16_f32 v{R+1}, v{R+2}, v{R+3}
global_store_dwordx2 v27, {vr(R,2)}, s[40:41] offset:{512*cb} sc1
""")
    if sidx == 0: a("s_branch k_pub")
a.label("k_pub"); a.reset()
a(f"""
s_setprio 0
s_lshr_b32 s15, s2, 5
s_lshl_b32 s15, s15, 12
s_add_u32 s15, s15, {FL}
v_lshl_add_u32 v26, v1, 7, s15
s_waitcnt vmcnt(0)
""")
stamp(11)
def sig4():
    a(f"""
s_mov_b32 exec_hi, 0
global_atomic_add v26, v29, s[40:41] offset:12 sc1
s_mov_b64 exec, -1
v_lshrrev_b32 v14, 3, v1
v_and_b32 v15, 7, v1
v_lshlrev_b32 v15, 4, v15
v_mul_u32_u24 v16, {UTP}, v14
v_mul_u32_u24 v17, {ATPI}, v14
s_mul_i32 s15, s12, {64*UTP}
s_and_b32 s13, s2, 7
s_lshl_b32 s13, s13, 2
s_add_u32 s13, s13, s8
s_lshl_b32 s13, s13, 7
s_add_u32 s15, s15, s13
s_add_u32 s15, s15, {AT}
v_add3_u32 v16, v16, v15, s15
v_add_u32 v17, v17, v15
v_add_u32 v17, {CS[0]}, v17
s_mov_b32 s27, 0
""")
    check("k_c4", "s[28:29]", 12, 32, 13, sleep=2)
    stamp(12)
    for i in range(8):
        a(f"global_load_dwordx4 {vr(32+4*i,4)}, v16, s[40:41] sc1")
        if i < 7: a(f"v_add_u32 v16, {8*UTP}, v16")
    for i in range(8):
        a(f"s_waitcnt vmcnt({7-i})")
        a(f"ds_write_b128 v17, {vr(32+4*i,4)} offset:{8*i*ATPI}")
last_of4("k_fw0" if OPT["fwarm"] else "k_final", 12, 28, sig4)
a("s_branch k_final")

a.label("k_spare"); a.reset()
a(f"""
s_sub_u32 s6, s2, 224                ; r
s_lshl_b32 s13, s6, 3
s_add_u32 s13, s13, s3               ; u 0..255
s_mov_b32 s59, s13
s_mul_i32 s60, s13, 7168             ; x rows 8u..8u+7
s_mul_i32 s61, s3, {8*912}
v_min_u32 v5, 48, v1
s_lshr_b32 s14, s13, 1
s_mul_i32 s14, s14, 49
v_add_lshl_u32 v6, v5, s14, 8
s_mul_i32 s14, s13, 49
v_add_lshl_u32 v5, v5, s14, 7
v_mov_b64 v[24:25], 0
v_mov_b64 v[26:27], 0
s_mul_i32 s14, s6, 896
s_add_u32 s14, s14, {FL}
v_min_u32 v13, 880, v10
v_add_u32 v13, s14, v13
v_mov_b32 v7, 1
s_lshl_b32 s13, s8, 3
s_add_u32 s13, s13, s3
s_lshr_b32 s14, s13, 1
s_mul_i32 s14, s14, 28
v_add_u32 v2, s14, v20
v_min_u32 v3, 6, v22
v_lshlrev_b32 v3, 8, v3
s_mul_i32 s14, s9, 1792
s_add_u32 s14, s14, 128
v_add_u32 v3, s14, v3
s_and_b32 s13, s13, 1
s_cmp_eq_u32 s13, 0
s_waitcnt lgkmcnt(0)
s_cselect_b32 s44, s32, s34
s_cselect_b32 s45, s33, s35
s_cmp_eq_u32 s3, 0
s_cbranch_scc0 k_r0
global_store_dwordx4 v13, v[24:27], s[40:41] sc1
s_waitcnt vmcnt(0)
s_mov_b64 exec, 1
global_atomic_add v24, v7, s[98:99] sc1
s_mov_b64 exec, -1
k_r0:
s_mov_b32 s48, s16
s_mov_b32 s49, s17
s_mov_b32 s50, 1835008
s_mov_b32 exec_hi, 0x00ffffff
""")
P = 912
for r in range(8):
    a(f"s_add_u32 m0, s61, {r*P}\ns_add_u32 s58, s60, {r*896}\nbuffer_load_dwordx4 v10, s[48:51], s58 offen lds")
a("s_mov_b32 exec_hi, -1\nv_lshlrev_b32 v30, 4, v22")
for i in range(7): a(f"global_load_dwordx4 {vr(64+4*i,4)}, v30, s[38:39] offset:{i*128}")
ntouch = 0
a(f"""
v_mul_u32_u24 v31, {P}, v20
v_add3_u32 v31, v31, v30, s61
v_and_b32 v48, 3, v1
v_lshrrev_b32 v49, 5, v1
v_lshl_add_u32 v48, v49, 2, v48
v_bfe_u32 v49, v1, 2, 2
v_lshl_add_u32 v48, v48, 3, v49
v_mul_u32_u24 v48, {P}, v48
v_bfe_u32 v49, v1, 4, 1
v_lshl_add_u32 v48, v49, 3, v48
s_mul_i32 s13, s3, 112
v_add_u32 v48, s13, v48
v_and_b32 v49, 4, v1
v_lshlrev_b32 v49, 3, v49
v_and_b32 v50, 32, v1
v_lshrrev_b32 v50, 1, v50
v_and_b32 v51, 3, v1
v_lshlrev_b32 v51, 2, v51
v_add3_u32 v49, v49, v50, v51
v_bfe_u32 v50, v1, 3, 2
v_add_lshl_u32 v49, v49, v50, 2
; store: d = 56w + 8X + (l>>3) ; t0 = 64r
s_mul_i32 s13, s3, 56
v_add_u32 v50, s13, v20
v_mul_u32_u24 v50, {UTP}, v50
s_lshl_b32 s13, s6, 7
s_add_u32 s13, s13, {UT}
v_add3_u32 v50, v50, v30, s13
s_waitcnt vmcnt({ntouch})
""")
for i in range(7): a(f"ds_read_b128 {vr(96+4*i,4)}, v31 offset:{i*128}")
a("s_barrier")
stamp(1)
a("v_mov_b32 v8, v5")
for X in range(7):
    a(f"ds_read_b64_tr_b16 {vr(128+4*X,2)}, v48 offset:{X*16}\nds_read_b64_tr_b16 {vr(130+4*X,2)}, v48 offset:{X*16+4*P}")
a("v_mov_b64 v[60:61], 0\ns_waitcnt lgkmcnt(14)")
for i in range(28): a(f"v_dot2c_f32_bf16 v{60+(i&1)}, v{96+i}, v{64+i}")
a("s_waitcnt lgkmcnt(0)")
for X in range(7):
    for q in range(4): a(f"ds_bpermute_b32 v{160+4*X+q}, v49, v{128+4*X+q}")
    if X >= 2:
        a(f"s_waitcnt lgkmcnt(8)\nglobal_store_dwordx4 v50, {vr(160+4*(X-2),4)}, s[40:41] sc1\nv_add_u32 v50, {8*UTP}, v50")
for X in (5, 6):
    a(f"s_waitcnt lgkmcnt({4*(6-X)})\nglobal_store_dwordx4 v50, {vr(160+4*X,4)}, s[40:41] sc1\nv_add_u32 v50, {8*UTP}, v50")
a(f"""
v_add_f32 v60, v60, v61
v_add_f32_dpp v60, v60, v60 quad_perm:[1,0,3,2] row_mask:0xf bank_mask:0xf
v_add_f32_dpp v60, v60, v60 quad_perm:[2,3,0,1] row_mask:0xf bank_mask:0xf
v_add_f32_dpp v60, v60, v60 row_half_mirror row_mask:0xf bank_mask:0xf
v_cvt_pk_bf16_f32 v60, v60, v60
v_and_b32 v60, 0xffff0000, v60
v_mul_f32 v60, {fbits(-LOG2E)}, v60
v_exp_f32 v60, v60
v_add_f32 v60, 1.0, v60
v_rcp_f32 v60, v60
v_cvt_pk_bf16_f32 v60, v60, v60
v_and_b32 v60, 0xffff0000, v60
v_sub_f32 v61, 1.0, v60
v_cvt_pk_bf16_f32 v60, v60, v61
s_lshl_b32 s13, s59, 5
s_add_u32 s13, s13, {GG}
v_lshl_add_u32 v54, v20, 2, s13
global_store_dword v54, v60, s[40:41] sc1
v_min_u32 v5, 55, v1
s_mul_i32 s13, s7, 56
v_add_lshl_u32 v5, v5, s13, 7
v_add_u32 v5, {FL}, v5
global_load_dword v6, v24, s[98:99] sc1
s_waitcnt vmcnt(0)
s_barrier
""")
stamp(2)
a(f"""
s_cmp_lt_u32 s3, 4
s_cbranch_scc0 k_r2
s_mov_b32 s59, {SPIN}
k_r1:
v_readfirstlane_b32 s58, v6
s_cmp_ge_u32 s58, 32
s_cbranch_scc1 k_r1d
s_sub_u32 s59, s59, 1
s_cmp_eq_u32 s59, 0
s_cbranch_scc1 k_r1d
global_load_dword v6, v24, s[98:99] sc1
s_waitcnt vmcnt(0)
s_branch k_r1
k_r1d:
s_mov_b32 exec_hi, 0x00ffffff
global_atomic_add v5, v7, s[40:41] sc1
s_mov_b32 exec_hi, -1
k_r2:
global_load_dword v0, v8, s[36:37]
""")
stamps_out(15)
a("s_endpgm")

a.label("k_y"); a.reset()
stamp(1)
vy.wait("X0", extra=" lgkmcnt(0)")
stamp(3)
bar(0)
stamp(4)
if not OPT["w1"]: dmaw(vy, 1)
dmax(vy, 1); dmaw(vy, 2); dmax(vy, 2)
a("""
s_and_b32 s13, s7, 2
s_mul_i32 s13, s13, 4608
v_add_u32 v16, s13, v10
v_lshl_add_u32 v17, v1, 3, s13
v_lshl_add_u32 v18, v1, 2, s13
""")
vy.wait("X1")
bar(1)
dmaw(vy, 3)
G = lambda w: 32 + 16*w
def gather(w):
    o = (0, 4608, 18432, 23040)[w] + 64; R = G(w)
    a(f"""
ds_read_b128 {vr(R,4)}, v16 offset:{o}
ds_read_b64 {vr(R+4,2)}, v17 offset:{o+1024}
ds_read_b64 {vr(R+6,2)}, v17 offset:{o+1536}
ds_read_b32 v{R+8}, v16 offset:{o-4}
ds_read_b32 v{R+9}, v17 offset:{o+1032}
ds_read_b32 v{R+10}, v17 offset:{o+1020}
ds_read_b32 v{R+11}, v17 offset:{o+1544}
ds_read_b32 v{R+12}, v18 offset:{o+2048}
ds_read_b32 v{R+13}, v18 offset:{o+2052}
ds_read_b32 v{R+14}, v18 offset:{o+2304}
ds_read_b32 v{R+15}, v18 offset:{o+2308}
""")
gather(3); gather(2)
dmax(vy, 3)
vy.wait("X2", extra=" lgkmcnt(0)")
bar(2)
dmaw(vy, 4)
gather(0); gather(1)
dmax(vy, 4)
vy.wait("X3", extra=" lgkmcnt(0)")
bar(3)
dmaw(vy, 5)
for i in range(16): a(f"v_add_f32 v{G(0)+i}, v{G(0)+i}, v{G(1)+i}\nv_add_f32 v{G(2)+i}, v{G(2)+i}, v{G(3)+i}")
dmax(vy, 5)
vy.wait("X4")
bar(4)
stamp(5)
dmaw(vy, 6)
for i in range(16): a(f"v_add_f32 v{G(0)+i}, v{G(0)+i}, v{G(2)+i}")
k0,k1,k2,k3,a1,b1,a2,b2,km,c1,pp,c2,a3,b3,a4,b4 = range(32, 48)
EW = 204
def cv(i, lo, hi): a(f"v_cvt_pk_bf16_f32 v{EW+i}, v{lo}, v{hi}")
a(f"""
v_and_b32 v19, 1, v1
v_cmp_eq_u32 vcc, 0, v19
v_cndmask_b32 v48, v{b3}, v{a3}, vcc
v_cndmask_b32 v49, v{b4}, v{a4}, vcc
v_cmp_ne_u32 vcc, 0, v1
v_cndmask_b32 v{km}, 0, v{km}, vcc
v_cndmask_b32 v{pp}, v{pp}, v{a1}, vcc
""")
dmax(vy, 6)
a("s_load_dword s27, s[98:99], 0")
vy.wait("X5")
bar(5)
dmaw(vy, 7)
cv(5, b2, b2); cv(7, a2, a2); cv(8, b3, b3); cv(10, a3, a3); cv(11, a3, a3); cv(12, b4, b4); cv(14, a4, a4); cv(15, a4, a4)
a("s_cmp_eq_u32 s61, 0\ns_cbranch_scc0 k_eo")
cv(0, k3, k2); cv(1, k1, k0); cv(2, c1, b1); cv(3, a1, a1); cv(4, c2, c2); cv(6, b2, a2); cv(9, b3, 48); cv(13, b4, 49)
a("s_branch k_ew\nk_eo:")
cv(0, k2, k1); cv(1, k0, km); cv(2, b1, a1); cv(3, a1, pp); cv(4, c2, b2); cv(6, a2, a2); cv(9, 48, a3); cv(13, 49, a4)
a("k_ew:")
pass_first_addr(1)
a(f"""
v_lshrrev_b32 v20, 3, v1
v_and_b32 v22, 7, v1
v_mul_u32_u24 v160, 896, v20
v_and_b32 v161, 6, v20
v_xor_b32 v161, v161, v22
v_lshl_add_u32 v160, v161, 4, v160
v_add_u32 v161, 6144, v160
v_add_u32 v162, 12288, v160
v_add_u32 v163, 18432, v160
v_bfe_u32 v164, v1, 2, 3
v_lshlrev_b32 v164, 7, v164
v_lshrrev_b32 v165, 5, v1
v_lshl_add_u32 v164, v165, 11, v164
v_bfe_u32 v165, v1, 3, 2
v_lshl_add_u32 v164, v165, 5, v164
v_and_b32 v165, 3, v1
v_lshl_add_u32 v164, v165, 3, v164
v_add_u32 v164, s14, v164
v_xor_b32 v165, 32, v164
v_xor_b32 v166, 64, v164
v_xor_b32 v167, 96, v164
s_and_b32 s9, s2, 7
s_lshl_b32 s9, s9, 2
s_add_u32 s9, s9, s8               ; rb64
s_mul_i32 s13, s9, 229376
s_mul_i32 s58, s7, 28672
s_add_u32 s13, s13, s58
s_add_u32 s16, s40, s13
s_addc_u32 s17, s41, 0
s_mov_b32 s18, {114688+28672}
s_mov_b32 s19, 0x20000
s_mov_b32 s20, s36
s_mov_b32 s21, s37
s_mov_b32 s22, 1605632
s_mov_b32 s23, 0x20000
s_mul_i32 s25, s7, 7
s_lshl_b32 s26, s12, 7               ; cb*128
""")
if not OPT["rot2"]: a("s_mov_b32 s42, 0")
vy.wait("X6", extra=" lgkmcnt(0)")
bar(6)
dmaw(vy, 8)
a(f"""
s_mul_i32 s13, s61, 4160
s_add_u32 s13, s13, s24
v_lshlrev_b32 v220, 3, v1
v_sub_u32 v220, s13, v220
v_sub_u32 v221, s13, v10
v_min_u32 v48, 39, v1
v_lshlrev_b32 v48, 4, v48
v_add_u32 v222, 8256, v48
v_add_u32 v50, {4096-36*16}, v48
v_cmp_gt_u32 vcc, 36, v1
v_cndmask_b32 v222, v50, v222, vcc
v_add_u32 v222, s24, v222
v_mov_b32 v224, 0
v_mov_b32 v225, 0
v_mov_b32 v226, 0
v_mov_b32 v227, 0
v_mov_b32 v52, 0
s_mov_b32 s59, {SPIN}
k_c0_l:
s_cmp_ge_u32 s27, 32
s_cbranch_scc1 k_c0_d
s_sub_u32 s59, s59, 1
s_cmp_eq_u32 s59, 0
s_cbranch_scc1 k_c0_d
s_sleep 4
global_load_dword v53, v52, s[98:99] sc1
s_waitcnt vmcnt(0)
v_readfirstlane_b32 s27, v53
s_branch k_c0_l
k_c0_d:
""")
hsig_addr(12)
a(f"""
v_mov_b32 v168, {CNT}
v_mov_b32 v169, 1
s_add_u32 s61, s26, 57344
""")
vy.wait("W7")
bar(7)
stamp(6)
FINA = [l.split(";")[0].strip() for l in f"""
s_lshr_b32 s13, s3, 1                ; tb
s_and_b32 s58, s3, 1
s_lshl_b32 s58, s58, 2
v_and_b32 v2, 15, v1                 ; t in block
v_lshrrev_b32 v3, 4, v1
v_add_u32 v3, s58, v3                ; dg
s_lshl_b32 s59, s13, 14
v_lshlrev_b32 v5, 1, v3
v_xor_b32 v5, v5, v2
v_lshlrev_b32 v5, 4, v5
v_lshl_add_u32 v5, v2, 8, v5
v_add_u32 v5, s59, v5
v_xor_b32 v6, 16, v5
s_lshl_b32 s13, s13, 4
v_add_u32 v2, s13, v2                ; t in tile
v_lshlrev_b32 v7, 2, v2
v_add_u32 v7, {GL}, v7
s_and_b32 s58, s2, 7
s_lshl_b32 s58, s58, 2
s_add_u32 s58, s58, s8
s_lshl_b32 s58, s58, 6
v_add_u32 v4, s58, v2
v_mul_u32_u24 v4, 896, v4
v_lshl_add_u32 v4, v3, 4, v4
s_lshl_b32 s58, s12, 7
v_add_u32 v4, s58, v4                ; out offset
v_bfe_u32 v8, v1, 2, 2
v_lshl_add_u32 v8, v3, 3, v8
v_mul_u32_u24 v8, {ATPI}, v8
v_and_b32 v9, 3, v1
v_lshl_add_u32 v8, v9, 3, v8
s_lshl_b32 s13, s13, 1
s_add_u32 s13, s13, {CS[0]}
v_add_u32 v8, s13, v8
""".strip().split("\n")]
vg = VM()
ACC2 = 16; AF = [172, 188]; RING = [204, 220, 236, 80, 96, 112, 144]
def rot_(i): return [f"s_add_u32 s58, s42, {i}", "s_sub_u32 s59, s58, 7", "s_min_u32 s58, s58, s59"]
def ldw_l(n):
    p, i = divmod(n, 7)
    o = rot_(i) + ["s_add_u32 s58, s58, s25", "s_lshr_b32 s59, s58, 1", "s_mul_i32 s59, s59, 114688", "s_and_b32 s58, s58, 1", "s_mul_i32 s58, s58, 28672",
         "s_add_u32 s58, s58, s59", f"s_add_u32 m0, s14, {RSL[i]}", f"s_add_u32 s60, s58, s{26 if p == 0 else 61}"]
    return ["\n".join(o)] + [(f"buffer_load_dwordx4 v{160+k}, s[20:23], s60 offen offset:{k*1024} lds", f"w{n}") for k in range(4)]
def ldh_l(n):
    p, i = divmod(n, 7)
    o = rot_(i) + ["s_lshl_b32 s56, s58, 12"] + (["s_add_u32 s56, s56, 114688"] if p else [])
    return ["\n".join(o)] + [(f"buffer_load_dwordx4 {vr(RING[i]+4*k,4)}, v10, s[16:19], s56 offen offset:{k*1024} sc1", f"h{n}") for k in range(4)]
def emit(l):
    for x in l:
        if isinstance(x, tuple): vg.op(*x)
        else: a(x)
pass_call(1, 4, 4)
a(f"""
ds_write_b64 v220, v[204:205] offset:4088
ds_write_b64 v220, v[206:207] offset:{4088-512}
ds_write_b128 v221, v[208:211] offset:{4080-1024}
ds_write_b128 v221, v[212:215] offset:{4080-2048}
ds_write_b128 v221, v[216:219] offset:{4080-3072}
ds_write_b128 v222, v[224:227]
s_mov_b64 exec, 1
ds_add_u32 v168, v169
s_mov_b64 exec, -1
""")
if OPT["yprio"]: a(f"s_setprio {OPT['yprio']}")
pass_resume(1)
stamp(7)
emit(ldw_l(0))
pass_resume(1)
emit(ldw_l(1))
pass_resume(1)
stamp(8)
a("""
s_mov_b64 exec, 1
ds_add_u32 v168, v169 offset:4
s_mov_b64 exec, -1
ds_read_b32 v170, v168 offset:4
s_nop 3
""")
EL = epi_list(0) + epi_list(1) + epi_list(2) + epi_list(3)
run_epi(vg, EL, 20)
a(f"""
s_mov_b32 s59, {SPIN}
k_ys:
s_waitcnt lgkmcnt(0)
v_readfirstlane_b32 s58, v170
s_cmp_eq_u32 s58, 4
s_cbranch_scc1 k_ysd
ds_read_b32 v170, v168 offset:4
s_sub_u32 s59, s59, 1
s_cmp_lg_u32 s59, 0
s_cbranch_scc1 k_ys
k_ysd:
""")
LQ = ldw_l(2) + ldw_l(3) + ldw_l(4) + ldw_l(5) + ["PP"] + ldw_l(6)
while LQ or EL:
    while LQ:
        x = LQ.pop(0)
        if x == "PP": pre_poll("s[28:29]", 4); continue
        emit([x])
        if isinstance(x, tuple): break
    run_epi(vg, EL, OPT["vgap"])
stamp(9)
a("s_setprio 0")
def rda(n):
    F = AF[n & 1]
    out = [f"v_add_u32 v{128+db}, {RSL[n % 7]}, v{164+db}" for db in range(4)]
    return out + [f"ds_read_b64_tr_b16 {vr(F+4*db+2*hh,2)}, v{128+db} offset:{hh*1024}" for db in range(4) for hh in range(2)]
check("k_c2", "s[28:29]", 4, HT, 15); stamp(10)
emit(ldh_l(0)); emit(ldh_l(1))
vg.wait("st")
def sigy(): a("s_mov_b64 exec, 0x3fff\nglobal_atomic_add v12, v169, s[40:41] offset:8 sc1\ns_mov_b64 exec, -1")
if OPT["one"]:
    stamp(3)
    last_of4("k_s3", 16, 2, sigy); a.label("k_s3"); stamp(5)
else: sigy()
for x in rda(0): a(x)
emit(ldh_l(2))
wi, hi_ = 7, 3
HD = OPT["HD"]; CK = OPT["CK"]
for n in range(14):
    F = AF[n & 1]; S = RING[n % 7]
    if n == CK:
        check("k_c3", "s[28:29]", 8, HT, 15); stamp(11)
    if hi_ < 7 and hi_ <= n + HD: emit(ldh_l(hi_)); hi_ += 1
    if wi < 14 and wi < n + 7: emit(ldw_l(wi)); wi += 1
    while n >= CK and hi_ < 14 and hi_ <= n + HD: emit(ldh_l(hi_)); hi_ += 1
    vg.wait(f"h{n}", *([f"w{n+1}"] if n < 13 else []), extra=" lgkmcnt(0)")
    if OPT["sw"] == 2: stamp(1+n, True)
    fill = rda(n+1) if n < 13 else []
    if n + 1 == CK: fill.append("s_load_dword s27, s[28:29], 8 glc")
    ext = []
    if n == 10: ext = ["v_and_b32 v132, 15, v1", "v_lshrrev_b32 v133, 4, v1", "v_xor_b32 v133, v133, v132", "v_lshlrev_b32 v133, 4, v133", "v_lshl_add_u32 v132, v132, 8, v133",
                       "v_add_u32 v132, s14, v132", "v_xor_b32 v133, 64, v132", "v_xor_b32 v134, 128, v132", "v_xor_b32 v135, 192, v132"]
    if n == 11: ext = FINA[:len(FINA)//2]
    if n == 12: ext = FINA[len(FINA)//2:]
    PW = [f"ds_write_b128 v{132+db}, {vr(ACC2+16*db+4*tb,4)} offset:{tb*16384}" for db in range(4) for tb in range(4)]
    j = 0
    for db in range(4):
        for tb in range(4):
            d = vr(ACC2+16*db+4*tb, 4)
            a(f"v_mfma_f32_16x16x32_bf16 {d}, {vr(F+4*db,4)}, {vr(S+4*tb,4)}, " + ("0" if n == 0 else d))
            if fill: a(fill.pop(0))
            if ext: a(ext.pop(0))
            if n == 13 and j >= 6: a(PW.pop(0))
            j += 1
    for x in ext: a(x)
    if n == 13:
        for x in PW: a(x)
assert wi == 14 and hi_ == 14
stamp(12)
a("s_branch k_fbar")
a.label("k_final"); a.reset()
for x in FINA: a(x)
a.label("k_fbar")
a("s_waitcnt lgkmcnt(0)")
if OPT["fwarm"]: a("s_cbranch_execz k_fw")
stamp(13)
a("s_barrier")
stamp(14)
a.label("k_fw")
for w in range(4):
    a(f"ds_read_b128 {vr(16+8*w,4)}, v5 offset:{w*4096}")
    a(f"ds_read_b128 {vr(20+8*w,4)}, v6 offset:{w*4096}")
a(f"""
ds_read_b64_tr_b16 v[48:49], v8
ds_read_b64_tr_b16 v[50:51], v8 offset:{4*ATPI}
ds_read_b32 v52, v7
s_waitcnt lgkmcnt(7)
""")
for i in range(0, 8, 2): a(f"v_pk_add_f32 {vr(16+i,2)}, {vr(16+i,2)}, {vr(24+i,2)}")
a("s_waitcnt lgkmcnt(3)")
for i in range(0, 8, 2): a(f"v_pk_add_f32 {vr(32+i,2)}, {vr(32+i,2)}, {vr(40+i,2)}")
for i in range(0, 8, 2): a(f"v_pk_add_f32 {vr(16+i,2)}, {vr(16+i,2)}, {vr(32+i,2)}")
a("s_waitcnt lgkmcnt(0)\nv_lshlrev_b32 v54, 16, v52\nv_and_b32 v55, 0xffff0000, v52")
for i in range(4):
    a(f"v_lshlrev_b32 v{24+2*i}, 16, v{48+i}\nv_and_b32 v{25+2*i}, 0xffff0000, v{48+i}")
for i in range(0, 8, 2): a(f"v_pk_mul_f32 {vr(16+i,2)}, {vr(16+i,2)}, v[54:55] op_sel:[0,1] op_sel_hi:[1,1]")
for i in range(0, 8, 2): a(f"v_pk_fma_f32 {vr(16+i,2)}, {vr(24+i,2)}, v[54:55], {vr(16+i,2)} op_sel_hi:[1,0,1]")
for i in range(4): a(f"v_cvt_pk_bf16_f32 v{32+i}, v{16+2*i}, v{17+2*i}")
if OPT["fwarm"]: a("s_cbranch_execz k_fw2")
a("global_store_dwordx4 v4, v[32:35], s[96:97] sc0 sc1")
stamps_out(15)
a.label("k_end")
a("s_endpgm")
if OPT["fwarm"]: a("k_fw2:\ns_mov_b64 exec, -1\ns_branch k_final\nk_fw0:\ns_mov_b64 exec, 0\ns_branch k_part")
emit_pass()
a.label("code_end")

hdr = open("cdna_kernels/%s.s.ref" % NAME).read().split("; Override launch")[0]
out = hdr + f"; @launch grid=(256,1,1) block=(512,1,1) lds={LDS}\n"
out += '.amdgcn_target "amdgcn-amd-amdhsa--gfx950"\n' + a.text()
out += f""".section .rodata,"a"
.p2align 6
.amdhsa_kernel {KN}
  .amdhsa_next_free_vgpr 256
  .amdhsa_next_free_sgpr 102
  .amdhsa_accum_offset 256
  .amdhsa_group_segment_fixed_size 0
  .amdhsa_kernarg_size 136
  .amdhsa_user_sgpr_count 2
  .amdhsa_user_sgpr_kernarg_segment_ptr 1
  .amdhsa_system_sgpr_workgroup_id_x 1
.end_amdhsa_kernel
"""
open(sys.argv[1], "w").write(out)
print("written", sys.argv[1], "lines", len(a.lines), "nops", a.nops, "")
```

```python
import sys, math, struct
from asm import *

NAME = "gated_mix__ssm_conv_s4__swiglu_ffn__prompt"
KN = NAME + "_kernel"
WDP = 0x800000
HP, UT, AT, GG, FL = 0, 0xA00000, 0xE00000, 0x1000000, 0x1010000
UTP = 4224
def fbits(x): return "0x%08x" % struct.unpack("<I", struct.pack("<f", x))[0]
LOG2E = 1.4426950408889634
OPT = dict(ntx="", ntw="", ntp="nt", stamp=0, cprio=0, yprio=1, warm=0, fwarm=0, rpg=2, w1=1, sw=0, wsig=1, xt=1, xwd=0, rot2=1, ht=0, xs1=26, xs2=26, xs3=56, vgap=9, HD=4, CK=5, xprio=2, one=1, ni=2, sch=4, cpf=0, pb=1, xw=1)
for a_ in sys.argv[2:]:
    k, v = a_.split("="); OPT[k] = int(v) if v.lstrip("-").isdigit() else v
a = Asm()
SPIN = 40000
HT = 14 if OPT["one"] else 56

def cmuls(lst):
    for d, x, y in lst:
        assert d != x and d != y
        a(f"v_pk_mul_f32 {vr(d,2)}, {vr(x,2)}, {vr(y,2)} op_sel_hi:[1,0]")
    for d, x, y in lst:
        a(f"v_pk_fma_f32 {vr(d,2)}, {vr(x,2)}, {vr(y,2)}, {vr(d,2)} op_sel:[1,1,0] op_sel_hi:[0,1,1] neg_lo:[1,0,0]")
def bar(n):
    k = (n - 1) if n < 8 else (n - 8)
    if OPT["sw"] == 1 and n >= 1: stamp(1+2*k, True)
    a("s_barrier")
    if OPT["sw"] == 1 and n >= 1: stamp(2+2*k, True)
_seen1 = [0]
def stamp(idx, force=False):
    if OPT.get("es") and idx == 1:
        _seen1[0] += 1
        if _seen1[0] in (2, 4): return
    if OPT["sw"] and not force and idx not in (0, 15): return
    if OPT["stamp"]: a(f"{'s_memtime' if OPT['stamp']==2 else 's_memrealtime'} s[{64+2*idx}:{65+2*idx}]")
def stamps_out(idx):
    if not OPT["stamp"]: return
    a("s_waitcnt vmcnt(0)")
    stamp(idx)
    a("s_waitcnt lgkmcnt(0)")
    for i in range(16): a(f"v_writelane_b32 v250, s{64+2*i}, {i}")
    a(f"""s_lshl_b32 s64, s2, 3
s_add_u32 s64, s64, s3
s_lshl_b32 s64, s64, 6
s_add_u32 s64, s64, 0x2000000
v_lshl_add_u32 v251, v1, 2, s64
s_mov_b64 exec, 0xffff
global_store_dword v251, v250, s[40:41]""")
    if OPT.get("dbgout"):
        a(f"""
s_lshl_b32 s65, s2, 3
s_add_u32 s65, s65, s3
s_cmp_eq_u32 s65, {OPT['dbgout']}
s_cbranch_scc0 k_end
v_readlane_b32 s65, v250, 0
v_subrev_u32 v250, s65, v250
v_lshlrev_b32 v251, 2, v1
s_mov_b64 exec, 0xfffe
global_store_dword v251, v250, s[98:99]""")
def stamps_init():
    if OPT["stamp"]:
        for i in range(1,16): a(f"s_mov_b32 s{64+2*i}, 0")
        stamp(0)

class VM:
    def __init__(self): self.q = []
    def op(self, text, tag):
        a(text); self.q.append(tag)
    def n_for(self, *tags):
        idx = max(i for i, t in enumerate(self.q) if t in tags)
        return len(self.q) - 1 - idx
    def wait(self, *tags, extra=""):
        n = self.n_for(*tags); assert n <= 63
        a(f"s_waitcnt vmcnt({n}){extra}")

XA = [98304, 49152, 65536, 81920, 32768, 0, 16384]
WR = [114688, 131072, 147456]
WA = [WR[s % 3] for s in range(10)] + [WR[1], XA[0], WR[2], XA[1]]
CS = [XA[2], WR[0]]
RSL = [XA[3], WR[1], XA[4], XA[5], XA[6], XA[0], XA[1]]
TABO = 12992
CNT = CS[0] + 16064
GL = CS[1] + 16064
ATPI = 144
LDS = 163840

a.raw(f".text\n.globl {KN}\n.p2align 8\n.type {KN},@function\n{KN}:")
a("""
s_cmp_ge_u32 s2, 256
s_cbranch_scc1 k_end
s_add_u32 s2, s2, 224
s_and_b32 s2, s2, 255
""")
stamps_init()
a("""
s_load_dwordx16 s[16:31], s[0:1], 0
s_load_dwordx8 s[32:39], s[0:1], 80
s_load_dwordx2 s[40:41], s[0:1], 128
s_load_dwordx4 s[96:99], s[0:1], 112
s_getpc_b64 s[4:5]
k_pc:
v_lshrrev_b32 v2, 6, v0
v_and_b32 v1, 63, v0
v_readfirstlane_b32 s3, v2
s_lshr_b32 s6, s2, 3                 ; j
s_and_b32 s8, s6, 3                  ; rbl
; code prefetch into L2: line = rbl*56 + wave*7 + min(lane,6)
s_mul_i32 s7, s8, 6144
v_min_u32 v3, 5, v1
v_mad_u32_u24 v3, v2, 6, v3
v_lshlrev_b32 v3, 7, v3
v_add_u32 v3, s7, v3
v_min_u32 v3, code_end-k_pc-4, v3
CPF
s_and_b32 s10, s2, 6
s_lshl_b32 s10, s10, 1
s_add_u32 s10, s10, s8               ; rb128
s_and_b32 s9, s2, 1
s_mul_i32 s11, s9, 7
s_lshr_b32 s12, s6, 2                ; fbl (7 = spare WG)
s_add_u32 s11, s11, s12              ; fb128
s_and_b32 s7, s3, 3
v_lshlrev_b32 v10, 4, v1
s_lshl_b32 s42, s8, 1
s_add_u32 s42, s42, s12
s_sub_u32 s43, s42, 7
s_cmp_ge_u32 s42, 7
s_cselect_b32 s42, s43, s42          ; rot
; W DMA voffsets v14,v15: row k = 16q+8i+(l>>3); chunk16 = (l&7) ^ (((l>>4)&1)<<1) ^ (i<<2)
v_lshrrev_b32 v20, 3, v1
v_lshrrev_b32 v21, 4, v1
v_and_b32 v22, 7, v1
s_lshl_b32 s13, s7, 4
v_add_u32 v25, s13, v20
v_mul_u32_u24 v25, 3584, v25
s_lshl_b32 s13, s11, 8
v_add_u32 v25, s13, v25
v_and_b32 v26, 1, v21
v_lshlrev_b32 v26, 1, v26
v_xor_b32 v26, v22, v26
v_lshl_add_u32 v240, v26, 4, v25
v_add_u32 v241, 27648, v240
v_xor_b32 v26, 4, v26
v_lshl_add_u32 v242, v26, 4, v25
v_add_u32 v243, 27648, v242
s_lshl_b32 s15, s7, 11               ; W dest offset in slot
s_mov_b32 s50, 1605632
s_mov_b32 s51, 0x20000
s_mov_b32 s54, 1605632
s_mov_b32 s55, 0x20000
s_cmp_eq_u32 s12, 7
s_cbranch_scc1 k_spare
""".replace("CPF", ["global_load_dword v0, v3, s[4:5]", "s_cmp_lt_u32 s2, 224\ns_cbranch_scc1 k_ncp\nglobal_load_dword v0, v3, s[4:5]\nk_ncp:", "s_cmp_lt_u32 s2, 192\ns_cbranch_scc1 k_ncp\nglobal_load_dword v0, v3, s[4:5]\nk_ncp:"][OPT["cpf"]]))
def dmaw(vm, st):
    a(f"s_add_u32 m0, s15, {WA[st]}")
    if st >= 7: a("s_add_u32 s58, s57, 128")
    else: a("s_mov_b32 s58, s57")
    for i in range(2): vm.op(f"buffer_load_dwordx4 v{240+i}, s[48:51], s58 offen offset:{i*1024} {OPT['ntw']} lds", f"W{st}")
    a(f"s_add_u32 m0, s15, {WA[st]+8192}\ns_add_u32 s57, s57, 229376")
    for i in range(2): vm.op(f"buffer_load_dwordx4 v{242+i}, s[52:55], s58 offen offset:{i*1024} {OPT['ntw']} lds", f"W{st}")
    a("s_cmp_eq_u32 s57, 1605632\ns_cselect_b32 s57, 0, s57")
def dmax(vm, st):
    a(f"s_add_u32 m0, s14, {XA[st]}\ns_mov_b32 s58, s56")
    for i in range(4): vm.op(f"buffer_load_dwordx4 v{232+i}, s[44:47], s58 offen offset:{i*1024} {OPT['ntx']} lds", f"X{st}")
    a("s_add_u32 s56, s56, 128\ns_cmp_eq_u32 s56, 896\ns_cselect_b32 s56, 0, s56")

FB = [16, 48]; ACC = 80; TM = 144; KA = 164
def pass_addrs():
    a(f"""
v_and_b32 v6, 31, v1
v_lshrrev_b32 v7, 5, v1
v_bfe_u32 v4, v1, 1, 3
v_xor_b32 v7, v7, v4
v_lshlrev_b32 v7, 4, v7
v_lshl_add_u32 v6, v6, 7, v7
s_lshr_b32 s13, s7, 1
s_lshl_b32 s13, s13, 13
v_add_u32 v2, s13, v6
v_lshlrev_b32 v6, 9, v1
v_and_b32 v6, 0x2000, v6
v_lshlrev_b32 v7, 5, v1
v_and_b32 v7, 0x580, v7
v_and_b32 v4, 3, v1
v_lshlrev_b32 v4, 3, v4
v_add3_u32 v6, v6, v7, v4
v_bfe_u32 v7, v1, 3, 2
s_and_b32 s13, s7, 1
s_lshl_b32 s13, s13, 1
v_xor_b32 v7, s13, v7
v_lshl_add_u32 v3, v7, 5, v6
""")
def h_addr(p):
    a(f"""
s_lshl_b32 s13, s10, 1
s_lshr_b32 s58, s7, 1
s_add_u32 s13, s13, s58
s_mul_i32 s13, s13, 56
s_lshl_b32 s58, s11, 1
s_add_u32 s13, s13, s58
s_and_b32 s58, s7, 1
s_add_u32 s13, s13, s58
s_lshr_b32 s58, s3, 2
s_mul_i32 s58, s58, 28
s_add_u32 s13, s13, s58
s_lshl_b32 s13, s13, 12
v_and_b32 v14, 15, v1
v_lshl_add_u32 v14, v14, 4, s13
v_bfe_u32 v15, v1, 4, 1
v_lshl_add_u32 v14, v15, 10, v14
v_lshrrev_b32 v15, 5, v1
v_lshl_add_u32 v14, v15, 8, v14
s_mov_b32 s62, {fbits(-LOG2E)}
""")
def nib(lst):
    v = 0
    for i, x in enumerate(lst): v |= (x // 16384) << (4*i)
    return "0x%x" % v
VADDR = lambda xs, ws: [f"v_add_u32 v6, {xs}, v2", f"v_add_u32 v4, {ws}, v3", "v_xor_b32 v7, 32, v6", "v_xor_b32 v5, 32, v4", "v_xor_b32 v8, 64, v6", "v_xor_b32 v9, 96, v6"]
SETA = ["s_and_b32 s13, s30, 15", "s_lshl_b32 s13, s13, 14", "s_lshr_b32 s30, s30, 4", "s_and_b32 s58, s31, 15", "s_lshl_b32 s58, s58, 14", "s_lshr_b32 s31, s31, 4"] + VADDR("s13", "s58")
def reads(hs, F):
    out = []
    for k2 in range(2):
        ks = 2*hs + k2
        A_ = lambda fa, hh: f"ds_read_b64_tr_b16 {vr(F+16*k2+4*fa+2*hh,2)}, v{4+fa} offset:{ks*2048+hh*512}"
        B_ = lambda tb: f"ds_read_b128 {vr(F+16*k2+8+4*tb,4)}, v{6+ks} offset:{tb*4096}"
        out += [A_(0,0), A_(0,1), B_(0), B_(1), A_(1,0), A_(1,1)]
    return out
def acc(n): return ACC + 16*n
def pass_resume(iters):
    a(f"s_mov_b32 s59, {iters}\ns_call_b64 s[100:101], k_pl")
    a.reset()
def pass_call(p, nbar, iters):
    a(f"""
s_mov_b32 s30, {nib(XA[1:]+[0])}
s_mov_b32 s31, {nib(WA[7*p+1:7*p+7]+[0])}
s_mov_b32 s43, {nbar}
s_mov_b32 s59, {iters}
s_call_b64 s[100:101], k_pass
""")
    a.reset()
def pass_first_addr(p):
    for x in VADDR(XA[0], WA[7*p]): a(x)
def emit_pass():
    def half(hs, first):
        F = FB[hs]; Fn = FB[hs ^ 1]
        mm = []
        for k2 in range(2):
            for fa in range(2):
                for tb in range(2):
                    d = vr(acc(2*fa+tb), 16)
                    mm.append(f"v_mfma_f32_32x32x16_bf16 {d}, {vr(F+16*k2+4*fa,4)}, {vr(F+16*k2+8+4*tb,4)}, " + ("0" if first and k2 == 0 else d))
        if first: a("s_waitcnt lgkmcnt(6)")
        else: a("s_waitcnt lgkmcnt(0)")
        if hs == 0:
            fill = reads(1, Fn) + SETA + ["s_cmp_eq_u32 s43, 0"]
        else:
            a(mm.pop(0))
            a("s_cbranch_scc1 k_pnb\ns_waitcnt vmcnt(0)\ns_barrier\ns_sub_u32 s43, s43, 1\nk_pnb:")
            fill = reads(0, Fn) + ["s_sub_u32 s59, s59, 1", "s_cmp_lg_u32 s59, 0"]
        for i, m in enumerate(mm):
            if first and i == 4: a("s_waitcnt lgkmcnt(12)")
            a(m)
            for _ in range(3 if (i < 4) else 4):
                if fill: a(fill.pop(0))
        for x in fill: a(x)
    a.raw(".p2align 6")
    a.label("k_pass"); a.reset()
    for r in reads(0, FB[0]): a(r)
    half(0, True)
    a("s_branch k_pm")
    a.raw(".p2align 6")
    a.label("k_pl")
    half(0, False)
    a.label("k_pm")
    half(1, False)
    a("s_cbranch_scc1 k_pl\ns_setpc_b64 s[100:101]")
def epi_list(n):
    Tm = TM + 8*(n & 1); R = acc(n); o = []
    for i in range(8): o.append(f"v_mul_f32 v{Tm+i}, s62, v{R+i}")
    for i in range(8): o += [f"v_exp_f32 v{Tm+i}, v{Tm+i}", f"v_mul_f32 v{R+i}, v{R+i}, v{R+8+i}"]
    for i in range(8): o.append(f"v_add_f32 v{Tm+i}, 1.0, v{Tm+i}")
    for i in range(8):
        o.append(f"v_rcp_f32 v{Tm+i}, v{Tm+i}")
        if i >= 2: o.append(f"v_mul_f32 v{R+i-2}, v{R+i-2}, v{Tm+i-2}")
    for i in (6, 7): o.append(f"v_mul_f32 v{R+i}, v{R+i}, v{Tm+i}")
    for i in range(4): o.append(f"v_cvt_pk_bf16_f32 v{R+8+i}, v{R+2*i}, v{R+2*i+1}")
    o.append(("st", n))
    return o
def hst(vm, n, tag):
    vm.op(f"global_store_dwordx4 v14, {vr(acc(n)+8,4)}, s[40:41] offset:{(n&1)*2048+(n>>1)*512} sc1", tag)
def run_epi(vm, lst, count):
    for _ in range(count):
        if not lst: return
        x = lst.pop(0)
        if isinstance(x, tuple): hst(vm, x[1], "st")
        else: a(x)
def pre_poll(base, off):
    a(f"s_load_dword s27, {base}, {off} glc")
def check(lbl, base, off, target, vt, sleep=1):
    a(f"""
s_mov_b32 s59, 0
{lbl}_l:
s_waitcnt lgkmcnt(0)
s_cmp_eq_u32 s27, {target}
s_cbranch_scc1 {lbl}_d
s_add_u32 s59, s59, 1
s_sleep {sleep}
s_cmp_lt_u32 s59, 256
s_cbranch_scc0 {lbl}_v
s_load_dword s27, {base}, {off} glc
s_branch {lbl}_l
{lbl}_v:
v_mov_b32 v{vt}, 0
global_load_dword v{vt}, v{vt}, {base} offset:{off} sc1
s_waitcnt vmcnt(0)
v_readfirstlane_b32 s27, v{vt}
s_cmp_lt_u32 s59, {SPIN}
s_cbranch_scc1 {lbl}_l
{lbl}_d:
""")
def own_line():
    a(f"""
s_lshl_b32 s13, s2, 7
s_add_u32 s13, s13, {FL}
s_add_u32 s28, s40, s13
s_addc_u32 s29, s41, 0
""")
def hsig_addr(v):
    a(f"""
s_lshl_b32 s13, s10, 1
s_and_b32 s58, s13, 3
s_lshl_b32 s58, s58, 3
s_lshr_b32 s13, s13, 2
s_add_u32 s13, s13, s58
s_lshl_b32 s13, s13, 7
s_add_u32 s13, s13, {FL}
v_lshrrev_b32 v{v}, 1, v1
v_lshlrev_b32 v{v}, 12, v{v}
v_and_b32 v{v+1}, 1, v1
v_lshl_add_u32 v{v}, v{v+1}, 10, v{v}
v_add_u32 v{v}, s13, v{v}
""")
def last_of4(lbl, cntoff, vt, body):
    a(f"""
v_mov_b32 v{vt}, {CNT+cntoff}
v_mov_b32 v{vt+1}, 1
s_mov_b64 exec, 1
ds_add_rtn_u32 v{vt+2}, v{vt}, v{vt+1}
s_waitcnt lgkmcnt(0)
v_readfirstlane_b32 s58, v{vt+2}
s_mov_b64 exec, -1
s_cmp_eq_u32 s58, 3
s_cbranch_scc0 {lbl}
""")
    body()

Z = lambda k: 20 + 2*k
Wp = lambda k: 50 + 2*k
E = lambda k: 68 + 2*k
Y_ = {1: 84, 2: 86, 4: 88, 8: 90}
T = lambda k: 92 + 2*k
CV = lambda k: 108 + (k & 7)
FE, FX0, FX1 = 116, 132, 148
PR = 176
vy = VM()
XV = 232
a(f"""
s_lshr_b32 s14, s7, 1
s_lshl_b32 s60, s2, 1
s_add_u32 s60, s60, s14              ; channel
s_lshl_b32 s13, s60, 9
s_and_b32 s14, s7, 1
s_lshl_b32 s14, s14, 7
s_add_u32 s13, s13, s14
s_lshr_b32 s14, s3, 2
s_lshl_b32 s14, s14, 8
s_add_u32 s13, s13, s14
v_lshl_add_u32 v8, v1, 1, s13
s_lshl_b32 s14, s60, 1
v_mov_b32 v9, s14
""")
P7 = [239, 11, 12, 216, 217, 218, 238]
for r in P7: a(f"v_mov_b32 v{r}, 0")
a(f"""
v_xor_b32 v23, v22, v21
v_xor_b32 v24, 4, v23
s_lshl_b32 s13, s7, 5
v_add_u32 v25, s13, v20
v_mul_u32_u24 v25, 896, v25
v_lshl_add_u32 v{XV}, v23, 4, v25
v_lshl_add_u32 v{XV+1}, v24, 4, v25
v_add_u32 v{XV+1}, 6144, v{XV+1}
v_add_u32 v{XV+2}, 12288, v{XV}
v_add_u32 v{XV+3}, 12288, v{XV+1}
s_lshl_b32 s14, s7, 12
s_lshl_b32 s56, s42, 7
s_mul_i32 s57, s42, 229376
s_mul_i32 s13, s10, 114688
s_mov_b32 s46, 114688
s_mov_b32 s47, 0x20000
s_mul_i32 s63, s3, 4608
s_waitcnt lgkmcnt(0)
""")
stamp(1)
a("global_load_short_d16_hi v238, v9, s[30:31]")
for r, p in zip(P7[:6], range(18, 30, 2)):
    a(f"global_load_short_d16_hi v{r}, v8, s[{p}:{p+1}] {OPT['ntp']}")
a("""
s_mov_b32 s48, s32
s_mov_b32 s49, s33
s_mov_b32 s52, s34
s_mov_b32 s53, s35
s_add_u32 s44, s16, s13
s_addc_u32 s45, s17, 0
""")
if OPT["pb"]: a("s_barrier")
a("""
s_cmp_lt_u32 s3, 4
s_cbranch_scc1 k_x0
""")
dmaw(vy, 0); dmax(vy, 0)
if OPT["w1"] and not OPT["xw"]: dmaw(vy, 1)
a("""
s_branch k_w0
k_x0:
s_load_dwordx2 s[4:5], s[0:1], 64
s_add_u32 s57, s42, XOFF
s_sub_u32 s13, s57, 7
s_cmp_ge_u32 s57, 7
s_cselect_b32 s57, s13, s57
s_mul_i32 s57, s57, 229376           ; chunk offset of stage 9
k_w0:
v_and_b32 v4, 15, v1                 ; c
v_lshlrev_b32 v5, 2, v21             ; 4g
v_lshlrev_b32 v6, 6, v21             ; 64g
v_lshl_add_u32 v247, v4, 4, v5
v_lshl_add_u32 v248, v4, 3, v5
v_lshl_add_u32 v249, v4, 2, v6
v_cmp_gt_u32 vcc, 2, v21
v_cndmask_b32 v248, v249, v248, vcc
v_lshl_add_u32 v249, v4, 1, v6
v_lshl_add_u32 v247, v247, 2, s63
v_lshl_add_u32 v248, v248, 2, s63
v_lshl_add_u32 v249, v249, 2, s63
""".replace("XOFF", "1" if OPT["xw"] else "2"))
pass_addrs()
h_addr(0)
own_line()
if OPT["warm"]:
    a("s_mov_b64 exec, 0")
    for w in range(1, 8): a(f"s_cmp_eq_u32 s3, {w}\ns_cbranch_scc1 k_sec{w}")
    a("s_branch k_kg\nk_wd:")
    for w in range(4):
        a(f"s_cmp_eq_u32 s3, {w}\ns_cbranch_scc0 k_we{w}\ns_call_b64 s[100:101], k_epi{w}\nk_we{w}:")
    a("s_cmp_eq_u32 s3, 3\ns_cbranch_scc0 k_wp\ns_mov_b32 s43, 0\ns_mov_b32 s59, 1\ns_call_b64 s[100:101], k_pass\nk_wp:")
    a("s_mov_b64 exec, -1")
a(f"""
v_mov_b32 v245, v9
s_cmp_lt_u32 s3, 4
s_cbranch_scc1 k_x1
s_waitcnt vmcnt({len(vy.q)})
s_branch k_kg
k_x1:
s_waitcnt vmcnt(0)
k_kg:
""")
secn = [0]
def sec():
    if OPT["warm"]:
        secn[0] += 1
        a("s_cbranch_execz k_wd")
        if secn[0] < 8: a.label(f"k_sec{secn[0]}")
a.reset()
stamp(2)
a(f"""
s_mov_b32 m0, s63
v_mul_f32 v16, {fbits(LOG2E)}, v238
v_exp_f32 v16, v16
v_and_b32 v18, 15, v1
v_mul_u32_u24 v18, 288, v18
v_and_b32 v19, 48, v1
v_add3_u32 v18, v18, v19, s63
v_cvt_pk_bf16_f32 v16, v16, v16
v_and_b32 v16, 0xffff0000, v16
v_mul_f32 v8, {fbits(LOG2E)}, v16
v_mul_f32 v9, 0.15915494, v16
v_mul_f32 v17, v239, v8
v_mul_f32 v11, v11, v9
v_mul_f32 v12, v12, v16
v_mul_f32 v216, v216, v16
v_mul_f32 v{E(0)}, v217, v12
v_mul_f32 v{E(0)+1}, v217, v216
v_fma_f32 v{E(0)}, -v218, v216, v{E(0)}
v_fma_f32 v{E(0)+1}, -v218, v12, -v{E(0)+1}
""")
ydn = [0]
def ydma(fn):
    ydn[0] += 1
    a(f"s_cmp_lt_u32 s3, 4\ns_cbranch_scc1 k_yd{ydn[0]}")
    fn()
    a(f"s_mov_b32 m0, s63\nk_yd{ydn[0]}:")
anc = [(Y_[1], 16.0, True), (Z(1), 1.0, False), (Wp(1), 256.0, False)]
for n, (d, p, cj) in enumerate(anc):
    if p != 1.0: a(f"v_mul_f32 v{T(n)}, {fbits(p)}, v17\nv_mul_f32 v{T(n)+1}, {fbits(p)}, v11")
for n, (d, p, cj) in enumerate(anc):
    if p == 1.0: a(f"v_exp_f32 v{T(n)}, v17\nv_fract_f32 v{T(n)+1}, v11")
    else: a(f"v_exp_f32 v{T(n)}, v{T(n)}\nv_fract_f32 v{T(n)+1}, v{T(n)+1}")
for n, (d, p, cj) in enumerate(anc):
    a(f"v_cos_f32 v{d}, v{T(n)+1}\nv_sin_f32 v{d+1}, v{T(n)+1}")
for n, (d, p, cj) in enumerate(anc):
    a(f"v_pk_mul_f32 {vr(d,2)}, {vr(d,2)}, {vr(T(n),2)} op_sel_hi:[1,0]" + (" neg_hi:[1,0]" if cj else ""))
cnt = [0]
def puts(lst):
    cs = []
    for row, src in lst:
        c = CV(cnt[0]); cnt[0] += 1; cs.append(c)
        if src is None: a(f"v_mov_b32 v{c}, 0x3f80")
        else: a(f"v_cvt_pk_bf16_f32 v{c}, v{src}, v{src+1}")
    for (row, src), c in zip(lst, cs):
        a(f"ds_write_addtid_b32 v{c} offset:{row*288}")
def putl(lst):
    for i in range(0, len(lst), 4): puts(lst[i:i+4])
def frags(F):
    for s in range(4): a(f"ds_read_b128 {vr(F+4*s,4)}, v18 offset:{s*64}")
def mf(tau, F):
    for s in range(4):
        a(f"v_mfma_f32_16x16x32_bf16 {vr(KA+4*tau,4)}, {vr(F+4*s,4)}, {vr(FE+4*s,4)}, " + ("0" if s == 0 else vr(KA+4*tau,4)))
Y = Y_
cmuls([(Y[2], Y[1], Y[1]), (E(1), E(0), Y[1]), (Z(2), Z(1), Z(1)), (Wp(2), Wp(1), Wp(1))])
cmuls([(Y[4], Y[2], Y[2]), (E(2), E(0), Y[2]), (E(3), E(1), Y[2]), (Z(3), Z(2), Z(1)), (Z(4), Z(2), Z(2)), (Wp(3), Wp(2), Wp(1)), (Wp(4), Wp(2), Wp(2))])
sec()
putl([(i, E(i)) for i in range(4)])
cmuls([(Y[8], Y[4], Y[4])] + [(E(4+i), E(i), Y[4]) for i in range(4)])
putl([(i, E(i)) for i in range(4, 8)])
cmuls([(T(i), E(i), Y[8]) for i in range(4)])
sec()
putl([(8+i, T(i)) for i in range(4)])
cmuls([(T(i), E(i), Y[8]) for i in range(4, 8)])
putl([(8+i, T(i)) for i in range(4, 8)])
frags(FE)
sec()
putl([(0, None)] + [(i, Z(i)) for i in range(1, 4)])
cmuls([(Z(5), Z(4), Z(1)), (Z(6), Z(4), Z(2)), (Z(7), Z(4), Z(3)), (Z(8), Z(4), Z(4))])
putl([(i, Z(i)) for i in range(4, 8)])
cmuls([(Z(8+i), Z(8), Z(i)) for i in range(1, 4)])
sec()
putl([(i, Z(i)) for i in range(8, 12)])
cmuls([(Z(8+i), Z(8), Z(i)) for i in range(4, 8)])
putl([(i, Z(i)) for i in range(12, 16)])
frags(FX0)
sec()
cmuls([(T(r), Wp(1), Z(2*r)) for r in range(1, 4)])
putl([(0, Wp(1))] + [(r, T(r)) for r in range(1, 4)])
cmuls([(T(r), Wp(1), Z(2*r)) for r in range(4, 8)])
putl([(r, T(r)) for r in range(4, 8)])
sec()
cmuls([(T(j-1), Wp(2), Z(4*j)) for j in (1, 2, 3)])
a("s_waitcnt lgkmcnt(8)")
mf(0, FX0)
putl([(8, Wp(2))] + [(8+j, T(j-1)) for j in (1, 2, 3)])
cmuls([(T(2+j), Wp(3), Z(4*j)) for j in (1, 2, 3)])
putl([(12, Wp(3))] + [(12+j, T(2+j)) for j in (1, 2, 3)])
frags(FX1)
sec()
cmuls([(Wp(5), Wp(4), Wp(1)), (Wp(6), Wp(4), Wp(2)), (Wp(7), Wp(4), Wp(3)), (Wp(8), Wp(4), Wp(4))])
putl([(2*h, Wp(4+h)) for h in range(5)])
cmuls([(T(h), Wp(4+h), Z(8)) for h in range(4)])
putl([(2*h+1, T(h)) for h in range(4)])
frags(FX0)
a("s_waitcnt lgkmcnt(13)")
mf(1, FX1)
a("s_waitcnt lgkmcnt(0)")
mf(2, FX0)
a(f"""
ds_write_b128 v247, {vr(KA,4)} offset:64
ds_write_b128 v248, {vr(KA+4,4)} offset:{64+1024}
s_lshr_b32 s13, s7, 1
s_mul_i32 s24, s13, {CS[1]-CS[0]}
s_add_u32 s24, s24, {CS[0]}
s_and_b32 s61, s7, 1                 ; parity
ds_write_b64 v249, {vr(KA+8,2)} offset:{64+2048}
ds_write_b64 v249, {vr(KA+10,2)} offset:{64+2048+128}
""")
sec()
a("""
s_cmp_ge_u32 s3, 4
s_cbranch_scc1 k_y
""")
vx = VM()
stamp(3)
if OPT["xw"]: dmaw(vx, 1)
if OPT["xw"] == 2:
    a("s_add_u32 s56, s56, 128\ns_cmp_eq_u32 s56, 896\ns_cselect_b32 s56, 0, s56"); dmax(vx, 1)
a("""
v_mov_b32 v244, 0
s_lshl_b32 s13, s2, 1
s_lshr_b32 s58, s7, 1
s_add_u32 s13, s13, s58
s_mul_i32 s13, s13, 14
v_min_u32 v4, 13, v1
v_add_lshl_u32 v4, v4, s13, 8
s_bitcmp1_b32 s7, 0
s_cselect_b32 s58, s34, s32
s_cselect_b32 s59, s35, s33
global_load_short_d16_hi v244, v245, s[4:5]
""")
if OPT["xt"]: a("global_load_dword v0, v4, s[58:59] offset:128")
a(f"""
s_mov_b32 s14, s24
v_and_b32 v20, 15, v1
v_lshrrev_b32 v21, 4, v1
v_or_b32 v24, 1, v20
v_lshlrev_b32 v25, 3, v21
v_sub_u32 v24, v25, v24
v_lshlrev_b32 v24, 1, v24
v_and_b32 v25, 1, v1
v_mul_u32_u24 v25, 4160, v25
v_sub_u32 v24, v24, v25
v_add_u32 v24, s14, v24
v_add_u32 v216, {4160+2*2031-512}, v24
v_add_u32 v217, {4160+2*2031-512*3}, v24
v_add_u32 v218, {4160+2*2031-512*5}, v24
v_add_u32 v219, {4160+2*2031-512*7}, v24
v_lshlrev_b32 v22, 5, v20
v_lshl_add_u32 v221, v21, 3, v22     ; 32j+8g
v_lshl_add_u32 v22, v21, 4, v22
v_add_u32 v22, s14, v22
v_add_u32 v220, {8832-32}, v22       ; B addr
s_mul_i32 s13, s60, {UTP}
s_add_u32 s13, s13, {UT}
v_add_u32 v222, s13, v10
v_add_u32 v223, s14, v10
s_and_b32 s13, s2, 7
s_lshl_b32 s13, s13, 2
s_add_u32 s13, s13, s8
s_lshl_b32 s13, s13, 8
s_lshl_b32 s58, s7, 6
s_add_u32 s13, s13, s58
s_add_u32 s13, s13, {GG}
v_lshlrev_b32 v225, 2, v20
v_add_u32 v224, s13, v225            ; g global
s_add_u32 s58, s58, {GL}
v_add_u32 v225, s58, v225            ; g LDS
""")
hsig_addr(226)
a("v_mov_b32 v227, 1")
pass_first_addr(0)
a("s_waitcnt lgkmcnt(0)")
stamp(1)
bar(0)
stamp(4)
pass_call(0, 7, 7)
stamp(6)
dmaw(vx, 9)
CA = 48
a("s_waitcnt lgkmcnt(0)")
for r in range(CA, CA+16): a(f"v_mov_b32 v{r}, 0")
EL = epi_list(0) + epi_list(1) + epi_list(2) + epi_list(3)
bar(8)
dmaw(vx, 10)
run_epi(vx, EL, OPT["xs1"])
dmaw(vx, 11)
vx.wait("W9")
bar(9)
dmaw(vx, 12)
run_epi(vx, EL, OPT["xs2"])
dmaw(vx, 13)
vx.wait("W10")
bar(10)
pre_poll("s[28:29]", 0)
run_epi(vx, EL, OPT["xs3"])
a(f"v_mov_b32 v40, {CNT}\nds_write_b128 v40, {vr(CA,4)}\nds_write_b128 v40, {vr(CA,4)} offset:16")
vx.wait("W13", extra=" lgkmcnt(0)")
stamp(7)
bar(11)
stamp(8)
if OPT["xprio"]: a(f"s_setprio {OPT['xprio']}")
check("k_c1", "s[28:29]", 0, 32, 13)
for i in range(4): vx.op(f"global_load_dwordx4 {vr(16+4*i,4)}, v222, s[40:41] offset:{i*1024} sc1", "u")
vx.op("global_load_dword v15, v224, s[40:41] sc1", "u")
run_epi(vx, EL, 999)
vx.wait("u")
for i in range(4): a(f"ds_write_b128 v223, {vr(16+4*i,4)} offset:{8832+i*1024}")
a("ds_write_b32 v225, v15\nds_read_b32 v41, v40\ns_waitcnt vmcnt(0)")
def sigx(): a("s_mov_b64 exec, 0x3fff\nglobal_atomic_add v226, v227, s[40:41] offset:4 sc1\ns_mov_b64 exec, -1")
if OPT["one"] == 1:
    last_of4("k_s2", 8, 42, sigx); a.label("k_s2")
else: sigx()
a(f"""
s_mov_b32 s59, {SPIN}
k_ps:
s_waitcnt lgkmcnt(0)
v_readfirstlane_b32 s58, v41
s_cmp_eq_u32 s58, 4
s_cbranch_scc1 k_psd
ds_read_b32 v41, v40
s_sub_u32 s59, s59, 1
s_cmp_lg_u32 s59, 0
s_cbranch_scc1 k_ps
k_psd:
""")
stamp(9)
a(f"s_setprio {OPT['cprio']}")
a("""
s_cmp_eq_u32 s61, 0
s_cbranch_scc0 k_set1
""")
FBUF = [88, 152]
def creads(F, amax):
    out = []
    for i in range(amax+1):
        o = 0 if (i & 1) else 128
        out.append(f"ds_read_b128 {vr(F+32+4*i,4)}, v220 offset:{512*i}")
        out.append(f"ds_read2_b32 {vr(F+4*i,2)}, v{216+(i>>1)} offset0:{o} offset1:{o+1}")
        out.append(f"ds_read2_b32 {vr(F+4*i+2,2)}, v{216+(i>>1)} offset0:{o+2} offset1:{o+3}")
    out += [f"v_subrev_u32 v{r}, 64, v{r}" for r in (216, 217, 218, 219, 220)]
    return out
for sidx, cbs in enumerate(((0, 3, 4, 7), (1, 2, 5, 6))):
    if sidx == 1:
        a.label("k_set1"); a.reset()
    amax = max(cbs)
    for x in creads(FBUF[0], amax): a(x)
    a("s_mov_b32 s21, 4")
    a.label(f"k_cl{sidx}")
    for half in range(2):
        F = FBUF[half]
        a("s_waitcnt lgkmcnt(0)")
        lists = [[(n, aa, cb-aa) for aa in range(cb+1)] for n, cb in enumerate(cbs)]
        order = []
        while any(lists):
            for L in sorted(lists, key=lambda L: -len(L)):
                if L: order.append(L.pop(0))
        fill = creads(FBUF[half ^ 1], amax)
        for k, (n, aa, bb) in enumerate(order):
            d = vr(CA+4*n, 4)
            a(f"v_mfma_f32_16x16x32_bf16 {d}, {vr(F+4*aa,4)}, {vr(F+32+4*bb,4)}, {d}")
            for _ in range(2):
                if fill: a(fill.pop(0))
        for x in fill: a(x)
    a(f"""
s_sub_u32 s21, s21, 1
s_cmp_lg_u32 s21, 0
s_cbranch_scc1 k_cl{sidx}
v_add_u32 v26, s14, v221
""")
    stamp(10)
    for n, cb in enumerate(cbs): a(f"ds_read_b64 {vr(32+2*n,2)}, v26 offset:{8832+512*cb}")
    a(f"""
s_mul_i32 s15, s60, {UTP}
s_add_u32 s15, s15, {AT}
v_add_u32 v27, s15, v221
s_waitcnt lgkmcnt(0)
""")
    for n, cb in enumerate(cbs):
        R = CA+4*n
        a(f"""
v_lshlrev_b32 v40, 16, v{32+2*n}
v_and_b32 v41, 0xffff0000, v{32+2*n}
v_lshlrev_b32 v42, 16, v{33+2*n}
v_and_b32 v43, 0xffff0000, v{33+2*n}
v_fmac_f32 v{R}, v40, v244
v_fmac_f32 v{R+1}, v41, v244
v_fmac_f32 v{R+2}, v42, v244
v_fmac_f32 v{R+3}, v43, v244
v_cvt_pk_bf16_f32 v{R}, v{R}, v{R+1}
v_cvt_pk_bf16_f32 v{R+1}, v{R+2}, v{R+3}
global_store_dwordx2 v27, {vr(R,2)}, s[40:41] offset:{512*cb} sc1
""")
    if sidx == 0: a("s_branch k_pub")
a.label("k_pub"); a.reset()
a(f"""
s_setprio 0
s_lshr_b32 s15, s2, 5
s_lshl_b32 s15, s15, 12
s_add_u32 s15, s15, {FL}
v_lshl_add_u32 v26, v1, 7, s15
s_waitcnt vmcnt(0)
""")
stamp(11)
def sig4():
    a(f"""
s_mov_b32 exec_hi, 0
global_atomic_add v26, v29, s[40:41] offset:12 sc1
s_mov_b64 exec, -1
v_lshrrev_b32 v14, 3, v1
v_and_b32 v15, 7, v1
v_lshlrev_b32 v15, 4, v15
v_mul_u32_u24 v16, {UTP}, v14
v_mul_u32_u24 v17, {ATPI}, v14
s_mul_i32 s15, s12, {64*UTP}
s_and_b32 s13, s2, 7
s_lshl_b32 s13, s13, 2
s_add_u32 s13, s13, s8
s_lshl_b32 s13, s13, 7
s_add_u32 s15, s15, s13
s_add_u32 s15, s15, {AT}
v_add3_u32 v16, v16, v15, s15
v_add_u32 v17, v17, v15
v_add_u32 v17, {CS[0]}, v17
s_mov_b32 s27, 0
""")
    check("k_c4", "s[28:29]", 12, 32, 13, sleep=2)
    stamp(12)
    for i in range(8):
        a(f"global_load_dwordx4 {vr(32+4*i,4)}, v16, s[40:41] sc1")
        if i < 7: a(f"v_add_u32 v16, {8*UTP}, v16")
    for i in range(8):
        a(f"s_waitcnt vmcnt({7-i})")
        a(f"ds_write_b128 v17, {vr(32+4*i,4)} offset:{8*i*ATPI}")
last_of4("k_fw0" if OPT["fwarm"] else "k_final", 12, 28, sig4)
a("s_branch k_final")

a.label("k_spare"); a.reset()
a(f"""
s_sub_u32 s6, s2, 224                ; r
s_lshl_b32 s13, s6, 3
s_add_u32 s13, s13, s3               ; u 0..255
s_mov_b32 s59, s13
s_mul_i32 s60, s13, 7168             ; x rows 8u..8u+7
s_mul_i32 s61, s3, {8*912}
v_min_u32 v5, 48, v1
s_lshr_b32 s14, s13, 1
s_mul_i32 s14, s14, 49
v_add_lshl_u32 v6, v5, s14, 8
s_mul_i32 s14, s13, 49
v_add_lshl_u32 v5, v5, s14, 7
v_mov_b64 v[24:25], 0
v_mov_b64 v[26:27], 0
s_mul_i32 s14, s6, 896
s_add_u32 s14, s14, {FL}
v_min_u32 v13, 880, v10
v_add_u32 v13, s14, v13
v_mov_b32 v7, 1
s_lshl_b32 s13, s8, 3
s_add_u32 s13, s13, s3
s_lshr_b32 s14, s13, 1
s_mul_i32 s14, s14, 28
v_add_u32 v2, s14, v20
v_min_u32 v3, 6, v22
v_lshlrev_b32 v3, 8, v3
s_mul_i32 s14, s9, 1792
s_add_u32 s14, s14, 128
v_add_u32 v3, s14, v3
s_and_b32 s13, s13, 1
s_cmp_eq_u32 s13, 0
s_waitcnt lgkmcnt(0)
s_cselect_b32 s44, s32, s34
s_cselect_b32 s45, s33, s35
s_cmp_eq_u32 s3, 0
s_cbranch_scc0 k_r0
global_store_dwordx4 v13, v[24:27], s[40:41] sc1
s_waitcnt vmcnt(0)
s_mov_b64 exec, 1
global_atomic_add v24, v7, s[98:99] sc1
s_mov_b64 exec, -1
k_r0:
s_mov_b32 s48, s16
s_mov_b32 s49, s17
s_mov_b32 s50, 1835008
s_mov_b32 exec_hi, 0x00ffffff
""")
P = 912
for r in range(8):
    a(f"s_add_u32 m0, s61, {r*P}\ns_add_u32 s58, s60, {r*896}\nbuffer_load_dwordx4 v10, s[48:51], s58 offen lds")
a("s_mov_b32 exec_hi, -1\nv_lshlrev_b32 v30, 4, v22")
for i in range(7): a(f"global_load_dwordx4 {vr(64+4*i,4)}, v30, s[38:39] offset:{i*128}")
ntouch = 0
a(f"""
v_mul_u32_u24 v31, {P}, v20
v_add3_u32 v31, v31, v30, s61
v_and_b32 v48, 3, v1
v_lshrrev_b32 v49, 5, v1
v_lshl_add_u32 v48, v49, 2, v48
v_bfe_u32 v49, v1, 2, 2
v_lshl_add_u32 v48, v48, 3, v49
v_mul_u32_u24 v48, {P}, v48
v_bfe_u32 v49, v1, 4, 1
v_lshl_add_u32 v48, v49, 3, v48
s_mul_i32 s13, s3, 112
v_add_u32 v48, s13, v48
v_and_b32 v49, 4, v1
v_lshlrev_b32 v49, 3, v49
v_and_b32 v50, 32, v1
v_lshrrev_b32 v50, 1, v50
v_and_b32 v51, 3, v1
v_lshlrev_b32 v51, 2, v51
v_add3_u32 v49, v49, v50, v51
v_bfe_u32 v50, v1, 3, 2
v_add_lshl_u32 v49, v49, v50, 2
; store: d = 56w + 8X + (l>>3) ; t0 = 64r
s_mul_i32 s13, s3, 56
v_add_u32 v50, s13, v20
v_mul_u32_u24 v50, {UTP}, v50
s_lshl_b32 s13, s6, 7
s_add_u32 s13, s13, {UT}
v_add3_u32 v50, v50, v30, s13
s_waitcnt vmcnt({ntouch})
""")
for i in range(7): a(f"ds_read_b128 {vr(96+4*i,4)}, v31 offset:{i*128}")
a("s_barrier")
stamp(1)
a("v_mov_b32 v8, v5")
for X in range(7):
    a(f"ds_read_b64_tr_b16 {vr(128+4*X,2)}, v48 offset:{X*16}\nds_read_b64_tr_b16 {vr(130+4*X,2)}, v48 offset:{X*16+4*P}")
a("v_mov_b64 v[60:61], 0\ns_waitcnt lgkmcnt(14)")
for i in range(28): a(f"v_dot2c_f32_bf16 v{60+(i&1)}, v{96+i}, v{64+i}")
a("s_waitcnt lgkmcnt(0)")
for X in range(7):
    for q in range(4): a(f"ds_bpermute_b32 v{160+4*X+q}, v49, v{128+4*X+q}")
    if X >= 2:
        a(f"s_waitcnt lgkmcnt(8)\nglobal_store_dwordx4 v50, {vr(160+4*(X-2),4)}, s[40:41] sc1\nv_add_u32 v50, {8*UTP}, v50")
for X in (5, 6):
    a(f"s_waitcnt lgkmcnt({4*(6-X)})\nglobal_store_dwordx4 v50, {vr(160+4*X,4)}, s[40:41] sc1\nv_add_u32 v50, {8*UTP}, v50")
a(f"""
v_add_f32 v60, v60, v61
v_add_f32_dpp v60, v60, v60 quad_perm:[1,0,3,2] row_mask:0xf bank_mask:0xf
v_add_f32_dpp v60, v60, v60 quad_perm:[2,3,0,1] row_mask:0xf bank_mask:0xf
v_add_f32_dpp v60, v60, v60 row_half_mirror row_mask:0xf bank_mask:0xf
v_cvt_pk_bf16_f32 v60, v60, v60
v_and_b32 v60, 0xffff0000, v60
v_mul_f32 v60, {fbits(-LOG2E)}, v60
v_exp_f32 v60, v60
v_add_f32 v60, 1.0, v60
v_rcp_f32 v60, v60
v_cvt_pk_bf16_f32 v60, v60, v60
v_and_b32 v60, 0xffff0000, v60
v_sub_f32 v61, 1.0, v60
v_cvt_pk_bf16_f32 v60, v60, v61
s_lshl_b32 s13, s59, 5
s_add_u32 s13, s13, {GG}
v_lshl_add_u32 v54, v20, 2, s13
global_store_dword v54, v60, s[40:41] sc1
v_min_u32 v5, 55, v1
s_mul_i32 s13, s7, 56
v_add_lshl_u32 v5, v5, s13, 7
v_add_u32 v5, {FL}, v5
global_load_dword v6, v24, s[98:99] sc1
s_waitcnt vmcnt(0)
s_barrier
""")
stamp(2)
a(f"""
s_cmp_lt_u32 s3, 4
s_cbranch_scc0 k_r2
s_mov_b32 s59, {SPIN}
k_r1:
v_readfirstlane_b32 s58, v6
s_cmp_ge_u32 s58, 32
s_cbranch_scc1 k_r1d
s_sub_u32 s59, s59, 1
s_cmp_eq_u32 s59, 0
s_cbranch_scc1 k_r1d
global_load_dword v6, v24, s[98:99] sc1
s_waitcnt vmcnt(0)
s_branch k_r1
k_r1d:
s_mov_b32 exec_hi, 0x00ffffff
global_atomic_add v5, v7, s[40:41] sc1
s_mov_b32 exec_hi, -1
k_r2:
global_load_dword v0, v8, s[36:37]
""")
stamps_out(15)
a("s_endpgm")

a.label("k_y"); a.reset()
stamp(1)
vy.wait("X0", extra=" lgkmcnt(0)")
stamp(3)
bar(0)
stamp(4)
if OPT["xw"]: a("s_add_u32 s57, s57, 229376\ns_cmp_eq_u32 s57, 1605632\ns_cselect_b32 s57, 0, s57")
elif not OPT["w1"]: dmaw(vy, 1)
if OPT["xw"] == 2: a("s_add_u32 s56, s56, 128\ns_cmp_eq_u32 s56, 896\ns_cselect_b32 s56, 0, s56")
else: dmax(vy, 1)
dmaw(vy, 2); dmax(vy, 2)
a("""
s_and_b32 s13, s7, 2
s_mul_i32 s13, s13, 4608
v_add_u32 v16, s13, v10
v_lshl_add_u32 v17, v1, 3, s13
v_lshl_add_u32 v18, v1, 2, s13
""")
if OPT["xw"] != 2: vy.wait("X1")
bar(1)
dmaw(vy, 3)
G = lambda w: 32 + 16*w
def gather(w):
    o = (0, 4608, 18432, 23040)[w] + 64; R = G(w)
    a(f"""
ds_read_b128 {vr(R,4)}, v16 offset:{o}
ds_read_b64 {vr(R+4,2)}, v17 offset:{o+1024}
ds_read_b64 {vr(R+6,2)}, v17 offset:{o+1536}
ds_read_b32 v{R+8}, v16 offset:{o-4}
ds_read_b32 v{R+9}, v17 offset:{o+1032}
ds_read_b32 v{R+10}, v17 offset:{o+1020}
ds_read_b32 v{R+11}, v17 offset:{o+1544}
ds_read_b32 v{R+12}, v18 offset:{o+2048}
ds_read_b32 v{R+13}, v18 offset:{o+2052}
ds_read_b32 v{R+14}, v18 offset:{o+2304}
ds_read_b32 v{R+15}, v18 offset:{o+2308}
""")
gather(3); gather(2)
dmax(vy, 3)
vy.wait("X2", extra=" lgkmcnt(0)")
bar(2)
dmaw(vy, 4)
gather(0); gather(1)
dmax(vy, 4)
vy.wait("X3", extra=" lgkmcnt(0)")
bar(3)
dmaw(vy, 5)
for i in range(16): a(f"v_add_f32 v{G(0)+i}, v{G(0)+i}, v{G(1)+i}\nv_add_f32 v{G(2)+i}, v{G(2)+i}, v{G(3)+i}")
dmax(vy, 5)
vy.wait("X4")
bar(4)
stamp(5)
dmaw(vy, 6)
for i in range(16): a(f"v_add_f32 v{G(0)+i}, v{G(0)+i}, v{G(2)+i}")
k0,k1,k2,k3,a1,b1,a2,b2,km,c1,pp,c2,a3,b3,a4,b4 = range(32, 48)
EW = 204
def cv(i, lo, hi): a(f"v_cvt_pk_bf16_f32 v{EW+i}, v{lo}, v{hi}")
a(f"""
v_and_b32 v19, 1, v1
v_cmp_eq_u32 vcc, 0, v19
v_cndmask_b32 v48, v{b3}, v{a3}, vcc
v_cndmask_b32 v49, v{b4}, v{a4}, vcc
v_cmp_ne_u32 vcc, 0, v1
v_cndmask_b32 v{km}, 0, v{km}, vcc
v_cndmask_b32 v{pp}, v{pp}, v{a1}, vcc
""")
dmax(vy, 6)
a("s_load_dword s27, s[98:99], 0")
vy.wait("X5")
bar(5)
dmaw(vy, 7)
cv(5, b2, b2); cv(7, a2, a2); cv(8, b3, b3); cv(10, a3, a3); cv(11, a3, a3); cv(12, b4, b4); cv(14, a4, a4); cv(15, a4, a4)
a("s_cmp_eq_u32 s61, 0\ns_cbranch_scc0 k_eo")
cv(0, k3, k2); cv(1, k1, k0); cv(2, c1, b1); cv(3, a1, a1); cv(4, c2, c2); cv(6, b2, a2); cv(9, b3, 48); cv(13, b4, 49)
a("s_branch k_ew\nk_eo:")
cv(0, k2, k1); cv(1, k0, km); cv(2, b1, a1); cv(3, a1, pp); cv(4, c2, b2); cv(6, a2, a2); cv(9, 48, a3); cv(13, 49, a4)
a("k_ew:")
pass_first_addr(1)
a(f"""
v_lshrrev_b32 v20, 3, v1
v_and_b32 v22, 7, v1
v_mul_u32_u24 v160, 896, v20
v_and_b32 v161, 6, v20
v_xor_b32 v161, v161, v22
v_lshl_add_u32 v160, v161, 4, v160
v_add_u32 v161, 6144, v160
v_add_u32 v162, 12288, v160
v_add_u32 v163, 18432, v160
v_bfe_u32 v164, v1, 2, 3
v_lshlrev_b32 v164, 7, v164
v_lshrrev_b32 v165, 5, v1
v_lshl_add_u32 v164, v165, 11, v164
v_bfe_u32 v165, v1, 3, 2
v_lshl_add_u32 v164, v165, 5, v164
v_and_b32 v165, 3, v1
v_lshl_add_u32 v164, v165, 3, v164
v_add_u32 v164, s14, v164
v_xor_b32 v165, 32, v164
v_xor_b32 v166, 64, v164
v_xor_b32 v167, 96, v164
s_and_b32 s9, s2, 7
s_lshl_b32 s9, s9, 2
s_add_u32 s9, s9, s8               ; rb64
s_mul_i32 s13, s9, 229376
s_mul_i32 s58, s7, 28672
s_add_u32 s13, s13, s58
s_add_u32 s16, s40, s13
s_addc_u32 s17, s41, 0
s_mov_b32 s18, {114688+28672}
s_mov_b32 s19, 0x20000
s_mov_b32 s20, s36
s_mov_b32 s21, s37
s_mov_b32 s22, 1605632
s_mov_b32 s23, 0x20000
s_mul_i32 s25, s7, 7
s_lshl_b32 s26, s12, 7               ; cb*128
""")
if not OPT["rot2"]: a("s_mov_b32 s42, 0")
vy.wait("X6", extra=" lgkmcnt(0)")
bar(6)
dmaw(vy, 8)
a(f"""
s_mul_i32 s13, s61, 4160
s_add_u32 s13, s13, s24
v_lshlrev_b32 v220, 3, v1
v_sub_u32 v220, s13, v220
v_sub_u32 v221, s13, v10
v_min_u32 v48, 39, v1
v_lshlrev_b32 v48, 4, v48
v_add_u32 v222, 8256, v48
v_add_u32 v50, {4096-36*16}, v48
v_cmp_gt_u32 vcc, 36, v1
v_cndmask_b32 v222, v50, v222, vcc
v_add_u32 v222, s24, v222
v_mov_b32 v224, 0
v_mov_b32 v225, 0
v_mov_b32 v226, 0
v_mov_b32 v227, 0
v_mov_b32 v52, 0
s_mov_b32 s59, {SPIN}
k_c0_l:
s_cmp_ge_u32 s27, 32
s_cbranch_scc1 k_c0_d
s_sub_u32 s59, s59, 1
s_cmp_eq_u32 s59, 0
s_cbranch_scc1 k_c0_d
s_sleep 4
global_load_dword v53, v52, s[98:99] sc1
s_waitcnt vmcnt(0)
v_readfirstlane_b32 s27, v53
s_branch k_c0_l
k_c0_d:
""")
SW = [32+i for i in range(7)]; SH = [44+i for i in range(7)]
for i in range(7):
    a(f"""
s_add_u32 s58, s42, {i}
s_sub_u32 s59, s58, 7
s_min_u32 s58, s58, s59
s_lshl_b32 s{SH[i]}, s58, 12
s_add_u32 s58, s58, s25
s_lshr_b32 s59, s58, 1
s_mul_i32 s59, s59, 114688
s_and_b32 s58, s58, 1
s_mul_i32 s58, s58, 28672
s_add_u32 s58, s58, s59
s_add_u32 s{SW[i]}, s58, s26
""")
hsig_addr(12)
a(f"""
v_mov_b32 v168, {CNT}
v_mov_b32 v169, 1
s_add_u32 s61, s26, 57344
""")
vy.wait("W7")
bar(7)
stamp(6)
FINA = [l.split(";")[0].strip() for l in f"""
s_lshr_b32 s13, s3, 1                ; tb
s_and_b32 s58, s3, 1
s_lshl_b32 s58, s58, 2
v_and_b32 v2, 15, v1                 ; t in block
v_lshrrev_b32 v3, 4, v1
v_add_u32 v3, s58, v3                ; dg
s_lshl_b32 s59, s13, 14
v_lshlrev_b32 v5, 1, v3
v_xor_b32 v5, v5, v2
v_lshlrev_b32 v5, 4, v5
v_lshl_add_u32 v5, v2, 8, v5
v_add_u32 v5, s59, v5
v_xor_b32 v6, 16, v5
s_lshl_b32 s13, s13, 4
v_add_u32 v2, s13, v2                ; t in tile
v_lshlrev_b32 v7, 2, v2
v_add_u32 v7, {GL}, v7
s_and_b32 s58, s2, 7
s_lshl_b32 s58, s58, 2
s_add_u32 s58, s58, s8
s_lshl_b32 s58, s58, 6
v_add_u32 v4, s58, v2
v_mul_u32_u24 v4, 896, v4
v_lshl_add_u32 v4, v3, 4, v4
s_lshl_b32 s58, s12, 7
v_add_u32 v4, s58, v4                ; out offset
v_bfe_u32 v8, v1, 2, 2
v_lshl_add_u32 v8, v3, 3, v8
v_mul_u32_u24 v8, {ATPI}, v8
v_and_b32 v9, 3, v1
v_lshl_add_u32 v8, v9, 3, v8
s_lshl_b32 s13, s13, 1
s_add_u32 s13, s13, {CS[0]}
v_add_u32 v8, s13, v8
""".strip().split("\n")]
vg = VM()
ACC2 = 16; AF = [172, 188]; RING = [204, 220, 236, 80, 96, 112, 144]
WS8 = RSL + [WR[2]]
def ldw_l(n):
    p, i = divmod(n, 7)
    o = f"s_add_u32 m0, s14, {WS8[n % 8]}\n" + (f"s_add_u32 s{SW[i]}, s{SW[i]}, 57344" if p else "s_nop 0")
    return [o] + [(f"buffer_load_dwordx4 v{160+k}, s[20:23], s{SW[i]} offen offset:{k*1024} lds", f"w{n}") for k in range(4)]
def ldh_l(n):
    p, i = divmod(n, 7)
    o = [f"s_add_u32 s{SH[i]}, s{SH[i]}, 114688"] if p else []
    return o + [(f"buffer_load_dwordx4 {vr(RING[i]+4*k,4)}, v10, s[16:19], s{SH[i]} offen offset:{k*1024} sc1", f"h{n}") for k in range(4)]
def emit(l):
    for x in l:
        if isinstance(x, tuple): vg.op(*x)
        else: a(x)
def uhalf(st, hs, extra, early=[], lg=0):
    F = FB[hs]; Fn = FB[hs ^ 1]
    mm = []
    for k2 in range(2):
        for fa in range(2):
            for tb in range(2):
                d = vr(acc(2*fa+tb), 16)
                mm.append(f"v_mfma_f32_32x32x16_bf16 {d}, {vr(F+16*k2+4*fa,4)}, {vr(F+16*k2+8+4*tb,4)}, {d}")
    a(f"s_waitcnt lgkmcnt({lg})")
    if hs == 0: fill = reads(1, Fn) + (VADDR(XA[(st+1) % 7], WA[st+1]) if st < 13 else [])
    else:
        if st == 10:
            a(mm.pop(0)); a("s_barrier"); stamp(7)
            if OPT["yprio"]: a(f"s_setprio {OPT['yprio']}")
        fill = reads(0, Fn) if st < 13 else []
    fill = fill + extra
    per = max(3, -(-len(fill) // len(mm)))
    for i, m in enumerate(mm):
        a(m)
        if early: emit([early.pop(0)]);
        if early and not isinstance(early[0], tuple): pass
        emit(fill[:per]); fill = fill[per:]
    emit(early); emit(fill)
def flat(l):
    out = []
    for x in l: out.append(x)
    return out
KW = [f"ds_write_b64 v220, v[204:205] offset:4088", f"ds_write_b64 v220, v[206:207] offset:{4088-512}", f"ds_write_b128 v221, v[208:211] offset:{4080-1024}",
      f"ds_write_b128 v221, v[212:215] offset:{4080-2048}", f"ds_write_b128 v221, v[216:219] offset:{4080-3072}", "ds_write_b128 v222, v[224:227]",
      "s_mov_b64 exec, 1\nds_add_u32 v168, v169\ns_mov_b64 exec, -1"]
def split(l):
    out = []
    for x in l:
        if isinstance(x, tuple): out.append(x)
        else: out += x.split("\n")
    return out
YS = ["s_mov_b64 exec, 1\nds_add_u32 v168, v169 offset:4\ns_mov_b64 exec, -1", "ds_read_b32 v170, v168 offset:4"]
pass_call(1, 3, 3)
uhalf(10, 0, [])
uhalf(10, 1, KW)
uhalf(11, 0, [], lg=7)
uhalf(11, 1, split(ldw_l(0)))
uhalf(12, 0, [])
uhalf(12, 1, split(ldw_l(1)))
uhalf(13, 0, [])
uhalf(13, 1, YS)
stamp(8)
EL = epi_list(0) + epi_list(1) + epi_list(2) + epi_list(3)
run_epi(vg, EL, 8)
a(f"""
s_mov_b32 s59, {SPIN}
k_ys:
s_waitcnt lgkmcnt(0)
v_readfirstlane_b32 s58, v170
s_cmp_eq_u32 s58, 4
s_cbranch_scc1 k_ysd
ds_read_b32 v170, v168 offset:4
s_sub_u32 s59, s59, 1
s_cmp_lg_u32 s59, 0
s_cbranch_scc1 k_ys
k_ysd:
""")
LQ = ldw_l(2) + ldw_l(3) + ldw_l(4) + ldw_l(5) + ["PP"] + ldw_l(6)
while LQ or EL:
    while LQ:
        x = LQ.pop(0)
        if x == "PP": pre_poll("s[28:29]", 4); continue
        emit([x])
        if isinstance(x, tuple): break
    run_epi(vg, EL, OPT["vgap"])
stamp(9)
a("s_setprio 0")
def rda(n):
    F = AF[n & 1]
    out = [f"v_add_u32 v{128+db}, {WS8[n % 8]}, v{164+db}" for db in range(4)]
    return out + [f"ds_read_b64_tr_b16 {vr(F+4*db+2*hh,2)}, v{128+db} offset:{hh*1024}" for db in range(4) for hh in range(2)]
check("k_c2", "s[28:29]", 4, 14 if OPT["one"] == 1 else 56, 15); stamp(10)
PRE = [ldh_l(0), ldh_l(1), ldh_l(2), ldw_l(7), ldh_l(3), ldh_l(4)]
vg.wait("w0")
for x in rda(0): a(x)
for l in PRE[:OPT["ni"]]: emit(l)
vg.wait("st")
def sigy(): a("s_mov_b64 exec, 0x3fff\nglobal_atomic_add v12, v169, s[40:41] offset:8 sc1\ns_mov_b64 exec, -1")
if OPT["one"]:
    stamp(3)
    last_of4("k_s3", 16, 2, sigy); a.label("k_s3"); stamp(5)
else: sigy()
for l in PRE[OPT["ni"]:max(OPT["ni"], 4)]: emit(l)
wi, hi_ = 8, 3 + max(0, OPT["ni"]-4)
SCHS = {
 0: (6, ["h w", "h w", "h w", "h w", "w", "w", "h h h", "h", "h", "h", "h", "", "", ""]),
 1: (6, ["h w", "h w", "h w", "h w", "w", "w", "h h", "h h", "h", "h", "h", "", "", ""]),
 2: (5, ["h w", "h w", "h w", "h w", "w", "h h", "h w", "h", "h", "h", "h", "", "", ""]),
 3: (6, ["h h", "h h", "w w", "w w", "w", "w", "h h h", "h", "h", "h", "h", "", "", ""]),
 4: (5, ["h w", "h w", "h w", "h", "w", "h", "h w", "h w", "h", "h", "h", "h", "", ""]),
 6: (5, ["h w", "h", "h w", "h", "w", "h", "h w", "h", "h w", "h w", "h", "h", "", ""]),
 7: (5, ["h", "h w", "h", "h w", "w", "h", "h w", "h w", "h w", "h", "h", "h", "", ""]),
 8: (4, ["h w", "h w", "h", "h", "h", "h w", "h w", "h w", "h w", "h", "h", "", "", ""]),
 9: (5, ["h w", "h w", "h", "h", "w", "h", "h", "h w", "h w", "h w", "h", "h", "", ""]),
 10: (6, ["h w", "h w", "h", "h w", "w", "w", "h h", "h", "h w", "h", "h", "h", "", ""]),
 5: (4, ["h w", "h w", "h w", "h", "h", "h w", "h w", "h w", "h", "h", "h", "", "", ""]),
}
CK, SCH = SCHS[OPT["sch"]]
for n in range(14):
    F = AF[n & 1]; S = RING[n % 7]
    if n == CK:
        check("k_c3", "s[28:29]", 8, HT, 15); stamp(11)
    vg.wait(f"h{n}", *([f"w{n+1}"] if n < 13 else []), extra=" lgkmcnt(0)")
    if OPT["sw"] == 2: stamp(1+n, True)
    ld = []
    for t in SCH[n].split():
        if t == "h": ld += ldh_l(hi_); assert hi_ <= n + 6 and (hi_ < 7 or n >= CK) and hi_ > n; hi_ += 1
        else: ld += ldw_l(wi); assert wi <= n + 8 and wi > n + 1; wi += 1
    fill = rda(n+1) if n < 13 else []
    if n + 1 == CK: fill.insert(0, "s_load_dword s27, s[28:29], 8 glc")
    ext = []
    if n == 10: ext = ["v_and_b32 v132, 15, v1", "v_lshrrev_b32 v133, 4, v1", "v_xor_b32 v133, v133, v132", "v_lshlrev_b32 v133, 4, v133", "v_lshl_add_u32 v132, v132, 8, v133",
                       "v_add_u32 v132, s14, v132", "v_xor_b32 v133, 64, v132", "v_xor_b32 v134, 128, v132", "v_xor_b32 v135, 192, v132"]
    if n == 11: ext = FINA[:len(FINA)//2]
    if n == 12: ext = FINA[len(FINA)//2:]
    PW = [f"ds_write_b128 v{132+db}, {vr(ACC2+16*db+4*tb,4)} offset:{tb*16384}" for db in range(4) for tb in range(4)]
    j = 0
    nl = len([x for x in ld if isinstance(x, tuple)]); STR = max(1, 16 // nl) if nl else 1
    for db in range(4):
        for tb in range(4):
            d = vr(ACC2+16*db+4*tb, 4)
            a(f"v_mfma_f32_16x16x32_bf16 {d}, {vr(F+4*db,4)}, {vr(S+4*tb,4)}, " + ("0" if n == 0 else d))
            if fill: a(fill.pop(0))
            if ld and (j % STR == 0):
                x = ld.pop(0); emit([x])
                if not isinstance(x, tuple) and ld: emit([ld.pop(0)])
            if ext: a(ext.pop(0))
            if n == 13 and j >= 6: a(PW.pop(0))
            j += 1
    emit(ld)
    for x in ext: a(x)
    if n == 13:
        for x in PW: a(x)
assert wi == 14 and hi_ == 14
stamp(12)
a("s_branch k_fbar")
a.label("k_final"); a.reset()
for x in FINA: a(x)
a.label("k_fbar")
a("s_waitcnt lgkmcnt(0)")
if OPT["fwarm"]: a("s_cbranch_execz k_fw")
stamp(13)
a("s_barrier")
stamp(14)
a.label("k_fw")
for w in range(4):
    a(f"ds_read_b128 {vr(16+8*w,4)}, v5 offset:{w*4096}")
    a(f"ds_read_b128 {vr(20+8*w,4)}, v6 offset:{w*4096}")
a(f"""
ds_read_b64_tr_b16 v[48:49], v8
ds_read_b64_tr_b16 v[50:51], v8 offset:{4*ATPI}
ds_read_b32 v52, v7
s_waitcnt lgkmcnt(7)
""")
for i in range(0, 8, 2): a(f"v_pk_add_f32 {vr(16+i,2)}, {vr(16+i,2)}, {vr(24+i,2)}")
a("s_waitcnt lgkmcnt(3)")
for i in range(0, 8, 2): a(f"v_pk_add_f32 {vr(32+i,2)}, {vr(32+i,2)}, {vr(40+i,2)}")
for i in range(0, 8, 2): a(f"v_pk_add_f32 {vr(16+i,2)}, {vr(16+i,2)}, {vr(32+i,2)}")
a("s_waitcnt lgkmcnt(0)\nv_lshlrev_b32 v54, 16, v52\nv_and_b32 v55, 0xffff0000, v52")
for i in range(4):
    a(f"v_lshlrev_b32 v{24+2*i}, 16, v{48+i}\nv_and_b32 v{25+2*i}, 0xffff0000, v{48+i}")
for i in range(0, 8, 2): a(f"v_pk_mul_f32 {vr(16+i,2)}, {vr(16+i,2)}, v[54:55] op_sel:[0,1] op_sel_hi:[1,1]")
for i in range(0, 8, 2): a(f"v_pk_fma_f32 {vr(16+i,2)}, {vr(24+i,2)}, v[54:55], {vr(16+i,2)} op_sel_hi:[1,0,1]")
for i in range(4): a(f"v_cvt_pk_bf16_f32 v{32+i}, v{16+2*i}, v{17+2*i}")
if OPT["fwarm"]: a("s_cbranch_execz k_fw2")
a("global_store_dwordx4 v4, v[32:35], s[96:97] sc0 sc1")
stamps_out(15)
a.label("k_end")
a("s_endpgm")
if OPT["fwarm"]: a("k_fw2:\ns_mov_b64 exec, -1\ns_branch k_final\nk_fw0:\ns_mov_b64 exec, 0\ns_branch k_part")
emit_pass()
a.label("code_end")

hdr = open("cdna_kernels/%s.s.ref" % NAME).read().split("; Override launch")[0]
out = hdr + f"; @launch grid=(256,1,1) block=(512,1,1) lds={LDS}\n"
out += '.amdgcn_target "amdgcn-amd-amdhsa--gfx950"\n' + a.text()
out += f""".section .rodata,"a"
.p2align 6
.amdhsa_kernel {KN}
  .amdhsa_next_free_vgpr 256
  .amdhsa_next_free_sgpr 102
  .amdhsa_accum_offset 256
  .amdhsa_group_segment_fixed_size 0
  .amdhsa_kernarg_size 136
  .amdhsa_user_sgpr_count 2
  .amdhsa_user_sgpr_kernarg_segment_ptr 1
  .amdhsa_system_sgpr_workgroup_id_x 1
.end_amdhsa_kernel
"""
open(sys.argv[1], "w").write(out)
print("written", sys.argv[1], "lines", len(a.lines), "nops", a.nops, "")
```

```python
import sys, math, struct
from asm import *

NAME = "gated_mix__ssm_conv_s4__swiglu_ffn__prompt"
KN = NAME + "_kernel"
WDP = 0x800000
HP, UT, AT, GG, FL = 0, 0xA00000, 0xE00000, 0x1000000, 0x1010000
UTP = 4224
def fbits(x): return "0x%08x" % struct.unpack("<I", struct.pack("<f", x))[0]
LOG2E = 1.4426950408889634
OPT = dict(ntx="", ntw="", ntp="nt", stamp=0, cprio=0, yprio=1, warm=0, fwarm=0, rpg=2, w1=1, sw=0, wsig=1, xt=1, xwd=0, rot2=1, ht=0, xs1=26, xs2=26, xs3=48, vgap=9, HD=4, CK=5, xprio=2, one=1, ni=2, sch=4, cpf=0, pb=0, xw=1, w2=0, trim=1, wso=0)
for a_ in sys.argv[2:]:
    k, v = a_.split("="); OPT[k] = int(v) if v.lstrip("-").isdigit() else v
a = Asm()
SPIN = 40000
HT = 14 if OPT["one"] else 56

def cmuls(lst):
    for d, x, y in lst:
        assert d != x and d != y
        a(f"v_pk_mul_f32 {vr(d,2)}, {vr(x,2)}, {vr(y,2)} op_sel_hi:[1,0]")
    for d, x, y in lst:
        a(f"v_pk_fma_f32 {vr(d,2)}, {vr(x,2)}, {vr(y,2)}, {vr(d,2)} op_sel:[1,1,0] op_sel_hi:[0,1,1] neg_lo:[1,0,0]")
def bar(n):
    k = (n - 1) if n < 8 else (n - 8)
    if OPT["sw"] == 1 and n >= 1: stamp(1+2*k, True)
    a("s_barrier")
    if OPT["sw"] == 1 and n >= 1: stamp(2+2*k, True)
_seen1 = [0]
def stamp(idx, force=False):
    if OPT.get("es") and idx == 1:
        _seen1[0] += 1
        if _seen1[0] in (2, 4): return
    if OPT["sw"] and not force and idx not in (0, 15): return
    if OPT["stamp"]: a(f"{'s_memtime' if OPT['stamp']==2 else 's_memrealtime'} s[{64+2*idx}:{65+2*idx}]")
def stamps_out(idx):
    if not OPT["stamp"]: return
    a("s_waitcnt vmcnt(0)")
    stamp(idx)
    a("s_waitcnt lgkmcnt(0)")
    for i in range(16): a(f"v_writelane_b32 v250, s{64+2*i}, {i}")
    a(f"""s_lshl_b32 s64, s2, 3
s_add_u32 s64, s64, s3
s_lshl_b32 s64, s64, 6
s_add_u32 s64, s64, 0x2000000
v_lshl_add_u32 v251, v1, 2, s64
s_mov_b64 exec, 0xffff
global_store_dword v251, v250, s[40:41]""")
    if OPT.get("dbgout"):
        a(f"""
s_lshl_b32 s65, s2, 3
s_add_u32 s65, s65, s3
s_cmp_eq_u32 s65, {OPT['dbgout']}
s_cbranch_scc0 k_end
v_readlane_b32 s65, v250, 0
v_subrev_u32 v250, s65, v250
v_lshlrev_b32 v251, 2, v1
s_mov_b64 exec, 0xfffe
global_store_dword v251, v250, s[98:99]""")
def stamps_init():
    if OPT["stamp"]:
        for i in range(1,16): a(f"s_mov_b32 s{64+2*i}, 0")
        stamp(0)

class VM:
    def __init__(self): self.q = []
    def op(self, text, tag):
        a(text); self.q.append(tag)
    def n_for(self, *tags):
        idx = max(i for i, t in enumerate(self.q) if t in tags)
        return len(self.q) - 1 - idx
    def wait(self, *tags, extra=""):
        n = self.n_for(*tags); assert n <= 63
        a(f"s_waitcnt vmcnt({n}){extra}")

XA = [98304, 49152, 65536, 81920, 32768, 0, 16384]
WR = [114688, 131072, 147456]
WA = [WR[s % 3] for s in range(10)] + [WR[1], XA[0], WR[2], XA[1]]
CS = [XA[2], WR[0]]
RSL = [XA[3], WR[1], XA[4], XA[5], XA[6], XA[0], XA[1]]
TABO = 12992
CNT = CS[0] + 16064
GL = CS[1] + 16064
ATPI = 144
LDS = 163840

a.raw(f".text\n.globl {KN}\n.p2align 8\n.type {KN},@function\n{KN}:")
a("""
s_cmp_ge_u32 s2, 256
s_cbranch_scc1 k_end
s_add_u32 s2, s2, 224
s_and_b32 s2, s2, 255
""")
stamps_init()
a("""
s_load_dwordx16 s[16:31], s[0:1], 0
s_load_dwordx8 s[32:39], s[0:1], 80
s_load_dwordx2 s[40:41], s[0:1], 128
s_load_dwordx4 s[96:99], s[0:1], 112
s_getpc_b64 s[4:5]
k_pc:
v_lshrrev_b32 v2, 6, v0
v_and_b32 v1, 63, v0
v_readfirstlane_b32 s3, v2
s_lshr_b32 s6, s2, 3                 ; j
s_and_b32 s8, s6, 3                  ; rbl
; code prefetch into L2: line = rbl*56 + wave*7 + min(lane,6)
s_mul_i32 s7, s8, 6144
v_min_u32 v3, 5, v1
v_mad_u32_u24 v3, v2, 6, v3
v_lshlrev_b32 v3, 7, v3
v_add_u32 v3, s7, v3
v_min_u32 v3, code_end-k_pc-4, v3
CPF
s_and_b32 s7, s3, 3
s_lshr_b32 s14, s7, 1
s_lshl_b32 s60, s2, 1
s_add_u32 s60, s60, s14
s_lshl_b32 s13, s60, 9
s_and_b32 s14, s7, 1
s_lshl_b32 s14, s14, 7
s_add_u32 s13, s13, s14
s_and_b32 s14, s3, 4
s_lshl_b32 s14, s14, 6
s_add_u32 s13, s13, s14
v_lshl_add_u32 v8, v1, 1, s13
s_lshl_b32 s14, s60, 1
v_mov_b32 v9, s14
s_cmp_ge_u32 s2, 224
s_cbranch_scc1 k_npl
s_waitcnt lgkmcnt(0)
global_load_ushort v238, v9, s[30:31]
global_load_ushort v239, v8, s[18:19] nt
global_load_ushort v11, v8, s[20:21] nt
global_load_ushort v12, v8, s[22:23] nt
global_load_ushort v216, v8, s[24:25] nt
global_load_ushort v217, v8, s[26:27] nt
global_load_ushort v218, v8, s[28:29] nt
k_npl:
WSO
s_and_b32 s10, s2, 6
s_lshl_b32 s10, s10, 1
s_add_u32 s10, s10, s8               ; rb128
s_and_b32 s9, s2, 1
s_mul_i32 s11, s9, 7
s_lshr_b32 s12, s6, 2                ; fbl (7 = spare WG)
s_add_u32 s11, s11, s12              ; fb128
v_lshlrev_b32 v10, 4, v1
s_lshl_b32 s42, s8, 1
s_add_u32 s42, s42, s12
s_sub_u32 s43, s42, 7
s_cmp_ge_u32 s42, 7
s_cselect_b32 s42, s43, s42          ; rot
; W DMA voffsets v14,v15: row k = 16q+8i+(l>>3); chunk16 = (l&7) ^ (((l>>4)&1)<<1) ^ (i<<2)
v_lshrrev_b32 v20, 3, v1
v_lshrrev_b32 v21, 4, v1
v_and_b32 v22, 7, v1
s_lshl_b32 s13, s7, 4
v_add_u32 v25, s13, v20
v_mul_u32_u24 v25, 3584, v25
s_lshl_b32 s13, s11, 8
v_add_u32 v25, s13, v25
v_and_b32 v26, 1, v21
v_lshlrev_b32 v26, 1, v26
v_xor_b32 v26, v22, v26
v_lshl_add_u32 v240, v26, 4, v25
v_add_u32 v241, 27648, v240
v_xor_b32 v26, 4, v26
v_lshl_add_u32 v242, v26, 4, v25
v_add_u32 v243, 27648, v242
s_lshl_b32 s15, s7, 11               ; W dest offset in slot
s_mov_b32 s50, 1605632
s_mov_b32 s51, 0x20000
s_mov_b32 s54, 1605632
s_mov_b32 s55, 0x20000
s_cmp_eq_u32 s12, 7
s_cbranch_scc1 k_spare
""".replace("WSO", f"s_waitcnt lgkmcnt(0)\ns_add_u32 s40, s40, {OPT['wso']<<20}\ns_addc_u32 s41, s41, 0" if OPT["wso"] else "").replace("CPF", ["global_load_dword v0, v3, s[4:5]", "s_cmp_lt_u32 s2, 224\ns_cbranch_scc1 k_ncp\nglobal_load_dword v0, v3, s[4:5]\nk_ncp:", "s_cmp_lt_u32 s2, 192\ns_cbranch_scc1 k_ncp\nglobal_load_dword v0, v3, s[4:5]\nk_ncp:"][OPT["cpf"]]))
def dmaw(vm, st):
    a(f"s_add_u32 m0, s15, {WA[st]}")
    if st >= 7: a("s_add_u32 s58, s57, 128")
    else: a("s_mov_b32 s58, s57")
    for i in range(2): vm.op(f"buffer_load_dwordx4 v{240+i}, s[48:51], s58 offen offset:{i*1024} {OPT['ntw']} lds", f"W{st}")
    a(f"s_add_u32 m0, s15, {WA[st]+8192}\ns_add_u32 s57, s57, 229376")
    for i in range(2): vm.op(f"buffer_load_dwordx4 v{242+i}, s[52:55], s58 offen offset:{i*1024} {OPT['ntw']} lds", f"W{st}")
    a("s_cmp_eq_u32 s57, 1605632\ns_cselect_b32 s57, 0, s57")
def dmax(vm, st):
    a(f"s_add_u32 m0, s14, {XA[st]}\ns_mov_b32 s58, s56")
    for i in range(4): vm.op(f"buffer_load_dwordx4 v{232+i}, s[44:47], s58 offen offset:{i*1024} {OPT['ntx']} lds", f"X{st}")
    a("s_add_u32 s56, s56, 128\ns_cmp_eq_u32 s56, 896\ns_cselect_b32 s56, 0, s56")

FB = [16, 48]; ACC = 80; TM = 144; KA = 164
def pass_addrs():
    a(f"""
v_and_b32 v6, 31, v1
v_lshrrev_b32 v7, 5, v1
v_bfe_u32 v4, v1, 1, 3
v_xor_b32 v7, v7, v4
v_lshlrev_b32 v7, 4, v7
v_lshl_add_u32 v6, v6, 7, v7
s_lshr_b32 s13, s7, 1
s_lshl_b32 s13, s13, 13
v_add_u32 v2, s13, v6
v_lshlrev_b32 v6, 9, v1
v_and_b32 v6, 0x2000, v6
v_lshlrev_b32 v7, 5, v1
v_and_b32 v7, 0x580, v7
v_and_b32 v4, 3, v1
v_lshlrev_b32 v4, 3, v4
v_add3_u32 v6, v6, v7, v4
v_bfe_u32 v7, v1, 3, 2
s_and_b32 s13, s7, 1
s_lshl_b32 s13, s13, 1
v_xor_b32 v7, s13, v7
v_lshl_add_u32 v3, v7, 5, v6
""")
def h_addr(p):
    a(f"""
s_lshl_b32 s13, s10, 1
s_lshr_b32 s58, s7, 1
s_add_u32 s13, s13, s58
s_mul_i32 s13, s13, 56
s_lshl_b32 s58, s11, 1
s_add_u32 s13, s13, s58
s_and_b32 s58, s7, 1
s_add_u32 s13, s13, s58
s_lshr_b32 s58, s3, 2
s_mul_i32 s58, s58, 28
s_add_u32 s13, s13, s58
s_lshl_b32 s13, s13, 12
v_and_b32 v14, 15, v1
v_lshl_add_u32 v14, v14, 4, s13
v_bfe_u32 v15, v1, 4, 1
v_lshl_add_u32 v14, v15, 10, v14
v_lshrrev_b32 v15, 5, v1
v_lshl_add_u32 v14, v15, 8, v14
s_mov_b32 s62, {fbits(-LOG2E)}
""")
def nib(lst):
    v = 0
    for i, x in enumerate(lst): v |= (x // 16384) << (4*i)
    return "0x%x" % v
VADDR = lambda xs, ws: [f"v_add_u32 v6, {xs}, v2", f"v_add_u32 v4, {ws}, v3", "v_xor_b32 v7, 32, v6", "v_xor_b32 v5, 32, v4", "v_xor_b32 v8, 64, v6", "v_xor_b32 v9, 96, v6"]
SETA = ["s_and_b32 s13, s30, 15", "s_lshl_b32 s13, s13, 14", "s_lshr_b32 s30, s30, 4", "s_and_b32 s58, s31, 15", "s_lshl_b32 s58, s58, 14", "s_lshr_b32 s31, s31, 4"] + VADDR("s13", "s58")
def reads(hs, F):
    out = []
    for k2 in range(2):
        ks = 2*hs + k2
        A_ = lambda fa, hh: f"ds_read_b64_tr_b16 {vr(F+16*k2+4*fa+2*hh,2)}, v{4+fa} offset:{ks*2048+hh*512}"
        B_ = lambda tb: f"ds_read_b128 {vr(F+16*k2+8+4*tb,4)}, v{6+ks} offset:{tb*4096}"
        out += [A_(0,0), A_(0,1), B_(0), B_(1), A_(1,0), A_(1,1)]
    return out
def acc(n): return ACC + 16*n
def pass_resume(iters):
    a(f"s_mov_b32 s59, {iters}\ns_call_b64 s[100:101], k_pl")
    a.reset()
def pass_call(p, nbar, iters):
    a(f"""
s_mov_b32 s30, {nib(XA[1:]+[0])}
s_mov_b32 s31, {nib(WA[7*p+1:7*p+7]+[0])}
s_mov_b32 s43, {nbar}
s_mov_b32 s59, {iters}
s_call_b64 s[100:101], k_pass
""")
    a.reset()
def pass_first_addr(p):
    for x in VADDR(XA[0], WA[7*p]): a(x)
def emit_pass():
    def half(hs, first):
        F = FB[hs]; Fn = FB[hs ^ 1]
        mm = []
        for k2 in range(2):
            for fa in range(2):
                for tb in range(2):
                    d = vr(acc(2*fa+tb), 16)
                    mm.append(f"v_mfma_f32_32x32x16_bf16 {d}, {vr(F+16*k2+4*fa,4)}, {vr(F+16*k2+8+4*tb,4)}, " + ("0" if first and k2 == 0 else d))
        if first: a("s_waitcnt lgkmcnt(6)")
        else: a("s_waitcnt lgkmcnt(0)")
        if hs == 0:
            fill = reads(1, Fn) + SETA + ["s_cmp_eq_u32 s43, 0"]
        else:
            a(mm.pop(0))
            a("s_cbranch_scc1 k_pnb\ns_waitcnt vmcnt(0)\ns_barrier\ns_sub_u32 s43, s43, 1\nk_pnb:")
            fill = reads(0, Fn) + ["s_sub_u32 s59, s59, 1", "s_cmp_lg_u32 s59, 0"]
        for i, m in enumerate(mm):
            if first and i == 4: a("s_waitcnt lgkmcnt(12)")
            a(m)
            for _ in range(3 if (i < 4) else 4):
                if fill: a(fill.pop(0))
        for x in fill: a(x)
    a.raw(".p2align 6")
    a.label("k_pass"); a.reset()
    for r in reads(0, FB[0]): a(r)
    half(0, True)
    a("s_branch k_pm")
    a.raw(".p2align 6")
    a.label("k_pl")
    half(0, False)
    a.label("k_pm")
    half(1, False)
    a("s_cbranch_scc1 k_pl\ns_setpc_b64 s[100:101]")
def epi_list(n):
    Tm = TM + 8*(n & 1); R = acc(n); o = []
    for i in range(8): o.append(f"v_mul_f32 v{Tm+i}, s62, v{R+i}")
    for i in range(8): o += [f"v_exp_f32 v{Tm+i}, v{Tm+i}", f"v_mul_f32 v{R+i}, v{R+i}, v{R+8+i}"]
    for i in range(8): o.append(f"v_add_f32 v{Tm+i}, 1.0, v{Tm+i}")
    for i in range(8):
        o.append(f"v_rcp_f32 v{Tm+i}, v{Tm+i}")
        if i >= 2: o.append(f"v_mul_f32 v{R+i-2}, v{R+i-2}, v{Tm+i-2}")
    for i in (6, 7): o.append(f"v_mul_f32 v{R+i}, v{R+i}, v{Tm+i}")
    for i in range(4): o.append(f"v_cvt_pk_bf16_f32 v{R+8+i}, v{R+2*i}, v{R+2*i+1}")
    o.append(("st", n))
    return o
def hst(vm, n, tag):
    vm.op(f"global_store_dwordx4 v14, {vr(acc(n)+8,4)}, s[40:41] offset:{(n&1)*2048+(n>>1)*512} sc1", tag)
def run_epi(vm, lst, count):
    for _ in range(count):
        if not lst: return
        x = lst.pop(0)
        if isinstance(x, tuple): hst(vm, x[1], "st")
        else: a(x)
def pre_poll(base, off):
    a(f"s_load_dword s27, {base}, {off} glc")
def check(lbl, base, off, target, vt, sleep=1):
    a(f"""
s_mov_b32 s59, 0
{lbl}_l:
s_waitcnt lgkmcnt(0)
s_cmp_eq_u32 s27, {target}
s_cbranch_scc1 {lbl}_d
s_add_u32 s59, s59, 1
s_sleep {sleep}
s_cmp_lt_u32 s59, 256
s_cbranch_scc0 {lbl}_v
s_load_dword s27, {base}, {off} glc
s_branch {lbl}_l
{lbl}_v:
v_mov_b32 v{vt}, 0
global_load_dword v{vt}, v{vt}, {base} offset:{off} sc1
s_waitcnt vmcnt(0)
v_readfirstlane_b32 s27, v{vt}
s_cmp_lt_u32 s59, {SPIN}
s_cbranch_scc1 {lbl}_l
{lbl}_d:
""")
def own_line():
    a(f"""
s_lshl_b32 s13, s2, 7
s_add_u32 s13, s13, {FL}
s_add_u32 s28, s40, s13
s_addc_u32 s29, s41, 0
""")
def hsig_addr(v):
    a(f"""
s_lshl_b32 s13, s10, 1
s_and_b32 s58, s13, 3
s_lshl_b32 s58, s58, 3
s_lshr_b32 s13, s13, 2
s_add_u32 s13, s13, s58
s_lshl_b32 s13, s13, 7
s_add_u32 s13, s13, {FL}
v_lshrrev_b32 v{v}, 1, v1
v_lshlrev_b32 v{v}, 12, v{v}
v_and_b32 v{v+1}, 1, v1
v_lshl_add_u32 v{v}, v{v+1}, 10, v{v}
v_add_u32 v{v}, s13, v{v}
""")
def last_of4(lbl, cntoff, vt, body):
    a(f"""
v_mov_b32 v{vt}, {CNT+cntoff}
v_mov_b32 v{vt+1}, 1
s_mov_b64 exec, 1
ds_add_rtn_u32 v{vt+2}, v{vt}, v{vt+1}
s_waitcnt lgkmcnt(0)
v_readfirstlane_b32 s58, v{vt+2}
s_mov_b64 exec, -1
s_cmp_eq_u32 s58, 3
s_cbranch_scc0 {lbl}
""")
    body()

Z = lambda k: 20 + 2*k
Wp = lambda k: 50 + 2*k
E = lambda k: 68 + 2*k
Y_ = {1: 84, 2: 86, 4: 88, 8: 90}
T = lambda k: 92 + 2*k
CV = lambda k: 108 + (k & 7)
FE, FX0, FX1 = 116, 132, 148
PR = 176
vy = VM()
XV = 232
a(f"""
v_xor_b32 v23, v22, v21
v_xor_b32 v24, 4, v23
s_lshl_b32 s13, s7, 5
v_add_u32 v25, s13, v20
v_mul_u32_u24 v25, 896, v25
v_lshl_add_u32 v{XV}, v23, 4, v25
v_lshl_add_u32 v{XV+1}, v24, 4, v25
v_add_u32 v{XV+1}, 6144, v{XV+1}
v_add_u32 v{XV+2}, 12288, v{XV}
v_add_u32 v{XV+3}, 12288, v{XV+1}
s_lshl_b32 s14, s7, 12
s_lshl_b32 s56, s42, 7
s_mul_i32 s57, s42, 229376
s_mul_i32 s13, s10, 114688
s_mov_b32 s46, 114688
s_mov_b32 s47, 0x20000
s_mul_i32 s63, s3, 4608
""")
a("""
s_mov_b32 s48, s32
s_mov_b32 s49, s33
s_mov_b32 s52, s34
s_mov_b32 s53, s35
s_add_u32 s44, s16, s13
s_addc_u32 s45, s17, 0
""")
if OPT["pb"]: a("s_barrier")
a("""
s_cmp_lt_u32 s3, 4
s_cbranch_scc1 k_x0
""")
dmaw(vy, 0); dmax(vy, 0)
if OPT["w1"] and not OPT["xw"]: dmaw(vy, 1)
a(f"""
s_and_b32 s9, s2, 7
s_lshl_b32 s9, s9, 2
s_add_u32 s9, s9, s8               ; rb64
s_mul_i32 s13, s9, 229376
s_mul_i32 s58, s7, 28672
s_add_u32 s13, s13, s58
s_add_u32 s16, s40, s13
s_addc_u32 s17, s41, 0
s_mov_b32 s18, {114688+28672}
s_mov_b32 s19, 0x20000
s_mov_b32 s20, s36
s_mov_b32 s21, s37
s_mov_b32 s22, 1605632
s_mov_b32 s23, 0x20000
s_mul_i32 s25, s7, 7
s_lshl_b32 s26, s12, 7               ; cb*128
""")
SW = [32+i for i in range(7)]; SH = [4, 5, 6, 39, 0, 1, 60]
for i in range(7):
    a(f"""
s_add_u32 s58, s42, {i}
s_sub_u32 s59, s58, 7
s_min_u32 s58, s58, s59
s_lshl_b32 s{SH[i]}, s58, 12
s_add_u32 s58, s58, s25
s_lshr_b32 s59, s58, 1
s_mul_i32 s59, s59, 114688
s_and_b32 s58, s58, 1
s_mul_i32 s58, s58, 28672
s_add_u32 s58, s58, s59
s_add_u32 s{SW[i]}, s58, s26
""")
a("""
s_branch k_w0
k_x0:
s_load_dwordx2 s[4:5], s[0:1], 64
s_add_u32 s57, s42, XOFF
s_sub_u32 s13, s57, 7
s_cmp_ge_u32 s57, 7
s_cselect_b32 s57, s13, s57
s_mul_i32 s57, s57, 229376           ; chunk offset of stage 9
k_w0:
v_and_b32 v4, 15, v1                 ; c
v_lshlrev_b32 v5, 2, v21             ; 4g
v_lshlrev_b32 v6, 6, v21             ; 64g
v_lshl_add_u32 v247, v4, 4, v5
v_lshl_add_u32 v248, v4, 3, v5
v_lshl_add_u32 v249, v4, 2, v6
v_cmp_gt_u32 vcc, 2, v21
v_cndmask_b32 v248, v249, v248, vcc
v_lshl_add_u32 v249, v4, 1, v6
v_lshl_add_u32 v247, v247, 2, s63
v_lshl_add_u32 v248, v248, 2, s63
v_lshl_add_u32 v249, v249, 2, s63
""".replace("XOFF", "1" if OPT["xw"] else "2"))
pass_addrs()
h_addr(0)
own_line()
if OPT["warm"]:
    a("s_mov_b64 exec, 0")
    for w in range(1, 8): a(f"s_cmp_eq_u32 s3, {w}\ns_cbranch_scc1 k_sec{w}")
    a("s_branch k_kg\nk_wd:")
    for w in range(4):
        a(f"s_cmp_eq_u32 s3, {w}\ns_cbranch_scc0 k_we{w}\ns_call_b64 s[100:101], k_epi{w}\nk_we{w}:")
    a("s_cmp_eq_u32 s3, 3\ns_cbranch_scc0 k_wp\ns_mov_b32 s43, 0\ns_mov_b32 s59, 1\ns_call_b64 s[100:101], k_pass\nk_wp:")
    a("s_mov_b64 exec, -1")
a(f"""
v_mov_b32 v245, v9
v_and_b32 v18, 15, v1
v_mul_u32_u24 v18, 288, v18
v_and_b32 v19, 48, v1
v_add3_u32 v18, v18, v19, s63
s_cmp_lt_u32 s3, 4
s_cbranch_scc1 k_x1
s_waitcnt vmcnt({len(vy.q)})
s_branch k_kg
k_x1:
s_waitcnt vmcnt(0)
k_kg:
""")
secn = [0]
def sec():
    if OPT["warm"]:
        secn[0] += 1
        a("s_cbranch_execz k_wd")
        if secn[0] < 8: a.label(f"k_sec{secn[0]}")
a.reset()
stamp(2)
a(f"""
s_mov_b32 m0, s63
v_lshlrev_b32 v238, 16, v238
v_mul_f32 v16, {fbits(LOG2E)}, v238
v_exp_f32 v16, v16
v_lshlrev_b32 v239, 16, v239
v_lshlrev_b32 v11, 16, v11
v_lshlrev_b32 v12, 16, v12
v_lshlrev_b32 v216, 16, v216
v_lshlrev_b32 v217, 16, v217
v_lshlrev_b32 v218, 16, v218
v_cvt_pk_bf16_f32 v16, v16, v16
v_and_b32 v16, 0xffff0000, v16
v_mul_f32 v8, {fbits(LOG2E)}, v16
v_mul_f32 v9, 0.15915494, v16
v_mul_f32 v17, v239, v8
v_mul_f32 v11, v11, v9
v_mul_f32 v12, v12, v16
v_mul_f32 v216, v216, v16
v_mul_f32 v{E(0)}, v217, v12
v_mul_f32 v{E(0)+1}, v217, v216
v_fma_f32 v{E(0)}, -v218, v216, v{E(0)}
v_fma_f32 v{E(0)+1}, -v218, v12, -v{E(0)+1}
""")
ydn = [0]
def ydma(fn):
    ydn[0] += 1
    a(f"s_cmp_lt_u32 s3, 4\ns_cbranch_scc1 k_yd{ydn[0]}")
    fn()
    a(f"s_mov_b32 m0, s63\nk_yd{ydn[0]}:")
anc = [(Y_[1], 16.0, True), (Z(1), 1.0, False), (Wp(1), 256.0, False)]
for n, (d, p, cj) in enumerate(anc):
    if p != 1.0: a(f"v_mul_f32 v{T(n)}, {fbits(p)}, v17\nv_mul_f32 v{T(n)+1}, {fbits(p)}, v11")
for n, (d, p, cj) in enumerate(anc):
    if p == 1.0: a(f"v_exp_f32 v{T(n)}, v17\nv_fract_f32 v{T(n)+1}, v11")
    else: a(f"v_exp_f32 v{T(n)}, v{T(n)}\nv_fract_f32 v{T(n)+1}, v{T(n)+1}")
for n, (d, p, cj) in enumerate(anc):
    a(f"v_cos_f32 v{d}, v{T(n)+1}\nv_sin_f32 v{d+1}, v{T(n)+1}")
for n, (d, p, cj) in enumerate(anc):
    a(f"v_pk_mul_f32 {vr(d,2)}, {vr(d,2)}, {vr(T(n),2)} op_sel_hi:[1,0]" + (" neg_hi:[1,0]" if cj else ""))
cnt = [0]; NDS = [0]; MK = {}
def puts(lst):
    cs = []
    for row, src in lst:
        c = CV(cnt[0]); cnt[0] += 1; cs.append(c)
        if src is None: a(f"v_mov_b32 v{c}, 0x3f80")
        else: a(f"v_cvt_pk_bf16_f32 v{c}, v{src}, v{src+1}")
    if OPT["w2"]:
        pend = list(zip([r for r, _ in lst], cs))
        while pend:
            r0, c0 = pend.pop(0)
            m = [x for x in pend if x[0]//4 == r0//4]
            if m:
                pend.remove(m[0]); r1, c1 = m[0]
                a(f"ds_write2_b32 v{176+r0//4}, v{c0}, v{c1} offset0:{(r0%4)*72} offset1:{(r1%4)*72}"); NDS[0] += 1
            else:
                a(f"ds_write_addtid_b32 v{c0} offset:{r0*288}"); NDS[0] += 1
        return
    for (row, src), c in zip(lst, cs):
        a(f"ds_write_addtid_b32 v{c} offset:{row*288}"); NDS[0] += 1
def putl(lst):
    for i in range(0, len(lst), 4): puts(lst[i:i+4])
def frags(F):
    for s in range(4): a(f"ds_read_b128 {vr(F+4*s,4)}, v18 offset:{s*64}")
    NDS[0] += 4; MK[F] = NDS[0]
def wfr(F): a(f"s_waitcnt lgkmcnt({min(15, NDS[0]-MK[F])})")
def mf(tau, F):
    for s in range(4):
        a(f"v_mfma_f32_16x16x32_bf16 {vr(KA+4*tau,4)}, {vr(F+4*s,4)}, {vr(FE+4*s,4)}, " + ("0" if s == 0 else vr(KA+4*tau,4)))
Y = Y_
if OPT["trim"]:
    cmuls([(Y[2], Y[1], Y[1]), (E(1), E(0), Y[1]), (Z(2), Z(1), Z(1)), (Wp(2), Wp(1), Wp(1))])
    cmuls([(E(2), E(0), Y[2]), (E(3), E(1), Y[2]), (Z(3), Z(2), Z(1)), (Z(4), Z(2), Z(2))])
    putl([(i, E(i)) for i in range(4)])
    cmuls([(E(4), E(2), Y[2]), (E(5), E(3), Y[2]), (Wp(3), Wp(2), Wp(1)), (Wp(4), Wp(2), Wp(2))])
    cmuls([(E(6), E(4), Y[2]), (E(7), E(5), Y[2])])
    putl([(i, E(i)) for i in range(4, 8)])
    cmuls([(T(0), E(6), Y[2]), (T(1), E(7), Y[2])])
    cmuls([(T(2), T(0), Y[2]), (T(3), T(1), Y[2])])
    putl([(8+i, T(i)) for i in range(4)])
    cmuls([(T(4), T(2), Y[2]), (T(5), T(3), Y[2])])
    cmuls([(T(6), T(4), Y[2]), (T(7), T(5), Y[2])])
    putl([(8+i, T(i)) for i in range(4, 8)])
else:
    cmuls([(Y[2], Y[1], Y[1]), (E(1), E(0), Y[1]), (Z(2), Z(1), Z(1)), (Wp(2), Wp(1), Wp(1))])
    cmuls([(Y[4], Y[2], Y[2]), (E(2), E(0), Y[2]), (E(3), E(1), Y[2]), (Z(3), Z(2), Z(1)), (Z(4), Z(2), Z(2)), (Wp(3), Wp(2), Wp(1)), (Wp(4), Wp(2), Wp(2))])
    sec()
    putl([(i, E(i)) for i in range(4)])
    cmuls([(Y[8], Y[4], Y[4])] + [(E(4+i), E(i), Y[4]) for i in range(4)])
    putl([(i, E(i)) for i in range(4, 8)])
    cmuls([(T(i), E(i), Y[8]) for i in range(4)])
    sec()
    putl([(8+i, T(i)) for i in range(4)])
    cmuls([(T(i), E(i), Y[8]) for i in range(4, 8)])
    putl([(8+i, T(i)) for i in range(4, 8)])
frags(FE)
sec()
putl([(0, None)] + [(i, Z(i)) for i in range(1, 4)])
cmuls([(Z(5), Z(4), Z(1)), (Z(6), Z(4), Z(2)), (Z(7), Z(4), Z(3)), (Z(8), Z(4), Z(4))])
putl([(i, Z(i)) for i in range(4, 8)])
cmuls([(Z(8+i), Z(8), Z(i)) for i in range(1, 4)])
sec()
putl([(i, Z(i)) for i in range(8, 12)])
cmuls([(Z(8+i), Z(8), Z(i)) for i in range(4, 8)])
putl([(i, Z(i)) for i in range(12, 16)])
frags(FX0)
sec()
cmuls([(T(r), Wp(1), Z(2*r)) for r in range(1, 4)])
putl([(0, Wp(1))] + [(r, T(r)) for r in range(1, 4)])
cmuls([(T(r), Wp(1), Z(2*r)) for r in range(4, 8)])
putl([(r, T(r)) for r in range(4, 8)])
sec()
cmuls([(T(j-1), Wp(2), Z(4*j)) for j in (1, 2, 3)])
wfr(FX0)
mf(0, FX0)
putl([(8, Wp(2))] + [(8+j, T(j-1)) for j in (1, 2, 3)])
cmuls([(T(2+j), Wp(3), Z(4*j)) for j in (1, 2, 3)])
putl([(12, Wp(3))] + [(12+j, T(2+j)) for j in (1, 2, 3)])
frags(FX1)
sec()
cmuls([(Wp(5), Wp(4), Wp(1)), (Wp(6), Wp(4), Wp(2)), (Wp(7), Wp(4), Wp(3)), (Wp(8), Wp(4), Wp(4))])
putl([(2*h, Wp(4+h)) for h in range(4)] )
cmuls([(T(h), Wp(4+h), Z(8)) for h in range(4)])
putl([(2*h+1, T(h)) for h in range(4)] + [(8, Wp(8))])
frags(FX0)
wfr(FX1)
mf(1, FX1)
a("s_waitcnt lgkmcnt(0)")
mf(2, FX0)
a(f"""
ds_write_b128 v247, {vr(KA,4)} offset:64
ds_write_b128 v248, {vr(KA+4,4)} offset:{64+1024}
s_lshr_b32 s13, s7, 1
s_mul_i32 s24, s13, {CS[1]-CS[0]}
s_add_u32 s24, s24, {CS[0]}
s_and_b32 s61, s7, 1                 ; parity
ds_write_b64 v249, {vr(KA+8,2)} offset:{64+2048}
ds_write_b64 v249, {vr(KA+10,2)} offset:{64+2048+128}
""")
sec()
a("""
s_cmp_ge_u32 s3, 4
s_cbranch_scc1 k_y
""")
vx = VM()
stamp(3)
if OPT["xw"]: dmaw(vx, 1)
if OPT["xw"] == 2:
    a("s_add_u32 s56, s56, 128\ns_cmp_eq_u32 s56, 896\ns_cselect_b32 s56, 0, s56"); dmax(vx, 1)
a("""
v_mov_b32 v244, 0
s_lshl_b32 s13, s2, 1
s_lshr_b32 s58, s7, 1
s_add_u32 s13, s13, s58
s_mul_i32 s13, s13, 14
v_min_u32 v4, 13, v1
v_add_lshl_u32 v4, v4, s13, 8
s_bitcmp1_b32 s7, 0
s_cselect_b32 s58, s34, s32
s_cselect_b32 s59, s35, s33
global_load_short_d16_hi v244, v245, s[4:5]
""")
if OPT["xt"]: a("global_load_dword v0, v4, s[58:59] offset:128")
a(f"""
s_mov_b32 s14, s24
v_and_b32 v20, 15, v1
v_lshrrev_b32 v21, 4, v1
v_or_b32 v24, 1, v20
v_lshlrev_b32 v25, 3, v21
v_sub_u32 v24, v25, v24
v_lshlrev_b32 v24, 1, v24
v_and_b32 v25, 1, v1
v_mul_u32_u24 v25, 4160, v25
v_sub_u32 v24, v24, v25
v_add_u32 v24, s14, v24
v_add_u32 v216, {4160+2*2031-512}, v24
v_add_u32 v217, {4160+2*2031-512*3}, v24
v_add_u32 v218, {4160+2*2031-512*5}, v24
v_add_u32 v219, {4160+2*2031-512*7}, v24
v_lshlrev_b32 v22, 5, v20
v_lshl_add_u32 v221, v21, 3, v22     ; 32j+8g
v_lshl_add_u32 v22, v21, 4, v22
v_add_u32 v22, s14, v22
v_add_u32 v220, {8832-32}, v22       ; B addr
s_mul_i32 s13, s60, {UTP}
s_add_u32 s13, s13, {UT}
v_add_u32 v222, s13, v10
v_add_u32 v223, s14, v10
s_and_b32 s13, s2, 7
s_lshl_b32 s13, s13, 2
s_add_u32 s13, s13, s8
s_lshl_b32 s13, s13, 8
s_lshl_b32 s58, s7, 6
s_add_u32 s13, s13, s58
s_add_u32 s13, s13, {GG}
v_lshlrev_b32 v225, 2, v20
v_add_u32 v224, s13, v225            ; g global
s_add_u32 s58, s58, {GL}
v_add_u32 v225, s58, v225            ; g LDS
""")
hsig_addr(226)
a("v_mov_b32 v227, 1")
pass_first_addr(0)
a("s_waitcnt lgkmcnt(0)")
stamp(1)
bar(0)
stamp(4)
pass_call(0, 7, 7)
stamp(6)
dmaw(vx, 9)
CA = 48
a("s_waitcnt lgkmcnt(0)")
for r in range(CA, CA+16): a(f"v_mov_b32 v{r}, 0")
EL = epi_list(0) + epi_list(1) + epi_list(2) + epi_list(3)
bar(8)
dmaw(vx, 10)
run_epi(vx, EL, OPT["xs1"])
dmaw(vx, 11)
vx.wait("W9")
bar(9)
dmaw(vx, 12)
run_epi(vx, EL, OPT["xs2"])
dmaw(vx, 13)
vx.wait("W10")
bar(10)
run_epi(vx, EL, OPT["xs3"])
a(f"v_mov_b32 v40, {CNT}\nds_write_b128 v40, {vr(CA,4)}\nds_write_b128 v40, {vr(CA,4)} offset:16")
vx.wait("W13", extra=" lgkmcnt(0)")
stamp(7)
bar(11)
stamp(8)
if OPT["xprio"]: a(f"s_setprio {OPT['xprio']}")
run_epi(vx, EL, len(EL)-30)
pre_poll("s[28:29]", 0)
run_epi(vx, EL, 999)
def uloads():
    for i in range(4): a(f"global_load_dwordx4 {vr(16+4*i,4)}, v222, s[40:41] offset:{i*1024} sc1")
    a("global_load_dword v15, v224, s[40:41] sc1")
a("s_waitcnt lgkmcnt(0)\ns_cmp_eq_u32 s27, 32\ns_cbranch_scc0 k_u0")
uloads()
a("s_waitcnt vmcnt(5)\ns_branch k_u1\nk_u0:\ns_waitcnt vmcnt(0)\nk_u1:")
def sigx(): a("s_mov_b64 exec, 0x3fff\nglobal_atomic_add v226, v227, s[40:41] offset:4 sc1\ns_mov_b64 exec, -1")
last_of4("k_s2", 8, 42, sigx); a.label("k_s2")
a("s_cmp_eq_u32 s27, 32\ns_cbranch_scc1 k_u2")
check("k_c1", "s[28:29]", 0, 32, 13)
uloads()
a("k_u2:\nds_read_b32 v41, v40\ns_waitcnt vmcnt(0)")
for i in range(4): a(f"ds_write_b128 v223, {vr(16+4*i,4)} offset:{8832+i*1024}")
a("ds_write_b32 v225, v15")
a(f"""
s_mov_b32 s59, {SPIN}
k_ps:
s_waitcnt lgkmcnt(0)
v_readfirstlane_b32 s58, v41
s_cmp_eq_u32 s58, 4
s_cbranch_scc1 k_psd
ds_read_b32 v41, v40
s_sub_u32 s59, s59, 1
s_cmp_lg_u32 s59, 0
s_cbranch_scc1 k_ps
k_psd:
""")
stamp(9)
a(f"s_setprio {OPT['cprio']}")
a("""
s_cmp_eq_u32 s61, 0
s_cbranch_scc0 k_set1
""")
FBUF = [88, 152]
def creads(F, amax):
    out = []
    for i in range(amax+1):
        o = 0 if (i & 1) else 128
        out.append(f"ds_read_b128 {vr(F+32+4*i,4)}, v220 offset:{512*i}")
        out.append(f"ds_read2_b32 {vr(F+4*i,2)}, v{216+(i>>1)} offset0:{o} offset1:{o+1}")
        out.append(f"ds_read2_b32 {vr(F+4*i+2,2)}, v{216+(i>>1)} offset0:{o+2} offset1:{o+3}")
    out += [f"v_subrev_u32 v{r}, 64, v{r}" for r in (216, 217, 218, 219, 220)]
    return out
for sidx, cbs in enumerate(((0, 3, 4, 7), (1, 2, 5, 6))):
    if sidx == 1:
        a.label("k_set1"); a.reset()
    amax = max(cbs)
    for x in creads(FBUF[0], amax): a(x)
    a("s_mov_b32 s21, 4")
    a.label(f"k_cl{sidx}")
    for half in range(2):
        F = FBUF[half]
        a("s_waitcnt lgkmcnt(0)")
        lists = [[(n, aa, cb-aa) for aa in range(cb+1)] for n, cb in enumerate(cbs)]
        order = []
        while any(lists):
            for L in sorted(lists, key=lambda L: -len(L)):
                if L: order.append(L.pop(0))
        fill = creads(FBUF[half ^ 1], amax)
        for k, (n, aa, bb) in enumerate(order):
            d = vr(CA+4*n, 4)
            a(f"v_mfma_f32_16x16x32_bf16 {d}, {vr(F+4*aa,4)}, {vr(F+32+4*bb,4)}, {d}")
            for _ in range(2):
                if fill: a(fill.pop(0))
        for x in fill: a(x)
    a(f"""
s_sub_u32 s21, s21, 1
s_cmp_lg_u32 s21, 0
s_cbranch_scc1 k_cl{sidx}
v_add_u32 v26, s14, v221
""")
    stamp(10)
    for n, cb in enumerate(cbs): a(f"ds_read_b64 {vr(32+2*n,2)}, v26 offset:{8832+512*cb}")
    a(f"""
s_mul_i32 s15, s60, {UTP}
s_add_u32 s15, s15, {AT}
v_add_u32 v27, s15, v221
s_waitcnt lgkmcnt(0)
""")
    for n, cb in enumerate(cbs):
        R = CA+4*n
        a(f"""
v_lshlrev_b32 v40, 16, v{32+2*n}
v_and_b32 v41, 0xffff0000, v{32+2*n}
v_lshlrev_b32 v42, 16, v{33+2*n}
v_and_b32 v43, 0xffff0000, v{33+2*n}
v_fmac_f32 v{R}, v40, v244
v_fmac_f32 v{R+1}, v41, v244
v_fmac_f32 v{R+2}, v42, v244
v_fmac_f32 v{R+3}, v43, v244
v_cvt_pk_bf16_f32 v{R}, v{R}, v{R+1}
v_cvt_pk_bf16_f32 v{R+1}, v{R+2}, v{R+3}
global_store_dwordx2 v27, {vr(R,2)}, s[40:41] offset:{512*cb} sc1
""")
    if sidx == 0: a("s_branch k_pub")
a.label("k_pub"); a.reset()
a(f"""
s_setprio 0
s_lshr_b32 s15, s2, 5
s_lshl_b32 s15, s15, 12
s_add_u32 s15, s15, {FL}
v_lshl_add_u32 v26, v1, 7, s15
s_waitcnt vmcnt(0)
""")
stamp(11)
def sig4():
    a(f"""
s_mov_b32 exec_hi, 0
global_atomic_add v26, v29, s[40:41] offset:12 sc1
s_mov_b64 exec, -1
v_lshrrev_b32 v14, 3, v1
v_and_b32 v15, 7, v1
v_lshlrev_b32 v15, 4, v15
v_mul_u32_u24 v16, {UTP}, v14
v_mul_u32_u24 v17, {ATPI}, v14
s_mul_i32 s15, s12, {64*UTP}
s_and_b32 s13, s2, 7
s_lshl_b32 s13, s13, 2
s_add_u32 s13, s13, s8
s_lshl_b32 s13, s13, 7
s_add_u32 s15, s15, s13
s_add_u32 s15, s15, {AT}
v_add3_u32 v16, v16, v15, s15
v_add_u32 v17, v17, v15
v_add_u32 v17, {CS[0]}, v17
s_mov_b32 s27, 0
""")
    check("k_c4", "s[28:29]", 12, 32, 13, sleep=2)
    stamp(12)
    for i in range(8):
        a(f"global_load_dwordx4 {vr(32+4*i,4)}, v16, s[40:41] sc1")
        if i < 7: a(f"v_add_u32 v16, {8*UTP}, v16")
    for i in range(8):
        a(f"s_waitcnt vmcnt({7-i})")
        a(f"ds_write_b128 v17, {vr(32+4*i,4)} offset:{8*i*ATPI}")
last_of4("k_fw0" if OPT["fwarm"] else "k_final", 12, 28, sig4)
a("s_branch k_final")

a.label("k_spare"); a.reset()
a(f"""
s_sub_u32 s6, s2, 224                ; r
s_lshl_b32 s13, s6, 3
s_add_u32 s13, s13, s3               ; u 0..255
s_mov_b32 s59, s13
s_mul_i32 s60, s13, 7168             ; x rows 8u..8u+7
s_mul_i32 s61, s3, {8*912}
v_min_u32 v5, 48, v1
s_lshr_b32 s14, s13, 1
s_mul_i32 s14, s14, 49
v_add_lshl_u32 v6, v5, s14, 8
s_mul_i32 s14, s13, 49
v_add_lshl_u32 v5, v5, s14, 7
v_mov_b64 v[24:25], 0
v_mov_b64 v[26:27], 0
s_mul_i32 s14, s6, 896
s_add_u32 s14, s14, {FL}
v_min_u32 v13, 880, v10
v_add_u32 v13, s14, v13
v_mov_b32 v7, 1
s_lshl_b32 s13, s8, 3
s_add_u32 s13, s13, s3
s_lshr_b32 s14, s13, 1
s_mul_i32 s14, s14, 28
v_add_u32 v2, s14, v20
v_min_u32 v3, 6, v22
v_lshlrev_b32 v3, 8, v3
s_mul_i32 s14, s9, 1792
s_add_u32 s14, s14, 128
v_add_u32 v3, s14, v3
s_and_b32 s13, s13, 1
s_cmp_eq_u32 s13, 0
s_waitcnt lgkmcnt(0)
s_cselect_b32 s44, s32, s34
s_cselect_b32 s45, s33, s35
s_cmp_eq_u32 s3, 0
s_cbranch_scc0 k_r0
global_store_dwordx4 v13, v[24:27], s[40:41] sc1
s_waitcnt vmcnt(0)
s_mov_b64 exec, 1
global_atomic_add v24, v7, s[98:99] sc1
s_mov_b64 exec, -1
k_r0:
s_mov_b32 s48, s16
s_mov_b32 s49, s17
s_mov_b32 s50, 1835008
s_mov_b32 exec_hi, 0x00ffffff
""")
P = 912
for r in range(8):
    a(f"s_add_u32 m0, s61, {r*P}\ns_add_u32 s58, s60, {r*896}\nbuffer_load_dwordx4 v10, s[48:51], s58 offen lds")
a("s_mov_b32 exec_hi, -1\nv_lshlrev_b32 v30, 4, v22")
for i in range(7): a(f"global_load_dwordx4 {vr(64+4*i,4)}, v30, s[38:39] offset:{i*128}")
ntouch = 0
a(f"""
v_mul_u32_u24 v31, {P}, v20
v_add3_u32 v31, v31, v30, s61
v_and_b32 v48, 3, v1
v_lshrrev_b32 v49, 5, v1
v_lshl_add_u32 v48, v49, 2, v48
v_bfe_u32 v49, v1, 2, 2
v_lshl_add_u32 v48, v48, 3, v49
v_mul_u32_u24 v48, {P}, v48
v_bfe_u32 v49, v1, 4, 1
v_lshl_add_u32 v48, v49, 3, v48
s_mul_i32 s13, s3, 112
v_add_u32 v48, s13, v48
v_and_b32 v49, 4, v1
v_lshlrev_b32 v49, 3, v49
v_and_b32 v50, 32, v1
v_lshrrev_b32 v50, 1, v50
v_and_b32 v51, 3, v1
v_lshlrev_b32 v51, 2, v51
v_add3_u32 v49, v49, v50, v51
v_bfe_u32 v50, v1, 3, 2
v_add_lshl_u32 v49, v49, v50, 2
; store: d = 56w + 8X + (l>>3) ; t0 = 64r
s_mul_i32 s13, s3, 56
v_add_u32 v50, s13, v20
v_mul_u32_u24 v50, {UTP}, v50
s_lshl_b32 s13, s6, 7
s_add_u32 s13, s13, {UT}
v_add3_u32 v50, v50, v30, s13
s_waitcnt vmcnt({ntouch})
""")
for i in range(7): a(f"ds_read_b128 {vr(96+4*i,4)}, v31 offset:{i*128}")
a("s_barrier")
stamp(1)
a("v_mov_b32 v8, v5")
for X in range(7):
    a(f"ds_read_b64_tr_b16 {vr(128+4*X,2)}, v48 offset:{X*16}\nds_read_b64_tr_b16 {vr(130+4*X,2)}, v48 offset:{X*16+4*P}")
a("v_mov_b64 v[60:61], 0\ns_waitcnt lgkmcnt(14)")
for i in range(28): a(f"v_dot2c_f32_bf16 v{60+(i&1)}, v{96+i}, v{64+i}")
a("s_waitcnt lgkmcnt(0)")
for X in range(7):
    for q in range(4): a(f"ds_bpermute_b32 v{160+4*X+q}, v49, v{128+4*X+q}")
    if X >= 2:
        a(f"s_waitcnt lgkmcnt(8)\nglobal_store_dwordx4 v50, {vr(160+4*(X-2),4)}, s[40:41] sc1\nv_add_u32 v50, {8*UTP}, v50")
for X in (5, 6):
    a(f"s_waitcnt lgkmcnt({4*(6-X)})\nglobal_store_dwordx4 v50, {vr(160+4*X,4)}, s[40:41] sc1\nv_add_u32 v50, {8*UTP}, v50")
a(f"""
v_add_f32 v60, v60, v61
v_add_f32_dpp v60, v60, v60 quad_perm:[1,0,3,2] row_mask:0xf bank_mask:0xf
v_add_f32_dpp v60, v60, v60 quad_perm:[2,3,0,1] row_mask:0xf bank_mask:0xf
v_add_f32_dpp v60, v60, v60 row_half_mirror row_mask:0xf bank_mask:0xf
v_cvt_pk_bf16_f32 v60, v60, v60
v_and_b32 v60, 0xffff0000, v60
v_mul_f32 v60, {fbits(-LOG2E)}, v60
v_exp_f32 v60, v60
v_add_f32 v60, 1.0, v60
v_rcp_f32 v60, v60
v_cvt_pk_bf16_f32 v60, v60, v60
v_and_b32 v60, 0xffff0000, v60
v_sub_f32 v61, 1.0, v60
v_cvt_pk_bf16_f32 v60, v60, v61
s_lshl_b32 s13, s59, 5
s_add_u32 s13, s13, {GG}
v_lshl_add_u32 v54, v20, 2, s13
global_store_dword v54, v60, s[40:41] sc1
v_min_u32 v5, 55, v1
s_mul_i32 s13, s7, 56
v_add_lshl_u32 v5, v5, s13, 7
v_add_u32 v5, {FL}, v5
global_load_dword v6, v24, s[98:99] sc1
s_waitcnt vmcnt(0)
s_barrier
""")
stamp(2)
a(f"""
s_cmp_lt_u32 s3, 4
s_cbranch_scc0 k_r2
s_mov_b32 s59, {SPIN}
k_r1:
v_readfirstlane_b32 s58, v6
s_cmp_ge_u32 s58, 32
s_cbranch_scc1 k_r1d
s_sub_u32 s59, s59, 1
s_cmp_eq_u32 s59, 0
s_cbranch_scc1 k_r1d
global_load_dword v6, v24, s[98:99] sc1
s_waitcnt vmcnt(0)
s_branch k_r1
k_r1d:
s_mov_b32 exec_hi, 0x00ffffff
global_atomic_add v5, v7, s[40:41] sc1
s_mov_b32 exec_hi, -1
k_r2:
global_load_dword v0, v8, s[36:37]
""")
stamps_out(15)
a("s_endpgm")

a.label("k_y"); a.reset()
stamp(1)
vy.wait("X0", extra=" lgkmcnt(0)")
stamp(3)
bar(0)
stamp(4)
if OPT["xw"]: a("s_add_u32 s57, s57, 229376\ns_cmp_eq_u32 s57, 1605632\ns_cselect_b32 s57, 0, s57")
elif not OPT["w1"]: dmaw(vy, 1)
if OPT["xw"] == 2: a("s_add_u32 s56, s56, 128\ns_cmp_eq_u32 s56, 896\ns_cselect_b32 s56, 0, s56")
else: dmax(vy, 1)
dmaw(vy, 2); dmax(vy, 2)
a("""
s_and_b32 s13, s7, 2
s_mul_i32 s13, s13, 4608
v_add_u32 v16, s13, v10
v_lshl_add_u32 v17, v1, 3, s13
v_lshl_add_u32 v18, v1, 2, s13
""")
G = lambda w: 32 + 16*w
def gather(w):
    o = (0, 4608, 18432, 23040)[w] + 64; R = G(w)
    a(f"""
ds_read_b128 {vr(R,4)}, v16 offset:{o}
ds_read_b64 {vr(R+4,2)}, v17 offset:{o+1024}
ds_read_b64 {vr(R+6,2)}, v17 offset:{o+1536}
ds_read_b32 v{R+8}, v16 offset:{o-4}
ds_read_b32 v{R+9}, v17 offset:{o+1032}
ds_read_b32 v{R+10}, v17 offset:{o+1020}
ds_read_b32 v{R+11}, v17 offset:{o+1544}
ds_read_b32 v{R+12}, v18 offset:{o+2048}
ds_read_b32 v{R+13}, v18 offset:{o+2052}
ds_read_b32 v{R+14}, v18 offset:{o+2304}
ds_read_b32 v{R+15}, v18 offset:{o+2308}
""")
gather(3); gather(0)
if OPT["xw"] != 2: vy.wait("X1")
bar(1)
dmaw(vy, 3)
gather(1)
dmax(vy, 3)
vy.wait("X2", extra=" lgkmcnt(0)")
bar(2)
dmaw(vy, 4)
gather(2)
dmax(vy, 4)
vy.wait("X3", extra=" lgkmcnt(0)")
bar(3)
dmaw(vy, 5)
for i in range(16): a(f"v_add_f32 v{G(0)+i}, v{G(0)+i}, v{G(1)+i}\nv_add_f32 v{G(2)+i}, v{G(2)+i}, v{G(3)+i}")
dmax(vy, 5)
vy.wait("X4")
bar(4)
stamp(5)
dmaw(vy, 6)
for i in range(16): a(f"v_add_f32 v{G(0)+i}, v{G(0)+i}, v{G(2)+i}")
k0,k1,k2,k3,a1,b1,a2,b2,km,c1,pp,c2,a3,b3,a4,b4 = range(32, 48)
EW = 204
def cv(i, lo, hi): a(f"v_cvt_pk_bf16_f32 v{EW+i}, v{lo}, v{hi}")
a(f"""
v_and_b32 v19, 1, v1
v_cmp_eq_u32 vcc, 0, v19
v_cndmask_b32 v48, v{b3}, v{a3}, vcc
v_cndmask_b32 v49, v{b4}, v{a4}, vcc
v_cmp_ne_u32 vcc, 0, v1
v_cndmask_b32 v{km}, 0, v{km}, vcc
v_cndmask_b32 v{pp}, v{pp}, v{a1}, vcc
""")
dmax(vy, 6)
a("s_load_dword s27, s[98:99], 0")
vy.wait("X5")
bar(5)
dmaw(vy, 7)
cv(5, b2, b2); cv(7, a2, a2); cv(8, b3, b3); cv(10, a3, a3); cv(11, a3, a3); cv(12, b4, b4); cv(14, a4, a4); cv(15, a4, a4)
a("s_cmp_eq_u32 s61, 0\ns_cbranch_scc0 k_eo")
cv(0, k3, k2); cv(1, k1, k0); cv(2, c1, b1); cv(3, a1, a1); cv(4, c2, c2); cv(6, b2, a2); cv(9, b3, 48); cv(13, b4, 49)
a("s_branch k_ew\nk_eo:")
cv(0, k2, k1); cv(1, k0, km); cv(2, b1, a1); cv(3, a1, pp); cv(4, c2, b2); cv(6, a2, a2); cv(9, 48, a3); cv(13, 49, a4)
a("k_ew:")
pass_first_addr(1)
a(f"""
v_lshrrev_b32 v20, 3, v1
v_and_b32 v22, 7, v1
v_mul_u32_u24 v160, 896, v20
v_and_b32 v161, 6, v20
v_xor_b32 v161, v161, v22
v_lshl_add_u32 v160, v161, 4, v160
v_add_u32 v161, 6144, v160
v_add_u32 v162, 12288, v160
v_add_u32 v163, 18432, v160
v_bfe_u32 v164, v1, 2, 3
v_lshlrev_b32 v164, 7, v164
v_lshrrev_b32 v165, 5, v1
v_lshl_add_u32 v164, v165, 11, v164
v_bfe_u32 v165, v1, 3, 2
v_lshl_add_u32 v164, v165, 5, v164
v_and_b32 v165, 3, v1
v_lshl_add_u32 v164, v165, 3, v164
v_add_u32 v164, s14, v164
v_xor_b32 v165, 32, v164
v_xor_b32 v166, 64, v164
v_xor_b32 v167, 96, v164
""")
if not OPT["rot2"]: a("s_mov_b32 s42, 0")
vy.wait("X6", extra=" lgkmcnt(0)")
bar(6)
dmaw(vy, 8)
a(f"""
s_mul_i32 s13, s61, 4160
s_add_u32 s13, s13, s24
v_lshlrev_b32 v220, 3, v1
v_sub_u32 v220, s13, v220
v_sub_u32 v221, s13, v10
v_min_u32 v48, 39, v1
v_lshlrev_b32 v48, 4, v48
v_add_u32 v222, 8256, v48
v_add_u32 v50, {4096-36*16}, v48
v_cmp_gt_u32 vcc, 36, v1
v_cndmask_b32 v222, v50, v222, vcc
v_add_u32 v222, s24, v222
v_mov_b32 v224, 0
v_mov_b32 v225, 0
v_mov_b32 v226, 0
v_mov_b32 v227, 0
v_mov_b32 v52, 0
s_mov_b32 s59, {SPIN}
k_c0_l:
s_cmp_ge_u32 s27, 32
s_cbranch_scc1 k_c0_d
s_sub_u32 s59, s59, 1
s_cmp_eq_u32 s59, 0
s_cbranch_scc1 k_c0_d
s_sleep 4
global_load_dword v53, v52, s[98:99] sc1
s_waitcnt vmcnt(0)
v_readfirstlane_b32 s27, v53
s_branch k_c0_l
k_c0_d:
""")
hsig_addr(12)
a(f"""
s_mov_b32 s19, 0x20000
s_mov_b32 s23, 0x20000
v_mov_b32 v168, {CNT}
v_mov_b32 v169, 1
""")
vy.wait("W7")
bar(7)
stamp(6)
FINA = [l.split(";")[0].strip() for l in f"""
s_lshr_b32 s13, s3, 1                ; tb
s_and_b32 s58, s3, 1
s_lshl_b32 s58, s58, 2
v_and_b32 v2, 15, v1                 ; t in block
v_lshrrev_b32 v3, 4, v1
v_add_u32 v3, s58, v3                ; dg
s_lshl_b32 s59, s13, 14
v_lshlrev_b32 v5, 1, v3
v_xor_b32 v5, v5, v2
v_lshlrev_b32 v5, 4, v5
v_lshl_add_u32 v5, v2, 8, v5
v_add_u32 v5, s59, v5
v_xor_b32 v6, 16, v5
s_lshl_b32 s13, s13, 4
v_add_u32 v2, s13, v2                ; t in tile
v_lshlrev_b32 v7, 2, v2
v_add_u32 v7, {GL}, v7
s_and_b32 s58, s2, 7
s_lshl_b32 s58, s58, 2
s_add_u32 s58, s58, s8
s_lshl_b32 s58, s58, 6
v_add_u32 v4, s58, v2
v_mul_u32_u24 v4, 896, v4
v_lshl_add_u32 v4, v3, 4, v4
s_lshl_b32 s58, s12, 7
v_add_u32 v4, s58, v4                ; out offset
v_bfe_u32 v8, v1, 2, 2
v_lshl_add_u32 v8, v3, 3, v8
v_mul_u32_u24 v8, {ATPI}, v8
v_and_b32 v9, 3, v1
v_lshl_add_u32 v8, v9, 3, v8
s_lshl_b32 s13, s13, 1
s_add_u32 s13, s13, {CS[0]}
v_add_u32 v8, s13, v8
""".strip().split("\n")]
vg = VM()
ACC2 = 16; AF = [172, 188]; RING = [204, 220, 236, 80, 96, 112, 144]
WS8 = RSL + [WR[2]]
def ldw_l(n):
    p, i = divmod(n, 7)
    o = f"s_add_u32 m0, s14, {WS8[n % 8]}\n" + (f"s_add_u32 s{SW[i]}, s{SW[i]}, 57344" if p else "s_nop 0")
    return [o] + [(f"buffer_load_dwordx4 v{160+k}, s[20:23], s{SW[i]} offen offset:{k*1024} lds", f"w{n}") for k in range(4)]
def ldh_l(n):
    p, i = divmod(n, 7)
    o = [f"s_add_u32 s{SH[i]}, s{SH[i]}, 114688"] if p else []
    return o + [(f"buffer_load_dwordx4 {vr(RING[i]+4*k,4)}, v10, s[16:19], s{SH[i]} offen offset:{k*1024} sc1", f"h{n}") for k in range(4)]
def emit(l):
    for x in l:
        if isinstance(x, tuple): vg.op(*x)
        else: a(x)
def uhalf(st, hs, extra, early=[], lg=0):
    F = FB[hs]; Fn = FB[hs ^ 1]
    mm = []
    for k2 in range(2):
        for fa in range(2):
            for tb in range(2):
                d = vr(acc(2*fa+tb), 16)
                mm.append(f"v_mfma_f32_32x32x16_bf16 {d}, {vr(F+16*k2+4*fa,4)}, {vr(F+16*k2+8+4*tb,4)}, {d}")
    a(f"s_waitcnt lgkmcnt({lg})")
    if hs == 0: fill = reads(1, Fn) + (VADDR(XA[(st+1) % 7], WA[st+1]) if st < 13 else [])
    else:
        if st == 10:
            a(mm.pop(0)); a("s_barrier"); stamp(7)
            if OPT["yprio"]: a(f"s_setprio {OPT['yprio']}")
        fill = reads(0, Fn) if st < 13 else []
    fill = fill + extra
    per = max(3, -(-len(fill) // len(mm)))
    for i, m in enumerate(mm):
        a(m)
        if early: emit([early.pop(0)]);
        if early and not isinstance(early[0], tuple): pass
        emit(fill[:per]); fill = fill[per:]
    emit(early); emit(fill)
def flat(l):
    out = []
    for x in l: out.append(x)
    return out
KW = [f"ds_write_b64 v220, v[204:205] offset:4088", f"ds_write_b64 v220, v[206:207] offset:{4088-512}", f"ds_write_b128 v221, v[208:211] offset:{4080-1024}",
      f"ds_write_b128 v221, v[212:215] offset:{4080-2048}", f"ds_write_b128 v221, v[216:219] offset:{4080-3072}", "ds_write_b128 v222, v[224:227]",
      "s_mov_b64 exec, 1\nds_add_u32 v168, v169\ns_mov_b64 exec, -1"]
def split(l):
    out = []
    for x in l:
        if isinstance(x, tuple): out.append(x)
        else: out += x.split("\n")
    return out
YS = ["s_mov_b64 exec, 1\nds_add_u32 v168, v169 offset:4\ns_mov_b64 exec, -1", "ds_read_b32 v170, v168 offset:4"]
pass_call(1, 3, 3)
uhalf(10, 0, [])
uhalf(10, 1, KW)
uhalf(11, 0, [], lg=7)
uhalf(11, 1, split(ldw_l(0)))
uhalf(12, 0, [])
uhalf(12, 1, split(ldw_l(1)))
uhalf(13, 0, [])
uhalf(13, 1, YS)
stamp(8)
EL = epi_list(0) + epi_list(1) + epi_list(2) + epi_list(3)
run_epi(vg, EL, 8)
a(f"""
s_mov_b32 s59, {SPIN}
k_ys:
s_waitcnt lgkmcnt(0)
v_readfirstlane_b32 s58, v170
s_cmp_eq_u32 s58, 4
s_cbranch_scc1 k_ysd
ds_read_b32 v170, v168 offset:4
s_sub_u32 s59, s59, 1
s_cmp_lg_u32 s59, 0
s_cbranch_scc1 k_ys
k_ysd:
""")
LQ = ldw_l(2) + ldw_l(3) + ldw_l(4) + ldw_l(5) + ["PP"] + ldw_l(6)
while LQ or EL:
    while LQ:
        x = LQ.pop(0)
        if x == "PP": pre_poll("s[28:29]", 4); continue
        emit([x])
        if isinstance(x, tuple): break
    run_epi(vg, EL, OPT["vgap"])
stamp(9)
a("s_setprio 0")
def rda(n):
    F = AF[n & 1]
    out = [f"v_add_u32 v{128+db}, {WS8[n % 8]}, v{164+db}" for db in range(4)]
    return out + [f"ds_read_b64_tr_b16 {vr(F+4*db+2*hh,2)}, v{128+db} offset:{hh*1024}" for db in range(4) for hh in range(2)]
check("k_c2", "s[28:29]", 4, 14 if OPT["one"] == 1 else 56, 15); stamp(10)
PRE = [ldh_l(0), ldh_l(1), ldh_l(2), ldw_l(7), ldh_l(3), ldh_l(4)]
vg.wait("w0")
for x in rda(0): a(x)
for l in PRE[:OPT["ni"]]: emit(l)
vg.wait("st")
def sigy(): a("s_mov_b64 exec, 0x3fff\nglobal_atomic_add v12, v169, s[40:41] offset:8 sc1\ns_mov_b64 exec, -1")
if OPT["one"]:
    stamp(3)
    last_of4("k_s3", 16, 2, sigy); a.label("k_s3"); stamp(5)
else: sigy()
for l in PRE[OPT["ni"]:max(OPT["ni"], 4)]: emit(l)
wi, hi_ = 8, 3 + max(0, OPT["ni"]-4)
SCHS = {
 0: (6, ["h w", "h w", "h w", "h w", "w", "w", "h h h", "h", "h", "h", "h", "", "", ""]),
 1: (6, ["h w", "h w", "h w", "h w", "w", "w", "h h", "h h", "h", "h", "h", "", "", ""]),
 2: (5, ["h w", "h w", "h w", "h w", "w", "h h", "h w", "h", "h", "h", "h", "", "", ""]),
 3: (6, ["h h", "h h", "w w", "w w", "w", "w", "h h h", "h", "h", "h", "h", "", "", ""]),
 4: (5, ["h w", "h w", "h w", "h", "w", "h", "h w", "h w", "h", "h", "h", "h", "", ""]),
 6: (5, ["h w", "h", "h w", "h", "w", "h", "h w", "h", "h w", "h w", "h", "h", "", ""]),
 7: (5, ["h", "h w", "h", "h w", "w", "h", "h w", "h w", "h w", "h", "h", "h", "", ""]),
 8: (4, ["h w", "h w", "h", "h", "h", "h w", "h w", "h w", "h w", "h", "h", "", "", ""]),
 9: (5, ["h w", "h w", "h", "h", "w", "h", "h", "h w", "h w", "h w", "h", "h", "", ""]),
 10: (6, ["h w", "h w", "h", "h w", "w", "w", "h h", "h", "h w", "h", "h", "h", "", ""]),
 5: (4, ["h w", "h w", "h w", "h", "h", "h w", "h w", "h w", "h", "h", "h", "", "", ""]),
}
CK, SCH = SCHS[OPT["sch"]]
for n in range(14):
    F = AF[n & 1]; S = RING[n % 7]
    if n == CK:
        check("k_c3", "s[28:29]", 8, HT, 15); stamp(11)
    vg.wait(f"h{n}", *([f"w{n+1}"] if n < 13 else []), extra=" lgkmcnt(0)")
    if OPT["sw"] == 2: stamp(1+n, True)
    ld = []
    for t in SCH[n].split():
        if t == "h": ld += ldh_l(hi_); assert hi_ <= n + 6 and (hi_ < 7 or n >= CK) and hi_ > n; hi_ += 1
        else: ld += ldw_l(wi); assert wi <= n + 8 and wi > n + 1; wi += 1
    fill = rda(n+1) if n < 13 else []
    if n + 1 == CK: fill.insert(0, "s_load_dword s27, s[28:29], 8 glc")
    ext = []
    if n == 10: ext = ["v_and_b32 v132, 15, v1", "v_lshrrev_b32 v133, 4, v1", "v_xor_b32 v133, v133, v132", "v_lshlrev_b32 v133, 4, v133", "v_lshl_add_u32 v132, v132, 8, v133",
                       "v_add_u32 v132, s14, v132", "v_xor_b32 v133, 64, v132", "v_xor_b32 v134, 128, v132", "v_xor_b32 v135, 192, v132"]
    if n == 11: ext = FINA[:len(FINA)//2]
    if n == 12: ext = FINA[len(FINA)//2:]
    PW = [f"ds_write_b128 v{132+db}, {vr(ACC2+16*db+4*tb,4)} offset:{tb*16384}" for db in range(4) for tb in range(4)]
    j = 0
    nl = len([x for x in ld if isinstance(x, tuple)]); STR = max(1, 16 // nl) if nl else 1
    for db in range(4):
        for tb in range(4):
            d = vr(ACC2+16*db+4*tb, 4)
            a(f"v_mfma_f32_16x16x32_bf16 {d}, {vr(F+4*db,4)}, {vr(S+4*tb,4)}, " + ("0" if n == 0 else d))
            if fill: a(fill.pop(0))
            if ld and (j % STR == 0):
                x = ld.pop(0); emit([x])
                if not isinstance(x, tuple) and ld: emit([ld.pop(0)])
            if ext: a(ext.pop(0))
            if n == 13 and j >= 6: a(PW.pop(0))
            j += 1
    emit(ld)
    for x in ext: a(x)
    if n == 13:
        for x in PW: a(x)
assert wi == 14 and hi_ == 14
stamp(12)
a("s_branch k_fbar")
a.label("k_final"); a.reset()
for x in FINA: a(x)
a.label("k_fbar")
a("s_waitcnt lgkmcnt(0)")
if OPT["fwarm"]: a("s_cbranch_execz k_fw")
stamp(13)
a("s_barrier")
stamp(14)
a.label("k_fw")
for w in range(4):
    a(f"ds_read_b128 {vr(16+8*w,4)}, v5 offset:{w*4096}")
    a(f"ds_read_b128 {vr(20+8*w,4)}, v6 offset:{w*4096}")
a(f"""
ds_read_b64_tr_b16 v[48:49], v8
ds_read_b64_tr_b16 v[50:51], v8 offset:{4*ATPI}
ds_read_b32 v52, v7
s_waitcnt lgkmcnt(7)
""")
for i in range(0, 8, 2): a(f"v_pk_add_f32 {vr(16+i,2)}, {vr(16+i,2)}, {vr(24+i,2)}")
a("s_waitcnt lgkmcnt(3)")
for i in range(0, 8, 2): a(f"v_pk_add_f32 {vr(32+i,2)}, {vr(32+i,2)}, {vr(40+i,2)}")
for i in range(0, 8, 2): a(f"v_pk_add_f32 {vr(16+i,2)}, {vr(16+i,2)}, {vr(32+i,2)}")
a("s_waitcnt lgkmcnt(0)\nv_lshlrev_b32 v54, 16, v52\nv_and_b32 v55, 0xffff0000, v52")
for i in range(4):
    a(f"v_lshlrev_b32 v{24+2*i}, 16, v{48+i}\nv_and_b32 v{25+2*i}, 0xffff0000, v{48+i}")
for i in range(0, 8, 2): a(f"v_pk_mul_f32 {vr(16+i,2)}, {vr(16+i,2)}, v[54:55] op_sel:[0,1] op_sel_hi:[1,1]")
for i in range(0, 8, 2): a(f"v_pk_fma_f32 {vr(16+i,2)}, {vr(24+i,2)}, v[54:55], {vr(16+i,2)} op_sel_hi:[1,0,1]")
for i in range(4): a(f"v_cvt_pk_bf16_f32 v{32+i}, v{16+2*i}, v{17+2*i}")
if OPT["fwarm"]: a("s_cbranch_execz k_fw2")
a("global_store_dwordx4 v4, v[32:35], s[96:97] sc0 sc1")
stamps_out(15)
a.label("k_end")
a("s_endpgm")
if OPT["fwarm"]: a("k_fw2:\ns_mov_b64 exec, -1\ns_branch k_final\nk_fw0:\ns_mov_b64 exec, 0\ns_branch k_part")
emit_pass()
a.label("code_end")

hdr = open("cdna_kernels/%s.s.ref" % NAME).read().split("; Override launch")[0]
out = hdr + f"; @launch grid=(256,1,1) block=(512,1,1) lds={LDS}\n"
out += '.amdgcn_target "amdgcn-amd-amdhsa--gfx950"\n' + a.text()
out += f""".section .rodata,"a"
.p2align 6
.amdhsa_kernel {KN}
  .amdhsa_next_free_vgpr 256
  .amdhsa_next_free_sgpr 102
  .amdhsa_accum_offset 256
  .amdhsa_group_segment_fixed_size 0
  .amdhsa_kernarg_size 136
  .amdhsa_user_sgpr_count 2
  .amdhsa_user_sgpr_kernarg_segment_ptr 1
  .amdhsa_system_sgpr_workgroup_id_x 1
.end_amdhsa_kernel
"""
open(sys.argv[1], "w").write(out)
print("written", sys.argv[1], "lines", len(a.lines), "nops", a.nops, "")
```

```python
import sys, math, struct
from asm import *

NAME = "gated_mix__ssm_conv_s4__swiglu_ffn__prompt"
KN = NAME + "_kernel"
WDP = 0x800000
HP, UT, AT, GG, FL = 0, 0xA00000, 0xE00000, 0x1000000, 0x1010000
UTP = 4224
def fbits(x): return "0x%08x" % struct.unpack("<I", struct.pack("<f", x))[0]
LOG2E = 1.4426950408889634
OPT = dict(ntx="", ntw="", ntp="nt", stamp=0, cprio=0, yprio=1, warm=0, fwarm=0, rpg=2, w1=1, sw=0, wsig=1, xt=1, xwd=0, rot2=1, ht=0, xs1=26, xs2=26, xs3=48, vgap=9, HD=4, CK=5, xprio=2, one=1, ni=2, sch=4, cpf=0, pb=0, xw=1, w2=0, trim=1, wso=0, sa="234")
for a_ in sys.argv[2:]:
    k, v = a_.split("="); OPT[k] = v if k == "sa" else int(v) if v.lstrip("-").isdigit() else v
a = Asm()
SPIN = 40000
HT = 14 if OPT["one"] else 56

def cmuls(lst):
    for d, x, y in lst:
        assert d != x and d != y
        a(f"v_pk_mul_f32 {vr(d,2)}, {vr(x,2)}, {vr(y,2)} op_sel_hi:[1,0]")
    for d, x, y in lst:
        a(f"v_pk_fma_f32 {vr(d,2)}, {vr(x,2)}, {vr(y,2)}, {vr(d,2)} op_sel:[1,1,0] op_sel_hi:[0,1,1] neg_lo:[1,0,0]")
def bar(n):
    k = (n - 1) if n < 8 else (n - 8)
    if OPT["sw"] == 1 and n >= 1: stamp(1+2*k, True)
    a("s_barrier")
    if OPT["sw"] == 1 and n >= 1: stamp(2+2*k, True)
_seen1 = [0]
def stamp(idx, force=False):
    if OPT.get("es") and idx == 1:
        _seen1[0] += 1
        if _seen1[0] in (2, 4): return
    if OPT["sw"] and not force and idx not in (0, 15): return
    if OPT["stamp"]: a(f"{'s_memtime' if OPT['stamp']==2 else 's_memrealtime'} s[{64+2*idx}:{65+2*idx}]")
def stamps_out(idx):
    if not OPT["stamp"]: return
    a("s_waitcnt vmcnt(0)")
    stamp(idx)
    a("s_waitcnt lgkmcnt(0)")
    for i in range(16): a(f"v_writelane_b32 v250, s{64+2*i}, {i}")
    a(f"""s_lshl_b32 s64, s2, 3
s_add_u32 s64, s64, s3
s_lshl_b32 s64, s64, 6
s_add_u32 s64, s64, 0x2000000
v_lshl_add_u32 v251, v1, 2, s64
s_mov_b64 exec, 0xffff
global_store_dword v251, v250, s[40:41]""")
    if OPT.get("dbgout"):
        a(f"""
s_lshl_b32 s65, s2, 3
s_add_u32 s65, s65, s3
s_cmp_eq_u32 s65, {OPT['dbgout']}
s_cbranch_scc0 k_end
v_readlane_b32 s65, v250, 0
v_subrev_u32 v250, s65, v250
v_lshlrev_b32 v251, 2, v1
s_mov_b64 exec, 0xfffe
global_store_dword v251, v250, s[98:99]""")
def stamps_init():
    if OPT["stamp"]:
        for i in range(1,16): a(f"s_mov_b32 s{64+2*i}, 0")
        stamp(0)

class VM:
    def __init__(self): self.q = []
    def op(self, text, tag):
        a(text); self.q.append(tag)
    def n_for(self, *tags):
        idx = max(i for i, t in enumerate(self.q) if t in tags)
        return len(self.q) - 1 - idx
    def wait(self, *tags, extra=""):
        n = self.n_for(*tags); assert n <= 63
        a(f"s_waitcnt vmcnt({n}){extra}")

XA = [98304, 49152, 65536, 81920, 32768, 0, 16384]
WR = [114688, 131072, 147456]
WA = [WR[s % 3] for s in range(10)] + [WR[1], XA[0], WR[2], XA[1]]
CS = [XA[2], WR[0]]
RSL = [XA[3], WR[1], XA[4], XA[5], XA[6], XA[0], XA[1]]
TABO = 12992
CNT = CS[0] + 16064
GL = CS[1] + 16064
ATPI = 144
LDS = 163840

a.raw(f".text\n.globl {KN}\n.p2align 8\n.type {KN},@function\n{KN}:")
a("""
s_cmp_ge_u32 s2, 256
s_cbranch_scc1 k_end
s_add_u32 s2, s2, 224
s_and_b32 s2, s2, 255
""")
stamps_init()
a("""
s_load_dwordx16 s[16:31], s[0:1], 0
s_load_dwordx8 s[32:39], s[0:1], 80
s_load_dwordx2 s[40:41], s[0:1], 128
s_load_dwordx4 s[96:99], s[0:1], 112
s_getpc_b64 s[4:5]
k_pc:
v_lshrrev_b32 v2, 6, v0
v_and_b32 v1, 63, v0
v_readfirstlane_b32 s3, v2
s_lshr_b32 s6, s2, 3                 ; j
s_and_b32 s8, s6, 3                  ; rbl
; code prefetch into L2: line = rbl*56 + wave*7 + min(lane,6)
s_mul_i32 s7, s8, 6144
v_min_u32 v3, 5, v1
v_mad_u32_u24 v3, v2, 6, v3
v_lshlrev_b32 v3, 7, v3
v_add_u32 v3, s7, v3
v_min_u32 v3, code_end-k_pc-4, v3
CPF
s_and_b32 s7, s3, 3
s_lshr_b32 s14, s7, 1
s_lshl_b32 s60, s2, 1
s_add_u32 s60, s60, s14
s_lshl_b32 s13, s60, 9
s_and_b32 s14, s7, 1
s_lshl_b32 s14, s14, 7
s_add_u32 s13, s13, s14
s_and_b32 s14, s3, 4
s_lshl_b32 s14, s14, 6
s_add_u32 s13, s13, s14
v_lshl_add_u32 v8, v1, 1, s13
s_lshl_b32 s14, s60, 1
v_mov_b32 v9, s14
s_cmp_ge_u32 s2, 224
s_cbranch_scc1 k_npl
s_waitcnt lgkmcnt(0)
global_load_ushort v238, v9, s[30:31]
global_load_ushort v239, v8, s[18:19] nt
global_load_ushort v11, v8, s[20:21] nt
global_load_ushort v12, v8, s[22:23] nt
global_load_ushort v216, v8, s[24:25] nt
global_load_ushort v217, v8, s[26:27] nt
global_load_ushort v218, v8, s[28:29] nt
k_npl:
WSO
s_and_b32 s10, s2, 6
s_lshl_b32 s10, s10, 1
s_add_u32 s10, s10, s8               ; rb128
s_and_b32 s9, s2, 1
s_mul_i32 s11, s9, 7
s_lshr_b32 s12, s6, 2                ; fbl (7 = spare WG)
s_add_u32 s11, s11, s12              ; fb128
v_lshlrev_b32 v10, 4, v1
s_lshl_b32 s42, s8, 1
s_add_u32 s42, s42, s12
s_sub_u32 s43, s42, 7
s_cmp_ge_u32 s42, 7
s_cselect_b32 s42, s43, s42          ; rot
; W DMA voffsets v14,v15: row k = 16q+8i+(l>>3); chunk16 = (l&7) ^ (((l>>4)&1)<<1) ^ (i<<2)
v_lshrrev_b32 v20, 3, v1
v_lshrrev_b32 v21, 4, v1
v_and_b32 v22, 7, v1
s_lshl_b32 s13, s7, 4
v_add_u32 v25, s13, v20
v_mul_u32_u24 v25, 3584, v25
s_lshl_b32 s13, s11, 8
v_add_u32 v25, s13, v25
v_and_b32 v26, 1, v21
v_lshlrev_b32 v26, 1, v26
v_xor_b32 v26, v22, v26
v_lshl_add_u32 v240, v26, 4, v25
v_add_u32 v241, 27648, v240
v_xor_b32 v26, 4, v26
v_lshl_add_u32 v242, v26, 4, v25
v_add_u32 v243, 27648, v242
s_lshl_b32 s15, s7, 11               ; W dest offset in slot
s_mov_b32 s50, 1605632
s_mov_b32 s51, 0x20000
s_mov_b32 s54, 1605632
s_mov_b32 s55, 0x20000
s_cmp_eq_u32 s12, 7
s_cbranch_scc1 k_spare
""".replace("WSO", f"s_waitcnt lgkmcnt(0)\ns_add_u32 s40, s40, {OPT['wso']<<20}\ns_addc_u32 s41, s41, 0" if OPT["wso"] else "").replace("CPF", ["global_load_dword v0, v3, s[4:5]", "s_cmp_lt_u32 s2, 224\ns_cbranch_scc1 k_ncp\nglobal_load_dword v0, v3, s[4:5]\nk_ncp:", "s_cmp_lt_u32 s2, 192\ns_cbranch_scc1 k_ncp\nglobal_load_dword v0, v3, s[4:5]\nk_ncp:"][OPT["cpf"]]))
def dmaw(vm, st):
    a(f"s_add_u32 m0, s15, {WA[st]}")
    if st >= 7: a("s_add_u32 s58, s57, 128")
    else: a("s_mov_b32 s58, s57")
    for i in range(2): vm.op(f"buffer_load_dwordx4 v{240+i}, s[48:51], s58 offen offset:{i*1024} {OPT['ntw']} lds", f"W{st}")
    a(f"s_add_u32 m0, s15, {WA[st]+8192}\ns_add_u32 s57, s57, 229376")
    for i in range(2): vm.op(f"buffer_load_dwordx4 v{242+i}, s[52:55], s58 offen offset:{i*1024} {OPT['ntw']} lds", f"W{st}")
    a("s_cmp_eq_u32 s57, 1605632\ns_cselect_b32 s57, 0, s57")
def dmax(vm, st):
    a(f"s_add_u32 m0, s14, {XA[st]}\ns_mov_b32 s58, s56")
    for i in range(4): vm.op(f"buffer_load_dwordx4 v{232+i}, s[44:47], s58 offen offset:{i*1024} {OPT['ntx']} lds", f"X{st}")
    a("s_add_u32 s56, s56, 128\ns_cmp_eq_u32 s56, 896\ns_cselect_b32 s56, 0, s56")

FB = [16, 48]; ACC = 80; TM = 144; KA = 164
def pass_addrs():
    a(f"""
v_and_b32 v6, 31, v1
v_lshrrev_b32 v7, 5, v1
v_bfe_u32 v4, v1, 1, 3
v_xor_b32 v7, v7, v4
v_lshlrev_b32 v7, 4, v7
v_lshl_add_u32 v6, v6, 7, v7
s_lshr_b32 s13, s7, 1
s_lshl_b32 s13, s13, 13
v_add_u32 v2, s13, v6
v_lshlrev_b32 v6, 9, v1
v_and_b32 v6, 0x2000, v6
v_lshlrev_b32 v7, 5, v1
v_and_b32 v7, 0x580, v7
v_and_b32 v4, 3, v1
v_lshlrev_b32 v4, 3, v4
v_add3_u32 v6, v6, v7, v4
v_bfe_u32 v7, v1, 3, 2
s_and_b32 s13, s7, 1
s_lshl_b32 s13, s13, 1
v_xor_b32 v7, s13, v7
v_lshl_add_u32 v3, v7, 5, v6
""")
def h_addr(p):
    a(f"""
s_lshl_b32 s13, s10, 1
s_lshr_b32 s58, s7, 1
s_add_u32 s13, s13, s58
s_mul_i32 s13, s13, 56
s_lshl_b32 s58, s11, 1
s_add_u32 s13, s13, s58
s_and_b32 s58, s7, 1
s_add_u32 s13, s13, s58
s_lshr_b32 s58, s3, 2
s_mul_i32 s58, s58, 28
s_add_u32 s13, s13, s58
s_lshl_b32 s13, s13, 12
v_and_b32 v14, 15, v1
v_lshl_add_u32 v14, v14, 4, s13
v_bfe_u32 v15, v1, 4, 1
v_lshl_add_u32 v14, v15, 10, v14
v_lshrrev_b32 v15, 5, v1
v_lshl_add_u32 v14, v15, 8, v14
s_mov_b32 s62, {fbits(-LOG2E)}
""")
def nib(lst):
    v = 0
    for i, x in enumerate(lst): v |= (x // 16384) << (4*i)
    return "0x%x" % v
VADDR = lambda xs, ws: [f"v_add_u32 v6, {xs}, v2", f"v_add_u32 v4, {ws}, v3", "v_xor_b32 v7, 32, v6", "v_xor_b32 v5, 32, v4", "v_xor_b32 v8, 64, v6", "v_xor_b32 v9, 96, v6"]
SETA = ["s_and_b32 s13, s30, 15", "s_lshl_b32 s13, s13, 14", "s_lshr_b32 s30, s30, 4", "s_and_b32 s58, s31, 15", "s_lshl_b32 s58, s58, 14", "s_lshr_b32 s31, s31, 4"] + VADDR("s13", "s58")
def reads(hs, F):
    out = []
    for k2 in range(2):
        ks = 2*hs + k2
        A_ = lambda fa, hh: f"ds_read_b64_tr_b16 {vr(F+16*k2+4*fa+2*hh,2)}, v{4+fa} offset:{ks*2048+hh*512}"
        B_ = lambda tb: f"ds_read_b128 {vr(F+16*k2+8+4*tb,4)}, v{6+ks} offset:{tb*4096}"
        out += [A_(0,0), A_(0,1), B_(0), B_(1), A_(1,0), A_(1,1)]
    return out
def acc(n): return ACC + 16*n
def pass_resume(iters):
    a(f"s_mov_b32 s59, {iters}\ns_call_b64 s[100:101], k_pl")
    a.reset()
def pass_call(p, nbar, iters):
    a(f"""
s_mov_b32 s30, {nib(XA[1:]+[0])}
s_mov_b32 s31, {nib(WA[7*p+1:7*p+7]+[0])}
s_mov_b32 s43, {nbar}
s_mov_b32 s59, {iters}
s_call_b64 s[100:101], k_pass
""")
    a.reset()
def pass_first_addr(p):
    for x in VADDR(XA[0], WA[7*p]): a(x)
def emit_pass():
    def half(hs, first):
        F = FB[hs]; Fn = FB[hs ^ 1]
        mm = []
        for k2 in range(2):
            for fa in range(2):
                for tb in range(2):
                    d = vr(acc(2*fa+tb), 16)
                    mm.append(f"v_mfma_f32_32x32x16_bf16 {d}, {vr(F+16*k2+4*fa,4)}, {vr(F+16*k2+8+4*tb,4)}, " + ("0" if first and k2 == 0 else d))
        if first: a("s_waitcnt lgkmcnt(6)")
        else: a("s_waitcnt lgkmcnt(0)")
        if hs == 0:
            fill = reads(1, Fn) + SETA + ["s_cmp_eq_u32 s43, 0"]
        else:
            a(mm.pop(0))
            a("s_cbranch_scc1 k_pnb\ns_waitcnt vmcnt(0)\ns_barrier\ns_sub_u32 s43, s43, 1\nk_pnb:")
            fill = reads(0, Fn) + ["s_sub_u32 s59, s59, 1", "s_cmp_lg_u32 s59, 0"]
        for i, m in enumerate(mm):
            if first and i == 4: a("s_waitcnt lgkmcnt(12)")
            a(m)
            for _ in range(3 if (i < 4) else 4):
                if fill: a(fill.pop(0))
        for x in fill: a(x)
    a.raw(".p2align 6")
    a.label("k_pass"); a.reset()
    for r in reads(0, FB[0]): a(r)
    half(0, True)
    a("s_branch k_pm")
    a.raw(".p2align 6")
    a.label("k_pl")
    half(0, False)
    a.label("k_pm")
    half(1, False)
    a("s_cbranch_scc1 k_pl\ns_setpc_b64 s[100:101]")
def epi_list(n):
    Tm = TM + 8*(n & 1); R = acc(n); o = []
    for i in range(8): o.append(f"v_mul_f32 v{Tm+i}, s62, v{R+i}")
    for i in range(8): o += [f"v_exp_f32 v{Tm+i}, v{Tm+i}", f"v_mul_f32 v{R+i}, v{R+i}, v{R+8+i}"]
    for i in range(8): o.append(f"v_add_f32 v{Tm+i}, 1.0, v{Tm+i}")
    for i in range(8):
        o.append(f"v_rcp_f32 v{Tm+i}, v{Tm+i}")
        if i >= 2: o.append(f"v_mul_f32 v{R+i-2}, v{R+i-2}, v{Tm+i-2}")
    for i in (6, 7): o.append(f"v_mul_f32 v{R+i}, v{R+i}, v{Tm+i}")
    for i in range(4): o.append(f"v_cvt_pk_bf16_f32 v{R+8+i}, v{R+2*i}, v{R+2*i+1}")
    o.append(("st", n))
    return o
def hst(vm, n, tag):
    vm.op(f"global_store_dwordx4 v14, {vr(acc(n)+8,4)}, s[40:41] offset:{(n&1)*2048+(n>>1)*512} sc1", tag)
def run_epi(vm, lst, count):
    for _ in range(count):
        if not lst: return
        x = lst.pop(0)
        if isinstance(x, tuple): hst(vm, x[1], "st")
        else: a(x)
def pre_poll(base, off):
    a(f"s_load_dword s27, {base}, {off} glc")
def check(lbl, base, off, target, vt, sleep=1):
    a(f"""
s_mov_b32 s59, 0
{lbl}_l:
s_waitcnt lgkmcnt(0)
s_cmp_eq_u32 s27, {target}
s_cbranch_scc1 {lbl}_d
s_add_u32 s59, s59, 1
s_sleep {sleep}
s_cmp_lt_u32 s59, 256
s_cbranch_scc0 {lbl}_v
s_load_dword s27, {base}, {off} glc
s_branch {lbl}_l
{lbl}_v:
v_mov_b32 v{vt}, 0
global_load_dword v{vt}, v{vt}, {base} offset:{off} sc1
s_waitcnt vmcnt(0)
v_readfirstlane_b32 s27, v{vt}
s_cmp_lt_u32 s59, {SPIN}
s_cbranch_scc1 {lbl}_l
{lbl}_d:
""")
def own_line():
    a(f"""
s_lshl_b32 s13, s2, 7
s_add_u32 s13, s13, {FL}
s_add_u32 s28, s40, s13
s_addc_u32 s29, s41, 0
""")
def hsig_addr(v):
    a(f"""
s_lshl_b32 s13, s10, 1
s_and_b32 s58, s13, 3
s_lshl_b32 s58, s58, 3
s_lshr_b32 s13, s13, 2
s_add_u32 s13, s13, s58
s_lshl_b32 s13, s13, 7
s_add_u32 s13, s13, {FL}
v_lshrrev_b32 v{v}, 1, v1
v_lshlrev_b32 v{v}, 12, v{v}
v_and_b32 v{v+1}, 1, v1
v_lshl_add_u32 v{v}, v{v+1}, 10, v{v}
v_add_u32 v{v}, s13, v{v}
""")
def ssig_h(word):
    a(f"""
s_lshl_b32 s13, s10, 1
s_and_b32 s58, s13, 3
s_lshl_b32 s58, s58, 3
s_lshr_b32 s13, s13, 2
s_add_u32 s13, s13, s58
s_lshl_b32 s13, s13, 7
s_add_u32 s13, s13, {FL}
s_add_u32 s44, s40, s13
s_addc_u32 s45, s41, 0
s_mov_b32 s46, 1
""")
    for cb in range(7):
        for r in range(2): a(f"s_atomic_add s46, s[44:45], {cb*4096+r*1024+word}")
def last_of4(lbl, cntoff, vt, body):
    a(f"""
v_mov_b32 v{vt}, {CNT+cntoff}
v_mov_b32 v{vt+1}, 1
s_mov_b64 exec, 1
ds_add_rtn_u32 v{vt+2}, v{vt}, v{vt+1}
s_waitcnt lgkmcnt(0)
v_readfirstlane_b32 s58, v{vt+2}
s_mov_b64 exec, -1
s_cmp_eq_u32 s58, 3
s_cbranch_scc0 {lbl}
""")
    body()

Z = lambda k: 20 + 2*k
Wp = lambda k: 50 + 2*k
E = lambda k: 68 + 2*k
Y_ = {1: 84, 2: 86, 4: 88, 8: 90}
T = lambda k: 92 + 2*k
CV = lambda k: 108 + (k & 7)
FE, FX0, FX1 = 116, 132, 148
PR = 176
vy = VM()
XV = 232
a(f"""
v_xor_b32 v23, v22, v21
v_xor_b32 v24, 4, v23
s_lshl_b32 s13, s7, 5
v_add_u32 v25, s13, v20
v_mul_u32_u24 v25, 896, v25
v_lshl_add_u32 v{XV}, v23, 4, v25
v_lshl_add_u32 v{XV+1}, v24, 4, v25
v_add_u32 v{XV+1}, 6144, v{XV+1}
v_add_u32 v{XV+2}, 12288, v{XV}
v_add_u32 v{XV+3}, 12288, v{XV+1}
s_lshl_b32 s14, s7, 12
s_lshl_b32 s56, s42, 7
s_mul_i32 s57, s42, 229376
s_mul_i32 s13, s10, 114688
s_mov_b32 s46, 114688
s_mov_b32 s47, 0x20000
s_mul_i32 s63, s3, 4608
""")
a("""
s_mov_b32 s48, s32
s_mov_b32 s49, s33
s_mov_b32 s52, s34
s_mov_b32 s53, s35
s_add_u32 s44, s16, s13
s_addc_u32 s45, s17, 0
""")
if OPT["pb"]: a("s_barrier")
a("""
s_cmp_lt_u32 s3, 4
s_cbranch_scc1 k_x0
""")
dmaw(vy, 0); dmax(vy, 0)
if OPT["w1"] and not OPT["xw"]: dmaw(vy, 1)
a(f"""
s_and_b32 s9, s2, 7
s_lshl_b32 s9, s9, 2
s_add_u32 s9, s9, s8               ; rb64
s_mul_i32 s13, s9, 229376
s_mul_i32 s58, s7, 28672
s_add_u32 s13, s13, s58
s_add_u32 s16, s40, s13
s_addc_u32 s17, s41, 0
s_mov_b32 s18, {114688+28672}
s_mov_b32 s19, 0x20000
s_mov_b32 s20, s36
s_mov_b32 s21, s37
s_mov_b32 s22, 1605632
s_mov_b32 s23, 0x20000
s_mul_i32 s25, s7, 7
s_lshl_b32 s26, s12, 7               ; cb*128
""")
SW = [32+i for i in range(7)]; SH = [4, 5, 6, 39, 0, 1, 60]
for i in range(7):
    a(f"""
s_add_u32 s58, s42, {i}
s_sub_u32 s59, s58, 7
s_min_u32 s58, s58, s59
s_lshl_b32 s{SH[i]}, s58, 12
s_add_u32 s58, s58, s25
s_lshr_b32 s59, s58, 1
s_mul_i32 s59, s59, 114688
s_and_b32 s58, s58, 1
s_mul_i32 s58, s58, 28672
s_add_u32 s58, s58, s59
s_add_u32 s{SW[i]}, s58, s26
""")
a("""
s_branch k_w0
k_x0:
s_load_dwordx2 s[4:5], s[0:1], 64
s_add_u32 s57, s42, XOFF
s_sub_u32 s13, s57, 7
s_cmp_ge_u32 s57, 7
s_cselect_b32 s57, s13, s57
s_mul_i32 s57, s57, 229376           ; chunk offset of stage 9
k_w0:
v_and_b32 v4, 15, v1                 ; c
v_lshlrev_b32 v5, 2, v21             ; 4g
v_lshlrev_b32 v6, 6, v21             ; 64g
v_lshl_add_u32 v247, v4, 4, v5
v_lshl_add_u32 v248, v4, 3, v5
v_lshl_add_u32 v249, v4, 2, v6
v_cmp_gt_u32 vcc, 2, v21
v_cndmask_b32 v248, v249, v248, vcc
v_lshl_add_u32 v249, v4, 1, v6
v_lshl_add_u32 v247, v247, 2, s63
v_lshl_add_u32 v248, v248, 2, s63
v_lshl_add_u32 v249, v249, 2, s63
""".replace("XOFF", "1" if OPT["xw"] else "2"))
pass_addrs()
h_addr(0)
own_line()
if OPT["warm"]:
    a("s_mov_b64 exec, 0")
    for w in range(1, 8): a(f"s_cmp_eq_u32 s3, {w}\ns_cbranch_scc1 k_sec{w}")
    a("s_branch k_kg\nk_wd:")
    for w in range(4):
        a(f"s_cmp_eq_u32 s3, {w}\ns_cbranch_scc0 k_we{w}\ns_call_b64 s[100:101], k_epi{w}\nk_we{w}:")
    a("s_cmp_eq_u32 s3, 3\ns_cbranch_scc0 k_wp\ns_mov_b32 s43, 0\ns_mov_b32 s59, 1\ns_call_b64 s[100:101], k_pass\nk_wp:")
    a("s_mov_b64 exec, -1")
a(f"""
v_mov_b32 v245, v9
v_and_b32 v18, 15, v1
v_mul_u32_u24 v18, 288, v18
v_and_b32 v19, 48, v1
v_add3_u32 v18, v18, v19, s63
s_cmp_lt_u32 s3, 4
s_cbranch_scc1 k_x1
s_waitcnt vmcnt({len(vy.q)})
s_branch k_kg
k_x1:
s_waitcnt vmcnt(0)
k_kg:
""")
secn = [0]
def sec():
    if OPT["warm"]:
        secn[0] += 1
        a("s_cbranch_execz k_wd")
        if secn[0] < 8: a.label(f"k_sec{secn[0]}")
a.reset()
stamp(2)
a(f"""
s_mov_b32 m0, s63
v_lshlrev_b32 v238, 16, v238
v_mul_f32 v16, {fbits(LOG2E)}, v238
v_exp_f32 v16, v16
v_lshlrev_b32 v239, 16, v239
v_lshlrev_b32 v11, 16, v11
v_lshlrev_b32 v12, 16, v12
v_lshlrev_b32 v216, 16, v216
v_lshlrev_b32 v217, 16, v217
v_lshlrev_b32 v218, 16, v218
v_cvt_pk_bf16_f32 v16, v16, v16
v_and_b32 v16, 0xffff0000, v16
v_mul_f32 v8, {fbits(LOG2E)}, v16
v_mul_f32 v9, 0.15915494, v16
v_mul_f32 v17, v239, v8
v_mul_f32 v11, v11, v9
v_mul_f32 v12, v12, v16
v_mul_f32 v216, v216, v16
v_mul_f32 v{E(0)}, v217, v12
v_mul_f32 v{E(0)+1}, v217, v216
v_fma_f32 v{E(0)}, -v218, v216, v{E(0)}
v_fma_f32 v{E(0)+1}, -v218, v12, -v{E(0)+1}
""")
ydn = [0]
def ydma(fn):
    ydn[0] += 1
    a(f"s_cmp_lt_u32 s3, 4\ns_cbranch_scc1 k_yd{ydn[0]}")
    fn()
    a(f"s_mov_b32 m0, s63\nk_yd{ydn[0]}:")
anc = [(Y_[1], 16.0, True), (Z(1), 1.0, False), (Wp(1), 256.0, False)]
for n, (d, p, cj) in enumerate(anc):
    if p != 1.0: a(f"v_mul_f32 v{T(n)}, {fbits(p)}, v17\nv_mul_f32 v{T(n)+1}, {fbits(p)}, v11")
for n, (d, p, cj) in enumerate(anc):
    if p == 1.0: a(f"v_exp_f32 v{T(n)}, v17\nv_fract_f32 v{T(n)+1}, v11")
    else: a(f"v_exp_f32 v{T(n)}, v{T(n)}\nv_fract_f32 v{T(n)+1}, v{T(n)+1}")
for n, (d, p, cj) in enumerate(anc):
    a(f"v_cos_f32 v{d}, v{T(n)+1}\nv_sin_f32 v{d+1}, v{T(n)+1}")
for n, (d, p, cj) in enumerate(anc):
    a(f"v_pk_mul_f32 {vr(d,2)}, {vr(d,2)}, {vr(T(n),2)} op_sel_hi:[1,0]" + (" neg_hi:[1,0]" if cj else ""))
cnt = [0]; NDS = [0]; MK = {}
def puts(lst):
    cs = []
    for row, src in lst:
        c = CV(cnt[0]); cnt[0] += 1; cs.append(c)
        if src is None: a(f"v_mov_b32 v{c}, 0x3f80")
        else: a(f"v_cvt_pk_bf16_f32 v{c}, v{src}, v{src+1}")
    if OPT["w2"]:
        pend = list(zip([r for r, _ in lst], cs))
        while pend:
            r0, c0 = pend.pop(0)
            m = [x for x in pend if x[0]//4 == r0//4]
            if m:
                pend.remove(m[0]); r1, c1 = m[0]
                a(f"ds_write2_b32 v{176+r0//4}, v{c0}, v{c1} offset0:{(r0%4)*72} offset1:{(r1%4)*72}"); NDS[0] += 1
            else:
                a(f"ds_write_addtid_b32 v{c0} offset:{r0*288}"); NDS[0] += 1
        return
    for (row, src), c in zip(lst, cs):
        a(f"ds_write_addtid_b32 v{c} offset:{row*288}"); NDS[0] += 1
def putl(lst):
    for i in range(0, len(lst), 4): puts(lst[i:i+4])
def frags(F):
    for s in range(4): a(f"ds_read_b128 {vr(F+4*s,4)}, v18 offset:{s*64}")
    NDS[0] += 4; MK[F] = NDS[0]
def wfr(F): a(f"s_waitcnt lgkmcnt({min(15, NDS[0]-MK[F])})")
def mf(tau, F):
    for s in range(4):
        a(f"v_mfma_f32_16x16x32_bf16 {vr(KA+4*tau,4)}, {vr(F+4*s,4)}, {vr(FE+4*s,4)}, " + ("0" if s == 0 else vr(KA+4*tau,4)))
Y = Y_
if OPT["trim"]:
    cmuls([(Y[2], Y[1], Y[1]), (E(1), E(0), Y[1]), (Z(2), Z(1), Z(1)), (Wp(2), Wp(1), Wp(1))])
    cmuls([(E(2), E(0), Y[2]), (E(3), E(1), Y[2]), (Z(3), Z(2), Z(1)), (Z(4), Z(2), Z(2))])
    putl([(i, E(i)) for i in range(4)])
    cmuls([(E(4), E(2), Y[2]), (E(5), E(3), Y[2]), (Wp(3), Wp(2), Wp(1)), (Wp(4), Wp(2), Wp(2))])
    cmuls([(E(6), E(4), Y[2]), (E(7), E(5), Y[2])])
    putl([(i, E(i)) for i in range(4, 8)])
    cmuls([(T(0), E(6), Y[2]), (T(1), E(7), Y[2])])
    cmuls([(T(2), T(0), Y[2]), (T(3), T(1), Y[2])])
    putl([(8+i, T(i)) for i in range(4)])
    cmuls([(T(4), T(2), Y[2]), (T(5), T(3), Y[2])])
    cmuls([(T(6), T(4), Y[2]), (T(7), T(5), Y[2])])
    putl([(8+i, T(i)) for i in range(4, 8)])
else:
    cmuls([(Y[2], Y[1], Y[1]), (E(1), E(0), Y[1]), (Z(2), Z(1), Z(1)), (Wp(2), Wp(1), Wp(1))])
    cmuls([(Y[4], Y[2], Y[2]), (E(2), E(0), Y[2]), (E(3), E(1), Y[2]), (Z(3), Z(2), Z(1)), (Z(4), Z(2), Z(2)), (Wp(3), Wp(2), Wp(1)), (Wp(4), Wp(2), Wp(2))])
    sec()
    putl([(i, E(i)) for i in range(4)])
    cmuls([(Y[8], Y[4], Y[4])] + [(E(4+i), E(i), Y[4]) for i in range(4)])
    putl([(i, E(i)) for i in range(4, 8)])
    cmuls([(T(i), E(i), Y[8]) for i in range(4)])
    sec()
    putl([(8+i, T(i)) for i in range(4)])
    cmuls([(T(i), E(i), Y[8]) for i in range(4, 8)])
    putl([(8+i, T(i)) for i in range(4, 8)])
frags(FE)
sec()
putl([(0, None)] + [(i, Z(i)) for i in range(1, 4)])
cmuls([(Z(5), Z(4), Z(1)), (Z(6), Z(4), Z(2)), (Z(7), Z(4), Z(3)), (Z(8), Z(4), Z(4))])
putl([(i, Z(i)) for i in range(4, 8)])
cmuls([(Z(8+i), Z(8), Z(i)) for i in range(1, 4)])
sec()
putl([(i, Z(i)) for i in range(8, 12)])
cmuls([(Z(8+i), Z(8), Z(i)) for i in range(4, 8)])
putl([(i, Z(i)) for i in range(12, 16)])
frags(FX0)
sec()
cmuls([(T(r), Wp(1), Z(2*r)) for r in range(1, 4)])
putl([(0, Wp(1))] + [(r, T(r)) for r in range(1, 4)])
cmuls([(T(r), Wp(1), Z(2*r)) for r in range(4, 8)])
putl([(r, T(r)) for r in range(4, 8)])
sec()
cmuls([(T(j-1), Wp(2), Z(4*j)) for j in (1, 2, 3)])
wfr(FX0)
mf(0, FX0)
putl([(8, Wp(2))] + [(8+j, T(j-1)) for j in (1, 2, 3)])
cmuls([(T(2+j), Wp(3), Z(4*j)) for j in (1, 2, 3)])
putl([(12, Wp(3))] + [(12+j, T(2+j)) for j in (1, 2, 3)])
frags(FX1)
sec()
cmuls([(Wp(5), Wp(4), Wp(1)), (Wp(6), Wp(4), Wp(2)), (Wp(7), Wp(4), Wp(3)), (Wp(8), Wp(4), Wp(4))])
putl([(2*h, Wp(4+h)) for h in range(4)] )
cmuls([(T(h), Wp(4+h), Z(8)) for h in range(4)])
putl([(2*h+1, T(h)) for h in range(4)] + [(8, Wp(8))])
frags(FX0)
wfr(FX1)
mf(1, FX1)
a("s_waitcnt lgkmcnt(0)")
mf(2, FX0)
a(f"""
ds_write_b128 v247, {vr(KA,4)} offset:64
ds_write_b128 v248, {vr(KA+4,4)} offset:{64+1024}
s_lshr_b32 s13, s7, 1
s_mul_i32 s24, s13, {CS[1]-CS[0]}
s_add_u32 s24, s24, {CS[0]}
s_and_b32 s61, s7, 1                 ; parity
ds_write_b64 v249, {vr(KA+8,2)} offset:{64+2048}
ds_write_b64 v249, {vr(KA+10,2)} offset:{64+2048+128}
""")
sec()
a("""
s_cmp_ge_u32 s3, 4
s_cbranch_scc1 k_y
""")
vx = VM()
stamp(3)
if OPT["xw"]: dmaw(vx, 1)
if OPT["xw"] == 2:
    a("s_add_u32 s56, s56, 128\ns_cmp_eq_u32 s56, 896\ns_cselect_b32 s56, 0, s56"); dmax(vx, 1)
a("""
v_mov_b32 v244, 0
s_lshl_b32 s13, s2, 1
s_lshr_b32 s58, s7, 1
s_add_u32 s13, s13, s58
s_mul_i32 s13, s13, 14
v_min_u32 v4, 13, v1
v_add_lshl_u32 v4, v4, s13, 8
s_bitcmp1_b32 s7, 0
s_cselect_b32 s58, s34, s32
s_cselect_b32 s59, s35, s33
global_load_short_d16_hi v244, v245, s[4:5]
""")
if OPT["xt"]: a("global_load_dword v0, v4, s[58:59] offset:128")
a(f"""
s_mov_b32 s14, s24
v_and_b32 v20, 15, v1
v_lshrrev_b32 v21, 4, v1
v_or_b32 v24, 1, v20
v_lshlrev_b32 v25, 3, v21
v_sub_u32 v24, v25, v24
v_lshlrev_b32 v24, 1, v24
v_and_b32 v25, 1, v1
v_mul_u32_u24 v25, 4160, v25
v_sub_u32 v24, v24, v25
v_add_u32 v24, s14, v24
v_add_u32 v216, {4160+2*2031-512}, v24
v_add_u32 v217, {4160+2*2031-512*3}, v24
v_add_u32 v218, {4160+2*2031-512*5}, v24
v_add_u32 v219, {4160+2*2031-512*7}, v24
v_lshlrev_b32 v22, 5, v20
v_lshl_add_u32 v221, v21, 3, v22     ; 32j+8g
v_lshl_add_u32 v22, v21, 4, v22
v_add_u32 v22, s14, v22
v_add_u32 v220, {8832-32}, v22       ; B addr
s_mul_i32 s13, s60, {UTP}
s_add_u32 s13, s13, {UT}
v_add_u32 v222, s13, v10
v_add_u32 v223, s14, v10
s_and_b32 s13, s2, 7
s_lshl_b32 s13, s13, 2
s_add_u32 s13, s13, s8
s_lshl_b32 s13, s13, 8
s_lshl_b32 s58, s7, 6
s_add_u32 s13, s13, s58
s_add_u32 s13, s13, {GG}
v_lshlrev_b32 v225, 2, v20
v_add_u32 v224, s13, v225            ; g global
s_add_u32 s58, s58, {GL}
v_add_u32 v225, s58, v225            ; g LDS
""")
hsig_addr(226)
a("v_mov_b32 v227, 1")
pass_first_addr(0)
a("s_waitcnt lgkmcnt(0)")
stamp(1)
bar(0)
stamp(4)
pass_call(0, 7, 7)
stamp(6)
dmaw(vx, 9)
CA = 48
a("s_waitcnt lgkmcnt(0)")
for r in range(CA, CA+16): a(f"v_mov_b32 v{r}, 0")
EL = epi_list(0) + epi_list(1) + epi_list(2) + epi_list(3)
bar(8)
dmaw(vx, 10)
run_epi(vx, EL, OPT["xs1"])
dmaw(vx, 11)
vx.wait("W9")
bar(9)
dmaw(vx, 12)
run_epi(vx, EL, OPT["xs2"])
dmaw(vx, 13)
vx.wait("W10")
bar(10)
run_epi(vx, EL, OPT["xs3"])
a(f"v_mov_b32 v40, {CNT}\nds_write_b128 v40, {vr(CA,4)}\nds_write_b128 v40, {vr(CA,4)} offset:16")
vx.wait("W13", extra=" lgkmcnt(0)")
stamp(7)
bar(11)
stamp(8)
if OPT["xprio"]: a(f"s_setprio {OPT['xprio']}")
run_epi(vx, EL, len(EL)-30)
pre_poll("s[28:29]", 0)
run_epi(vx, EL, 999)
def uloads():
    for i in range(4): a(f"global_load_dwordx4 {vr(16+4*i,4)}, v222, s[40:41] offset:{i*1024} sc1")
    a("global_load_dword v15, v224, s[40:41] sc1")
a("s_waitcnt lgkmcnt(0)\ns_cmp_eq_u32 s27, 32\ns_cbranch_scc0 k_u0")
uloads()
a("s_waitcnt vmcnt(5)\ns_branch k_u1\nk_u0:\ns_waitcnt vmcnt(0)\nk_u1:")
def sigx():
    if "2" in OPT["sa"]: return ssig_h(4)
    a("s_mov_b64 exec, 0x3fff\nglobal_atomic_add v226, v227, s[40:41] offset:4 sc1\ns_mov_b64 exec, -1")
last_of4("k_s2", 8, 42, sigx); a.label("k_s2")
a("s_cmp_eq_u32 s27, 32\ns_cbranch_scc1 k_u2")
check("k_c1", "s[28:29]", 0, 32, 13)
uloads()
a("k_u2:\nds_read_b32 v41, v40\ns_waitcnt vmcnt(0)")
for i in range(4): a(f"ds_write_b128 v223, {vr(16+4*i,4)} offset:{8832+i*1024}")
a("ds_write_b32 v225, v15")
a(f"""
s_mov_b32 s59, {SPIN}
k_ps:
s_waitcnt lgkmcnt(0)
v_readfirstlane_b32 s58, v41
s_cmp_eq_u32 s58, 4
s_cbranch_scc1 k_psd
ds_read_b32 v41, v40
s_sub_u32 s59, s59, 1
s_cmp_lg_u32 s59, 0
s_cbranch_scc1 k_ps
k_psd:
""")
stamp(9)
a(f"s_setprio {OPT['cprio']}")
a("""
s_cmp_eq_u32 s61, 0
s_cbranch_scc0 k_set1
""")
FBUF = [88, 152]
def creads(F, amax):
    out = []
    for i in range(amax+1):
        o = 0 if (i & 1) else 128
        out.append(f"ds_read_b128 {vr(F+32+4*i,4)}, v220 offset:{512*i}")
        out.append(f"ds_read2_b32 {vr(F+4*i,2)}, v{216+(i>>1)} offset0:{o} offset1:{o+1}")
        out.append(f"ds_read2_b32 {vr(F+4*i+2,2)}, v{216+(i>>1)} offset0:{o+2} offset1:{o+3}")
    out += [f"v_subrev_u32 v{r}, 64, v{r}" for r in (216, 217, 218, 219, 220)]
    return out
for sidx, cbs in enumerate(((0, 3, 4, 7), (1, 2, 5, 6))):
    if sidx == 1:
        a.label("k_set1"); a.reset()
    amax = max(cbs)
    for x in creads(FBUF[0], amax): a(x)
    a("s_mov_b32 s21, 4")
    a.label(f"k_cl{sidx}")
    for half in range(2):
        F = FBUF[half]
        a("s_waitcnt lgkmcnt(0)")
        lists = [[(n, aa, cb-aa) for aa in range(cb+1)] for n, cb in enumerate(cbs)]
        order = []
        while any(lists):
            for L in sorted(lists, key=lambda L: -len(L)):
                if L: order.append(L.pop(0))
        fill = creads(FBUF[half ^ 1], amax)
        for k, (n, aa, bb) in enumerate(order):
            d = vr(CA+4*n, 4)
            a(f"v_mfma_f32_16x16x32_bf16 {d}, {vr(F+4*aa,4)}, {vr(F+32+4*bb,4)}, {d}")
            for _ in range(2):
                if fill: a(fill.pop(0))
        for x in fill: a(x)
    a(f"""
s_sub_u32 s21, s21, 1
s_cmp_lg_u32 s21, 0
s_cbranch_scc1 k_cl{sidx}
v_add_u32 v26, s14, v221
""")
    stamp(10)
    for n, cb in enumerate(cbs): a(f"ds_read_b64 {vr(32+2*n,2)}, v26 offset:{8832+512*cb}")
    a(f"""
s_mul_i32 s15, s60, {UTP}
s_add_u32 s15, s15, {AT}
v_add_u32 v27, s15, v221
s_waitcnt lgkmcnt(0)
""")
    for n, cb in enumerate(cbs):
        R = CA+4*n
        a(f"""
v_lshlrev_b32 v40, 16, v{32+2*n}
v_and_b32 v41, 0xffff0000, v{32+2*n}
v_lshlrev_b32 v42, 16, v{33+2*n}
v_and_b32 v43, 0xffff0000, v{33+2*n}
v_fmac_f32 v{R}, v40, v244
v_fmac_f32 v{R+1}, v41, v244
v_fmac_f32 v{R+2}, v42, v244
v_fmac_f32 v{R+3}, v43, v244
v_cvt_pk_bf16_f32 v{R}, v{R}, v{R+1}
v_cvt_pk_bf16_f32 v{R+1}, v{R+2}, v{R+3}
global_store_dwordx2 v27, {vr(R,2)}, s[40:41] offset:{512*cb} sc1
""")
    if sidx == 0: a("s_branch k_pub")
a.label("k_pub"); a.reset()
a(f"""
s_setprio 0
s_lshr_b32 s15, s2, 5
s_lshl_b32 s15, s15, 12
s_add_u32 s15, s15, {FL}
v_lshl_add_u32 v26, v1, 7, s15
s_waitcnt vmcnt(0)
""")
stamp(11)
def sig4():
    if "4" in OPT["sa"]:
        a("s_add_u32 s44, s40, s15\ns_addc_u32 s45, s41, 0\ns_mov_b32 s46, 1")
        for l in range(32): a(f"s_atomic_add s46, s[44:45], {l*128+12}")
    else: a("s_mov_b32 exec_hi, 0\nglobal_atomic_add v26, v29, s[40:41] offset:12 sc1\ns_mov_b64 exec, -1")
    a(f"""
v_lshrrev_b32 v14, 3, v1
v_and_b32 v15, 7, v1
v_lshlrev_b32 v15, 4, v15
v_mul_u32_u24 v16, {UTP}, v14
v_mul_u32_u24 v17, {ATPI}, v14
s_mul_i32 s15, s12, {64*UTP}
s_and_b32 s13, s2, 7
s_lshl_b32 s13, s13, 2
s_add_u32 s13, s13, s8
s_lshl_b32 s13, s13, 7
s_add_u32 s15, s15, s13
s_add_u32 s15, s15, {AT}
v_add3_u32 v16, v16, v15, s15
v_add_u32 v17, v17, v15
v_add_u32 v17, {CS[0]}, v17
s_mov_b32 s27, 0
""")
    check("k_c4", "s[28:29]", 12, 32, 13, sleep=2)
    stamp(12)
    for i in range(8):
        a(f"global_load_dwordx4 {vr(32+4*i,4)}, v16, s[40:41] sc1")
        if i < 7: a(f"v_add_u32 v16, {8*UTP}, v16")
    for i in range(8):
        a(f"s_waitcnt vmcnt({7-i})")
        a(f"ds_write_b128 v17, {vr(32+4*i,4)} offset:{8*i*ATPI}")
last_of4("k_fw0" if OPT["fwarm"] else "k_final", 12, 28, sig4)
a("s_branch k_final")

a.label("k_spare"); a.reset()
a(f"""
s_sub_u32 s6, s2, 224                ; r
s_lshl_b32 s13, s6, 3
s_add_u32 s13, s13, s3               ; u 0..255
s_mov_b32 s59, s13
s_mul_i32 s60, s13, 7168             ; x rows 8u..8u+7
s_mul_i32 s61, s3, {8*912}
v_min_u32 v5, 48, v1
s_lshr_b32 s14, s13, 1
s_mul_i32 s14, s14, 49
v_add_lshl_u32 v6, v5, s14, 8
s_mul_i32 s14, s13, 49
v_add_lshl_u32 v5, v5, s14, 7
v_mov_b64 v[24:25], 0
v_mov_b64 v[26:27], 0
s_mul_i32 s14, s6, 896
s_add_u32 s14, s14, {FL}
v_min_u32 v13, 880, v10
v_add_u32 v13, s14, v13
v_mov_b32 v7, 1
s_lshl_b32 s13, s8, 3
s_add_u32 s13, s13, s3
s_lshr_b32 s14, s13, 1
s_mul_i32 s14, s14, 28
v_add_u32 v2, s14, v20
v_min_u32 v3, 6, v22
v_lshlrev_b32 v3, 8, v3
s_mul_i32 s14, s9, 1792
s_add_u32 s14, s14, 128
v_add_u32 v3, s14, v3
s_and_b32 s13, s13, 1
s_cmp_eq_u32 s13, 0
s_waitcnt lgkmcnt(0)
s_cselect_b32 s44, s32, s34
s_cselect_b32 s45, s33, s35
s_cmp_eq_u32 s3, 0
s_cbranch_scc0 k_r0
global_store_dwordx4 v13, v[24:27], s[40:41] sc1
s_waitcnt vmcnt(0)
s_mov_b64 exec, 1
global_atomic_add v24, v7, s[98:99] sc1
s_mov_b64 exec, -1
k_r0:
s_mov_b32 s48, s16
s_mov_b32 s49, s17
s_mov_b32 s50, 1835008
s_mov_b32 exec_hi, 0x00ffffff
""")
P = 912
for r in range(8):
    a(f"s_add_u32 m0, s61, {r*P}\ns_add_u32 s58, s60, {r*896}\nbuffer_load_dwordx4 v10, s[48:51], s58 offen lds")
a("s_mov_b32 exec_hi, -1\nv_lshlrev_b32 v30, 4, v22")
for i in range(7): a(f"global_load_dwordx4 {vr(64+4*i,4)}, v30, s[38:39] offset:{i*128}")
ntouch = 0
a(f"""
v_mul_u32_u24 v31, {P}, v20
v_add3_u32 v31, v31, v30, s61
v_and_b32 v48, 3, v1
v_lshrrev_b32 v49, 5, v1
v_lshl_add_u32 v48, v49, 2, v48
v_bfe_u32 v49, v1, 2, 2
v_lshl_add_u32 v48, v48, 3, v49
v_mul_u32_u24 v48, {P}, v48
v_bfe_u32 v49, v1, 4, 1
v_lshl_add_u32 v48, v49, 3, v48
s_mul_i32 s13, s3, 112
v_add_u32 v48, s13, v48
v_and_b32 v49, 4, v1
v_lshlrev_b32 v49, 3, v49
v_and_b32 v50, 32, v1
v_lshrrev_b32 v50, 1, v50
v_and_b32 v51, 3, v1
v_lshlrev_b32 v51, 2, v51
v_add3_u32 v49, v49, v50, v51
v_bfe_u32 v50, v1, 3, 2
v_add_lshl_u32 v49, v49, v50, 2
; store: d = 56w + 8X + (l>>3) ; t0 = 64r
s_mul_i32 s13, s3, 56
v_add_u32 v50, s13, v20
v_mul_u32_u24 v50, {UTP}, v50
s_lshl_b32 s13, s6, 7
s_add_u32 s13, s13, {UT}
v_add3_u32 v50, v50, v30, s13
s_waitcnt vmcnt({ntouch})
""")
for i in range(7): a(f"ds_read_b128 {vr(96+4*i,4)}, v31 offset:{i*128}")
a("s_barrier")
stamp(1)
a("v_mov_b32 v8, v5")
for X in range(7):
    a(f"ds_read_b64_tr_b16 {vr(128+4*X,2)}, v48 offset:{X*16}\nds_read_b64_tr_b16 {vr(130+4*X,2)}, v48 offset:{X*16+4*P}")
a("v_mov_b64 v[60:61], 0\ns_waitcnt lgkmcnt(14)")
for i in range(28): a(f"v_dot2c_f32_bf16 v{60+(i&1)}, v{96+i}, v{64+i}")
a("s_waitcnt lgkmcnt(0)")
for X in range(7):
    for q in range(4): a(f"ds_bpermute_b32 v{160+4*X+q}, v49, v{128+4*X+q}")
    if X >= 2:
        a(f"s_waitcnt lgkmcnt(8)\nglobal_store_dwordx4 v50, {vr(160+4*(X-2),4)}, s[40:41] sc1\nv_add_u32 v50, {8*UTP}, v50")
for X in (5, 6):
    a(f"s_waitcnt lgkmcnt({4*(6-X)})\nglobal_store_dwordx4 v50, {vr(160+4*X,4)}, s[40:41] sc1\nv_add_u32 v50, {8*UTP}, v50")
a(f"""
v_add_f32 v60, v60, v61
v_add_f32_dpp v60, v60, v60 quad_perm:[1,0,3,2] row_mask:0xf bank_mask:0xf
v_add_f32_dpp v60, v60, v60 quad_perm:[2,3,0,1] row_mask:0xf bank_mask:0xf
v_add_f32_dpp v60, v60, v60 row_half_mirror row_mask:0xf bank_mask:0xf
v_cvt_pk_bf16_f32 v60, v60, v60
v_and_b32 v60, 0xffff0000, v60
v_mul_f32 v60, {fbits(-LOG2E)}, v60
v_exp_f32 v60, v60
v_add_f32 v60, 1.0, v60
v_rcp_f32 v60, v60
v_cvt_pk_bf16_f32 v60, v60, v60
v_and_b32 v60, 0xffff0000, v60
v_sub_f32 v61, 1.0, v60
v_cvt_pk_bf16_f32 v60, v60, v61
s_lshl_b32 s13, s59, 5
s_add_u32 s13, s13, {GG}
v_lshl_add_u32 v54, v20, 2, s13
global_store_dword v54, v60, s[40:41] sc1
v_min_u32 v5, 55, v1
s_mul_i32 s13, s7, 56
v_add_lshl_u32 v5, v5, s13, 7
v_add_u32 v5, {FL}, v5
global_load_dword v6, v24, s[98:99] sc1
s_waitcnt vmcnt(0)
s_barrier
""")
stamp(2)
a(f"""
s_cmp_lt_u32 s3, 4
s_cbranch_scc0 k_r2
s_mov_b32 s59, {SPIN}
k_r1:
v_readfirstlane_b32 s58, v6
s_cmp_ge_u32 s58, 32
s_cbranch_scc1 k_r1d
s_sub_u32 s59, s59, 1
s_cmp_eq_u32 s59, 0
s_cbranch_scc1 k_r1d
global_load_dword v6, v24, s[98:99] sc1
s_waitcnt vmcnt(0)
s_branch k_r1
k_r1d:
s_mov_b32 exec_hi, 0x00ffffff
global_atomic_add v5, v7, s[40:41] sc1
s_mov_b32 exec_hi, -1
k_r2:
global_load_dword v0, v8, s[36:37]
""")
stamps_out(15)
a("s_endpgm")

a.label("k_y"); a.reset()
stamp(1)
vy.wait("X0", extra=" lgkmcnt(0)")
stamp(3)
bar(0)
stamp(4)
if OPT["xw"]: a("s_add_u32 s57, s57, 229376\ns_cmp_eq_u32 s57, 1605632\ns_cselect_b32 s57, 0, s57")
elif not OPT["w1"]: dmaw(vy, 1)
if OPT["xw"] == 2: a("s_add_u32 s56, s56, 128\ns_cmp_eq_u32 s56, 896\ns_cselect_b32 s56, 0, s56")
else: dmax(vy, 1)
dmaw(vy, 2); dmax(vy, 2)
a("""
s_and_b32 s13, s7, 2
s_mul_i32 s13, s13, 4608
v_add_u32 v16, s13, v10
v_lshl_add_u32 v17, v1, 3, s13
v_lshl_add_u32 v18, v1, 2, s13
""")
G = lambda w: 32 + 16*w
def gather(w):
    o = (0, 4608, 18432, 23040)[w] + 64; R = G(w)
    a(f"""
ds_read_b128 {vr(R,4)}, v16 offset:{o}
ds_read_b64 {vr(R+4,2)}, v17 offset:{o+1024}
ds_read_b64 {vr(R+6,2)}, v17 offset:{o+1536}
ds_read_b32 v{R+8}, v16 offset:{o-4}
ds_read_b32 v{R+9}, v17 offset:{o+1032}
ds_read_b32 v{R+10}, v17 offset:{o+1020}
ds_read_b32 v{R+11}, v17 offset:{o+1544}
ds_read_b32 v{R+12}, v18 offset:{o+2048}
ds_read_b32 v{R+13}, v18 offset:{o+2052}
ds_read_b32 v{R+14}, v18 offset:{o+2304}
ds_read_b32 v{R+15}, v18 offset:{o+2308}
""")
gather(3); gather(0)
if OPT["xw"] != 2: vy.wait("X1")
bar(1)
dmaw(vy, 3)
gather(1)
dmax(vy, 3)
vy.wait("X2", extra=" lgkmcnt(0)")
bar(2)
dmaw(vy, 4)
gather(2)
dmax(vy, 4)
vy.wait("X3", extra=" lgkmcnt(0)")
bar(3)
dmaw(vy, 5)
for i in range(16): a(f"v_add_f32 v{G(0)+i}, v{G(0)+i}, v{G(1)+i}\nv_add_f32 v{G(2)+i}, v{G(2)+i}, v{G(3)+i}")
dmax(vy, 5)
vy.wait("X4")
bar(4)
stamp(5)
dmaw(vy, 6)
for i in range(16): a(f"v_add_f32 v{G(0)+i}, v{G(0)+i}, v{G(2)+i}")
k0,k1,k2,k3,a1,b1,a2,b2,km,c1,pp,c2,a3,b3,a4,b4 = range(32, 48)
EW = 204
def cv(i, lo, hi): a(f"v_cvt_pk_bf16_f32 v{EW+i}, v{lo}, v{hi}")
a(f"""
v_and_b32 v19, 1, v1
v_cmp_eq_u32 vcc, 0, v19
v_cndmask_b32 v48, v{b3}, v{a3}, vcc
v_cndmask_b32 v49, v{b4}, v{a4}, vcc
v_cmp_ne_u32 vcc, 0, v1
v_cndmask_b32 v{km}, 0, v{km}, vcc
v_cndmask_b32 v{pp}, v{pp}, v{a1}, vcc
""")
dmax(vy, 6)
a("s_load_dword s27, s[98:99], 0")
vy.wait("X5")
bar(5)
dmaw(vy, 7)
cv(5, b2, b2); cv(7, a2, a2); cv(8, b3, b3); cv(10, a3, a3); cv(11, a3, a3); cv(12, b4, b4); cv(14, a4, a4); cv(15, a4, a4)
a("s_cmp_eq_u32 s61, 0\ns_cbranch_scc0 k_eo")
cv(0, k3, k2); cv(1, k1, k0); cv(2, c1, b1); cv(3, a1, a1); cv(4, c2, c2); cv(6, b2, a2); cv(9, b3, 48); cv(13, b4, 49)
a("s_branch k_ew\nk_eo:")
cv(0, k2, k1); cv(1, k0, km); cv(2, b1, a1); cv(3, a1, pp); cv(4, c2, b2); cv(6, a2, a2); cv(9, 48, a3); cv(13, 49, a4)
a("k_ew:")
pass_first_addr(1)
a(f"""
v_lshrrev_b32 v20, 3, v1
v_and_b32 v22, 7, v1
v_mul_u32_u24 v160, 896, v20
v_and_b32 v161, 6, v20
v_xor_b32 v161, v161, v22
v_lshl_add_u32 v160, v161, 4, v160
v_add_u32 v161, 6144, v160
v_add_u32 v162, 12288, v160
v_add_u32 v163, 18432, v160
v_bfe_u32 v164, v1, 2, 3
v_lshlrev_b32 v164, 7, v164
v_lshrrev_b32 v165, 5, v1
v_lshl_add_u32 v164, v165, 11, v164
v_bfe_u32 v165, v1, 3, 2
v_lshl_add_u32 v164, v165, 5, v164
v_and_b32 v165, 3, v1
v_lshl_add_u32 v164, v165, 3, v164
v_add_u32 v164, s14, v164
v_xor_b32 v165, 32, v164
v_xor_b32 v166, 64, v164
v_xor_b32 v167, 96, v164
""")
if not OPT["rot2"]: a("s_mov_b32 s42, 0")
vy.wait("X6", extra=" lgkmcnt(0)")
bar(6)
dmaw(vy, 8)
a(f"""
s_mul_i32 s13, s61, 4160
s_add_u32 s13, s13, s24
v_lshlrev_b32 v220, 3, v1
v_sub_u32 v220, s13, v220
v_sub_u32 v221, s13, v10
v_min_u32 v48, 39, v1
v_lshlrev_b32 v48, 4, v48
v_add_u32 v222, 8256, v48
v_add_u32 v50, {4096-36*16}, v48
v_cmp_gt_u32 vcc, 36, v1
v_cndmask_b32 v222, v50, v222, vcc
v_add_u32 v222, s24, v222
v_mov_b32 v224, 0
v_mov_b32 v225, 0
v_mov_b32 v226, 0
v_mov_b32 v227, 0
v_mov_b32 v52, 0
s_mov_b32 s59, {SPIN}
k_c0_l:
s_cmp_ge_u32 s27, 32
s_cbranch_scc1 k_c0_d
s_sub_u32 s59, s59, 1
s_cmp_eq_u32 s59, 0
s_cbranch_scc1 k_c0_d
s_sleep 4
global_load_dword v53, v52, s[98:99] sc1
s_waitcnt vmcnt(0)
v_readfirstlane_b32 s27, v53
s_branch k_c0_l
k_c0_d:
""")
hsig_addr(12)
a(f"""
s_mov_b32 s19, 0x20000
s_mov_b32 s23, 0x20000
v_mov_b32 v168, {CNT}
v_mov_b32 v169, 1
""")
vy.wait("W7")
bar(7)
stamp(6)
FINA = [l.split(";")[0].strip() for l in f"""
s_lshr_b32 s13, s3, 1                ; tb
s_and_b32 s58, s3, 1
s_lshl_b32 s58, s58, 2
v_and_b32 v2, 15, v1                 ; t in block
v_lshrrev_b32 v3, 4, v1
v_add_u32 v3, s58, v3                ; dg
s_lshl_b32 s59, s13, 14
v_lshlrev_b32 v5, 1, v3
v_xor_b32 v5, v5, v2
v_lshlrev_b32 v5, 4, v5
v_lshl_add_u32 v5, v2, 8, v5
v_add_u32 v5, s59, v5
v_xor_b32 v6, 16, v5
s_lshl_b32 s13, s13, 4
v_add_u32 v2, s13, v2                ; t in tile
v_lshlrev_b32 v7, 2, v2
v_add_u32 v7, {GL}, v7
s_and_b32 s58, s2, 7
s_lshl_b32 s58, s58, 2
s_add_u32 s58, s58, s8
s_lshl_b32 s58, s58, 6
v_add_u32 v4, s58, v2
v_mul_u32_u24 v4, 896, v4
v_lshl_add_u32 v4, v3, 4, v4
s_lshl_b32 s58, s12, 7
v_add_u32 v4, s58, v4                ; out offset
v_bfe_u32 v8, v1, 2, 2
v_lshl_add_u32 v8, v3, 3, v8
v_mul_u32_u24 v8, {ATPI}, v8
v_and_b32 v9, 3, v1
v_lshl_add_u32 v8, v9, 3, v8
s_lshl_b32 s13, s13, 1
s_add_u32 s13, s13, {CS[0]}
v_add_u32 v8, s13, v8
""".strip().split("\n")]
vg = VM()
ACC2 = 16; AF = [172, 188]; RING = [204, 220, 236, 80, 96, 112, 144]
WS8 = RSL + [WR[2]]
def ldw_l(n):
    p, i = divmod(n, 7)
    o = f"s_add_u32 m0, s14, {WS8[n % 8]}\n" + (f"s_add_u32 s{SW[i]}, s{SW[i]}, 57344" if p else "s_nop 0")
    return [o] + [(f"buffer_load_dwordx4 v{160+k}, s[20:23], s{SW[i]} offen offset:{k*1024} lds", f"w{n}") for k in range(4)]
def ldh_l(n):
    p, i = divmod(n, 7)
    o = [f"s_add_u32 s{SH[i]}, s{SH[i]}, 114688"] if p else []
    return o + [(f"buffer_load_dwordx4 {vr(RING[i]+4*k,4)}, v10, s[16:19], s{SH[i]} offen offset:{k*1024} sc1", f"h{n}") for k in range(4)]
def emit(l):
    for x in l:
        if isinstance(x, tuple): vg.op(*x)
        else: a(x)
def uhalf(st, hs, extra, early=[], lg=0):
    F = FB[hs]; Fn = FB[hs ^ 1]
    mm = []
    for k2 in range(2):
        for fa in range(2):
            for tb in range(2):
                d = vr(acc(2*fa+tb), 16)
                mm.append(f"v_mfma_f32_32x32x16_bf16 {d}, {vr(F+16*k2+4*fa,4)}, {vr(F+16*k2+8+4*tb,4)}, {d}")
    a(f"s_waitcnt lgkmcnt({lg})")
    if hs == 0: fill = reads(1, Fn) + (VADDR(XA[(st+1) % 7], WA[st+1]) if st < 13 else [])
    else:
        if st == 10:
            a(mm.pop(0)); a("s_barrier"); stamp(7)
            if OPT["yprio"]: a(f"s_setprio {OPT['yprio']}")
        fill = reads(0, Fn) if st < 13 else []
    fill = fill + extra
    per = max(3, -(-len(fill) // len(mm)))
    for i, m in enumerate(mm):
        a(m)
        if early: emit([early.pop(0)]);
        if early and not isinstance(early[0], tuple): pass
        emit(fill[:per]); fill = fill[per:]
    emit(early); emit(fill)
def flat(l):
    out = []
    for x in l: out.append(x)
    return out
KW = [f"ds_write_b64 v220, v[204:205] offset:4088", f"ds_write_b64 v220, v[206:207] offset:{4088-512}", f"ds_write_b128 v221, v[208:211] offset:{4080-1024}",
      f"ds_write_b128 v221, v[212:215] offset:{4080-2048}", f"ds_write_b128 v221, v[216:219] offset:{4080-3072}", "ds_write_b128 v222, v[224:227]",
      "s_mov_b64 exec, 1\nds_add_u32 v168, v169\ns_mov_b64 exec, -1"]
def split(l):
    out = []
    for x in l:
        if isinstance(x, tuple): out.append(x)
        else: out += x.split("\n")
    return out
YS = ["s_mov_b64 exec, 1\nds_add_u32 v168, v169 offset:4\ns_mov_b64 exec, -1", "ds_read_b32 v170, v168 offset:4"]
pass_call(1, 3, 3)
uhalf(10, 0, [])
uhalf(10, 1, KW)
uhalf(11, 0, [], lg=7)
uhalf(11, 1, split(ldw_l(0)))
uhalf(12, 0, [])
uhalf(12, 1, split(ldw_l(1)))
uhalf(13, 0, [])
uhalf(13, 1, YS)
stamp(8)
EL = epi_list(0) + epi_list(1) + epi_list(2) + epi_list(3)
run_epi(vg, EL, 8)
a(f"""
s_mov_b32 s59, {SPIN}
k_ys:
s_waitcnt lgkmcnt(0)
v_readfirstlane_b32 s58, v170
s_cmp_eq_u32 s58, 4
s_cbranch_scc1 k_ysd
ds_read_b32 v170, v168 offset:4
s_sub_u32 s59, s59, 1
s_cmp_lg_u32 s59, 0
s_cbranch_scc1 k_ys
k_ysd:
""")
LQ = ldw_l(2) + ldw_l(3) + ldw_l(4) + ldw_l(5) + ["PP"] + ldw_l(6)
while LQ or EL:
    while LQ:
        x = LQ.pop(0)
        if x == "PP": pre_poll("s[28:29]", 4); continue
        emit([x])
        if isinstance(x, tuple): break
    run_epi(vg, EL, OPT["vgap"])
stamp(9)
a("s_setprio 0")
def rda(n):
    F = AF[n & 1]
    out = [f"v_add_u32 v{128+db}, {WS8[n % 8]}, v{164+db}" for db in range(4)]
    return out + [f"ds_read_b64_tr_b16 {vr(F+4*db+2*hh,2)}, v{128+db} offset:{hh*1024}" for db in range(4) for hh in range(2)]
check("k_c2", "s[28:29]", 4, 14 if OPT["one"] == 1 else 56, 15); stamp(10)
PRE = [ldh_l(0), ldh_l(1), ldh_l(2), ldw_l(7), ldh_l(3), ldh_l(4)]
vg.wait("w0")
for x in rda(0): a(x)
for l in PRE[:OPT["ni"]]: emit(l)
vg.wait("st")
def sigy():
    if "3" in OPT["sa"]: return ssig_h(8)
    a("s_mov_b64 exec, 0x3fff\nglobal_atomic_add v12, v169, s[40:41] offset:8 sc1\ns_mov_b64 exec, -1")
if OPT["one"]:
    stamp(3)
    last_of4("k_s3", 16, 2, sigy); a.label("k_s3"); stamp(5)
else: sigy()
for l in PRE[OPT["ni"]:max(OPT["ni"], 4)]: emit(l)
wi, hi_ = 8, 3 + max(0, OPT["ni"]-4)
SCHS = {
 0: (6, ["h w", "h w", "h w", "h w", "w", "w", "h h h", "h", "h", "h", "h", "", "", ""]),
 1: (6, ["h w", "h w", "h w", "h w", "w", "w", "h h", "h h", "h", "h", "h", "", "", ""]),
 2: (5, ["h w", "h w", "h w", "h w", "w", "h h", "h w", "h", "h", "h", "h", "", "", ""]),
 3: (6, ["h h", "h h", "w w", "w w", "w", "w", "h h h", "h", "h", "h", "h", "", "", ""]),
 4: (5, ["h w", "h w", "h w", "h", "w", "h", "h w", "h w", "h", "h", "h", "h", "", ""]),
 6: (5, ["h w", "h", "h w", "h", "w", "h", "h w", "h", "h w", "h w", "h", "h", "", ""]),
 7: (5, ["h", "h w", "h", "h w", "w", "h", "h w", "h w", "h w", "h", "h", "h", "", ""]),
 8: (4, ["h w", "h w", "h", "h", "h", "h w", "h w", "h w", "h w", "h", "h", "", "", ""]),
 9: (5, ["h w", "h w", "h", "h", "w", "h", "h", "h w", "h w", "h w", "h", "h", "", ""]),
 10: (6, ["h w", "h w", "h", "h w", "w", "w", "h h", "h", "h w", "h", "h", "h", "", ""]),
 5: (4, ["h w", "h w", "h w", "h", "h", "h w", "h w", "h w", "h", "h", "h", "", "", ""]),
}
CK, SCH = SCHS[OPT["sch"]]
for n in range(14):
    F = AF[n & 1]; S = RING[n % 7]
    if n == CK:
        check("k_c3", "s[28:29]", 8, HT, 15); stamp(11)
    vg.wait(f"h{n}", *([f"w{n+1}"] if n < 13 else []), extra=" lgkmcnt(0)")
    if OPT["sw"] == 2: stamp(1+n, True)
    ld = []
    for t in SCH[n].split():
        if t == "h": ld += ldh_l(hi_); assert hi_ <= n + 6 and (hi_ < 7 or n >= CK) and hi_ > n; hi_ += 1
        else: ld += ldw_l(wi); assert wi <= n + 8 and wi > n + 1; wi += 1
    fill = rda(n+1) if n < 13 else []
    if n + 1 == CK: fill.insert(0, "s_load_dword s27, s[28:29], 8 glc")
    ext = []
    if n == 10: ext = ["v_and_b32 v132, 15, v1", "v_lshrrev_b32 v133, 4, v1", "v_xor_b32 v133, v133, v132", "v_lshlrev_b32 v133, 4, v133", "v_lshl_add_u32 v132, v132, 8, v133",
                       "v_add_u32 v132, s14, v132", "v_xor_b32 v133, 64, v132", "v_xor_b32 v134, 128, v132", "v_xor_b32 v135, 192, v132"]
    if n == 11: ext = FINA[:len(FINA)//2]
    if n == 12: ext = FINA[len(FINA)//2:]
    PW = [f"ds_write_b128 v{132+db}, {vr(ACC2+16*db+4*tb,4)} offset:{tb*16384}" for db in range(4) for tb in range(4)]
    j = 0
    nl = len([x for x in ld if isinstance(x, tuple)]); STR = max(1, 16 // nl) if nl else 1
    for db in range(4):
        for tb in range(4):
            d = vr(ACC2+16*db+4*tb, 4)
            a(f"v_mfma_f32_16x16x32_bf16 {d}, {vr(F+4*db,4)}, {vr(S+4*tb,4)}, " + ("0" if n == 0 else d))
            if fill: a(fill.pop(0))
            if ld and (j % STR == 0):
                x = ld.pop(0); emit([x])
                if not isinstance(x, tuple) and ld: emit([ld.pop(0)])
            if ext: a(ext.pop(0))
            if n == 13 and j >= 6: a(PW.pop(0))
            j += 1
    emit(ld)
    for x in ext: a(x)
    if n == 13:
        for x in PW: a(x)
assert wi == 14 and hi_ == 14
stamp(12)
a("s_branch k_fbar")
a.label("k_final"); a.reset()
for x in FINA: a(x)
a.label("k_fbar")
a("s_waitcnt lgkmcnt(0)")
if OPT["fwarm"]: a("s_cbranch_execz k_fw")
stamp(13)
a("s_barrier")
stamp(14)
a.label("k_fw")
for w in range(4):
    a(f"ds_read_b128 {vr(16+8*w,4)}, v5 offset:{w*4096}")
    a(f"ds_read_b128 {vr(20+8*w,4)}, v6 offset:{w*4096}")
a(f"""
ds_read_b64_tr_b16 v[48:49], v8
ds_read_b64_tr_b16 v[50:51], v8 offset:{4*ATPI}
ds_read_b32 v52, v7
s_waitcnt lgkmcnt(7)
""")
for i in range(0, 8, 2): a(f"v_pk_add_f32 {vr(16+i,2)}, {vr(16+i,2)}, {vr(24+i,2)}")
a("s_waitcnt lgkmcnt(3)")
for i in range(0, 8, 2): a(f"v_pk_add_f32 {vr(32+i,2)}, {vr(32+i,2)}, {vr(40+i,2)}")
for i in range(0, 8, 2): a(f"v_pk_add_f32 {vr(16+i,2)}, {vr(16+i,2)}, {vr(32+i,2)}")
a("s_waitcnt lgkmcnt(0)\nv_lshlrev_b32 v54, 16, v52\nv_and_b32 v55, 0xffff0000, v52")
for i in range(4):
    a(f"v_lshlrev_b32 v{24+2*i}, 16, v{48+i}\nv_and_b32 v{25+2*i}, 0xffff0000, v{48+i}")
for i in range(0, 8, 2): a(f"v_pk_mul_f32 {vr(16+i,2)}, {vr(16+i,2)}, v[54:55] op_sel:[0,1] op_sel_hi:[1,1]")
for i in range(0, 8, 2): a(f"v_pk_fma_f32 {vr(16+i,2)}, {vr(24+i,2)}, v[54:55], {vr(16+i,2)} op_sel_hi:[1,0,1]")
for i in range(4): a(f"v_cvt_pk_bf16_f32 v{32+i}, v{16+2*i}, v{17+2*i}")
if OPT["fwarm"]: a("s_cbranch_execz k_fw2")
a("global_store_dwordx4 v4, v[32:35], s[96:97] sc0 sc1")
stamps_out(15)
a.label("k_end")
a("s_endpgm")
if OPT["fwarm"]: a("k_fw2:\ns_mov_b64 exec, -1\ns_branch k_final\nk_fw0:\ns_mov_b64 exec, 0\ns_branch k_part")
emit_pass()
a.label("code_end")

hdr = open("cdna_kernels/%s.s.ref" % NAME).read().split("; Override launch")[0]
out = hdr + f"; @launch grid=(256,1,1) block=(512,1,1) lds={LDS}\n"
out += '.amdgcn_target "amdgcn-amd-amdhsa--gfx950"\n' + a.text()
out += f""".section .rodata,"a"
.p2align 6
.amdhsa_kernel {KN}
  .amdhsa_next_free_vgpr 256
  .amdhsa_next_free_sgpr 102
  .amdhsa_accum_offset 256
  .amdhsa_group_segment_fixed_size 0
  .amdhsa_kernarg_size 136
  .amdhsa_user_sgpr_count 2
  .amdhsa_user_sgpr_kernarg_segment_ptr 1
  .amdhsa_system_sgpr_workgroup_id_x 1
.end_amdhsa_kernel
"""
open(sys.argv[1], "w").write(out)
print("written", sys.argv[1], "lines", len(a.lines), "nops", a.nops, "")
```

```python
import sys, math, struct
from asm import *

NAME = "gated_mix__ssm_conv_s4__swiglu_ffn__prompt"
KN = NAME + "_kernel"
WDP = 0x800000
HP, UT, AT, GG, FL = 0, 0xA00000, 0xE00000, 0x1000000, 0x1010000
UTP = 4224
def fbits(x): return "0x%08x" % struct.unpack("<I", struct.pack("<f", x))[0]
LOG2E = 1.4426950408889634
OPT = dict(ntx="", ntw="", ntp="nt", stamp=0, cprio=0, yprio=1, warm=0, fwarm=0, rpg=2, w1=1, sw=0, wsig=1, xt=1, xwd=0, rot2=1, ht=0, xs1=26, xs2=26, xs3=48, vgap=9, HD=4, CK=5, xprio=2, one=1, ni=2, sch=14, cpf=0, pb=0, xw=1, w2=0, trim=1, wso=0, sa="1234", hpf=1, hh=1, mt=0)
for a_ in sys.argv[2:]:
    k, v = a_.split("="); OPT[k] = v if k == "sa" else int(v) if v.lstrip("-").isdigit() else v
a = Asm()
SPIN = 40000
SIGM = '0xffff' if OPT['hh'] else '0x3fff'
HT = 14 if OPT["one"] else 56

def cmuls(lst):
    for d, x, y in lst:
        assert d != x and d != y
        a(f"v_pk_mul_f32 {vr(d,2)}, {vr(x,2)}, {vr(y,2)} op_sel_hi:[1,0]")
    for d, x, y in lst:
        a(f"v_pk_fma_f32 {vr(d,2)}, {vr(x,2)}, {vr(y,2)}, {vr(d,2)} op_sel:[1,1,0] op_sel_hi:[0,1,1] neg_lo:[1,0,0]")
def bar(n):
    k = (n - 1) if n < 8 else (n - 8)
    if OPT["sw"] == 1 and n >= 1: stamp(1+2*k, True)
    a("s_barrier")
    if OPT["sw"] == 1 and n >= 1: stamp(2+2*k, True)
_seen1 = [0]
_j = [0]
def stamp(idx, force=False):
    if OPT.get("jit") and idx not in (0,):
        _j[0] += 1; k = _j[0]
        a(f"""s_cselect_b32 s66, 1, 0
s_mul_i32 s64, s2, {3+2*(k % 5)}
s_add_u32 s64, s64, s3
s_add_u32 s64, s64, {k*OPT["jit"]}
s_and_b32 s64, s64, 3
s_cmp_eq_u32 s64, 0
s_cbranch_scc0 k_jit{k}
s_sleep {20 + 13*(k % 4)}
k_jit{k}:
s_cmp_eq_u32 s66, 1""")
        return
    if OPT.get("es") and idx == 1:
        _seen1[0] += 1
        if _seen1[0] in (2, 4): return
    if OPT["sw"] and not force and idx not in (0, 15): return
    if OPT["stamp"]: a(f"{'s_memtime' if OPT['stamp']==2 else 's_memrealtime'} s[{64+2*idx}:{65+2*idx}]")
def stamps_out(idx):
    if not OPT["stamp"]: return
    a("s_waitcnt vmcnt(0)")
    stamp(idx)
    a("s_waitcnt lgkmcnt(0)")
    for i in range(16): a(f"v_writelane_b32 v250, s{64+2*i}, {i}")
    a(f"""s_lshl_b32 s64, s2, 3
s_add_u32 s64, s64, s3
s_lshl_b32 s64, s64, 6
s_add_u32 s64, s64, 0x2000000
v_lshl_add_u32 v251, v1, 2, s64
s_mov_b64 exec, 0xffff
global_store_dword v251, v250, s[40:41]""")
    if OPT.get("dbgout"):
        a(f"""
s_lshl_b32 s65, s2, 3
s_add_u32 s65, s65, s3
s_cmp_eq_u32 s65, {OPT['dbgout']}
s_cbranch_scc0 k_end
v_readlane_b32 s65, v250, 0
v_subrev_u32 v250, s65, v250
v_lshlrev_b32 v251, 2, v1
s_mov_b64 exec, 0xfffe
global_store_dword v251, v250, s[98:99]""")
def stamps_init():
    if OPT["stamp"]:
        for i in range(1,16): a(f"s_mov_b32 s{64+2*i}, 0")
        stamp(0)

class VM:
    def __init__(self): self.q = []
    def op(self, text, tag):
        a(text); self.q.append(tag)
    def n_for(self, *tags):
        idx = max(i for i, t in enumerate(self.q) if t in tags)
        return len(self.q) - 1 - idx
    def wait(self, *tags, extra=""):
        n = self.n_for(*tags); assert n <= 63
        a(f"s_waitcnt vmcnt({n}){extra}")

XA = [98304, 49152, 65536, 81920, 32768, 0, 16384]
WR = [114688, 131072, 147456]
WA = [WR[s % 3] for s in range(10)] + [WR[1], XA[0], WR[2], XA[1]]
CS = [XA[2], WR[0]]
RSL = [XA[3], WR[1], XA[4], XA[5], XA[6], XA[0], XA[1]]
TABO = 12992
CNT = CS[0] + 16064
GL = CS[1] + 16064
ATPI = 144
LDS = 163840

a.raw(f".text\n.globl {KN}\n.p2align 8\n.type {KN},@function\n{KN}:")
a("""
s_cmp_ge_u32 s2, 256
s_cbranch_scc1 k_end
s_add_u32 s2, s2, 224
s_and_b32 s2, s2, 255
""")
stamps_init()
a("""
s_load_dwordx16 s[16:31], s[0:1], 0
s_load_dwordx8 s[32:39], s[0:1], 80
s_load_dwordx2 s[40:41], s[0:1], 128
s_load_dwordx4 s[96:99], s[0:1], 112
s_getpc_b64 s[4:5]
k_pc:
v_lshrrev_b32 v2, 6, v0
v_and_b32 v1, 63, v0
v_readfirstlane_b32 s3, v2
s_lshr_b32 s6, s2, 3                 ; j
s_and_b32 s8, s6, 3                  ; rbl
; code prefetch into L2: line = rbl*56 + wave*7 + min(lane,6)
s_mul_i32 s7, s8, 6144
v_min_u32 v3, 5, v1
v_mad_u32_u24 v3, v2, 6, v3
v_lshlrev_b32 v3, 7, v3
v_add_u32 v3, s7, v3
v_min_u32 v3, code_end-k_pc-4, v3
CPF
s_and_b32 s7, s3, 3
s_lshr_b32 s14, s7, 1
s_lshl_b32 s60, s2, 1
s_add_u32 s60, s60, s14
s_lshl_b32 s13, s60, 9
s_and_b32 s14, s7, 1
s_lshl_b32 s14, s14, 7
s_add_u32 s13, s13, s14
s_and_b32 s14, s3, 4
s_lshl_b32 s14, s14, 6
s_add_u32 s13, s13, s14
v_lshl_add_u32 v8, v1, 1, s13
s_lshl_b32 s14, s60, 1
v_mov_b32 v9, s14
s_cmp_ge_u32 s2, 224
s_cbranch_scc1 k_npl
s_waitcnt lgkmcnt(0)
global_load_ushort v238, v9, s[30:31]
global_load_ushort v239, v8, s[18:19] nt
global_load_ushort v11, v8, s[20:21] nt
global_load_ushort v12, v8, s[22:23] nt
global_load_ushort v216, v8, s[24:25] nt
global_load_ushort v217, v8, s[26:27] nt
global_load_ushort v218, v8, s[28:29] nt
k_npl:
WSO
s_and_b32 s10, s2, 6
s_lshl_b32 s10, s10, 1
s_add_u32 s10, s10, s8               ; rb128
s_and_b32 s9, s2, 1
s_mul_i32 s11, s9, 7
s_lshr_b32 s12, s6, 2                ; fbl (7 = spare WG)
s_add_u32 s11, s11, s12              ; fb128
v_lshlrev_b32 v10, 4, v1
s_lshl_b32 s42, s8, 1
s_add_u32 s42, s42, s12
s_sub_u32 s43, s42, 7
s_cmp_ge_u32 s42, 7
s_cselect_b32 s42, s43, s42          ; rot
; W DMA voffsets v14,v15: row k = 16q+8i+(l>>3); chunk16 = (l&7) ^ (((l>>4)&1)<<1) ^ (i<<2)
v_lshrrev_b32 v20, 3, v1
v_lshrrev_b32 v21, 4, v1
v_and_b32 v22, 7, v1
s_lshl_b32 s13, s7, 4
v_add_u32 v25, s13, v20
v_mul_u32_u24 v25, 3584, v25
s_lshl_b32 s13, s11, 8
v_add_u32 v25, s13, v25
v_and_b32 v26, 1, v21
v_lshlrev_b32 v26, 1, v26
v_xor_b32 v26, v22, v26
v_lshl_add_u32 v240, v26, 4, v25
v_add_u32 v241, 27648, v240
v_xor_b32 v26, 4, v26
v_lshl_add_u32 v242, v26, 4, v25
v_add_u32 v243, 27648, v242
s_lshl_b32 s15, s7, 11               ; W dest offset in slot
s_mov_b32 s50, 1605632
s_mov_b32 s51, 0x20000
s_mov_b32 s54, 1605632
s_mov_b32 s55, 0x20000
s_cmp_eq_u32 s12, 7
s_cbranch_scc1 k_spare
""".replace("WSO", f"s_waitcnt lgkmcnt(0)\ns_add_u32 s40, s40, {OPT['wso']<<20}\ns_addc_u32 s41, s41, 0" if OPT["wso"] else "").replace("CPF", ["global_load_dword v0, v3, s[4:5]", "s_cmp_lt_u32 s2, 224\ns_cbranch_scc1 k_ncp\nglobal_load_dword v0, v3, s[4:5]\nk_ncp:", "s_cmp_lt_u32 s2, 192\ns_cbranch_scc1 k_ncp\nglobal_load_dword v0, v3, s[4:5]\nk_ncp:"][OPT["cpf"]]))
def dmaw(vm, st):
    a(f"s_add_u32 m0, s15, {WA[st]}")
    if st >= 7: a("s_add_u32 s58, s57, 128")
    else: a("s_mov_b32 s58, s57")
    for i in range(2): vm.op(f"buffer_load_dwordx4 v{240+i}, s[48:51], s58 offen offset:{i*1024} {OPT['ntw']} lds", f"W{st}")
    a(f"s_add_u32 m0, s15, {WA[st]+8192}\ns_add_u32 s57, s57, 229376")
    for i in range(2): vm.op(f"buffer_load_dwordx4 v{242+i}, s[52:55], s58 offen offset:{i*1024} {OPT['ntw']} lds", f"W{st}")
    a("s_cmp_eq_u32 s57, 1605632\ns_cselect_b32 s57, 0, s57")
def dmax(vm, st):
    a(f"s_add_u32 m0, s14, {XA[st]}\ns_mov_b32 s58, s56")
    for i in range(4): vm.op(f"buffer_load_dwordx4 v{232+i}, s[44:47], s58 offen offset:{i*1024} {OPT['ntx']} lds", f"X{st}")
    a("s_add_u32 s56, s56, 128\ns_cmp_eq_u32 s56, 896\ns_cselect_b32 s56, 0, s56")

FB = [16, 48]; ACC = 80; TM = 144; KA = 164
def pass_addrs():
    a(f"""
v_and_b32 v6, 31, v1
v_lshrrev_b32 v7, 5, v1
v_bfe_u32 v4, v1, 1, 3
v_xor_b32 v7, v7, v4
v_lshlrev_b32 v7, 4, v7
v_lshl_add_u32 v6, v6, 7, v7
s_lshr_b32 s13, s7, 1
s_lshl_b32 s13, s13, 13
v_add_u32 v2, s13, v6
v_lshlrev_b32 v6, 9, v1
v_and_b32 v6, 0x2000, v6
v_lshlrev_b32 v7, 5, v1
v_and_b32 v7, 0x580, v7
v_and_b32 v4, 3, v1
v_lshlrev_b32 v4, 3, v4
v_add3_u32 v6, v6, v7, v4
v_bfe_u32 v7, v1, 3, 2
s_and_b32 s13, s7, 1
s_lshl_b32 s13, s13, 1
v_xor_b32 v7, s13, v7
v_lshl_add_u32 v3, v7, 5, v6
""")
def h_addr(p):
    a(f"""
s_lshl_b32 s13, s10, 1
s_lshr_b32 s58, s7, 1
s_add_u32 s13, s13, s58
s_mul_i32 s13, s13, 56
s_lshl_b32 s58, s11, 1
s_add_u32 s13, s13, s58
s_and_b32 s58, s7, 1
s_add_u32 s13, s13, s58
s_lshr_b32 s58, s3, 2
s_mul_i32 s58, s58, 28
s_add_u32 s13, s13, s58
s_lshl_b32 s13, s13, 12
v_and_b32 v14, 15, v1
v_lshl_add_u32 v14, v14, 4, s13
v_bfe_u32 v15, v1, 4, 1
v_lshl_add_u32 v14, v15, 10, v14
v_lshrrev_b32 v15, 5, v1
v_lshl_add_u32 v14, v15, 8, v14
s_mov_b32 s62, {fbits(-LOG2E)}
""")
def nib(lst):
    v = 0
    for i, x in enumerate(lst): v |= (x // 16384) << (4*i)
    return "0x%x" % v
VADDR = lambda xs, ws: [f"v_add_u32 v6, {xs}, v2", f"v_add_u32 v4, {ws}, v3", "v_xor_b32 v7, 32, v6", "v_xor_b32 v5, 32, v4", "v_xor_b32 v8, 64, v6", "v_xor_b32 v9, 96, v6"]
SETA = ["s_and_b32 s13, s30, 15", "s_lshl_b32 s13, s13, 14", "s_lshr_b32 s30, s30, 4", "s_and_b32 s58, s31, 15", "s_lshl_b32 s58, s58, 14", "s_lshr_b32 s31, s31, 4"] + VADDR("s13", "s58")
def reads(hs, F):
    out = []
    for k2 in range(2):
        ks = 2*hs + k2
        A_ = lambda fa, hh: f"ds_read_b64_tr_b16 {vr(F+16*k2+4*fa+2*hh,2)}, v{4+fa} offset:{ks*2048+hh*512}"
        B_ = lambda tb: f"ds_read_b128 {vr(F+16*k2+8+4*tb,4)}, v{6+ks} offset:{tb*4096}"
        out += [A_(0,0), A_(0,1), B_(0), B_(1), A_(1,0), A_(1,1)]
    return out
def acc(n): return ACC + 16*n
def pass_resume(iters):
    a(f"s_mov_b32 s59, {iters}\ns_call_b64 s[100:101], k_pl")
    a.reset()
def pass_call(p, nbar, iters):
    a(f"""
s_mov_b32 s30, {nib(XA[1:]+[0])}
s_mov_b32 s31, {nib(WA[7*p+1:7*p+7]+[0])}
s_mov_b32 s43, {nbar}
s_mov_b32 s59, {iters}
s_call_b64 s[100:101], k_pass
""")
    a.reset()
def pass_first_addr(p):
    for x in VADDR(XA[0], WA[7*p]): a(x)
def emit_pass():
    def half(hs, first):
        F = FB[hs]; Fn = FB[hs ^ 1]
        mm = []
        for k2 in range(2):
            for fa in range(2):
                for tb in range(2):
                    d = vr(acc(2*fa+tb), 16)
                    mm.append(f"v_mfma_f32_32x32x16_bf16 {d}, {vr(F+16*k2+4*fa,4)}, {vr(F+16*k2+8+4*tb,4)}, " + ("0" if first and k2 == 0 else d))
        if first: a("s_waitcnt lgkmcnt(6)")
        else: a("s_waitcnt lgkmcnt(0)")
        if hs == 0:
            fill = reads(1, Fn) + SETA + ["s_cmp_eq_u32 s43, 0"]
        else:
            a(mm.pop(0))
            a("s_cbranch_scc1 k_pnb\ns_waitcnt vmcnt(0)\ns_barrier\ns_sub_u32 s43, s43, 1\nk_pnb:")
            fill = reads(0, Fn) + ["s_sub_u32 s59, s59, 1", "s_cmp_lg_u32 s59, 0"]
        for i, m in enumerate(mm):
            if first and i == 4: a("s_waitcnt lgkmcnt(12)")
            a(m)
            for _ in range(3 if (i < 4) else 4):
                if fill: a(fill.pop(0))
        for x in fill: a(x)
    a.raw(".p2align 6")
    a.label("k_pass"); a.reset()
    for r in reads(0, FB[0]): a(r)
    half(0, True)
    a("s_branch k_pm")
    a.raw(".p2align 6")
    a.label("k_pl")
    half(0, False)
    a.label("k_pm")
    half(1, False)
    a("s_cbranch_scc1 k_pl\ns_setpc_b64 s[100:101]")
def epi_list(n):
    Tm = TM + 8*(n & 1); R = acc(n); o = []
    for i in range(8): o.append(f"v_mul_f32 v{Tm+i}, s62, v{R+i}")
    for i in range(8): o += [f"v_exp_f32 v{Tm+i}, v{Tm+i}", f"v_mul_f32 v{R+i}, v{R+i}, v{R+8+i}"]
    for i in range(8): o.append(f"v_add_f32 v{Tm+i}, 1.0, v{Tm+i}")
    for i in range(8):
        o.append(f"v_rcp_f32 v{Tm+i}, v{Tm+i}")
        if i >= 2: o.append(f"v_mul_f32 v{R+i-2}, v{R+i-2}, v{Tm+i-2}")
    for i in (6, 7): o.append(f"v_mul_f32 v{R+i}, v{R+i}, v{Tm+i}")
    for i in range(4): o.append(f"v_cvt_pk_bf16_f32 v{R+8+i}, v{R+2*i}, v{R+2*i+1}")
    o.append(("st", n))
    return o
def hst(vm, n, tag):
    vm.op(f"global_store_dwordx4 v14, {vr(acc(n)+8,4)}, s[40:41] offset:{(n&1)*2048+(n>>1)*512} sc1", tag)
def run_epi(vm, lst, count):
    for _ in range(count):
        if not lst: return
        x = lst.pop(0)
        if isinstance(x, tuple): hst(vm, x[1], "st")
        else: a(x)
def pre_poll(base, off):
    a(f"s_load_dword s27, {base}, {off} glc")
def check(lbl, base, off, target, vt, sleep=1):
    a(f"""
s_mov_b32 s59, 0
{lbl}_l:
s_waitcnt lgkmcnt(0)
s_cmp_eq_u32 s27, {target}
s_cbranch_scc1 {lbl}_d
s_add_u32 s59, s59, 1
s_sleep {sleep}
s_cmp_lt_u32 s59, 256
s_cbranch_scc0 {lbl}_v
s_load_dword s27, {base}, {off} glc
s_branch {lbl}_l
{lbl}_v:
v_mov_b32 v{vt}, 0
global_load_dword v{vt}, v{vt}, {base} offset:{off} sc1
s_waitcnt vmcnt(0)
v_readfirstlane_b32 s27, v{vt}
s_cmp_lt_u32 s59, {SPIN}
s_cbranch_scc1 {lbl}_l
{lbl}_d:
""")
def own_line():
    a(f"""
s_lshl_b32 s13, s2, 7
s_add_u32 s13, s13, {FL}
s_add_u32 s28, s40, s13
s_addc_u32 s29, s41, 0
""")
def hsig_addr(v):
    a(f"""
s_lshl_b32 s13, s10, 1
s_and_b32 s58, s13, 3
s_lshl_b32 s58, s58, 3
s_lshr_b32 s13, s13, 2
s_add_u32 s13, s13, s58
s_lshl_b32 s13, s13, 7
s_add_u32 s13, s13, {FL}
v_lshrrev_b32 v{v}, 1, v1
v_lshlrev_b32 v{v}, 12, v{v}
v_and_b32 v{v+1}, 1, v1
v_lshl_add_u32 v{v}, v{v+1}, 10, v{v}
v_add_u32 v{v}, s13, v{v}
""")
def ssig_h(word):
    a(f"""
s_lshl_b32 s13, s10, 1
s_and_b32 s58, s13, 3
s_lshl_b32 s58, s58, 3
s_lshr_b32 s13, s13, 2
s_add_u32 s13, s13, s58
s_lshl_b32 s13, s13, 7
s_add_u32 s13, s13, {FL}
s_add_u32 s44, s40, s13
s_addc_u32 s45, s41, 0
s_mov_b32 s46, 1
""")
    for cb in ([7] if OPT['hh'] else []) + list(range(7)):
        for r in range(2): a(f"s_atomic_add s46, s[44:45], {cb*4096+r*1024+word}")
def last_of4(lbl, cntoff, vt, body):
    a(f"""
v_mov_b32 v{vt}, {CNT+cntoff}
v_mov_b32 v{vt+1}, 1
s_mov_b64 exec, 1
ds_add_rtn_u32 v{vt+2}, v{vt}, v{vt+1}
s_waitcnt lgkmcnt(0)
v_readfirstlane_b32 s58, v{vt+2}
s_mov_b64 exec, -1
s_cmp_eq_u32 s58, 3
s_cbranch_scc0 {lbl}
""")
    body()

Z = lambda k: 20 + 2*k
Wp = lambda k: 50 + 2*k
E = lambda k: 68 + 2*k
Y_ = {1: 84, 2: 86, 4: 88, 8: 90}
T = lambda k: 92 + 2*k
CV = lambda k: 108 + (k & 7)
FE, FX0, FX1 = 116, 132, 148
PR = 176
vy = VM()
XV = 232
a(f"""
v_xor_b32 v23, v22, v21
v_xor_b32 v24, 4, v23
s_lshl_b32 s13, s7, 5
v_add_u32 v25, s13, v20
v_mul_u32_u24 v25, 896, v25
v_lshl_add_u32 v{XV}, v23, 4, v25
v_lshl_add_u32 v{XV+1}, v24, 4, v25
v_add_u32 v{XV+1}, 6144, v{XV+1}
v_add_u32 v{XV+2}, 12288, v{XV}
v_add_u32 v{XV+3}, 12288, v{XV+1}
s_lshl_b32 s14, s7, 12
s_lshl_b32 s56, s42, 7
s_mul_i32 s57, s42, 229376
s_mul_i32 s13, s10, 114688
s_mov_b32 s46, 114688
s_mov_b32 s47, 0x20000
s_mul_i32 s63, s3, 4608
""")
a("""
s_mov_b32 s48, s32
s_mov_b32 s49, s33
s_mov_b32 s52, s34
s_mov_b32 s53, s35
s_add_u32 s44, s16, s13
s_addc_u32 s45, s17, 0
""")
if OPT["pb"]: a("s_barrier")
a("""
s_cmp_lt_u32 s3, 4
s_cbranch_scc1 k_x0
""")
dmaw(vy, 0); dmax(vy, 0)
if OPT["w1"] and not OPT["xw"]: dmaw(vy, 1)
a(f"""
s_and_b32 s9, s2, 7
s_lshl_b32 s9, s9, 2
s_add_u32 s9, s9, s8               ; rb64
s_mul_i32 s13, s9, 229376
s_mul_i32 s58, s7, 28672
s_add_u32 s13, s13, s58
s_add_u32 s16, s40, s13
s_addc_u32 s17, s41, 0
s_mov_b32 s18, {114688+28672}
s_mov_b32 s19, 0x20000
s_mov_b32 s20, s36
s_mov_b32 s21, s37
s_mov_b32 s22, 1605632
s_mov_b32 s23, 0x20000
s_mul_i32 s25, s7, 7
s_lshl_b32 s26, s12, 7               ; cb*128
""")
SW = [32+i for i in range(7)]; SH = [4, 5, 6, 39, 0, 1, 60]
for i in range(7):
    a(f"""
s_add_u32 s58, s42, {i}
s_sub_u32 s59, s58, 7
s_min_u32 s58, s58, s59
s_lshl_b32 s{SH[i]}, s58, 12
s_add_u32 s58, s58, s25
s_lshr_b32 s59, s58, 1
s_mul_i32 s59, s59, 114688
s_and_b32 s58, s58, 1
s_mul_i32 s58, s58, 28672
s_add_u32 s58, s58, s59
s_add_u32 s{SW[i]}, s58, s26
""")
a("""
s_branch k_w0
k_x0:
s_load_dwordx2 s[4:5], s[0:1], 64
s_add_u32 s57, s42, XOFF
s_sub_u32 s13, s57, 7
s_cmp_ge_u32 s57, 7
s_cselect_b32 s57, s13, s57
s_mul_i32 s57, s57, 229376           ; chunk offset of stage 9
k_w0:
v_and_b32 v4, 15, v1                 ; c
v_lshlrev_b32 v5, 2, v21             ; 4g
v_lshlrev_b32 v6, 6, v21             ; 64g
v_lshl_add_u32 v247, v4, 4, v5
v_lshl_add_u32 v248, v4, 3, v5
v_lshl_add_u32 v249, v4, 2, v6
v_cmp_gt_u32 vcc, 2, v21
v_cndmask_b32 v248, v249, v248, vcc
v_lshl_add_u32 v249, v4, 1, v6
v_lshl_add_u32 v247, v247, 2, s63
v_lshl_add_u32 v248, v248, 2, s63
v_lshl_add_u32 v249, v249, 2, s63
""".replace("XOFF", "1" if OPT["xw"] else "2"))
pass_addrs()
h_addr(0)
own_line()
if OPT["warm"]:
    a("s_mov_b64 exec, 0")
    for w in range(1, 8): a(f"s_cmp_eq_u32 s3, {w}\ns_cbranch_scc1 k_sec{w}")
    a("s_branch k_kg\nk_wd:")
    for w in range(4):
        a(f"s_cmp_eq_u32 s3, {w}\ns_cbranch_scc0 k_we{w}\ns_call_b64 s[100:101], k_epi{w}\nk_we{w}:")
    a("s_cmp_eq_u32 s3, 3\ns_cbranch_scc0 k_wp\ns_mov_b32 s43, 0\ns_mov_b32 s59, 1\ns_call_b64 s[100:101], k_pass\nk_wp:")
    a("s_mov_b64 exec, -1")
a(f"""
v_mov_b32 v245, v9
v_and_b32 v18, 15, v1
v_mul_u32_u24 v18, 288, v18
v_and_b32 v19, 48, v1
v_add3_u32 v18, v18, v19, s63
s_cmp_lt_u32 s3, 4
s_cbranch_scc1 k_x1
s_waitcnt vmcnt({len(vy.q)})
s_branch k_kg
k_x1:
s_waitcnt vmcnt(0)
k_kg:
""")
secn = [0]
def sec():
    if OPT["warm"]:
        secn[0] += 1
        a("s_cbranch_execz k_wd")
        if secn[0] < 8: a.label(f"k_sec{secn[0]}")
a.reset()
stamp(2)
a(f"""
s_mov_b32 m0, s63
v_lshlrev_b32 v238, 16, v238
v_mul_f32 v16, {fbits(LOG2E)}, v238
v_exp_f32 v16, v16
v_lshlrev_b32 v239, 16, v239
v_lshlrev_b32 v11, 16, v11
v_lshlrev_b32 v12, 16, v12
v_lshlrev_b32 v216, 16, v216
v_lshlrev_b32 v217, 16, v217
v_lshlrev_b32 v218, 16, v218
v_cvt_pk_bf16_f32 v16, v16, v16
v_and_b32 v16, 0xffff0000, v16
v_mul_f32 v8, {fbits(LOG2E)}, v16
v_mul_f32 v9, 0.15915494, v16
v_mul_f32 v17, v239, v8
v_mul_f32 v11, v11, v9
v_mul_f32 v12, v12, v16
v_mul_f32 v216, v216, v16
v_mul_f32 v{E(0)}, v217, v12
v_mul_f32 v{E(0)+1}, v217, v216
v_fma_f32 v{E(0)}, -v218, v216, v{E(0)}
v_fma_f32 v{E(0)+1}, -v218, v12, -v{E(0)+1}
""")
ydn = [0]
def ydma(fn):
    ydn[0] += 1
    a(f"s_cmp_lt_u32 s3, 4\ns_cbranch_scc1 k_yd{ydn[0]}")
    fn()
    a(f"s_mov_b32 m0, s63\nk_yd{ydn[0]}:")
anc = [(Y_[1], 16.0, True), (Z(1), 1.0, False), (Wp(1), 256.0, False)]
for n, (d, p, cj) in enumerate(anc):
    if p != 1.0: a(f"v_mul_f32 v{T(n)}, {fbits(p)}, v17\nv_mul_f32 v{T(n)+1}, {fbits(p)}, v11")
for n, (d, p, cj) in enumerate(anc):
    if p == 1.0: a(f"v_exp_f32 v{T(n)}, v17\nv_fract_f32 v{T(n)+1}, v11")
    else: a(f"v_exp_f32 v{T(n)}, v{T(n)}\nv_fract_f32 v{T(n)+1}, v{T(n)+1}")
for n, (d, p, cj) in enumerate(anc):
    a(f"v_cos_f32 v{d}, v{T(n)+1}\nv_sin_f32 v{d+1}, v{T(n)+1}")
for n, (d, p, cj) in enumerate(anc):
    a(f"v_pk_mul_f32 {vr(d,2)}, {vr(d,2)}, {vr(T(n),2)} op_sel_hi:[1,0]" + (" neg_hi:[1,0]" if cj else ""))
cnt = [0]; NDS = [0]; MK = {}
def puts(lst):
    cs = []
    for row, src in lst:
        c = CV(cnt[0]); cnt[0] += 1; cs.append(c)
        if src is None: a(f"v_mov_b32 v{c}, 0x3f80")
        else: a(f"v_cvt_pk_bf16_f32 v{c}, v{src}, v{src+1}")
    if OPT["w2"]:
        pend = list(zip([r for r, _ in lst], cs))
        while pend:
            r0, c0 = pend.pop(0)
            m = [x for x in pend if x[0]//4 == r0//4]
            if m:
                pend.remove(m[0]); r1, c1 = m[0]
                a(f"ds_write2_b32 v{176+r0//4}, v{c0}, v{c1} offset0:{(r0%4)*72} offset1:{(r1%4)*72}"); NDS[0] += 1
            else:
                a(f"ds_write_addtid_b32 v{c0} offset:{r0*288}"); NDS[0] += 1
        return
    for (row, src), c in zip(lst, cs):
        a(f"ds_write_addtid_b32 v{c} offset:{row*288}"); NDS[0] += 1
def putl(lst):
    for i in range(0, len(lst), 4): puts(lst[i:i+4])
def frags(F):
    for s in range(4): a(f"ds_read_b128 {vr(F+4*s,4)}, v18 offset:{s*64}")
    NDS[0] += 4; MK[F] = NDS[0]
def wfr(F): a(f"s_waitcnt lgkmcnt({min(15, NDS[0]-MK[F])})")
def mf(tau, F):
    for s in range(4):
        a(f"v_mfma_f32_16x16x32_bf16 {vr(KA+4*tau,4)}, {vr(F+4*s,4)}, {vr(FE+4*s,4)}, " + ("0" if s == 0 else vr(KA+4*tau,4)))
Y = Y_
if OPT["trim"]:
    cmuls([(Y[2], Y[1], Y[1]), (E(1), E(0), Y[1]), (Z(2), Z(1), Z(1)), (Wp(2), Wp(1), Wp(1))])
    cmuls([(E(2), E(0), Y[2]), (E(3), E(1), Y[2]), (Z(3), Z(2), Z(1)), (Z(4), Z(2), Z(2))])
    putl([(i, E(i)) for i in range(4)])
    cmuls([(E(4), E(2), Y[2]), (E(5), E(3), Y[2]), (Wp(3), Wp(2), Wp(1)), (Wp(4), Wp(2), Wp(2))])
    cmuls([(E(6), E(4), Y[2]), (E(7), E(5), Y[2])])
    putl([(i, E(i)) for i in range(4, 8)])
    cmuls([(T(0), E(6), Y[2]), (T(1), E(7), Y[2])])
    cmuls([(T(2), T(0), Y[2]), (T(3), T(1), Y[2])])
    putl([(8+i, T(i)) for i in range(4)])
    cmuls([(T(4), T(2), Y[2]), (T(5), T(3), Y[2])])
    cmuls([(T(6), T(4), Y[2]), (T(7), T(5), Y[2])])
    putl([(8+i, T(i)) for i in range(4, 8)])
else:
    cmuls([(Y[2], Y[1], Y[1]), (E(1), E(0), Y[1]), (Z(2), Z(1), Z(1)), (Wp(2), Wp(1), Wp(1))])
    cmuls([(Y[4], Y[2], Y[2]), (E(2), E(0), Y[2]), (E(3), E(1), Y[2]), (Z(3), Z(2), Z(1)), (Z(4), Z(2), Z(2)), (Wp(3), Wp(2), Wp(1)), (Wp(4), Wp(2), Wp(2))])
    sec()
    putl([(i, E(i)) for i in range(4)])
    cmuls([(Y[8], Y[4], Y[4])] + [(E(4+i), E(i), Y[4]) for i in range(4)])
    putl([(i, E(i)) for i in range(4, 8)])
    cmuls([(T(i), E(i), Y[8]) for i in range(4)])
    sec()
    putl([(8+i, T(i)) for i in range(4)])
    cmuls([(T(i), E(i), Y[8]) for i in range(4, 8)])
    putl([(8+i, T(i)) for i in range(4, 8)])
frags(FE)
sec()
putl([(0, None)] + [(i, Z(i)) for i in range(1, 4)])
cmuls([(Z(5), Z(4), Z(1)), (Z(6), Z(4), Z(2)), (Z(7), Z(4), Z(3)), (Z(8), Z(4), Z(4))])
putl([(i, Z(i)) for i in range(4, 8)])
cmuls([(Z(8+i), Z(8), Z(i)) for i in range(1, 4)])
sec()
putl([(i, Z(i)) for i in range(8, 12)])
cmuls([(Z(8+i), Z(8), Z(i)) for i in range(4, 8)])
putl([(i, Z(i)) for i in range(12, 16)])
frags(FX0)
sec()
cmuls([(T(r), Wp(1), Z(2*r)) for r in range(1, 4)])
putl([(0, Wp(1))] + [(r, T(r)) for r in range(1, 4)])
cmuls([(T(r), Wp(1), Z(2*r)) for r in range(4, 8)])
putl([(r, T(r)) for r in range(4, 8)])
sec()
cmuls([(T(j-1), Wp(2), Z(4*j)) for j in (1, 2, 3)])
wfr(FX0)
mf(0, FX0)
putl([(8, Wp(2))] + [(8+j, T(j-1)) for j in (1, 2, 3)])
cmuls([(T(2+j), Wp(3), Z(4*j)) for j in (1, 2, 3)])
putl([(12, Wp(3))] + [(12+j, T(2+j)) for j in (1, 2, 3)])
frags(FX1)
sec()
cmuls([(Wp(5), Wp(4), Wp(1)), (Wp(6), Wp(4), Wp(2)), (Wp(7), Wp(4), Wp(3)), (Wp(8), Wp(4), Wp(4))])
putl([(2*h, Wp(4+h)) for h in range(4)] )
cmuls([(T(h), Wp(4+h), Z(8)) for h in range(4)])
putl([(2*h+1, T(h)) for h in range(4)] + [(8, Wp(8))])
frags(FX0)
wfr(FX1)
mf(1, FX1)
a("s_waitcnt lgkmcnt(0)")
mf(2, FX0)
a(f"""
ds_write_b128 v247, {vr(KA,4)} offset:64
ds_write_b128 v248, {vr(KA+4,4)} offset:{64+1024}
s_lshr_b32 s13, s7, 1
s_mul_i32 s24, s13, {CS[1]-CS[0]}
s_add_u32 s24, s24, {CS[0]}
s_and_b32 s61, s7, 1                 ; parity
ds_write_b64 v249, {vr(KA+8,2)} offset:{64+2048}
ds_write_b64 v249, {vr(KA+10,2)} offset:{64+2048+128}
""")
sec()
a("""
s_cmp_ge_u32 s3, 4
s_cbranch_scc1 k_y
""")
vx = VM()
stamp(3)
if OPT["xw"]: dmaw(vx, 1)
if OPT["xw"] == 2:
    a("s_add_u32 s56, s56, 128\ns_cmp_eq_u32 s56, 896\ns_cselect_b32 s56, 0, s56"); dmax(vx, 1)
a("""
v_mov_b32 v244, 0
s_lshl_b32 s13, s2, 1
s_lshr_b32 s58, s7, 1
s_add_u32 s13, s13, s58
s_mul_i32 s13, s13, 14
v_min_u32 v4, 13, v1
v_add_lshl_u32 v4, v4, s13, 8
s_bitcmp1_b32 s7, 0
s_cselect_b32 s58, s34, s32
s_cselect_b32 s59, s35, s33
global_load_short_d16_hi v244, v245, s[4:5]
""")
if OPT["xt"]: a("global_load_dword v0, v4, s[58:59] offset:128")
if OPT["mt"]:
    a("""
s_lshl_b32 s13, s2, 2
s_add_u32 s13, s13, s7
s_mul_i32 s13, s13, 14
v_min_u32 v4, 13, v1
v_add_lshl_u32 v4, v4, s13, 7
global_load_dword v0, v4, s[36:37]
""")
a(f"""
s_mov_b32 s14, s24
v_and_b32 v20, 15, v1
v_lshrrev_b32 v21, 4, v1
v_or_b32 v24, 1, v20
v_lshlrev_b32 v25, 3, v21
v_sub_u32 v24, v25, v24
v_lshlrev_b32 v24, 1, v24
v_and_b32 v25, 1, v1
v_mul_u32_u24 v25, 4160, v25
v_sub_u32 v24, v24, v25
v_add_u32 v24, s14, v24
v_add_u32 v216, {4160+2*2031-512}, v24
v_add_u32 v217, {4160+2*2031-512*3}, v24
v_add_u32 v218, {4160+2*2031-512*5}, v24
v_add_u32 v219, {4160+2*2031-512*7}, v24
v_lshlrev_b32 v22, 5, v20
v_lshl_add_u32 v221, v21, 3, v22     ; 32j+8g
v_lshl_add_u32 v22, v21, 4, v22
v_add_u32 v22, s14, v22
v_add_u32 v220, {8832-32}, v22       ; B addr
s_mul_i32 s13, s60, {UTP}
s_add_u32 s13, s13, {UT}
v_add_u32 v222, s13, v10
v_add_u32 v223, s14, v10
s_and_b32 s13, s2, 7
s_lshl_b32 s13, s13, 2
s_add_u32 s13, s13, s8
s_lshl_b32 s13, s13, 8
s_lshl_b32 s58, s7, 6
s_add_u32 s13, s13, s58
s_add_u32 s13, s13, {GG}
v_lshlrev_b32 v225, 2, v20
v_add_u32 v224, s13, v225            ; g global
s_add_u32 s58, s58, {GL}
v_add_u32 v225, s58, v225            ; g LDS
""")
hsig_addr(226)
a("v_mov_b32 v227, 1")
pass_first_addr(0)
a("s_waitcnt lgkmcnt(0)")
stamp(1)
bar(0)
stamp(4)
pass_call(0, 7, 7)
stamp(6)
dmaw(vx, 9)
CA = 48
a("s_waitcnt lgkmcnt(0)")
for r in range(CA, CA+16): a(f"v_mov_b32 v{r}, 0")
EL = epi_list(0) + epi_list(1) + epi_list(2) + epi_list(3)
bar(8)
dmaw(vx, 10)
run_epi(vx, EL, OPT["xs1"])
dmaw(vx, 11)
vx.wait("W9")
bar(9)
dmaw(vx, 12)
run_epi(vx, EL, OPT["xs2"])
dmaw(vx, 13)
vx.wait("W10")
bar(10)
pre_poll("s[28:29]", 0)
run_epi(vx, EL, OPT["xs3"])
a(f"v_mov_b32 v40, {CNT}\nds_write_b128 v40, {vr(CA,4)}\nds_write_b128 v40, {vr(CA,4)} offset:16")
vx.wait("W13", extra=" lgkmcnt(0)")
stamp(7)
bar(11)
stamp(8)
if OPT["xprio"]: a(f"s_setprio {OPT['xprio']}")
def uloads():
    for i in range(4): a(f"global_load_dwordx4 {vr(16+4*i,4)}, v222, s[40:41] offset:{i*1024} sc1")
    a("global_load_dword v15, v224, s[40:41] sc1")
def uwrites():
    for i in range(4): a(f"ds_write_b128 v223, {vr(16+4*i,4)} offset:{8832+i*1024}")
    a("ds_write_b32 v225, v15")
a("s_cmp_eq_u32 s27, 32\ns_cbranch_scc0 k_u0")
uloads()
a("k_u0:")
nst = len([x for x in EL if isinstance(x, tuple)])
run_epi(vx, EL, 999)
a(f"s_cmp_eq_u32 s27, 32\ns_cbranch_scc0 k_u1\ns_waitcnt vmcnt({nst})")
uwrites()
a("k_u1:\nds_read_b32 v41, v40\ns_waitcnt vmcnt(0)")
def sigx():
    if "2" in OPT["sa"]: return ssig_h(4)
    a(f"s_mov_b64 exec, {SIGM}\nglobal_atomic_add v226, v227, s[40:41] offset:4 sc1\ns_mov_b64 exec, -1")
last_of4("k_s2", 8, 42, sigx); a.label("k_s2")
a("s_cmp_eq_u32 s27, 32\ns_cbranch_scc1 k_u2")
check("k_c1", "s[28:29]", 0, 32, 13)
uloads()
a("s_waitcnt vmcnt(0)")
uwrites()
a("k_u2:")
a(f"""
s_mov_b32 s59, {SPIN}
k_ps:
s_waitcnt lgkmcnt(0)
v_readfirstlane_b32 s58, v41
s_cmp_eq_u32 s58, 4
s_cbranch_scc1 k_psd
ds_read_b32 v41, v40
s_sub_u32 s59, s59, 1
s_cmp_lg_u32 s59, 0
s_cbranch_scc1 k_ps
k_psd:
""")
stamp(9)
a(f"s_setprio {OPT['cprio']}")
a("""
s_cmp_eq_u32 s61, 0
s_cbranch_scc0 k_set1
""")
FBUF = [88, 152]
def creads(F, amax):
    out = []
    for i in range(amax+1):
        o = 0 if (i & 1) else 128
        out.append(f"ds_read_b128 {vr(F+32+4*i,4)}, v220 offset:{512*i}")
        out.append(f"ds_read2_b32 {vr(F+4*i,2)}, v{216+(i>>1)} offset0:{o} offset1:{o+1}")
        out.append(f"ds_read2_b32 {vr(F+4*i+2,2)}, v{216+(i>>1)} offset0:{o+2} offset1:{o+3}")
    out += [f"v_subrev_u32 v{r}, 64, v{r}" for r in (216, 217, 218, 219, 220)]
    return out
for sidx, cbs in enumerate(((0, 3, 4, 7), (1, 2, 5, 6))):
    if sidx == 1:
        a.label("k_set1"); a.reset()
    amax = max(cbs)
    for x in creads(FBUF[0], amax): a(x)
    a("s_mov_b32 s21, 4")
    a.label(f"k_cl{sidx}")
    for half in range(2):
        F = FBUF[half]
        a("s_waitcnt lgkmcnt(0)")
        lists = [[(n, aa, cb-aa) for aa in range(cb+1)] for n, cb in enumerate(cbs)]
        order = []
        while any(lists):
            for L in sorted(lists, key=lambda L: -len(L)):
                if L: order.append(L.pop(0))
        fill = creads(FBUF[half ^ 1], amax)
        for k, (n, aa, bb) in enumerate(order):
            d = vr(CA+4*n, 4)
            a(f"v_mfma_f32_16x16x32_bf16 {d}, {vr(F+4*aa,4)}, {vr(F+32+4*bb,4)}, {d}")
            for _ in range(2):
                if fill: a(fill.pop(0))
        for x in fill: a(x)
    a(f"""
s_sub_u32 s21, s21, 1
s_cmp_lg_u32 s21, 0
s_cbranch_scc1 k_cl{sidx}
v_add_u32 v26, s14, v221
""")
    stamp(10)
    for n, cb in enumerate(cbs): a(f"ds_read_b64 {vr(32+2*n,2)}, v26 offset:{8832+512*cb}")
    a(f"""
s_mul_i32 s15, s60, {UTP}
s_add_u32 s15, s15, {AT}
v_add_u32 v27, s15, v221
s_waitcnt lgkmcnt(0)
""")
    for n, cb in enumerate(cbs):
        R = CA+4*n
        a(f"""
v_lshlrev_b32 v40, 16, v{32+2*n}
v_and_b32 v41, 0xffff0000, v{32+2*n}
v_lshlrev_b32 v42, 16, v{33+2*n}
v_and_b32 v43, 0xffff0000, v{33+2*n}
v_fmac_f32 v{R}, v40, v244
v_fmac_f32 v{R+1}, v41, v244
v_fmac_f32 v{R+2}, v42, v244
v_fmac_f32 v{R+3}, v43, v244
v_cvt_pk_bf16_f32 v{R}, v{R}, v{R+1}
v_cvt_pk_bf16_f32 v{R+1}, v{R+2}, v{R+3}
global_store_dwordx2 v27, {vr(R,2)}, s[40:41] offset:{512*cb} sc1
""")
    if sidx == 0: a("s_branch k_pub")
a.label("k_pub"); a.reset()
a(f"""
s_setprio 0
s_lshr_b32 s15, s2, 5
s_lshl_b32 s15, s15, 12
s_add_u32 s15, s15, {FL}
v_lshl_add_u32 v26, v1, 7, s15
s_waitcnt vmcnt(0)
""")
stamp(11)
def sig4():
    if "4" in OPT["sa"]:
        a("s_add_u32 s44, s40, s15\ns_addc_u32 s45, s41, 0\ns_mov_b32 s46, 1")
        for l in range(32): a(f"s_atomic_add s46, s[44:45], {l*128+12}")
    else: a("s_mov_b32 exec_hi, 0\nglobal_atomic_add v26, v29, s[40:41] offset:12 sc1\ns_mov_b64 exec, -1")
    a(f"""
v_lshrrev_b32 v14, 3, v1
v_and_b32 v15, 7, v1
v_lshlrev_b32 v15, 4, v15
v_mul_u32_u24 v16, {UTP}, v14
v_mul_u32_u24 v17, {ATPI}, v14
s_mul_i32 s15, s12, {64*UTP}
s_and_b32 s13, s2, 7
s_lshl_b32 s13, s13, 2
s_add_u32 s13, s13, s8
s_lshl_b32 s13, s13, 7
s_add_u32 s15, s15, s13
s_add_u32 s15, s15, {AT}
v_add3_u32 v16, v16, v15, s15
v_add_u32 v17, v17, v15
v_add_u32 v17, {CS[0]}, v17
s_mov_b32 s27, 0
""")
    check("k_c4", "s[28:29]", 12, 32, 13, sleep=2)
    stamp(12)
    for i in range(8):
        a(f"global_load_dwordx4 {vr(32+4*i,4)}, v16, s[40:41] sc1")
        if i < 7: a(f"v_add_u32 v16, {8*UTP}, v16")
    for i in range(8):
        a(f"s_waitcnt vmcnt({7-i})")
        a(f"ds_write_b128 v17, {vr(32+4*i,4)} offset:{8*i*ATPI}")
last_of4("k_fw0" if OPT["fwarm"] else "k_final", 12, 28, sig4)
a("s_branch k_final")

HP_ = ['\ns_cmp_eq_u32 s3, 0\ns_cbranch_scc0 k_hw0\ns_mov_b32 s59, 400\nk_h0:\ns_load_dword s27, s[28:29], 4 glc\ns_waitcnt lgkmcnt(0)\ns_cmp_eq_u32 s27, 14\ns_cbranch_scc1 k_hok0\ns_sleep 2\ns_sub_u32 s59, s59, 1\ns_cmp_lg_u32 s59, 0\ns_cbranch_scc1 k_h0\nk_hok0:\nv_mov_b32 v12, s27\nds_write_b32 v24, v12\ns_waitcnt lgkmcnt(0)\nk_hw0:\ns_barrier\nds_read_b32 v12, v24\ns_waitcnt lgkmcnt(0)\nv_readfirstlane_b32 s27, v12\ns_barrier\ns_cmp_eq_u32 s27, 14\ns_cbranch_scc0 k_hend\n', '\ns_cmp_eq_u32 s3, 0\ns_cbranch_scc0 k_hw1\ns_mov_b32 s59, 400\nk_h1:\ns_load_dword s27, s[28:29], 8 glc\ns_waitcnt lgkmcnt(0)\ns_cmp_eq_u32 s27, 14\ns_cbranch_scc1 k_hok1\ns_sleep 2\ns_sub_u32 s59, s59, 1\ns_cmp_lg_u32 s59, 0\ns_cbranch_scc1 k_h1\nk_hok1:\nv_mov_b32 v12, s27\nds_write_b32 v24, v12\ns_waitcnt lgkmcnt(0)\nk_hw1:\ns_barrier\nds_read_b32 v12, v24\ns_waitcnt lgkmcnt(0)\nv_readfirstlane_b32 s27, v12\ns_barrier\ns_cmp_eq_u32 s27, 14\ns_cbranch_scc0 k_hend\n']
a.label("k_spare"); a.reset()
a(f"""
s_sub_u32 s6, s2, 224                ; r
s_lshl_b32 s13, s6, 3
s_add_u32 s13, s13, s3               ; u 0..255
s_mov_b32 s59, s13
s_mul_i32 s60, s13, 7168             ; x rows 8u..8u+7
s_mul_i32 s61, s3, {8*912}
v_min_u32 v5, 48, v1
s_lshr_b32 s14, s13, 1
s_mul_i32 s14, s14, 49
v_add_lshl_u32 v6, v5, s14, 8
s_mul_i32 s14, s13, 49
v_add_lshl_u32 v5, v5, s14, 7
v_mov_b64 v[24:25], 0
v_mov_b64 v[26:27], 0
s_lshl_b32 s14, s6, 10
s_add_u32 s14, s14, {FL}
v_add_u32 v13, s14, v10
v_mov_b32 v7, 1
s_lshl_b32 s13, s8, 3
s_add_u32 s13, s13, s3
s_lshr_b32 s14, s13, 1
s_mul_i32 s14, s14, 28
v_add_u32 v2, s14, v20
v_min_u32 v3, 6, v22
v_lshlrev_b32 v3, 8, v3
s_mul_i32 s14, s9, 1792
s_add_u32 s14, s14, 128
v_add_u32 v3, s14, v3
s_and_b32 s13, s13, 1
s_cmp_eq_u32 s13, 0
s_waitcnt lgkmcnt(0)
s_cselect_b32 s44, s32, s34
s_cselect_b32 s45, s33, s35
s_cmp_eq_u32 s3, 0
s_cbranch_scc0 k_r0
global_store_dwordx4 v13, v[24:27], s[40:41] sc1
s_waitcnt vmcnt(0)
s_mov_b64 exec, 1
global_atomic_add v24, v7, s[98:99] sc1
s_mov_b64 exec, -1
k_r0:
s_mov_b32 s48, s16
s_mov_b32 s49, s17
s_mov_b32 s50, 1835008
s_mov_b32 exec_hi, 0x00ffffff
""")
P = 912
for r in range(8):
    a(f"s_add_u32 m0, s61, {r*P}\ns_add_u32 s58, s60, {r*896}\nbuffer_load_dwordx4 v10, s[48:51], s58 offen lds")
a("s_mov_b32 exec_hi, -1\nv_lshlrev_b32 v30, 4, v22")
for i in range(7): a(f"global_load_dwordx4 {vr(64+4*i,4)}, v30, s[38:39] offset:{i*128}")
ntouch = 0
a(f"""
v_mul_u32_u24 v31, {P}, v20
v_add3_u32 v31, v31, v30, s61
v_and_b32 v48, 3, v1
v_lshrrev_b32 v49, 5, v1
v_lshl_add_u32 v48, v49, 2, v48
v_bfe_u32 v49, v1, 2, 2
v_lshl_add_u32 v48, v48, 3, v49
v_mul_u32_u24 v48, {P}, v48
v_bfe_u32 v49, v1, 4, 1
v_lshl_add_u32 v48, v49, 3, v48
s_mul_i32 s13, s3, 112
v_add_u32 v48, s13, v48
v_and_b32 v49, 4, v1
v_lshlrev_b32 v49, 3, v49
v_and_b32 v50, 32, v1
v_lshrrev_b32 v50, 1, v50
v_and_b32 v51, 3, v1
v_lshlrev_b32 v51, 2, v51
v_add3_u32 v49, v49, v50, v51
v_bfe_u32 v50, v1, 3, 2
v_add_lshl_u32 v49, v49, v50, 2
; store: d = 56w + 8X + (l>>3) ; t0 = 64r
s_mul_i32 s13, s3, 56
v_add_u32 v50, s13, v20
v_mul_u32_u24 v50, {UTP}, v50
s_lshl_b32 s13, s6, 7
s_add_u32 s13, s13, {UT}
v_add3_u32 v50, v50, v30, s13
s_waitcnt vmcnt({ntouch})
""")
for i in range(7): a(f"ds_read_b128 {vr(96+4*i,4)}, v31 offset:{i*128}")
a("s_barrier")
stamp(1)
a("v_mov_b32 v8, v5")
for X in range(7):
    a(f"ds_read_b64_tr_b16 {vr(128+4*X,2)}, v48 offset:{X*16}\nds_read_b64_tr_b16 {vr(130+4*X,2)}, v48 offset:{X*16+4*P}")
a("v_mov_b64 v[60:61], 0\ns_waitcnt lgkmcnt(14)")
for i in range(28): a(f"v_dot2c_f32_bf16 v{60+(i&1)}, v{96+i}, v{64+i}")
a("s_waitcnt lgkmcnt(0)")
for X in range(7):
    for q in range(4): a(f"ds_bpermute_b32 v{160+4*X+q}, v49, v{128+4*X+q}")
    if X >= 2:
        a(f"s_waitcnt lgkmcnt(8)\nglobal_store_dwordx4 v50, {vr(160+4*(X-2),4)}, s[40:41] sc1\nv_add_u32 v50, {8*UTP}, v50")
for X in (5, 6):
    a(f"s_waitcnt lgkmcnt({4*(6-X)})\nglobal_store_dwordx4 v50, {vr(160+4*X,4)}, s[40:41] sc1\nv_add_u32 v50, {8*UTP}, v50")
a(f"""
v_add_f32 v60, v60, v61
v_add_f32_dpp v60, v60, v60 quad_perm:[1,0,3,2] row_mask:0xf bank_mask:0xf
v_add_f32_dpp v60, v60, v60 quad_perm:[2,3,0,1] row_mask:0xf bank_mask:0xf
v_add_f32_dpp v60, v60, v60 row_half_mirror row_mask:0xf bank_mask:0xf
v_cvt_pk_bf16_f32 v60, v60, v60
v_and_b32 v60, 0xffff0000, v60
v_mul_f32 v60, {fbits(-LOG2E)}, v60
v_exp_f32 v60, v60
v_add_f32 v60, 1.0, v60
v_rcp_f32 v60, v60
v_cvt_pk_bf16_f32 v60, v60, v60
v_and_b32 v60, 0xffff0000, v60
v_sub_f32 v61, 1.0, v60
v_cvt_pk_bf16_f32 v60, v60, v61
s_lshl_b32 s13, s59, 5
s_add_u32 s13, s13, {GG}
v_lshl_add_u32 v54, v20, 2, s13
global_store_dword v54, v60, s[40:41] sc1
v_min_u32 v5, 55, v1
s_mul_i32 s13, s7, 56
v_add_lshl_u32 v5, v5, s13, 7
v_add_u32 v5, {FL}, v5
global_load_dword v6, v24, s[98:99] sc1
s_waitcnt vmcnt(0)
s_barrier
""")
stamp(2)
if "1" not in OPT["sa"]: a("s_cmp_lt_u32 s3, 4\ns_cbranch_scc0 k_r2")
a(f"""
s_mov_b32 s59, {SPIN}
k_r1:
v_readfirstlane_b32 s58, v6
s_cmp_ge_u32 s58, 32
s_cbranch_scc1 k_r1d
s_sub_u32 s59, s59, 1
s_cmp_eq_u32 s59, 0
s_cbranch_scc1 k_r1d
global_load_dword v6, v24, s[98:99] sc1
s_waitcnt vmcnt(0)
s_branch k_r1
k_r1d:
""")
if "1" in OPT["sa"]:
    a(f"s_mul_i32 s13, s3, {28*128}\ns_add_u32 s13, s13, {FL}\ns_add_u32 s44, s40, s13\ns_addc_u32 s45, s41, 0\ns_mov_b32 s46, 1")
    for l in range(28): a(f"s_atomic_add s46, s[44:45], {l*128}")
else: a("s_mov_b32 exec_hi, 0x00ffffff\nglobal_atomic_add v5, v7, s[40:41] sc1\ns_mov_b32 exec_hi, -1")
a("""
k_r2:
""")
def wdpf(half):
    a(f"""
s_lshl_b32 s60, s8, 3
s_add_u32 s60, s60, s3
s_mul_i32 s60, s60, 1792
s_add_u32 s60, s60, {57344*half}
k_pf{half}:
buffer_load_dwordx4 v[96:99], v10, s[52:55], s60 offen
buffer_load_dwordx4 v[96:99], v9, s[52:55], s60 offen
s_add_u32 s60, s60, 114688
s_cmp_lt_u32 s60, 1605632
s_cbranch_scc1 k_pf{half}
""")
if not OPT["mt"]: a("global_load_dword v0, v8, s[36:37]" + ("\ns_waitcnt vmcnt(0)" if OPT["hpf"] else ""))
a("s_mov_b32 s52, s36\ns_mov_b32 s53, s37\nv_add_u32 v9, 1024, v10\nv_min_u32 v9, 1776, v9")
if OPT["hpf"] & 2: wdpf(0)
if OPT["hpf"] & 1: wdpf(1)
stamp(3)
if OPT["hh"]:
    own_line()
    a("""
s_and_b32 s13, s2, 7
s_lshl_b32 s13, s13, 2
s_add_u32 s13, s13, s8
s_mul_i32 s13, s13, 229376
s_mul_i32 s58, s3, 14336
s_add_u32 s13, s13, s58
v_add_u32 v9, s13, v10
""")
    for p in range(2):
        a(HP_[p])
        stamp(4+p)
        for i in range(14):
            a(f"global_load_dwordx4 v[96:99], v9, s[40:41] offset:{(i%4)*1024} sc1")
            if i % 4 == 3: a("v_add_u32 v9, 4096, v9")
        a(f"v_add_u32 v9, {114688-3*4096}, v9")
    a("k_hend:")
stamps_out(15)
a("s_endpgm")

a.label("k_y"); a.reset()
stamp(1)
vy.wait("X0", extra=" lgkmcnt(0)")
stamp(3)
bar(0)
stamp(4)
if OPT["xw"]: a("s_add_u32 s57, s57, 229376\ns_cmp_eq_u32 s57, 1605632\ns_cselect_b32 s57, 0, s57")
elif not OPT["w1"]: dmaw(vy, 1)
if OPT["xw"] == 2: a("s_add_u32 s56, s56, 128\ns_cmp_eq_u32 s56, 896\ns_cselect_b32 s56, 0, s56")
else: dmax(vy, 1)
dmaw(vy, 2); dmax(vy, 2)
a("""
s_and_b32 s13, s7, 2
s_mul_i32 s13, s13, 4608
v_add_u32 v16, s13, v10
v_lshl_add_u32 v17, v1, 3, s13
v_lshl_add_u32 v18, v1, 2, s13
""")
G = lambda w: 32 + 16*w
def gather(w):
    o = (0, 4608, 18432, 23040)[w] + 64; R = G(w)
    a(f"""
ds_read_b128 {vr(R,4)}, v16 offset:{o}
ds_read_b64 {vr(R+4,2)}, v17 offset:{o+1024}
ds_read_b64 {vr(R+6,2)}, v17 offset:{o+1536}
ds_read_b32 v{R+8}, v16 offset:{o-4}
ds_read_b32 v{R+9}, v17 offset:{o+1032}
ds_read_b32 v{R+10}, v17 offset:{o+1020}
ds_read_b32 v{R+11}, v17 offset:{o+1544}
ds_read_b32 v{R+12}, v18 offset:{o+2048}
ds_read_b32 v{R+13}, v18 offset:{o+2052}
ds_read_b32 v{R+14}, v18 offset:{o+2304}
ds_read_b32 v{R+15}, v18 offset:{o+2308}
""")
gather(3); gather(0)
if OPT["xw"] != 2: vy.wait("X1")
bar(1)
dmaw(vy, 3)
gather(1)
dmax(vy, 3)
vy.wait("X2", extra=" lgkmcnt(0)")
bar(2)
dmaw(vy, 4)
gather(2)
dmax(vy, 4)
vy.wait("X3", extra=" lgkmcnt(0)")
bar(3)
dmaw(vy, 5)
for i in range(16): a(f"v_add_f32 v{G(0)+i}, v{G(0)+i}, v{G(1)+i}\nv_add_f32 v{G(2)+i}, v{G(2)+i}, v{G(3)+i}")
dmax(vy, 5)
vy.wait("X4")
bar(4)
stamp(5)
dmaw(vy, 6)
for i in range(16): a(f"v_add_f32 v{G(0)+i}, v{G(0)+i}, v{G(2)+i}")
k0,k1,k2,k3,a1,b1,a2,b2,km,c1,pp,c2,a3,b3,a4,b4 = range(32, 48)
EW = 204
def cv(i, lo, hi): a(f"v_cvt_pk_bf16_f32 v{EW+i}, v{lo}, v{hi}")
a(f"""
v_and_b32 v19, 1, v1
v_cmp_eq_u32 vcc, 0, v19
v_cndmask_b32 v48, v{b3}, v{a3}, vcc
v_cndmask_b32 v49, v{b4}, v{a4}, vcc
v_cmp_ne_u32 vcc, 0, v1
v_cndmask_b32 v{km}, 0, v{km}, vcc
v_cndmask_b32 v{pp}, v{pp}, v{a1}, vcc
""")
dmax(vy, 6)
a("s_load_dword s27, s[98:99], 0")
vy.wait("X5")
bar(5)
dmaw(vy, 7)
cv(5, b2, b2); cv(7, a2, a2); cv(8, b3, b3); cv(10, a3, a3); cv(11, a3, a3); cv(12, b4, b4); cv(14, a4, a4); cv(15, a4, a4)
a("s_cmp_eq_u32 s61, 0\ns_cbranch_scc0 k_eo")
cv(0, k3, k2); cv(1, k1, k0); cv(2, c1, b1); cv(3, a1, a1); cv(4, c2, c2); cv(6, b2, a2); cv(9, b3, 48); cv(13, b4, 49)
a("s_branch k_ew\nk_eo:")
cv(0, k2, k1); cv(1, k0, km); cv(2, b1, a1); cv(3, a1, pp); cv(4, c2, b2); cv(6, a2, a2); cv(9, 48, a3); cv(13, 49, a4)
a("k_ew:")
pass_first_addr(1)
a(f"""
v_lshrrev_b32 v20, 3, v1
v_and_b32 v22, 7, v1
v_mul_u32_u24 v160, 896, v20
v_and_b32 v161, 6, v20
v_xor_b32 v161, v161, v22
v_lshl_add_u32 v160, v161, 4, v160
v_add_u32 v161, 6144, v160
v_add_u32 v162, 12288, v160
v_add_u32 v163, 18432, v160
v_bfe_u32 v164, v1, 2, 3
v_lshlrev_b32 v164, 7, v164
v_lshrrev_b32 v165, 5, v1
v_lshl_add_u32 v164, v165, 11, v164
v_bfe_u32 v165, v1, 3, 2
v_lshl_add_u32 v164, v165, 5, v164
v_and_b32 v165, 3, v1
v_lshl_add_u32 v164, v165, 3, v164
v_add_u32 v164, s14, v164
v_xor_b32 v165, 32, v164
v_xor_b32 v166, 64, v164
v_xor_b32 v167, 96, v164
""")
if not OPT["rot2"]: a("s_mov_b32 s42, 0")
vy.wait("X6", extra=" lgkmcnt(0)")
bar(6)
dmaw(vy, 8)
a(f"""
s_mul_i32 s13, s61, 4160
s_add_u32 s13, s13, s24
v_lshlrev_b32 v220, 3, v1
v_sub_u32 v220, s13, v220
v_sub_u32 v221, s13, v10
v_min_u32 v48, 39, v1
v_lshlrev_b32 v48, 4, v48
v_add_u32 v222, 8256, v48
v_add_u32 v50, {4096-36*16}, v48
v_cmp_gt_u32 vcc, 36, v1
v_cndmask_b32 v222, v50, v222, vcc
v_add_u32 v222, s24, v222
v_mov_b32 v224, 0
v_mov_b32 v225, 0
v_mov_b32 v226, 0
v_mov_b32 v227, 0
v_mov_b32 v52, 0
s_mov_b32 s59, {SPIN}
k_c0_l:
s_cmp_ge_u32 s27, 32
s_cbranch_scc1 k_c0_d
s_sub_u32 s59, s59, 1
s_cmp_eq_u32 s59, 0
s_cbranch_scc1 k_c0_d
s_sleep 4
global_load_dword v53, v52, s[98:99] sc1
s_waitcnt vmcnt(0)
v_readfirstlane_b32 s27, v53
s_branch k_c0_l
k_c0_d:
""")
hsig_addr(12)
a(f"""
s_mov_b32 s19, 0x20000
s_mov_b32 s23, 0x20000
v_mov_b32 v168, {CNT}
v_mov_b32 v169, 1
""")
vy.wait("W7")
bar(7)
stamp(6)
FINA = [l.split(";")[0].strip() for l in f"""
s_lshr_b32 s13, s3, 1                ; tb
s_and_b32 s58, s3, 1
s_lshl_b32 s58, s58, 2
v_and_b32 v2, 15, v1                 ; t in block
v_lshrrev_b32 v3, 4, v1
v_add_u32 v3, s58, v3                ; dg
s_lshl_b32 s59, s13, 14
v_lshlrev_b32 v5, 1, v3
v_xor_b32 v5, v5, v2
v_lshlrev_b32 v5, 4, v5
v_lshl_add_u32 v5, v2, 8, v5
v_add_u32 v5, s59, v5
v_xor_b32 v6, 16, v5
s_lshl_b32 s13, s13, 4
v_add_u32 v2, s13, v2                ; t in tile
v_lshlrev_b32 v7, 2, v2
v_add_u32 v7, {GL}, v7
s_and_b32 s58, s2, 7
s_lshl_b32 s58, s58, 2
s_add_u32 s58, s58, s8
s_lshl_b32 s58, s58, 6
v_add_u32 v4, s58, v2
v_mul_u32_u24 v4, 896, v4
v_lshl_add_u32 v4, v3, 4, v4
s_lshl_b32 s58, s12, 7
v_add_u32 v4, s58, v4                ; out offset
v_bfe_u32 v8, v1, 2, 2
v_lshl_add_u32 v8, v3, 3, v8
v_mul_u32_u24 v8, {ATPI}, v8
v_and_b32 v9, 3, v1
v_lshl_add_u32 v8, v9, 3, v8
s_lshl_b32 s13, s13, 1
s_add_u32 s13, s13, {CS[0]}
v_add_u32 v8, s13, v8
""".strip().split("\n")]
vg = VM()
ACC2 = 16; AF = [172, 188]; RING = [204, 220, 236, 80, 96, 112, 144]
WS8 = RSL + [WR[2]]
def ldw_l(n):
    p, i = divmod(n, 7)
    o = f"s_add_u32 m0, s14, {WS8[n % 8]}\n" + (f"s_add_u32 s{SW[i]}, s{SW[i]}, 57344" if p else "s_nop 0")
    return [o] + [(f"buffer_load_dwordx4 v{160+k}, s[20:23], s{SW[i]} offen offset:{k*1024} lds", f"w{n}") for k in range(4)]
def ldh_l(n):
    p, i = divmod(n, 7)
    o = [f"s_add_u32 s{SH[i]}, s{SH[i]}, 114688"] if p else []
    return o + [(f"buffer_load_dwordx4 {vr(RING[i]+4*k,4)}, v10, s[16:19], s{SH[i]} offen offset:{k*1024} sc1", f"h{n}") for k in range(4)]
def emit(l):
    for x in l:
        if isinstance(x, tuple): vg.op(*x)
        else: a(x)
def uhalf(st, hs, extra, early=[], lg=0):
    F = FB[hs]; Fn = FB[hs ^ 1]
    mm = []
    for k2 in range(2):
        for fa in range(2):
            for tb in range(2):
                d = vr(acc(2*fa+tb), 16)
                mm.append(f"v_mfma_f32_32x32x16_bf16 {d}, {vr(F+16*k2+4*fa,4)}, {vr(F+16*k2+8+4*tb,4)}, {d}")
    a(f"s_waitcnt lgkmcnt({lg})")
    if hs == 0: fill = reads(1, Fn) + (VADDR(XA[(st+1) % 7], WA[st+1]) if st < 13 else [])
    else:
        if st == 10:
            a(mm.pop(0)); a("s_barrier"); stamp(7)
            if OPT["yprio"]: a(f"s_setprio {OPT['yprio']}")
        fill = reads(0, Fn) if st < 13 else []
    fill = fill + extra
    per = max(3, -(-len(fill) // len(mm)))
    for i, m in enumerate(mm):
        a(m)
        if early: emit([early.pop(0)]);
        if early and not isinstance(early[0], tuple): pass
        emit(fill[:per]); fill = fill[per:]
    emit(early); emit(fill)
def flat(l):
    out = []
    for x in l: out.append(x)
    return out
KW = [f"ds_write_b64 v220, v[204:205] offset:4088", f"ds_write_b64 v220, v[206:207] offset:{4088-512}", f"ds_write_b128 v221, v[208:211] offset:{4080-1024}",
      f"ds_write_b128 v221, v[212:215] offset:{4080-2048}", f"ds_write_b128 v221, v[216:219] offset:{4080-3072}", "ds_write_b128 v222, v[224:227]",
      "s_mov_b64 exec, 1\nds_add_u32 v168, v169\ns_mov_b64 exec, -1"]
def split(l):
    out = []
    for x in l:
        if isinstance(x, tuple): out.append(x)
        else: out += x.split("\n")
    return out
YS = ["s_mov_b64 exec, 1\nds_add_u32 v168, v169 offset:4\ns_mov_b64 exec, -1", "ds_read_b32 v170, v168 offset:4"]
pass_call(1, 3, 3)
uhalf(10, 0, [])
uhalf(10, 1, KW)
uhalf(11, 0, [], lg=7)
uhalf(11, 1, split(ldw_l(0)))
uhalf(12, 0, [])
uhalf(12, 1, split(ldw_l(1)))
uhalf(13, 0, [])
uhalf(13, 1, YS)
stamp(8)
EL = epi_list(0) + epi_list(1) + epi_list(2) + epi_list(3)
run_epi(vg, EL, 8)
a(f"""
s_mov_b32 s59, {SPIN}
k_ys:
s_waitcnt lgkmcnt(0)
v_readfirstlane_b32 s58, v170
s_cmp_eq_u32 s58, 4
s_cbranch_scc1 k_ysd
ds_read_b32 v170, v168 offset:4
s_sub_u32 s59, s59, 1
s_cmp_lg_u32 s59, 0
s_cbranch_scc1 k_ys
k_ysd:
""")
LQ = ldw_l(2) + ldw_l(3) + ldw_l(4) + ldw_l(5) + ["PP"] + ldw_l(6)
while LQ or EL:
    while LQ:
        x = LQ.pop(0)
        if x == "PP": pre_poll("s[28:29]", 4); continue
        emit([x])
        if isinstance(x, tuple): break
    run_epi(vg, EL, OPT["vgap"])
stamp(9)
a("s_setprio 0")
def rda(n):
    F = AF[n & 1]
    out = [f"v_add_u32 v{128+db}, {WS8[n % 8]}, v{164+db}" for db in range(4)]
    return out + [f"ds_read_b64_tr_b16 {vr(F+4*db+2*hh,2)}, v{128+db} offset:{hh*1024}" for db in range(4) for hh in range(2)]
check("k_c2", "s[28:29]", 4, 14 if OPT["one"] == 1 else 56, 15); stamp(10)
PRE = [ldh_l(0), ldh_l(1), ldh_l(2), ldw_l(7), ldh_l(3), ldh_l(4)]
vg.wait("w0")
for x in rda(0): a(x)
for l in PRE[:OPT["ni"]]: emit(l)
vg.wait("st")
def sigy():
    if "3" in OPT["sa"]: return ssig_h(8)
    a(f"s_mov_b64 exec, {SIGM}\nglobal_atomic_add v12, v169, s[40:41] offset:8 sc1\ns_mov_b64 exec, -1")
if OPT["one"]:
    stamp(3)
    last_of4("k_s3", 16, 2, sigy); a.label("k_s3"); stamp(5)
else: sigy()
for l in PRE[OPT["ni"]:max(OPT["ni"], 4)]: emit(l)
wi, hi_ = 8, 3 + max(0, OPT["ni"]-4)
SCHS = {
 0: (6, ["h w", "h w", "h w", "h w", "w", "w", "h h h", "h", "h", "h", "h", "", "", ""]),
 1: (6, ["h w", "h w", "h w", "h w", "w", "w", "h h", "h h", "h", "h", "h", "", "", ""]),
 2: (5, ["h w", "h w", "h w", "h w", "w", "h h", "h w", "h", "h", "h", "h", "", "", ""]),
 3: (6, ["h h", "h h", "w w", "w w", "w", "w", "h h h", "h", "h", "h", "h", "", "", ""]),
 4: (5, ["h w", "h w", "h w", "h", "w", "h", "h w", "h w", "h", "h", "h", "h", "", ""]),
 6: (5, ["h w", "h", "h w", "h", "w", "h", "h w", "h", "h w", "h w", "h", "h", "", ""]),
 7: (5, ["h", "h w", "h", "h w", "w", "h", "h w", "h w", "h w", "h", "h", "h", "", ""]),
 8: (4, ["h w", "h w", "h", "h", "h", "h w", "h w", "h w", "h w", "h", "h", "", "", ""]),
 9: (5, ["h w", "h w", "h", "h", "w", "h", "h", "h w", "h w", "h w", "h", "h", "", ""]),
 10: (6, ["h w", "h w", "h", "h w", "w", "w", "h h", "h", "h w", "h", "h", "h", "", ""]),
 11: (5, ["h w", "h w", "h w", "h w", "w w", "h h", "h h", "h", "h", "h", "", "", "", ""]),
 12: (6, ["h w", "h w", "h w", "h w", "w", "w", "h h h", "h h", "h", "h", "", "", "", ""]),
 13: (5, ["h w", "h w", "h w", "h w", "w", "h h", "h w", "h", "h", "h", "h", "", "", ""]),
 14: (5, ["h w", "h w", "h w", "h", "w", "h h", "h w", "h w", "h", "h", "h", "", "", ""]),
 15: (4, ["h w", "h w", "h w", "h w", "h", "h w", "h w", "h", "h", "h", "h", "", "", ""]),
 16: (5, ["h w", "h w", "h h", "w", "w", "h h", "h w", "h w", "h", "h", "h", "", "", ""]),
 17: (5, ["h w", "h w", "h w", "h", "w", "h h", "h h", "h w", "h w", "h", "", "", "", ""]),
 18: (6, ["h w", "h w", "h w", "h", "w", "w", "h h h", "h w", "h", "h", "h", "", "", ""]),
 5: (4, ["h w", "h w", "h w", "h", "h", "h w", "h w", "h w", "h", "h", "h", "", "", ""]),
}
CK, SCH = SCHS[OPT["sch"]]
for n in range(14):
    F = AF[n & 1]; S = RING[n % 7]
    if n == CK:
        check("k_c3", "s[28:29]", 8, HT, 15); stamp(11)
    vg.wait(f"h{n}", *([f"w{n+1}"] if n < 13 else []), extra=" lgkmcnt(0)")
    if OPT["sw"] == 2: stamp(1+n, True)
    ld = []
    for t in SCH[n].split():
        if t == "h": ld += ldh_l(hi_); assert hi_ <= n + 6 and (hi_ < 7 or n >= CK) and hi_ > n; hi_ += 1
        else: ld += ldw_l(wi); assert wi <= n + 8 and wi > n + 1; wi += 1
    fill = rda(n+1) if n < 13 else []
    if n + 1 == CK: fill.insert(0, "s_load_dword s27, s[28:29], 8 glc")
    ext = []
    if n == 10: ext = ["v_and_b32 v132, 15, v1", "v_lshrrev_b32 v133, 4, v1", "v_xor_b32 v133, v133, v132", "v_lshlrev_b32 v133, 4, v133", "v_lshl_add_u32 v132, v132, 8, v133",
                       "v_add_u32 v132, s14, v132", "v_xor_b32 v133, 64, v132", "v_xor_b32 v134, 128, v132", "v_xor_b32 v135, 192, v132"]
    if n == 11: ext = FINA[:len(FINA)//2]
    if n == 12: ext = FINA[len(FINA)//2:]
    PW = [f"ds_write_b128 v{132+db}, {vr(ACC2+16*db+4*tb,4)} offset:{tb*16384}" for db in range(4) for tb in range(4)]
    j = 0
    nl = len([x for x in ld if isinstance(x, tuple)]); STR = max(1, 16 // nl) if nl else 1
    for db in range(4):
        for tb in range(4):
            d = vr(ACC2+16*db+4*tb, 4)
            a(f"v_mfma_f32_16x16x32_bf16 {d}, {vr(F+4*db,4)}, {vr(S+4*tb,4)}, " + ("0" if n == 0 else d))
            if fill: a(fill.pop(0))
            if ld and (j % STR == 0):
                x = ld.pop(0); emit([x])
                if not isinstance(x, tuple) and ld: emit([ld.pop(0)])
            if ext: a(ext.pop(0))
            if n == 13 and j >= 6: a(PW.pop(0))
            j += 1
    emit(ld)
    for x in ext: a(x)
    if n == 13:
        for x in PW: a(x)
assert wi == 14 and hi_ == 14
stamp(12)
a("s_branch k_fbar")
a.label("k_final"); a.reset()
for x in FINA: a(x)
a.label("k_fbar")
a("s_waitcnt lgkmcnt(0)")
if OPT["fwarm"]: a("s_cbranch_execz k_fw")
stamp(13)
a("s_barrier")
stamp(14)
a.label("k_fw")
for w in range(4):
    a(f"ds_read_b128 {vr(16+8*w,4)}, v5 offset:{w*4096}")
    a(f"ds_read_b128 {vr(20+8*w,4)}, v6 offset:{w*4096}")
a(f"""
ds_read_b64_tr_b16 v[48:49], v8
ds_read_b64_tr_b16 v[50:51], v8 offset:{4*ATPI}
ds_read_b32 v52, v7
s_waitcnt lgkmcnt(7)
""")
for i in range(0, 8, 2): a(f"v_pk_add_f32 {vr(16+i,2)}, {vr(16+i,2)}, {vr(24+i,2)}")
a("s_waitcnt lgkmcnt(3)")
for i in range(0, 8, 2): a(f"v_pk_add_f32 {vr(32+i,2)}, {vr(32+i,2)}, {vr(40+i,2)}")
for i in range(0, 8, 2): a(f"v_pk_add_f32 {vr(16+i,2)}, {vr(16+i,2)}, {vr(32+i,2)}")
a("s_waitcnt lgkmcnt(0)\nv_lshlrev_b32 v54, 16, v52\nv_and_b32 v55, 0xffff0000, v52")
for i in range(4):
    a(f"v_lshlrev_b32 v{24+2*i}, 16, v{48+i}\nv_and_b32 v{25+2*i}, 0xffff0000, v{48+i}")
for i in range(0, 8, 2): a(f"v_pk_mul_f32 {vr(16+i,2)}, {vr(16+i,2)}, v[54:55] op_sel:[0,1] op_sel_hi:[1,1]")
for i in range(0, 8, 2): a(f"v_pk_fma_f32 {vr(16+i,2)}, {vr(24+i,2)}, v[54:55], {vr(16+i,2)} op_sel_hi:[1,0,1]")
for i in range(4): a(f"v_cvt_pk_bf16_f32 v{32+i}, v{16+2*i}, v{17+2*i}")
if OPT["fwarm"]: a("s_cbranch_execz k_fw2")
a("global_store_dwordx4 v4, v[32:35], s[96:97] sc0 sc1")
stamps_out(15)
a.label("k_end")
a("s_endpgm")
if OPT["fwarm"]: a("k_fw2:\ns_mov_b64 exec, -1\ns_branch k_final\nk_fw0:\ns_mov_b64 exec, 0\ns_branch k_part")
emit_pass()
a.label("code_end")

hdr = open("cdna_kernels/%s.s.ref" % NAME).read().split("; Override launch")[0]
out = hdr + f"; @launch grid=(256,1,1) block=(512,1,1) lds={LDS}\n"
out += '.amdgcn_target "amdgcn-amd-amdhsa--gfx950"\n' + a.text()
out += f""".section .rodata,"a"
.p2align 6
.amdhsa_kernel {KN}
  .amdhsa_next_free_vgpr 256
  .amdhsa_next_free_sgpr 102
  .amdhsa_accum_offset 256
  .amdhsa_group_segment_fixed_size 0
  .amdhsa_kernarg_size 136
  .amdhsa_user_sgpr_count 2
  .amdhsa_user_sgpr_kernarg_segment_ptr 1
  .amdhsa_system_sgpr_workgroup_id_x 1
.end_amdhsa_kernel
"""
open(sys.argv[1], "w").write(out)
print("written", sys.argv[1], "lines", len(a.lines), "nops", a.nops, "")
```

```python
import sys, math, struct
from asm import *

NAME = "gated_mix__ssm_conv_s4__swiglu_ffn__prompt"
KN = NAME + "_kernel"
WDP = 0x800000
HP, UT, AT, GG, FL = 0, 0xA00000, 0xE00000, 0x1000000, 0x1010000
UTP = 4224
def fbits(x): return "0x%08x" % struct.unpack("<I", struct.pack("<f", x))[0]
LOG2E = 1.4426950408889634
OPT = dict(ntx="", ntw="", ntp="nt", stamp=0, cprio=0, yprio=1, warm=0, fwarm=0, rpg=2, w1=1, sw=0, wsig=1, xt=1, xwd=0, rot2=1, ht=0, xs1=26, xs2=26, xs3=48, vgap=9, HD=4, CK=5, xprio=2, one=1, ni=2, sch=4, cpf=0, pb=0, xw=1, w2=0, trim=1, wso=0, sa="234")
for a_ in sys.argv[2:]:
    k, v = a_.split("="); OPT[k] = v if k == "sa" else int(v) if v.lstrip("-").isdigit() else v
a = Asm()
SPIN = 40000
HT = 14 if OPT["one"] else 56

def cmuls(lst):
    for d, x, y in lst:
        assert d != x and d != y
        a(f"v_pk_mul_f32 {vr(d,2)}, {vr(x,2)}, {vr(y,2)} op_sel_hi:[1,0]")
    for d, x, y in lst:
        a(f"v_pk_fma_f32 {vr(d,2)}, {vr(x,2)}, {vr(y,2)}, {vr(d,2)} op_sel:[1,1,0] op_sel_hi:[0,1,1] neg_lo:[1,0,0]")
def bar(n):
    k = (n - 1) if n < 8 else (n - 8)
    if OPT["sw"] == 1 and n >= 1: stamp(1+2*k, True)
    a("s_barrier")
    if OPT["sw"] == 1 and n >= 1: stamp(2+2*k, True)
_seen1 = [0]
_j = [0]
def stamp(idx, force=False):
    if OPT.get("jit") and idx not in (0,):
        _j[0] += 1; k = _j[0]
        a(f"""s_cselect_b32 s66, 1, 0
s_mul_i32 s64, s2, {3+2*(k % 5)}
s_add_u32 s64, s64, s3
s_add_u32 s64, s64, {k*OPT["jit"]}
s_and_b32 s64, s64, 3
s_cmp_eq_u32 s64, 0
s_cbranch_scc0 k_jit{k}
s_sleep {20 + 13*(k % 4)}
k_jit{k}:
s_cmp_eq_u32 s66, 1""")
        return
    if OPT.get("es") and idx == 1:
        _seen1[0] += 1
        if _seen1[0] in (2, 4): return
    if OPT["sw"] and not force and idx not in (0, 15): return
    if OPT["stamp"]: a(f"{'s_memtime' if OPT['stamp']==2 else 's_memrealtime'} s[{64+2*idx}:{65+2*idx}]")
_so = [0]
def stamps_out(idx):
    _so[0] += 1
    if _so[0] == 1: return
    L = OPT["leak"]
    a("s_waitcnt vmcnt(0)")
    stamp(idx)
    a(f"""
s_waitcnt lgkmcnt(0)
s_cmp_lt_u32 s3, 4
s_cbranch_scc1 k_end
s_sub_u32 s13, s{64+2*L}, s64
s_add_u32 s13, s13, s94
k_lk:
s_memrealtime s[58:59]
s_waitcnt lgkmcnt(0)
s_sub_u32 s58, s58, s13
s_cmp_lt_i32 s58, 0
s_cbranch_scc1 k_lk
""")
def stamps_init():
    if OPT["stamp"]:
        for i in range(1,16): a(f"s_mov_b32 s{64+2*i}, 0")
        stamp(0)

class VM:
    def __init__(self): self.q = []
    def op(self, text, tag):
        a(text); self.q.append(tag)
    def n_for(self, *tags):
        idx = max(i for i, t in enumerate(self.q) if t in tags)
        return len(self.q) - 1 - idx
    def wait(self, *tags, extra=""):
        n = self.n_for(*tags); assert n <= 63
        a(f"s_waitcnt vmcnt({n}){extra}")

XA = [98304, 49152, 65536, 81920, 32768, 0, 16384]
WR = [114688, 131072, 147456]
WA = [WR[s % 3] for s in range(10)] + [WR[1], XA[0], WR[2], XA[1]]
CS = [XA[2], WR[0]]
RSL = [XA[3], WR[1], XA[4], XA[5], XA[6], XA[0], XA[1]]
TABO = 12992
CNT = CS[0] + 16064
GL = CS[1] + 16064
ATPI = 144
LDS = 163840

a.raw(f".text\n.globl {KN}\n.p2align 8\n.type {KN},@function\n{KN}:")
a("""
s_cmp_ge_u32 s2, 256
s_cbranch_scc1 k_end
s_add_u32 s2, s2, 224
s_and_b32 s2, s2, 255
""")
stamps_init()
a("""
s_load_dwordx16 s[16:31], s[0:1], 0
s_load_dwordx8 s[32:39], s[0:1], 80
s_load_dwordx2 s[40:41], s[0:1], 128
s_load_dwordx4 s[96:99], s[0:1], 112
s_getpc_b64 s[4:5]
k_pc:
v_lshrrev_b32 v2, 6, v0
v_and_b32 v1, 63, v0
v_readfirstlane_b32 s3, v2
s_lshr_b32 s6, s2, 3                 ; j
s_and_b32 s8, s6, 3                  ; rbl
; code prefetch into L2: line = rbl*56 + wave*7 + min(lane,6)
s_mul_i32 s7, s8, 6144
v_min_u32 v3, 5, v1
v_mad_u32_u24 v3, v2, 6, v3
v_lshlrev_b32 v3, 7, v3
v_add_u32 v3, s7, v3
v_min_u32 v3, code_end-k_pc-4, v3
CPF
s_and_b32 s7, s3, 3
s_lshr_b32 s14, s7, 1
s_lshl_b32 s60, s2, 1
s_add_u32 s60, s60, s14
s_lshl_b32 s13, s60, 9
s_and_b32 s14, s7, 1
s_lshl_b32 s14, s14, 7
s_add_u32 s13, s13, s14
s_and_b32 s14, s3, 4
s_lshl_b32 s14, s14, 6
s_add_u32 s13, s13, s14
v_lshl_add_u32 v8, v1, 1, s13
s_lshl_b32 s14, s60, 1
v_mov_b32 v9, s14
s_cmp_ge_u32 s2, 224
s_cbranch_scc1 k_npl
s_waitcnt lgkmcnt(0)
global_load_ushort v238, v9, s[30:31]
global_load_ushort v239, v8, s[18:19] nt
global_load_ushort v11, v8, s[20:21] nt
global_load_ushort v12, v8, s[22:23] nt
global_load_ushort v216, v8, s[24:25] nt
global_load_ushort v217, v8, s[26:27] nt
global_load_ushort v218, v8, s[28:29] nt
k_npl:
WSO
s_and_b32 s10, s2, 6
s_lshl_b32 s10, s10, 1
s_add_u32 s10, s10, s8               ; rb128
s_and_b32 s9, s2, 1
s_mul_i32 s11, s9, 7
s_lshr_b32 s12, s6, 2                ; fbl (7 = spare WG)
s_add_u32 s11, s11, s12              ; fb128
v_lshlrev_b32 v10, 4, v1
s_lshl_b32 s42, s8, 1
s_add_u32 s42, s42, s12
s_sub_u32 s43, s42, 7
s_cmp_ge_u32 s42, 7
s_cselect_b32 s42, s43, s42          ; rot
; W DMA voffsets v14,v15: row k = 16q+8i+(l>>3); chunk16 = (l&7) ^ (((l>>4)&1)<<1) ^ (i<<2)
v_lshrrev_b32 v20, 3, v1
v_lshrrev_b32 v21, 4, v1
v_and_b32 v22, 7, v1
s_lshl_b32 s13, s7, 4
v_add_u32 v25, s13, v20
v_mul_u32_u24 v25, 3584, v25
s_lshl_b32 s13, s11, 8
v_add_u32 v25, s13, v25
v_and_b32 v26, 1, v21
v_lshlrev_b32 v26, 1, v26
v_xor_b32 v26, v22, v26
v_lshl_add_u32 v240, v26, 4, v25
v_add_u32 v241, 27648, v240
v_xor_b32 v26, 4, v26
v_lshl_add_u32 v242, v26, 4, v25
v_add_u32 v243, 27648, v242
s_lshl_b32 s15, s7, 11               ; W dest offset in slot
s_mov_b32 s50, 1605632
s_mov_b32 s51, 0x20000
s_mov_b32 s54, 1605632
s_mov_b32 s55, 0x20000
s_cmp_eq_u32 s12, 7
s_cbranch_scc1 k_spare
""".replace("WSO", f"s_waitcnt lgkmcnt(0)\ns_add_u32 s40, s40, {OPT['wso']<<20}\ns_addc_u32 s41, s41, 0" if OPT["wso"] else "").replace("CPF", ["global_load_dword v0, v3, s[4:5]", "s_cmp_lt_u32 s2, 224\ns_cbranch_scc1 k_ncp\nglobal_load_dword v0, v3, s[4:5]\nk_ncp:", "s_cmp_lt_u32 s2, 192\ns_cbranch_scc1 k_ncp\nglobal_load_dword v0, v3, s[4:5]\nk_ncp:"][OPT["cpf"]]))
def dmaw(vm, st):
    a(f"s_add_u32 m0, s15, {WA[st]}")
    if st >= 7: a("s_add_u32 s58, s57, 128")
    else: a("s_mov_b32 s58, s57")
    for i in range(2): vm.op(f"buffer_load_dwordx4 v{240+i}, s[48:51], s58 offen offset:{i*1024} {OPT['ntw']} lds", f"W{st}")
    a(f"s_add_u32 m0, s15, {WA[st]+8192}\ns_add_u32 s57, s57, 229376")
    for i in range(2): vm.op(f"buffer_load_dwordx4 v{242+i}, s[52:55], s58 offen offset:{i*1024} {OPT['ntw']} lds", f"W{st}")
    a("s_cmp_eq_u32 s57, 1605632\ns_cselect_b32 s57, 0, s57")
def dmax(vm, st):
    a(f"s_add_u32 m0, s14, {XA[st]}\ns_mov_b32 s58, s56")
    for i in range(4): vm.op(f"buffer_load_dwordx4 v{232+i}, s[44:47], s58 offen offset:{i*1024} {OPT['ntx']} lds", f"X{st}")
    a("s_add_u32 s56, s56, 128\ns_cmp_eq_u32 s56, 896\ns_cselect_b32 s56, 0, s56")

FB = [16, 48]; ACC = 80; TM = 144; KA = 164
def pass_addrs():
    a(f"""
v_and_b32 v6, 31, v1
v_lshrrev_b32 v7, 5, v1
v_bfe_u32 v4, v1, 1, 3
v_xor_b32 v7, v7, v4
v_lshlrev_b32 v7, 4, v7
v_lshl_add_u32 v6, v6, 7, v7
s_lshr_b32 s13, s7, 1
s_lshl_b32 s13, s13, 13
v_add_u32 v2, s13, v6
v_lshlrev_b32 v6, 9, v1
v_and_b32 v6, 0x2000, v6
v_lshlrev_b32 v7, 5, v1
v_and_b32 v7, 0x580, v7
v_and_b32 v4, 3, v1
v_lshlrev_b32 v4, 3, v4
v_add3_u32 v6, v6, v7, v4
v_bfe_u32 v7, v1, 3, 2
s_and_b32 s13, s7, 1
s_lshl_b32 s13, s13, 1
v_xor_b32 v7, s13, v7
v_lshl_add_u32 v3, v7, 5, v6
""")
def h_addr(p):
    a(f"""
s_lshl_b32 s13, s10, 1
s_lshr_b32 s58, s7, 1
s_add_u32 s13, s13, s58
s_mul_i32 s13, s13, 56
s_lshl_b32 s58, s11, 1
s_add_u32 s13, s13, s58
s_and_b32 s58, s7, 1
s_add_u32 s13, s13, s58
s_lshr_b32 s58, s3, 2
s_mul_i32 s58, s58, 28
s_add_u32 s13, s13, s58
s_lshl_b32 s13, s13, 12
v_and_b32 v14, 15, v1
v_lshl_add_u32 v14, v14, 4, s13
v_bfe_u32 v15, v1, 4, 1
v_lshl_add_u32 v14, v15, 10, v14
v_lshrrev_b32 v15, 5, v1
v_lshl_add_u32 v14, v15, 8, v14
s_mov_b32 s62, {fbits(-LOG2E)}
""")
def nib(lst):
    v = 0
    for i, x in enumerate(lst): v |= (x // 16384) << (4*i)
    return "0x%x" % v
VADDR = lambda xs, ws: [f"v_add_u32 v6, {xs}, v2", f"v_add_u32 v4, {ws}, v3", "v_xor_b32 v7, 32, v6", "v_xor_b32 v5, 32, v4", "v_xor_b32 v8, 64, v6", "v_xor_b32 v9, 96, v6"]
SETA = ["s_and_b32 s13, s30, 15", "s_lshl_b32 s13, s13, 14", "s_lshr_b32 s30, s30, 4", "s_and_b32 s58, s31, 15", "s_lshl_b32 s58, s58, 14", "s_lshr_b32 s31, s31, 4"] + VADDR("s13", "s58")
def reads(hs, F):
    out = []
    for k2 in range(2):
        ks = 2*hs + k2
        A_ = lambda fa, hh: f"ds_read_b64_tr_b16 {vr(F+16*k2+4*fa+2*hh,2)}, v{4+fa} offset:{ks*2048+hh*512}"
        B_ = lambda tb: f"ds_read_b128 {vr(F+16*k2+8+4*tb,4)}, v{6+ks} offset:{tb*4096}"
        out += [A_(0,0), A_(0,1), B_(0), B_(1), A_(1,0), A_(1,1)]
    return out
def acc(n): return ACC + 16*n
def pass_resume(iters):
    a(f"s_mov_b32 s59, {iters}\ns_call_b64 s[100:101], k_pl")
    a.reset()
def pass_call(p, nbar, iters):
    a(f"""
s_mov_b32 s30, {nib(XA[1:]+[0])}
s_mov_b32 s31, {nib(WA[7*p+1:7*p+7]+[0])}
s_mov_b32 s43, {nbar}
s_mov_b32 s59, {iters}
s_call_b64 s[100:101], k_pass
""")
    a.reset()
def pass_first_addr(p):
    for x in VADDR(XA[0], WA[7*p]): a(x)
def emit_pass():
    def half(hs, first):
        F = FB[hs]; Fn = FB[hs ^ 1]
        mm = []
        for k2 in range(2):
            for fa in range(2):
                for tb in range(2):
                    d = vr(acc(2*fa+tb), 16)
                    mm.append(f"v_mfma_f32_32x32x16_bf16 {d}, {vr(F+16*k2+4*fa,4)}, {vr(F+16*k2+8+4*tb,4)}, " + ("0" if first and k2 == 0 else d))
        if first: a("s_waitcnt lgkmcnt(6)")
        else: a("s_waitcnt lgkmcnt(0)")
        if hs == 0:
            fill = reads(1, Fn) + SETA + ["s_cmp_eq_u32 s43, 0"]
        else:
            a(mm.pop(0))
            a("s_cbranch_scc1 k_pnb\ns_waitcnt vmcnt(0)\ns_barrier\ns_sub_u32 s43, s43, 1\nk_pnb:")
            fill = reads(0, Fn) + ["s_sub_u32 s59, s59, 1", "s_cmp_lg_u32 s59, 0"]
        for i, m in enumerate(mm):
            if first and i == 4: a("s_waitcnt lgkmcnt(12)")
            a(m)
            for _ in range(3 if (i < 4) else 4):
                if fill: a(fill.pop(0))
        for x in fill: a(x)
    a.raw(".p2align 6")
    a.label("k_pass"); a.reset()
    for r in reads(0, FB[0]): a(r)
    half(0, True)
    a("s_branch k_pm")
    a.raw(".p2align 6")
    a.label("k_pl")
    half(0, False)
    a.label("k_pm")
    half(1, False)
    a("s_cbranch_scc1 k_pl\ns_setpc_b64 s[100:101]")
def epi_list(n):
    Tm = TM + 8*(n & 1); R = acc(n); o = []
    for i in range(8): o.append(f"v_mul_f32 v{Tm+i}, s62, v{R+i}")
    for i in range(8): o += [f"v_exp_f32 v{Tm+i}, v{Tm+i}", f"v_mul_f32 v{R+i}, v{R+i}, v{R+8+i}"]
    for i in range(8): o.append(f"v_add_f32 v{Tm+i}, 1.0, v{Tm+i}")
    for i in range(8):
        o.append(f"v_rcp_f32 v{Tm+i}, v{Tm+i}")
        if i >= 2: o.append(f"v_mul_f32 v{R+i-2}, v{R+i-2}, v{Tm+i-2}")
    for i in (6, 7): o.append(f"v_mul_f32 v{R+i}, v{R+i}, v{Tm+i}")
    for i in range(4): o.append(f"v_cvt_pk_bf16_f32 v{R+8+i}, v{R+2*i}, v{R+2*i+1}")
    o.append(("st", n))
    return o
def hst(vm, n, tag):
    vm.op(f"global_store_dwordx4 v14, {vr(acc(n)+8,4)}, s[40:41] offset:{(n&1)*2048+(n>>1)*512} sc1", tag)
def run_epi(vm, lst, count):
    for _ in range(count):
        if not lst: return
        x = lst.pop(0)
        if isinstance(x, tuple): hst(vm, x[1], "st")
        else: a(x)
def pre_poll(base, off):
    a(f"s_load_dword s27, {base}, {off} glc")
def check(lbl, base, off, target, vt, sleep=1):
    a(f"""
s_mov_b32 s59, 0
{lbl}_l:
s_waitcnt lgkmcnt(0)
s_cmp_eq_u32 s27, {target}
s_cbranch_scc1 {lbl}_d
s_add_u32 s59, s59, 1
s_sleep {sleep}
s_cmp_lt_u32 s59, 256
s_cbranch_scc0 {lbl}_v
s_load_dword s27, {base}, {off} glc
s_branch {lbl}_l
{lbl}_v:
v_mov_b32 v{vt}, 0
global_load_dword v{vt}, v{vt}, {base} offset:{off} sc1
s_waitcnt vmcnt(0)
v_readfirstlane_b32 s27, v{vt}
s_cmp_lt_u32 s59, {SPIN}
s_cbranch_scc1 {lbl}_l
{lbl}_d:
""")
def own_line():
    a(f"""
s_lshl_b32 s13, s2, 7
s_add_u32 s13, s13, {FL}
s_add_u32 s28, s40, s13
s_addc_u32 s29, s41, 0
""")
def hsig_addr(v):
    a(f"""
s_lshl_b32 s13, s10, 1
s_and_b32 s58, s13, 3
s_lshl_b32 s58, s58, 3
s_lshr_b32 s13, s13, 2
s_add_u32 s13, s13, s58
s_lshl_b32 s13, s13, 7
s_add_u32 s13, s13, {FL}
v_lshrrev_b32 v{v}, 1, v1
v_lshlrev_b32 v{v}, 12, v{v}
v_and_b32 v{v+1}, 1, v1
v_lshl_add_u32 v{v}, v{v+1}, 10, v{v}
v_add_u32 v{v}, s13, v{v}
""")
def ssig_h(word):
    a(f"""
s_lshl_b32 s13, s10, 1
s_and_b32 s58, s13, 3
s_lshl_b32 s58, s58, 3
s_lshr_b32 s13, s13, 2
s_add_u32 s13, s13, s58
s_lshl_b32 s13, s13, 7
s_add_u32 s13, s13, {FL}
s_add_u32 s44, s40, s13
s_addc_u32 s45, s41, 0
s_mov_b32 s46, 1
""")
    for cb in range(7):
        for r in range(2): a(f"s_atomic_add s46, s[44:45], {cb*4096+r*1024+word}")
def last_of4(lbl, cntoff, vt, body):
    a(f"""
v_mov_b32 v{vt}, {CNT+cntoff}
v_mov_b32 v{vt+1}, 1
s_mov_b64 exec, 1
ds_add_rtn_u32 v{vt+2}, v{vt}, v{vt+1}
s_waitcnt lgkmcnt(0)
v_readfirstlane_b32 s58, v{vt+2}
s_mov_b64 exec, -1
s_cmp_eq_u32 s58, 3
s_cbranch_scc0 {lbl}
""")
    body()

Z = lambda k: 20 + 2*k
Wp = lambda k: 50 + 2*k
E = lambda k: 68 + 2*k
Y_ = {1: 84, 2: 86, 4: 88, 8: 90}
T = lambda k: 92 + 2*k
CV = lambda k: 108 + (k & 7)
FE, FX0, FX1 = 116, 132, 148
PR = 176
vy = VM()
XV = 232
a(f"""
v_xor_b32 v23, v22, v21
v_xor_b32 v24, 4, v23
s_lshl_b32 s13, s7, 5
v_add_u32 v25, s13, v20
v_mul_u32_u24 v25, 896, v25
v_lshl_add_u32 v{XV}, v23, 4, v25
v_lshl_add_u32 v{XV+1}, v24, 4, v25
v_add_u32 v{XV+1}, 6144, v{XV+1}
v_add_u32 v{XV+2}, 12288, v{XV}
v_add_u32 v{XV+3}, 12288, v{XV+1}
s_lshl_b32 s14, s7, 12
s_lshl_b32 s56, s42, 7
s_mul_i32 s57, s42, 229376
s_mul_i32 s13, s10, 114688
s_mov_b32 s46, 114688
s_mov_b32 s47, 0x20000
s_mul_i32 s63, s3, 4608
""")
a("""
s_mov_b32 s48, s32
s_mov_b32 s49, s33
s_mov_b32 s52, s34
s_mov_b32 s53, s35
s_add_u32 s44, s16, s13
s_addc_u32 s45, s17, 0
""")
if OPT["pb"]: a("s_barrier")
a("""
s_cmp_lt_u32 s3, 4
s_cbranch_scc1 k_x0
""")
dmaw(vy, 0); dmax(vy, 0)
if OPT["w1"] and not OPT["xw"]: dmaw(vy, 1)
a(f"""
s_and_b32 s9, s2, 7
s_lshl_b32 s9, s9, 2
s_add_u32 s9, s9, s8               ; rb64
s_mul_i32 s13, s9, 229376
s_mul_i32 s58, s7, 28672
s_add_u32 s13, s13, s58
s_add_u32 s16, s40, s13
s_addc_u32 s17, s41, 0
s_mov_b32 s18, {114688+28672}
s_mov_b32 s19, 0x20000
s_mov_b32 s20, s36
s_mov_b32 s21, s37
s_mov_b32 s22, 1605632
s_mov_b32 s23, 0x20000
s_mul_i32 s25, s7, 7
s_lshl_b32 s26, s12, 7               ; cb*128
""")
SW = [32+i for i in range(7)]; SH = [4, 5, 6, 39, 0, 1, 60]
for i in range(7):
    a(f"""
s_add_u32 s58, s42, {i}
s_sub_u32 s59, s58, 7
s_min_u32 s58, s58, s59
s_lshl_b32 s{SH[i]}, s58, 12
s_add_u32 s58, s58, s25
s_lshr_b32 s59, s58, 1
s_mul_i32 s59, s59, 114688
s_and_b32 s58, s58, 1
s_mul_i32 s58, s58, 28672
s_add_u32 s58, s58, s59
s_add_u32 s{SW[i]}, s58, s26
""")
a("""
s_branch k_w0
k_x0:
s_load_dwordx2 s[4:5], s[0:1], 64
s_add_u32 s57, s42, XOFF
s_sub_u32 s13, s57, 7
s_cmp_ge_u32 s57, 7
s_cselect_b32 s57, s13, s57
s_mul_i32 s57, s57, 229376           ; chunk offset of stage 9
k_w0:
v_and_b32 v4, 15, v1                 ; c
v_lshlrev_b32 v5, 2, v21             ; 4g
v_lshlrev_b32 v6, 6, v21             ; 64g
v_lshl_add_u32 v247, v4, 4, v5
v_lshl_add_u32 v248, v4, 3, v5
v_lshl_add_u32 v249, v4, 2, v6
v_cmp_gt_u32 vcc, 2, v21
v_cndmask_b32 v248, v249, v248, vcc
v_lshl_add_u32 v249, v4, 1, v6
v_lshl_add_u32 v247, v247, 2, s63
v_lshl_add_u32 v248, v248, 2, s63
v_lshl_add_u32 v249, v249, 2, s63
""".replace("XOFF", "1" if OPT["xw"] else "2"))
pass_addrs()
h_addr(0)
own_line()
if OPT["warm"]:
    a("s_mov_b64 exec, 0")
    for w in range(1, 8): a(f"s_cmp_eq_u32 s3, {w}\ns_cbranch_scc1 k_sec{w}")
    a("s_branch k_kg\nk_wd:")
    for w in range(4):
        a(f"s_cmp_eq_u32 s3, {w}\ns_cbranch_scc0 k_we{w}\ns_call_b64 s[100:101], k_epi{w}\nk_we{w}:")
    a("s_cmp_eq_u32 s3, 3\ns_cbranch_scc0 k_wp\ns_mov_b32 s43, 0\ns_mov_b32 s59, 1\ns_call_b64 s[100:101], k_pass\nk_wp:")
    a("s_mov_b64 exec, -1")
a(f"""
v_mov_b32 v245, v9
v_and_b32 v18, 15, v1
v_mul_u32_u24 v18, 288, v18
v_and_b32 v19, 48, v1
v_add3_u32 v18, v18, v19, s63
s_cmp_lt_u32 s3, 4
s_cbranch_scc1 k_x1
s_waitcnt vmcnt({len(vy.q)})
s_branch k_kg
k_x1:
s_waitcnt vmcnt(0)
k_kg:
""")
secn = [0]
def sec():
    if OPT["warm"]:
        secn[0] += 1
        a("s_cbranch_execz k_wd")
        if secn[0] < 8: a.label(f"k_sec{secn[0]}")
a.reset()
stamp(2)
a(f"""
s_mov_b32 m0, s63
v_lshlrev_b32 v238, 16, v238
v_mul_f32 v16, {fbits(LOG2E)}, v238
v_exp_f32 v16, v16
v_lshlrev_b32 v239, 16, v239
v_lshlrev_b32 v11, 16, v11
v_lshlrev_b32 v12, 16, v12
v_lshlrev_b32 v216, 16, v216
v_lshlrev_b32 v217, 16, v217
v_lshlrev_b32 v218, 16, v218
v_cvt_pk_bf16_f32 v16, v16, v16
v_and_b32 v16, 0xffff0000, v16
v_mul_f32 v8, {fbits(LOG2E)}, v16
v_mul_f32 v9, 0.15915494, v16
v_mul_f32 v17, v239, v8
v_mul_f32 v11, v11, v9
v_mul_f32 v12, v12, v16
v_mul_f32 v216, v216, v16
v_mul_f32 v{E(0)}, v217, v12
v_mul_f32 v{E(0)+1}, v217, v216
v_fma_f32 v{E(0)}, -v218, v216, v{E(0)}
v_fma_f32 v{E(0)+1}, -v218, v12, -v{E(0)+1}
""")
ydn = [0]
def ydma(fn):
    ydn[0] += 1
    a(f"s_cmp_lt_u32 s3, 4\ns_cbranch_scc1 k_yd{ydn[0]}")
    fn()
    a(f"s_mov_b32 m0, s63\nk_yd{ydn[0]}:")
anc = [(Y_[1], 16.0, True), (Z(1), 1.0, False), (Wp(1), 256.0, False)]
for n, (d, p, cj) in enumerate(anc):
    if p != 1.0: a(f"v_mul_f32 v{T(n)}, {fbits(p)}, v17\nv_mul_f32 v{T(n)+1}, {fbits(p)}, v11")
for n, (d, p, cj) in enumerate(anc):
    if p == 1.0: a(f"v_exp_f32 v{T(n)}, v17\nv_fract_f32 v{T(n)+1}, v11")
    else: a(f"v_exp_f32 v{T(n)}, v{T(n)}\nv_fract_f32 v{T(n)+1}, v{T(n)+1}")
for n, (d, p, cj) in enumerate(anc):
    a(f"v_cos_f32 v{d}, v{T(n)+1}\nv_sin_f32 v{d+1}, v{T(n)+1}")
for n, (d, p, cj) in enumerate(anc):
    a(f"v_pk_mul_f32 {vr(d,2)}, {vr(d,2)}, {vr(T(n),2)} op_sel_hi:[1,0]" + (" neg_hi:[1,0]" if cj else ""))
cnt = [0]; NDS = [0]; MK = {}
def puts(lst):
    cs = []
    for row, src in lst:
        c = CV(cnt[0]); cnt[0] += 1; cs.append(c)
        if src is None: a(f"v_mov_b32 v{c}, 0x3f80")
        else: a(f"v_cvt_pk_bf16_f32 v{c}, v{src}, v{src+1}")
    if OPT["w2"]:
        pend = list(zip([r for r, _ in lst], cs))
        while pend:
            r0, c0 = pend.pop(0)
            m = [x for x in pend if x[0]//4 == r0//4]
            if m:
                pend.remove(m[0]); r1, c1 = m[0]
                a(f"ds_write2_b32 v{176+r0//4}, v{c0}, v{c1} offset0:{(r0%4)*72} offset1:{(r1%4)*72}"); NDS[0] += 1
            else:
                a(f"ds_write_addtid_b32 v{c0} offset:{r0*288}"); NDS[0] += 1
        return
    for (row, src), c in zip(lst, cs):
        a(f"ds_write_addtid_b32 v{c} offset:{row*288}"); NDS[0] += 1
def putl(lst):
    for i in range(0, len(lst), 4): puts(lst[i:i+4])
def frags(F):
    for s in range(4): a(f"ds_read_b128 {vr(F+4*s,4)}, v18 offset:{s*64}")
    NDS[0] += 4; MK[F] = NDS[0]
def wfr(F): a(f"s_waitcnt lgkmcnt({min(15, NDS[0]-MK[F])})")
def mf(tau, F):
    for s in range(4):
        a(f"v_mfma_f32_16x16x32_bf16 {vr(KA+4*tau,4)}, {vr(F+4*s,4)}, {vr(FE+4*s,4)}, " + ("0" if s == 0 else vr(KA+4*tau,4)))
Y = Y_
if OPT["trim"]:
    cmuls([(Y[2], Y[1], Y[1]), (E(1), E(0), Y[1]), (Z(2), Z(1), Z(1)), (Wp(2), Wp(1), Wp(1))])
    cmuls([(E(2), E(0), Y[2]), (E(3), E(1), Y[2]), (Z(3), Z(2), Z(1)), (Z(4), Z(2), Z(2))])
    putl([(i, E(i)) for i in range(4)])
    cmuls([(E(4), E(2), Y[2]), (E(5), E(3), Y[2]), (Wp(3), Wp(2), Wp(1)), (Wp(4), Wp(2), Wp(2))])
    cmuls([(E(6), E(4), Y[2]), (E(7), E(5), Y[2])])
    putl([(i, E(i)) for i in range(4, 8)])
    cmuls([(T(0), E(6), Y[2]), (T(1), E(7), Y[2])])
    cmuls([(T(2), T(0), Y[2]), (T(3), T(1), Y[2])])
    putl([(8+i, T(i)) for i in range(4)])
    cmuls([(T(4), T(2), Y[2]), (T(5), T(3), Y[2])])
    cmuls([(T(6), T(4), Y[2]), (T(7), T(5), Y[2])])
    putl([(8+i, T(i)) for i in range(4, 8)])
else:
    cmuls([(Y[2], Y[1], Y[1]), (E(1), E(0), Y[1]), (Z(2), Z(1), Z(1)), (Wp(2), Wp(1), Wp(1))])
    cmuls([(Y[4], Y[2], Y[2]), (E(2), E(0), Y[2]), (E(3), E(1), Y[2]), (Z(3), Z(2), Z(1)), (Z(4), Z(2), Z(2)), (Wp(3), Wp(2), Wp(1)), (Wp(4), Wp(2), Wp(2))])
    sec()
    putl([(i, E(i)) for i in range(4)])
    cmuls([(Y[8], Y[4], Y[4])] + [(E(4+i), E(i), Y[4]) for i in range(4)])
    putl([(i, E(i)) for i in range(4, 8)])
    cmuls([(T(i), E(i), Y[8]) for i in range(4)])
    sec()
    putl([(8+i, T(i)) for i in range(4)])
    cmuls([(T(i), E(i), Y[8]) for i in range(4, 8)])
    putl([(8+i, T(i)) for i in range(4, 8)])
frags(FE)
sec()
putl([(0, None)] + [(i, Z(i)) for i in range(1, 4)])
cmuls([(Z(5), Z(4), Z(1)), (Z(6), Z(4), Z(2)), (Z(7), Z(4), Z(3)), (Z(8), Z(4), Z(4))])
putl([(i, Z(i)) for i in range(4, 8)])
cmuls([(Z(8+i), Z(8), Z(i)) for i in range(1, 4)])
sec()
putl([(i, Z(i)) for i in range(8, 12)])
cmuls([(Z(8+i), Z(8), Z(i)) for i in range(4, 8)])
putl([(i, Z(i)) for i in range(12, 16)])
frags(FX0)
sec()
cmuls([(T(r), Wp(1), Z(2*r)) for r in range(1, 4)])
putl([(0, Wp(1))] + [(r, T(r)) for r in range(1, 4)])
cmuls([(T(r), Wp(1), Z(2*r)) for r in range(4, 8)])
putl([(r, T(r)) for r in range(4, 8)])
sec()
cmuls([(T(j-1), Wp(2), Z(4*j)) for j in (1, 2, 3)])
wfr(FX0)
mf(0, FX0)
putl([(8, Wp(2))] + [(8+j, T(j-1)) for j in (1, 2, 3)])
cmuls([(T(2+j), Wp(3), Z(4*j)) for j in (1, 2, 3)])
putl([(12, Wp(3))] + [(12+j, T(2+j)) for j in (1, 2, 3)])
frags(FX1)
sec()
cmuls([(Wp(5), Wp(4), Wp(1)), (Wp(6), Wp(4), Wp(2)), (Wp(7), Wp(4), Wp(3)), (Wp(8), Wp(4), Wp(4))])
putl([(2*h, Wp(4+h)) for h in range(4)] )
cmuls([(T(h), Wp(4+h), Z(8)) for h in range(4)])
putl([(2*h+1, T(h)) for h in range(4)] + [(8, Wp(8))])
frags(FX0)
wfr(FX1)
mf(1, FX1)
a("s_waitcnt lgkmcnt(0)")
mf(2, FX0)
a(f"""
ds_write_b128 v247, {vr(KA,4)} offset:64
ds_write_b128 v248, {vr(KA+4,4)} offset:{64+1024}
s_lshr_b32 s13, s7, 1
s_mul_i32 s24, s13, {CS[1]-CS[0]}
s_add_u32 s24, s24, {CS[0]}
s_and_b32 s61, s7, 1                 ; parity
ds_write_b64 v249, {vr(KA+8,2)} offset:{64+2048}
ds_write_b64 v249, {vr(KA+10,2)} offset:{64+2048+128}
""")
sec()
a("""
s_cmp_ge_u32 s3, 4
s_cbranch_scc1 k_y
""")
vx = VM()
stamp(3)
if OPT["xw"]: dmaw(vx, 1)
if OPT["xw"] == 2:
    a("s_add_u32 s56, s56, 128\ns_cmp_eq_u32 s56, 896\ns_cselect_b32 s56, 0, s56"); dmax(vx, 1)
a("""
v_mov_b32 v244, 0
s_lshl_b32 s13, s2, 1
s_lshr_b32 s58, s7, 1
s_add_u32 s13, s13, s58
s_mul_i32 s13, s13, 14
v_min_u32 v4, 13, v1
v_add_lshl_u32 v4, v4, s13, 8
s_bitcmp1_b32 s7, 0
s_cselect_b32 s58, s34, s32
s_cselect_b32 s59, s35, s33
global_load_short_d16_hi v244, v245, s[4:5]
""")
if OPT["xt"]: a("global_load_dword v0, v4, s[58:59] offset:128")
a(f"""
s_mov_b32 s14, s24
v_and_b32 v20, 15, v1
v_lshrrev_b32 v21, 4, v1
v_or_b32 v24, 1, v20
v_lshlrev_b32 v25, 3, v21
v_sub_u32 v24, v25, v24
v_lshlrev_b32 v24, 1, v24
v_and_b32 v25, 1, v1
v_mul_u32_u24 v25, 4160, v25
v_sub_u32 v24, v24, v25
v_add_u32 v24, s14, v24
v_add_u32 v216, {4160+2*2031-512}, v24
v_add_u32 v217, {4160+2*2031-512*3}, v24
v_add_u32 v218, {4160+2*2031-512*5}, v24
v_add_u32 v219, {4160+2*2031-512*7}, v24
v_lshlrev_b32 v22, 5, v20
v_lshl_add_u32 v221, v21, 3, v22     ; 32j+8g
v_lshl_add_u32 v22, v21, 4, v22
v_add_u32 v22, s14, v22
v_add_u32 v220, {8832-32}, v22       ; B addr
s_mul_i32 s13, s60, {UTP}
s_add_u32 s13, s13, {UT}
v_add_u32 v222, s13, v10
v_add_u32 v223, s14, v10
s_and_b32 s13, s2, 7
s_lshl_b32 s13, s13, 2
s_add_u32 s13, s13, s8
s_lshl_b32 s13, s13, 8
s_lshl_b32 s58, s7, 6
s_add_u32 s13, s13, s58
s_add_u32 s13, s13, {GG}
v_lshlrev_b32 v225, 2, v20
v_add_u32 v224, s13, v225            ; g global
s_add_u32 s58, s58, {GL}
v_add_u32 v225, s58, v225            ; g LDS
""")
hsig_addr(226)
a("v_mov_b32 v227, 1")
pass_first_addr(0)
a("s_waitcnt lgkmcnt(0)")
stamp(1)
bar(0)
stamp(4)
pass_call(0, 7, 7)
stamp(6)
dmaw(vx, 9)
CA = 48
a("s_waitcnt lgkmcnt(0)")
for r in range(CA, CA+16): a(f"v_mov_b32 v{r}, 0")
EL = epi_list(0) + epi_list(1) + epi_list(2) + epi_list(3)
bar(8)
dmaw(vx, 10)
run_epi(vx, EL, OPT["xs1"])
dmaw(vx, 11)
vx.wait("W9")
bar(9)
dmaw(vx, 12)
run_epi(vx, EL, OPT["xs2"])
dmaw(vx, 13)
vx.wait("W10")
bar(10)
run_epi(vx, EL, OPT["xs3"])
a(f"v_mov_b32 v40, {CNT}\nds_write_b128 v40, {vr(CA,4)}\nds_write_b128 v40, {vr(CA,4)} offset:16")
vx.wait("W13", extra=" lgkmcnt(0)")
stamp(7)
bar(11)
stamp(8)
if OPT["xprio"]: a(f"s_setprio {OPT['xprio']}")
run_epi(vx, EL, len(EL)-30)
pre_poll("s[28:29]", 0)
run_epi(vx, EL, 999)
def uloads():
    for i in range(4): a(f"global_load_dwordx4 {vr(16+4*i,4)}, v222, s[40:41] offset:{i*1024} sc1")
    a("global_load_dword v15, v224, s[40:41] sc1")
a("s_waitcnt lgkmcnt(0)\ns_cmp_eq_u32 s27, 32\ns_cbranch_scc0 k_u0")
uloads()
a("s_waitcnt vmcnt(5)\ns_branch k_u1\nk_u0:\ns_waitcnt vmcnt(0)\nk_u1:")
def sigx():
    if "2" in OPT["sa"]: return ssig_h(4)
    a("s_mov_b64 exec, 0x3fff\nglobal_atomic_add v226, v227, s[40:41] offset:4 sc1\ns_mov_b64 exec, -1")
last_of4("k_s2", 8, 42, sigx); a.label("k_s2")
a("s_cmp_eq_u32 s27, 32\ns_cbranch_scc1 k_u2")
check("k_c1", "s[28:29]", 0, 32, 13)
uloads()
a("k_u2:\nds_read_b32 v41, v40\ns_waitcnt vmcnt(0)")
for i in range(4): a(f"ds_write_b128 v223, {vr(16+4*i,4)} offset:{8832+i*1024}")
a("ds_write_b32 v225, v15")
a(f"""
s_mov_b32 s59, {SPIN}
k_ps:
s_waitcnt lgkmcnt(0)
v_readfirstlane_b32 s58, v41
s_cmp_eq_u32 s58, 4
s_cbranch_scc1 k_psd
ds_read_b32 v41, v40
s_sub_u32 s59, s59, 1
s_cmp_lg_u32 s59, 0
s_cbranch_scc1 k_ps
k_psd:
""")
stamp(9)
a(f"s_setprio {OPT['cprio']}")
a("""
s_cmp_eq_u32 s61, 0
s_cbranch_scc0 k_set1
""")
FBUF = [88, 152]
def creads(F, amax):
    out = []
    for i in range(amax+1):
        o = 0 if (i & 1) else 128
        out.append(f"ds_read_b128 {vr(F+32+4*i,4)}, v220 offset:{512*i}")
        out.append(f"ds_read2_b32 {vr(F+4*i,2)}, v{216+(i>>1)} offset0:{o} offset1:{o+1}")
        out.append(f"ds_read2_b32 {vr(F+4*i+2,2)}, v{216+(i>>1)} offset0:{o+2} offset1:{o+3}")
    out += [f"v_subrev_u32 v{r}, 64, v{r}" for r in (216, 217, 218, 219, 220)]
    return out
for sidx, cbs in enumerate(((0, 3, 4, 7), (1, 2, 5, 6))):
    if sidx == 1:
        a.label("k_set1"); a.reset()
    amax = max(cbs)
    for x in creads(FBUF[0], amax): a(x)
    a("s_mov_b32 s21, 4")
    a.label(f"k_cl{sidx}")
    for half in range(2):
        F = FBUF[half]
        a("s_waitcnt lgkmcnt(0)")
        lists = [[(n, aa, cb-aa) for aa in range(cb+1)] for n, cb in enumerate(cbs)]
        order = []
        while any(lists):
            for L in sorted(lists, key=lambda L: -len(L)):
                if L: order.append(L.pop(0))
        fill = creads(FBUF[half ^ 1], amax)
        for k, (n, aa, bb) in enumerate(order):
            d = vr(CA+4*n, 4)
            a(f"v_mfma_f32_16x16x32_bf16 {d}, {vr(F+4*aa,4)}, {vr(F+32+4*bb,4)}, {d}")
            for _ in range(2):
                if fill: a(fill.pop(0))
        for x in fill: a(x)
    a(f"""
s_sub_u32 s21, s21, 1
s_cmp_lg_u32 s21, 0
s_cbranch_scc1 k_cl{sidx}
v_add_u32 v26, s14, v221
""")
    stamp(10)
    for n, cb in enumerate(cbs): a(f"ds_read_b64 {vr(32+2*n,2)}, v26 offset:{8832+512*cb}")
    a(f"""
s_mul_i32 s15, s60, {UTP}
s_add_u32 s15, s15, {AT}
v_add_u32 v27, s15, v221
s_waitcnt lgkmcnt(0)
""")
    for n, cb in enumerate(cbs):
        R = CA+4*n
        a(f"""
v_lshlrev_b32 v40, 16, v{32+2*n}
v_and_b32 v41, 0xffff0000, v{32+2*n}
v_lshlrev_b32 v42, 16, v{33+2*n}
v_and_b32 v43, 0xffff0000, v{33+2*n}
v_fmac_f32 v{R}, v40, v244
v_fmac_f32 v{R+1}, v41, v244
v_fmac_f32 v{R+2}, v42, v244
v_fmac_f32 v{R+3}, v43, v244
v_cvt_pk_bf16_f32 v{R}, v{R}, v{R+1}
v_cvt_pk_bf16_f32 v{R+1}, v{R+2}, v{R+3}
global_store_dwordx2 v27, {vr(R,2)}, s[40:41] offset:{512*cb} sc1
""")
    if sidx == 0: a("s_branch k_pub")
a.label("k_pub"); a.reset()
a(f"""
s_setprio 0
s_lshr_b32 s15, s2, 5
s_lshl_b32 s15, s15, 12
s_add_u32 s15, s15, {FL}
v_lshl_add_u32 v26, v1, 7, s15
s_waitcnt vmcnt(0)
""")
stamp(11)
def sig4():
    if "4" in OPT["sa"]:
        a("s_add_u32 s44, s40, s15\ns_addc_u32 s45, s41, 0\ns_mov_b32 s46, 1")
        for l in range(32): a(f"s_atomic_add s46, s[44:45], {l*128+12}")
    else: a("s_mov_b32 exec_hi, 0\nglobal_atomic_add v26, v29, s[40:41] offset:12 sc1\ns_mov_b64 exec, -1")
    a(f"""
v_lshrrev_b32 v14, 3, v1
v_and_b32 v15, 7, v1
v_lshlrev_b32 v15, 4, v15
v_mul_u32_u24 v16, {UTP}, v14
v_mul_u32_u24 v17, {ATPI}, v14
s_mul_i32 s15, s12, {64*UTP}
s_and_b32 s13, s2, 7
s_lshl_b32 s13, s13, 2
s_add_u32 s13, s13, s8
s_lshl_b32 s13, s13, 7
s_add_u32 s15, s15, s13
s_add_u32 s15, s15, {AT}
v_add3_u32 v16, v16, v15, s15
v_add_u32 v17, v17, v15
v_add_u32 v17, {CS[0]}, v17
s_mov_b32 s27, 0
""")
    check("k_c4", "s[28:29]", 12, 32, 13, sleep=2)
    stamp(12)
    for i in range(8):
        a(f"global_load_dwordx4 {vr(32+4*i,4)}, v16, s[40:41] sc1")
        if i < 7: a(f"v_add_u32 v16, {8*UTP}, v16")
    for i in range(8):
        a(f"s_waitcnt vmcnt({7-i})")
        a(f"ds_write_b128 v17, {vr(32+4*i,4)} offset:{8*i*ATPI}")
last_of4("k_fw0" if OPT["fwarm"] else "k_final", 12, 28, sig4)
a("s_branch k_final")

a.label("k_spare"); a.reset()
a(f"""
s_sub_u32 s6, s2, 224                ; r
s_lshl_b32 s13, s6, 3
s_add_u32 s13, s13, s3               ; u 0..255
s_mov_b32 s59, s13
s_mul_i32 s60, s13, 7168             ; x rows 8u..8u+7
s_mul_i32 s61, s3, {8*912}
v_min_u32 v5, 48, v1
s_lshr_b32 s14, s13, 1
s_mul_i32 s14, s14, 49
v_add_lshl_u32 v6, v5, s14, 8
s_mul_i32 s14, s13, 49
v_add_lshl_u32 v5, v5, s14, 7
v_mov_b64 v[24:25], 0
v_mov_b64 v[26:27], 0
s_mul_i32 s14, s6, 896
s_add_u32 s14, s14, {FL}
v_min_u32 v13, 880, v10
v_add_u32 v13, s14, v13
v_mov_b32 v7, 1
s_lshl_b32 s13, s8, 3
s_add_u32 s13, s13, s3
s_lshr_b32 s14, s13, 1
s_mul_i32 s14, s14, 28
v_add_u32 v2, s14, v20
v_min_u32 v3, 6, v22
v_lshlrev_b32 v3, 8, v3
s_mul_i32 s14, s9, 1792
s_add_u32 s14, s14, 128
v_add_u32 v3, s14, v3
s_and_b32 s13, s13, 1
s_cmp_eq_u32 s13, 0
s_waitcnt lgkmcnt(0)
s_cselect_b32 s44, s32, s34
s_cselect_b32 s45, s33, s35
s_cmp_eq_u32 s3, 0
s_cbranch_scc0 k_r0
global_store_dwordx4 v13, v[24:27], s[40:41] sc1
s_waitcnt vmcnt(0)
s_mov_b64 exec, 1
global_atomic_add v24, v7, s[98:99] sc1
s_mov_b64 exec, -1
k_r0:
s_mov_b32 s48, s16
s_mov_b32 s49, s17
s_mov_b32 s50, 1835008
s_mov_b32 exec_hi, 0x00ffffff
""")
P = 912
for r in range(8):
    a(f"s_add_u32 m0, s61, {r*P}\ns_add_u32 s58, s60, {r*896}\nbuffer_load_dwordx4 v10, s[48:51], s58 offen lds")
a("s_mov_b32 exec_hi, -1\nv_lshlrev_b32 v30, 4, v22")
for i in range(7): a(f"global_load_dwordx4 {vr(64+4*i,4)}, v30, s[38:39] offset:{i*128}")
ntouch = 0
a(f"""
v_mul_u32_u24 v31, {P}, v20
v_add3_u32 v31, v31, v30, s61
v_and_b32 v48, 3, v1
v_lshrrev_b32 v49, 5, v1
v_lshl_add_u32 v48, v49, 2, v48
v_bfe_u32 v49, v1, 2, 2
v_lshl_add_u32 v48, v48, 3, v49
v_mul_u32_u24 v48, {P}, v48
v_bfe_u32 v49, v1, 4, 1
v_lshl_add_u32 v48, v49, 3, v48
s_mul_i32 s13, s3, 112
v_add_u32 v48, s13, v48
v_and_b32 v49, 4, v1
v_lshlrev_b32 v49, 3, v49
v_and_b32 v50, 32, v1
v_lshrrev_b32 v50, 1, v50
v_and_b32 v51, 3, v1
v_lshlrev_b32 v51, 2, v51
v_add3_u32 v49, v49, v50, v51
v_bfe_u32 v50, v1, 3, 2
v_add_lshl_u32 v49, v49, v50, 2
; store: d = 56w + 8X + (l>>3) ; t0 = 64r
s_mul_i32 s13, s3, 56
v_add_u32 v50, s13, v20
v_mul_u32_u24 v50, {UTP}, v50
s_lshl_b32 s13, s6, 7
s_add_u32 s13, s13, {UT}
v_add3_u32 v50, v50, v30, s13
s_waitcnt vmcnt({ntouch})
""")
for i in range(7): a(f"ds_read_b128 {vr(96+4*i,4)}, v31 offset:{i*128}")
a("s_barrier")
stamp(1)
a("v_mov_b32 v8, v5")
for X in range(7):
    a(f"ds_read_b64_tr_b16 {vr(128+4*X,2)}, v48 offset:{X*16}\nds_read_b64_tr_b16 {vr(130+4*X,2)}, v48 offset:{X*16+4*P}")
a("v_mov_b64 v[60:61], 0\ns_waitcnt lgkmcnt(14)")
for i in range(28): a(f"v_dot2c_f32_bf16 v{60+(i&1)}, v{96+i}, v{64+i}")
a("s_waitcnt lgkmcnt(0)")
for X in range(7):
    for q in range(4): a(f"ds_bpermute_b32 v{160+4*X+q}, v49, v{128+4*X+q}")
    if X >= 2:
        a(f"s_waitcnt lgkmcnt(8)\nglobal_store_dwordx4 v50, {vr(160+4*(X-2),4)}, s[40:41] sc1\nv_add_u32 v50, {8*UTP}, v50")
for X in (5, 6):
    a(f"s_waitcnt lgkmcnt({4*(6-X)})\nglobal_store_dwordx4 v50, {vr(160+4*X,4)}, s[40:41] sc1\nv_add_u32 v50, {8*UTP}, v50")
a(f"""
v_add_f32 v60, v60, v61
v_add_f32_dpp v60, v60, v60 quad_perm:[1,0,3,2] row_mask:0xf bank_mask:0xf
v_add_f32_dpp v60, v60, v60 quad_perm:[2,3,0,1] row_mask:0xf bank_mask:0xf
v_add_f32_dpp v60, v60, v60 row_half_mirror row_mask:0xf bank_mask:0xf
v_cvt_pk_bf16_f32 v60, v60, v60
v_and_b32 v60, 0xffff0000, v60
v_mul_f32 v60, {fbits(-LOG2E)}, v60
v_exp_f32 v60, v60
v_add_f32 v60, 1.0, v60
v_rcp_f32 v60, v60
v_cvt_pk_bf16_f32 v60, v60, v60
v_and_b32 v60, 0xffff0000, v60
v_sub_f32 v61, 1.0, v60
v_cvt_pk_bf16_f32 v60, v60, v61
s_lshl_b32 s13, s59, 5
s_add_u32 s13, s13, {GG}
v_lshl_add_u32 v54, v20, 2, s13
global_store_dword v54, v60, s[40:41] sc1
v_min_u32 v5, 55, v1
s_mul_i32 s13, s7, 56
v_add_lshl_u32 v5, v5, s13, 7
v_add_u32 v5, {FL}, v5
global_load_dword v6, v24, s[98:99] sc1
s_waitcnt vmcnt(0)
s_barrier
""")
stamp(2)
a(f"""
s_cmp_lt_u32 s3, 4
s_cbranch_scc0 k_r2
s_mov_b32 s59, {SPIN}
k_r1:
v_readfirstlane_b32 s58, v6
s_cmp_ge_u32 s58, 32
s_cbranch_scc1 k_r1d
s_sub_u32 s59, s59, 1
s_cmp_eq_u32 s59, 0
s_cbranch_scc1 k_r1d
global_load_dword v6, v24, s[98:99] sc1
s_waitcnt vmcnt(0)
s_branch k_r1
k_r1d:
s_mov_b32 exec_hi, 0x00ffffff
global_atomic_add v5, v7, s[40:41] sc1
s_mov_b32 exec_hi, -1
k_r2:
global_load_dword v0, v8, s[36:37]
""")
stamps_out(15)
a("s_endpgm")

a.label("k_y"); a.reset()
stamp(1)
vy.wait("X0", extra=" lgkmcnt(0)")
stamp(3)
bar(0)
stamp(4)
if OPT["xw"]: a("s_add_u32 s57, s57, 229376\ns_cmp_eq_u32 s57, 1605632\ns_cselect_b32 s57, 0, s57")
elif not OPT["w1"]: dmaw(vy, 1)
if OPT["xw"] == 2: a("s_add_u32 s56, s56, 128\ns_cmp_eq_u32 s56, 896\ns_cselect_b32 s56, 0, s56")
else: dmax(vy, 1)
dmaw(vy, 2); dmax(vy, 2)
a("""
s_and_b32 s13, s7, 2
s_mul_i32 s13, s13, 4608
v_add_u32 v16, s13, v10
v_lshl_add_u32 v17, v1, 3, s13
v_lshl_add_u32 v18, v1, 2, s13
""")
G = lambda w: 32 + 16*w
def gather(w):
    o = (0, 4608, 18432, 23040)[w] + 64; R = G(w)
    a(f"""
ds_read_b128 {vr(R,4)}, v16 offset:{o}
ds_read_b64 {vr(R+4,2)}, v17 offset:{o+1024}
ds_read_b64 {vr(R+6,2)}, v17 offset:{o+1536}
ds_read_b32 v{R+8}, v16 offset:{o-4}
ds_read_b32 v{R+9}, v17 offset:{o+1032}
ds_read_b32 v{R+10}, v17 offset:{o+1020}
ds_read_b32 v{R+11}, v17 offset:{o+1544}
ds_read_b32 v{R+12}, v18 offset:{o+2048}
ds_read_b32 v{R+13}, v18 offset:{o+2052}
ds_read_b32 v{R+14}, v18 offset:{o+2304}
ds_read_b32 v{R+15}, v18 offset:{o+2308}
""")
gather(3); gather(0)
if OPT["xw"] != 2: vy.wait("X1")
bar(1)
dmaw(vy, 3)
gather(1)
dmax(vy, 3)
vy.wait("X2", extra=" lgkmcnt(0)")
bar(2)
dmaw(vy, 4)
gather(2)
dmax(vy, 4)
vy.wait("X3", extra=" lgkmcnt(0)")
bar(3)
dmaw(vy, 5)
for i in range(16): a(f"v_add_f32 v{G(0)+i}, v{G(0)+i}, v{G(1)+i}\nv_add_f32 v{G(2)+i}, v{G(2)+i}, v{G(3)+i}")
dmax(vy, 5)
vy.wait("X4")
bar(4)
stamp(5)
dmaw(vy, 6)
for i in range(16): a(f"v_add_f32 v{G(0)+i}, v{G(0)+i}, v{G(2)+i}")
k0,k1,k2,k3,a1,b1,a2,b2,km,c1,pp,c2,a3,b3,a4,b4 = range(32, 48)
EW = 204
def cv(i, lo, hi): a(f"v_cvt_pk_bf16_f32 v{EW+i}, v{lo}, v{hi}")
a(f"""
v_and_b32 v19, 1, v1
v_cmp_eq_u32 vcc, 0, v19
v_cndmask_b32 v48, v{b3}, v{a3}, vcc
v_cndmask_b32 v49, v{b4}, v{a4}, vcc
v_cmp_ne_u32 vcc, 0, v1
v_cndmask_b32 v{km}, 0, v{km}, vcc
v_cndmask_b32 v{pp}, v{pp}, v{a1}, vcc
""")
dmax(vy, 6)
a("s_load_dword s27, s[98:99], 0")
vy.wait("X5")
bar(5)
dmaw(vy, 7)
cv(5, b2, b2); cv(7, a2, a2); cv(8, b3, b3); cv(10, a3, a3); cv(11, a3, a3); cv(12, b4, b4); cv(14, a4, a4); cv(15, a4, a4)
a("s_cmp_eq_u32 s61, 0\ns_cbranch_scc0 k_eo")
cv(0, k3, k2); cv(1, k1, k0); cv(2, c1, b1); cv(3, a1, a1); cv(4, c2, c2); cv(6, b2, a2); cv(9, b3, 48); cv(13, b4, 49)
a("s_branch k_ew\nk_eo:")
cv(0, k2, k1); cv(1, k0, km); cv(2, b1, a1); cv(3, a1, pp); cv(4, c2, b2); cv(6, a2, a2); cv(9, 48, a3); cv(13, 49, a4)
a("k_ew:")
pass_first_addr(1)
a(f"""
v_lshrrev_b32 v20, 3, v1
v_and_b32 v22, 7, v1
v_mul_u32_u24 v160, 896, v20
v_and_b32 v161, 6, v20
v_xor_b32 v161, v161, v22
v_lshl_add_u32 v160, v161, 4, v160
v_add_u32 v161, 6144, v160
v_add_u32 v162, 12288, v160
v_add_u32 v163, 18432, v160
v_bfe_u32 v164, v1, 2, 3
v_lshlrev_b32 v164, 7, v164
v_lshrrev_b32 v165, 5, v1
v_lshl_add_u32 v164, v165, 11, v164
v_bfe_u32 v165, v1, 3, 2
v_lshl_add_u32 v164, v165, 5, v164
v_and_b32 v165, 3, v1
v_lshl_add_u32 v164, v165, 3, v164
v_add_u32 v164, s14, v164
v_xor_b32 v165, 32, v164
v_xor_b32 v166, 64, v164
v_xor_b32 v167, 96, v164
""")
if not OPT["rot2"]: a("s_mov_b32 s42, 0")
vy.wait("X6", extra=" lgkmcnt(0)")
bar(6)
dmaw(vy, 8)
a(f"""
s_mul_i32 s13, s61, 4160
s_add_u32 s13, s13, s24
v_lshlrev_b32 v220, 3, v1
v_sub_u32 v220, s13, v220
v_sub_u32 v221, s13, v10
v_min_u32 v48, 39, v1
v_lshlrev_b32 v48, 4, v48
v_add_u32 v222, 8256, v48
v_add_u32 v50, {4096-36*16}, v48
v_cmp_gt_u32 vcc, 36, v1
v_cndmask_b32 v222, v50, v222, vcc
v_add_u32 v222, s24, v222
v_mov_b32 v224, 0
v_mov_b32 v225, 0
v_mov_b32 v226, 0
v_mov_b32 v227, 0
v_mov_b32 v52, 0
s_mov_b32 s59, {SPIN}
k_c0_l:
s_cmp_ge_u32 s27, 32
s_cbranch_scc1 k_c0_d
s_sub_u32 s59, s59, 1
s_cmp_eq_u32 s59, 0
s_cbranch_scc1 k_c0_d
s_sleep 4
global_load_dword v53, v52, s[98:99] sc1
s_waitcnt vmcnt(0)
v_readfirstlane_b32 s27, v53
s_branch k_c0_l
k_c0_d:
""")
hsig_addr(12)
a(f"""
s_mov_b32 s19, 0x20000
s_mov_b32 s23, 0x20000
v_mov_b32 v168, {CNT}
v_mov_b32 v169, 1
""")
vy.wait("W7")
bar(7)
stamp(6)
FINA = [l.split(";")[0].strip() for l in f"""
s_lshr_b32 s13, s3, 1                ; tb
s_and_b32 s58, s3, 1
s_lshl_b32 s58, s58, 2
v_and_b32 v2, 15, v1                 ; t in block
v_lshrrev_b32 v3, 4, v1
v_add_u32 v3, s58, v3                ; dg
s_lshl_b32 s59, s13, 14
v_lshlrev_b32 v5, 1, v3
v_xor_b32 v5, v5, v2
v_lshlrev_b32 v5, 4, v5
v_lshl_add_u32 v5, v2, 8, v5
v_add_u32 v5, s59, v5
v_xor_b32 v6, 16, v5
s_lshl_b32 s13, s13, 4
v_add_u32 v2, s13, v2                ; t in tile
v_lshlrev_b32 v7, 2, v2
v_add_u32 v7, {GL}, v7
s_and_b32 s58, s2, 7
s_lshl_b32 s58, s58, 2
s_add_u32 s58, s58, s8
s_lshl_b32 s58, s58, 6
v_add_u32 v4, s58, v2
v_mul_u32_u24 v4, 896, v4
v_lshl_add_u32 v4, v3, 4, v4
s_lshl_b32 s58, s12, 7
v_add_u32 v4, s58, v4                ; out offset
v_bfe_u32 v8, v1, 2, 2
v_lshl_add_u32 v8, v3, 3, v8
v_mul_u32_u24 v8, {ATPI}, v8
v_and_b32 v9, 3, v1
v_lshl_add_u32 v8, v9, 3, v8
s_lshl_b32 s13, s13, 1
s_add_u32 s13, s13, {CS[0]}
v_add_u32 v8, s13, v8
""".strip().split("\n")]
vg = VM()
ACC2 = 16; AF = [172, 188]; RING = [204, 220, 236, 80, 96, 112, 144]
WS8 = RSL + [WR[2]]
def ldw_l(n):
    p, i = divmod(n, 7)
    o = f"s_add_u32 m0, s14, {WS8[n % 8]}\n" + (f"s_add_u32 s{SW[i]}, s{SW[i]}, 57344" if p else "s_nop 0")
    return [o] + [(f"buffer_load_dwordx4 v{160+k}, s[20:23], s{SW[i]} offen offset:{k*1024} lds", f"w{n}") for k in range(4)]
def ldh_l(n):
    p, i = divmod(n, 7)
    o = [f"s_add_u32 s{SH[i]}, s{SH[i]}, 114688"] if p else []
    return o + [(f"buffer_load_dwordx4 {vr(RING[i]+4*k,4)}, v10, s[16:19], s{SH[i]} offen offset:{k*1024} sc1", f"h{n}") for k in range(4)]
def emit(l):
    for x in l:
        if isinstance(x, tuple): vg.op(*x)
        else: a(x)
def uhalf(st, hs, extra, early=[], lg=0):
    F = FB[hs]; Fn = FB[hs ^ 1]
    mm = []
    for k2 in range(2):
        for fa in range(2):
            for tb in range(2):
                d = vr(acc(2*fa+tb), 16)
                mm.append(f"v_mfma_f32_32x32x16_bf16 {d}, {vr(F+16*k2+4*fa,4)}, {vr(F+16*k2+8+4*tb,4)}, {d}")
    a(f"s_waitcnt lgkmcnt({lg})")
    if hs == 0: fill = reads(1, Fn) + (VADDR(XA[(st+1) % 7], WA[st+1]) if st < 13 else [])
    else:
        if st == 10:
            a(mm.pop(0)); a("s_barrier"); stamp(7)
            if OPT["yprio"]: a(f"s_setprio {OPT['yprio']}")
        fill = reads(0, Fn) if st < 13 else []
    fill = fill + extra
    per = max(3, -(-len(fill) // len(mm)))
    for i, m in enumerate(mm):
        a(m)
        if early: emit([early.pop(0)]);
        if early and not isinstance(early[0], tuple): pass
        emit(fill[:per]); fill = fill[per:]
    emit(early); emit(fill)
def flat(l):
    out = []
    for x in l: out.append(x)
    return out
KW = [f"ds_write_b64 v220, v[204:205] offset:4088", f"ds_write_b64 v220, v[206:207] offset:{4088-512}", f"ds_write_b128 v221, v[208:211] offset:{4080-1024}",
      f"ds_write_b128 v221, v[212:215] offset:{4080-2048}", f"ds_write_b128 v221, v[216:219] offset:{4080-3072}", "ds_write_b128 v222, v[224:227]",
      "s_mov_b64 exec, 1\nds_add_u32 v168, v169\ns_mov_b64 exec, -1"]
def split(l):
    out = []
    for x in l:
        if isinstance(x, tuple): out.append(x)
        else: out += x.split("\n")
    return out
YS = ["s_mov_b64 exec, 1\nds_add_u32 v168, v169 offset:4\ns_mov_b64 exec, -1", "ds_read_b32 v170, v168 offset:4"]
pass_call(1, 3, 3)
uhalf(10, 0, [])
uhalf(10, 1, KW)
uhalf(11, 0, [], lg=7)
uhalf(11, 1, split(ldw_l(0)))
uhalf(12, 0, [])
uhalf(12, 1, split(ldw_l(1)))
uhalf(13, 0, [])
uhalf(13, 1, YS)
stamp(8)
EL = epi_list(0) + epi_list(1) + epi_list(2) + epi_list(3)
run_epi(vg, EL, 8)
a(f"""
s_mov_b32 s59, {SPIN}
k_ys:
s_waitcnt lgkmcnt(0)
v_readfirstlane_b32 s58, v170
s_cmp_eq_u32 s58, 4
s_cbranch_scc1 k_ysd
ds_read_b32 v170, v168 offset:4
s_sub_u32 s59, s59, 1
s_cmp_lg_u32 s59, 0
s_cbranch_scc1 k_ys
k_ysd:
""")
LQ = ldw_l(2) + ldw_l(3) + ldw_l(4) + ldw_l(5) + ["PP"] + ldw_l(6)
while LQ or EL:
    while LQ:
        x = LQ.pop(0)
        if x == "PP": pre_poll("s[28:29]", 4); continue
        emit([x])
        if isinstance(x, tuple): break
    run_epi(vg, EL, OPT["vgap"])
stamp(9)
a("s_setprio 0")
def rda(n):
    F = AF[n & 1]
    out = [f"v_add_u32 v{128+db}, {WS8[n % 8]}, v{164+db}" for db in range(4)]
    return out + [f"ds_read_b64_tr_b16 {vr(F+4*db+2*hh,2)}, v{128+db} offset:{hh*1024}" for db in range(4) for hh in range(2)]
check("k_c2", "s[28:29]", 4, 14 if OPT["one"] == 1 else 56, 15); stamp(10)
PRE = [ldh_l(0), ldh_l(1), ldh_l(2), ldw_l(7), ldh_l(3), ldh_l(4)]
vg.wait("w0")
for x in rda(0): a(x)
for l in PRE[:OPT["ni"]]: emit(l)
vg.wait("st")
def sigy():
    if "3" in OPT["sa"]: return ssig_h(8)
    a("s_mov_b64 exec, 0x3fff\nglobal_atomic_add v12, v169, s[40:41] offset:8 sc1\ns_mov_b64 exec, -1")
if OPT["one"]:
    stamp(3)
    last_of4("k_s3", 16, 2, sigy); a.label("k_s3"); stamp(5)
else: sigy()
for l in PRE[OPT["ni"]:max(OPT["ni"], 4)]: emit(l)
wi, hi_ = 8, 3 + max(0, OPT["ni"]-4)
SCHS = {
 0: (6, ["h w", "h w", "h w", "h w", "w", "w", "h h h", "h", "h", "h", "h", "", "", ""]),
 1: (6, ["h w", "h w", "h w", "h w", "w", "w", "h h", "h h", "h", "h", "h", "", "", ""]),
 2: (5, ["h w", "h w", "h w", "h w", "w", "h h", "h w", "h", "h", "h", "h", "", "", ""]),
 3: (6, ["h h", "h h", "w w", "w w", "w", "w", "h h h", "h", "h", "h", "h", "", "", ""]),
 4: (5, ["h w", "h w", "h w", "h", "w", "h", "h w", "h w", "h", "h", "h", "h", "", ""]),
 6: (5, ["h w", "h", "h w", "h", "w", "h", "h w", "h", "h w", "h w", "h", "h", "", ""]),
 7: (5, ["h", "h w", "h", "h w", "w", "h", "h w", "h w", "h w", "h", "h", "h", "", ""]),
 8: (4, ["h w", "h w", "h", "h", "h", "h w", "h w", "h w", "h w", "h", "h", "", "", ""]),
 9: (5, ["h w", "h w", "h", "h", "w", "h", "h", "h w", "h w", "h w", "h", "h", "", ""]),
 10: (6, ["h w", "h w", "h", "h w", "w", "w", "h h", "h", "h w", "h", "h", "h", "", ""]),
 5: (4, ["h w", "h w", "h w", "h", "h", "h w", "h w", "h w", "h", "h", "h", "", "", ""]),
}
CK, SCH = SCHS[OPT["sch"]]
for n in range(14):
    F = AF[n & 1]; S = RING[n % 7]
    if n == CK:
        check("k_c3", "s[28:29]", 8, HT, 15); stamp(11)
    vg.wait(f"h{n}", *([f"w{n+1}"] if n < 13 else []), extra=" lgkmcnt(0)")
    if OPT["sw"] == 2: stamp(1+n, True)
    ld = []
    for t in SCH[n].split():
        if t == "h": ld += ldh_l(hi_); assert hi_ <= n + 6 and (hi_ < 7 or n >= CK) and hi_ > n; hi_ += 1
        else: ld += ldw_l(wi); assert wi <= n + 8 and wi > n + 1; wi += 1
    fill = rda(n+1) if n < 13 else []
    if n + 1 == CK: fill.insert(0, "s_load_dword s27, s[28:29], 8 glc")
    ext = []
    if n == 10: ext = ["v_and_b32 v132, 15, v1", "v_lshrrev_b32 v133, 4, v1", "v_xor_b32 v133, v133, v132", "v_lshlrev_b32 v133, 4, v133", "v_lshl_add_u32 v132, v132, 8, v133",
                       "v_add_u32 v132, s14, v132", "v_xor_b32 v133, 64, v132", "v_xor_b32 v134, 128, v132", "v_xor_b32 v135, 192, v132"]
    if n == 11: ext = FINA[:len(FINA)//2]
    if n == 12: ext = FINA[len(FINA)//2:]
    PW = [f"ds_write_b128 v{132+db}, {vr(ACC2+16*db+4*tb,4)} offset:{tb*16384}" for db in range(4) for tb in range(4)]
    j = 0
    nl = len([x for x in ld if isinstance(x, tuple)]); STR = max(1, 16 // nl) if nl else 1
    for db in range(4):
        for tb in range(4):
            d = vr(ACC2+16*db+4*tb, 4)
            a(f"v_mfma_f32_16x16x32_bf16 {d}, {vr(F+4*db,4)}, {vr(S+4*tb,4)}, " + ("0" if n == 0 else d))
            if fill: a(fill.pop(0))
            if ld and (j % STR == 0):
                x = ld.pop(0); emit([x])
                if not isinstance(x, tuple) and ld: emit([ld.pop(0)])
            if ext: a(ext.pop(0))
            if n == 13 and j >= 6: a(PW.pop(0))
            j += 1
    emit(ld)
    for x in ext: a(x)
    if n == 13:
        for x in PW: a(x)
assert wi == 14 and hi_ == 14
stamp(12)
a("s_branch k_fbar")
a.label("k_final"); a.reset()
for x in FINA: a(x)
a.label("k_fbar")
a("s_waitcnt lgkmcnt(0)")
if OPT["fwarm"]: a("s_cbranch_execz k_fw")
stamp(13)
a("s_barrier")
stamp(14)
a.label("k_fw")
for w in range(4):
    a(f"ds_read_b128 {vr(16+8*w,4)}, v5 offset:{w*4096}")
    a(f"ds_read_b128 {vr(20+8*w,4)}, v6 offset:{w*4096}")
a(f"""
ds_read_b64_tr_b16 v[48:49], v8
ds_read_b64_tr_b16 v[50:51], v8 offset:{4*ATPI}
ds_read_b32 v52, v7
s_waitcnt lgkmcnt(7)
""")
for i in range(0, 8, 2): a(f"v_pk_add_f32 {vr(16+i,2)}, {vr(16+i,2)}, {vr(24+i,2)}")
a("s_waitcnt lgkmcnt(3)")
for i in range(0, 8, 2): a(f"v_pk_add_f32 {vr(32+i,2)}, {vr(32+i,2)}, {vr(40+i,2)}")
for i in range(0, 8, 2): a(f"v_pk_add_f32 {vr(16+i,2)}, {vr(16+i,2)}, {vr(32+i,2)}")
a("s_waitcnt lgkmcnt(0)\nv_lshlrev_b32 v54, 16, v52\nv_and_b32 v55, 0xffff0000, v52")
for i in range(4):
    a(f"v_lshlrev_b32 v{24+2*i}, 16, v{48+i}\nv_and_b32 v{25+2*i}, 0xffff0000, v{48+i}")
for i in range(0, 8, 2): a(f"v_pk_mul_f32 {vr(16+i,2)}, {vr(16+i,2)}, v[54:55] op_sel:[0,1] op_sel_hi:[1,1]")
for i in range(0, 8, 2): a(f"v_pk_fma_f32 {vr(16+i,2)}, {vr(24+i,2)}, v[54:55], {vr(16+i,2)} op_sel_hi:[1,0,1]")
for i in range(4): a(f"v_cvt_pk_bf16_f32 v{32+i}, v{16+2*i}, v{17+2*i}")
if OPT["fwarm"]: a("s_cbranch_execz k_fw2")
a("global_store_dwordx4 v4, v[32:35], s[96:97] sc0 sc1")
stamps_out(15)
a.label("k_end")
a("s_endpgm")
if OPT["fwarm"]: a("k_fw2:\ns_mov_b64 exec, -1\ns_branch k_final\nk_fw0:\ns_mov_b64 exec, 0\ns_branch k_part")
emit_pass()
a.label("code_end")

hdr = open("cdna_kernels/%s.s.ref" % NAME).read().split("; Override launch")[0]
out = hdr + f"; @launch grid=(256,1,1) block=(512,1,1) lds={LDS}\n"
out += '.amdgcn_target "amdgcn-amd-amdhsa--gfx950"\n' + a.text()
out += f""".section .rodata,"a"
.p2align 6
.amdhsa_kernel {KN}
  .amdhsa_next_free_vgpr 256
  .amdhsa_next_free_sgpr 102
  .amdhsa_accum_offset 256
  .amdhsa_group_segment_fixed_size 0
  .amdhsa_kernarg_size 136
  .amdhsa_user_sgpr_count 2
  .amdhsa_user_sgpr_kernarg_segment_ptr 1
  .amdhsa_system_sgpr_workgroup_id_x 1
.end_amdhsa_kernel
"""
open(sys.argv[1], "w").write(out)
print("written", sys.argv[1], "lines", len(a.lines), "nops", a.nops, "")
```

```python
import sys, math, struct
from asm import *

NAME = "gated_mix__ssm_conv_s4__swiglu_ffn__prompt"
KN = NAME + "_kernel"
WDP = 0x800000
HP, UT, AT, GG, FL = 0, 0xA00000, 0xE00000, 0x1000000, 0x1010000
UTP = 4224
def fbits(x): return "0x%08x" % struct.unpack("<I", struct.pack("<f", x))[0]
LOG2E = 1.4426950408889634
OPT = dict(ntx="", ntw="", ntp="nt", stamp=0, cprio=0, yprio=1, warm=0, fwarm=0, rpg=2, w1=1, sw=0, wsig=1, xt=1, xwd=0, rot2=1, ht=0, xs1=26, xs2=26, xs3=48, vgap=9, HD=4, CK=5, xprio=2, one=1, ni=2, sch=4, cpf=0, pb=0, xw=1, w2=0, trim=1, wso=0, sa="234", ost="sc0 sc1", bp=0)
for a_ in sys.argv[2:]:
    k, v = a_.split("="); OPT[k] = v if k == "sa" else int(v) if v.lstrip("-").isdigit() else v
a = Asm()
SPIN = 40000
HT = 14 if OPT["one"] else 56

def cmuls(lst):
    for d, x, y in lst:
        assert d != x and d != y
        a(f"v_pk_mul_f32 {vr(d,2)}, {vr(x,2)}, {vr(y,2)} op_sel_hi:[1,0]")
    for d, x, y in lst:
        a(f"v_pk_fma_f32 {vr(d,2)}, {vr(x,2)}, {vr(y,2)}, {vr(d,2)} op_sel:[1,1,0] op_sel_hi:[0,1,1] neg_lo:[1,0,0]")
def bar(n):
    k = (n - 1) if n < 8 else (n - 8)
    if OPT["sw"] == 1 and n >= 1: stamp(1+2*k, True)
    a("s_barrier")
    if OPT["sw"] == 1 and n >= 1: stamp(2+2*k, True)
_seen1 = [0]
_j = [0]
def stamp(idx, force=False):
    if OPT.get("jit") and idx not in (0,):
        _j[0] += 1; k = _j[0]
        a(f"""s_cselect_b32 s66, 1, 0
s_mul_i32 s64, s2, {3+2*(k % 5)}
s_add_u32 s64, s64, s3
s_add_u32 s64, s64, {k*OPT["jit"]}
s_and_b32 s64, s64, 3
s_cmp_eq_u32 s64, 0
s_cbranch_scc0 k_jit{k}
s_sleep {20 + 13*(k % 4)}
k_jit{k}:
s_cmp_eq_u32 s66, 1""")
        return
    if OPT.get("es") and idx == 1:
        _seen1[0] += 1
        if _seen1[0] in (2, 4): return
    if OPT["sw"] and not force and idx not in (0, 15): return
    if OPT["stamp"]: a(f"{'s_memtime' if OPT['stamp']==2 else 's_memrealtime'} s[{64+2*idx}:{65+2*idx}]")
def stamps_out(idx):
    if not OPT["stamp"]: return
    a("s_waitcnt vmcnt(0)")
    stamp(idx)
    a("s_waitcnt lgkmcnt(0)")
    for i in range(16): a(f"v_writelane_b32 v250, s{64+2*i}, {i}")
    a(f"""s_lshl_b32 s64, s2, 3
s_add_u32 s64, s64, s3
s_lshl_b32 s64, s64, 6
s_add_u32 s64, s64, 0x2000000
v_lshl_add_u32 v251, v1, 2, s64
s_mov_b64 exec, 0xffff
global_store_dword v251, v250, s[40:41]""")
    if OPT.get("dbgout"):
        a(f"""
s_lshl_b32 s65, s2, 3
s_add_u32 s65, s65, s3
s_cmp_eq_u32 s65, {OPT['dbgout']}
s_cbranch_scc0 k_end
v_readlane_b32 s65, v250, 0
v_subrev_u32 v250, s65, v250
v_lshlrev_b32 v251, 2, v1
s_mov_b64 exec, 0xfffe
global_store_dword v251, v250, s[98:99]""")
def stamps_init():
    if OPT["stamp"]:
        for i in range(1,16): a(f"s_mov_b32 s{64+2*i}, 0")
        stamp(0)

class VM:
    def __init__(self): self.q = []
    def op(self, text, tag):
        a(text); self.q.append(tag)
    def n_for(self, *tags):
        idx = max(i for i, t in enumerate(self.q) if t in tags)
        return len(self.q) - 1 - idx
    def wait(self, *tags, extra=""):
        n = self.n_for(*tags); assert n <= 63
        a(f"s_waitcnt vmcnt({n}){extra}")

XA = [98304, 49152, 65536, 81920, 32768, 0, 16384]
WR = [114688, 131072, 147456]
WA = [WR[s % 3] for s in range(10)] + [WR[1], XA[0], WR[2], XA[1]]
CS = [XA[2], WR[0]]
RSL = [XA[3], WR[1], XA[4], XA[5], XA[6], XA[0], XA[1]]
TABO = 12992
CNT = CS[0] + 16064
GL = CS[1] + 16064
ATPI = 144
LDS = 163840

a.raw(f".text\n.globl {KN}\n.p2align 8\n.type {KN},@function\n{KN}:")
a("""
s_cmp_ge_u32 s2, 256
s_cbranch_scc1 k_end
s_add_u32 s2, s2, 224
s_and_b32 s2, s2, 255
""")
stamps_init()
a("""
s_load_dwordx16 s[16:31], s[0:1], 0
s_load_dwordx8 s[32:39], s[0:1], 80
s_load_dwordx2 s[40:41], s[0:1], 128
s_load_dwordx4 s[96:99], s[0:1], 112
s_getpc_b64 s[4:5]
k_pc:
v_lshrrev_b32 v2, 6, v0
v_and_b32 v1, 63, v0
v_readfirstlane_b32 s3, v2
s_lshr_b32 s6, s2, 3                 ; j
s_and_b32 s8, s6, 3                  ; rbl
; code prefetch into L2: line = rbl*56 + wave*7 + min(lane,6)
s_mul_i32 s7, s8, 6144
v_min_u32 v3, 5, v1
v_mad_u32_u24 v3, v2, 6, v3
v_lshlrev_b32 v3, 7, v3
v_add_u32 v3, s7, v3
v_min_u32 v3, code_end-k_pc-4, v3
CPF
s_and_b32 s7, s3, 3
s_lshr_b32 s14, s7, 1
s_lshl_b32 s60, s2, 1
s_add_u32 s60, s60, s14
s_lshl_b32 s13, s60, 9
s_and_b32 s14, s7, 1
s_lshl_b32 s14, s14, 7
s_add_u32 s13, s13, s14
s_and_b32 s14, s3, 4
s_lshl_b32 s14, s14, 6
s_add_u32 s13, s13, s14
v_lshl_add_u32 v8, v1, 1, s13
s_lshl_b32 s14, s60, 1
v_mov_b32 v9, s14
s_cmp_ge_u32 s2, 224
s_cbranch_scc1 k_npl
s_waitcnt lgkmcnt(0)
global_load_ushort v238, v9, s[30:31]
global_load_ushort v239, v8, s[18:19] nt
global_load_ushort v11, v8, s[20:21] nt
global_load_ushort v12, v8, s[22:23] nt
global_load_ushort v216, v8, s[24:25] nt
global_load_ushort v217, v8, s[26:27] nt
global_load_ushort v218, v8, s[28:29] nt
k_npl:
WSO
s_and_b32 s10, s2, 6
s_lshl_b32 s10, s10, 1
s_add_u32 s10, s10, s8               ; rb128
s_and_b32 s9, s2, 1
s_mul_i32 s11, s9, 7
s_lshr_b32 s12, s6, 2                ; fbl (7 = spare WG)
s_add_u32 s11, s11, s12              ; fb128
v_lshlrev_b32 v10, 4, v1
s_lshl_b32 s42, s8, 1
s_add_u32 s42, s42, s12
s_sub_u32 s43, s42, 7
s_cmp_ge_u32 s42, 7
s_cselect_b32 s42, s43, s42          ; rot
; W DMA voffsets v14,v15: row k = 16q+8i+(l>>3); chunk16 = (l&7) ^ (((l>>4)&1)<<1) ^ (i<<2)
v_lshrrev_b32 v20, 3, v1
v_lshrrev_b32 v21, 4, v1
v_and_b32 v22, 7, v1
s_lshl_b32 s13, s7, 4
v_add_u32 v25, s13, v20
v_mul_u32_u24 v25, 3584, v25
s_lshl_b32 s13, s11, 8
v_add_u32 v25, s13, v25
v_and_b32 v26, 1, v21
v_lshlrev_b32 v26, 1, v26
v_xor_b32 v26, v22, v26
v_lshl_add_u32 v240, v26, 4, v25
v_add_u32 v241, 27648, v240
v_xor_b32 v26, 4, v26
v_lshl_add_u32 v242, v26, 4, v25
v_add_u32 v243, 27648, v242
s_lshl_b32 s15, s7, 11               ; W dest offset in slot
s_mov_b32 s50, 1605632
s_mov_b32 s51, 0x20000
s_mov_b32 s54, 1605632
s_mov_b32 s55, 0x20000
s_cmp_eq_u32 s12, 7
s_cbranch_scc1 k_spare
""".replace("WSO", f"s_waitcnt lgkmcnt(0)\ns_add_u32 s40, s40, {OPT['wso']<<20}\ns_addc_u32 s41, s41, 0" if OPT["wso"] else "").replace("CPF", ["global_load_dword v0, v3, s[4:5]", "s_cmp_lt_u32 s2, 224\ns_cbranch_scc1 k_ncp\nglobal_load_dword v0, v3, s[4:5]\nk_ncp:", "s_cmp_lt_u32 s2, 192\ns_cbranch_scc1 k_ncp\nglobal_load_dword v0, v3, s[4:5]\nk_ncp:"][OPT["cpf"]]))
def dmaw(vm, st):
    a(f"s_add_u32 m0, s15, {WA[st]}")
    if st >= 7: a("s_add_u32 s58, s57, 128")
    else: a("s_mov_b32 s58, s57")
    for i in range(2): vm.op(f"buffer_load_dwordx4 v{240+i}, s[48:51], s58 offen offset:{i*1024} {OPT['ntw']} lds", f"W{st}")
    a(f"s_add_u32 m0, s15, {WA[st]+8192}\ns_add_u32 s57, s57, 229376")
    for i in range(2): vm.op(f"buffer_load_dwordx4 v{242+i}, s[52:55], s58 offen offset:{i*1024} {OPT['ntw']} lds", f"W{st}")
    a("s_cmp_eq_u32 s57, 1605632\ns_cselect_b32 s57, 0, s57")
def dmax(vm, st):
    a(f"s_add_u32 m0, s14, {XA[st]}\ns_mov_b32 s58, s56")
    for i in range(4): vm.op(f"buffer_load_dwordx4 v{232+i}, s[44:47], s58 offen offset:{i*1024} {OPT['ntx']} lds", f"X{st}")
    a("s_add_u32 s56, s56, 128\ns_cmp_eq_u32 s56, 896\ns_cselect_b32 s56, 0, s56")

FB = [16, 48]; ACC = 80; TM = 144; KA = 164
def pass_addrs():
    a(f"""
v_and_b32 v6, 31, v1
v_lshrrev_b32 v7, 5, v1
v_bfe_u32 v4, v1, 1, 3
v_xor_b32 v7, v7, v4
v_lshlrev_b32 v7, 4, v7
v_lshl_add_u32 v6, v6, 7, v7
s_lshr_b32 s13, s7, 1
s_lshl_b32 s13, s13, 13
v_add_u32 v2, s13, v6
v_lshlrev_b32 v6, 9, v1
v_and_b32 v6, 0x2000, v6
v_lshlrev_b32 v7, 5, v1
v_and_b32 v7, 0x580, v7
v_and_b32 v4, 3, v1
v_lshlrev_b32 v4, 3, v4
v_add3_u32 v6, v6, v7, v4
v_bfe_u32 v7, v1, 3, 2
s_and_b32 s13, s7, 1
s_lshl_b32 s13, s13, 1
v_xor_b32 v7, s13, v7
v_lshl_add_u32 v3, v7, 5, v6
""")
def h_addr(p):
    a(f"""
s_lshl_b32 s13, s10, 1
s_lshr_b32 s58, s7, 1
s_add_u32 s13, s13, s58
s_mul_i32 s13, s13, 56
s_lshl_b32 s58, s11, 1
s_add_u32 s13, s13, s58
s_and_b32 s58, s7, 1
s_add_u32 s13, s13, s58
s_lshr_b32 s58, s3, 2
s_mul_i32 s58, s58, 28
s_add_u32 s13, s13, s58
s_lshl_b32 s13, s13, 12
v_and_b32 v14, 15, v1
v_lshl_add_u32 v14, v14, 4, s13
v_bfe_u32 v15, v1, 4, 1
v_lshl_add_u32 v14, v15, 10, v14
v_lshrrev_b32 v15, 5, v1
v_lshl_add_u32 v14, v15, 8, v14
s_mov_b32 s62, {fbits(-LOG2E)}
""")
def nib(lst):
    v = 0
    for i, x in enumerate(lst): v |= (x // 16384) << (4*i)
    return "0x%x" % v
VADDR = lambda xs, ws: [f"v_add_u32 v6, {xs}, v2", f"v_add_u32 v4, {ws}, v3", "v_xor_b32 v7, 32, v6", "v_xor_b32 v5, 32, v4", "v_xor_b32 v8, 64, v6", "v_xor_b32 v9, 96, v6"]
SETA = ["s_and_b32 s13, s30, 15", "s_lshl_b32 s13, s13, 14", "s_lshr_b32 s30, s30, 4", "s_and_b32 s58, s31, 15", "s_lshl_b32 s58, s58, 14", "s_lshr_b32 s31, s31, 4"] + VADDR("s13", "s58")
def reads(hs, F):
    out = []
    for k2 in range(2):
        ks = 2*hs + k2
        A_ = lambda fa, hh: f"ds_read_b64_tr_b16 {vr(F+16*k2+4*fa+2*hh,2)}, v{4+fa} offset:{ks*2048+hh*512}"
        B_ = lambda tb: f"ds_read_b128 {vr(F+16*k2+8+4*tb,4)}, v{6+ks} offset:{tb*4096}"
        out += [A_(0,0), A_(0,1), B_(0), B_(1), A_(1,0), A_(1,1)]
    return out
def acc(n): return ACC + 16*n
def pass_resume(iters):
    a(f"s_mov_b32 s59, {iters}\ns_call_b64 s[100:101], k_pl")
    a.reset()
def pass_call(p, nbar, iters):
    a(f"""
s_mov_b32 s30, {nib(XA[1:]+[0])}
s_mov_b32 s31, {nib(WA[7*p+1:7*p+7]+[0])}
s_mov_b32 s43, {nbar}
s_mov_b32 s59, {iters}
s_call_b64 s[100:101], k_pass
""")
    a.reset()
def pass_first_addr(p):
    for x in VADDR(XA[0], WA[7*p]): a(x)
def emit_pass():
    def half(hs, first):
        F = FB[hs]; Fn = FB[hs ^ 1]
        mm = []
        for k2 in range(2):
            for fa in range(2):
                for tb in range(2):
                    d = vr(acc(2*fa+tb), 16)
                    mm.append(f"v_mfma_f32_32x32x16_bf16 {d}, {vr(F+16*k2+4*fa,4)}, {vr(F+16*k2+8+4*tb,4)}, " + ("0" if first and k2 == 0 else d))
        if first: a("s_waitcnt lgkmcnt(6)")
        else: a("s_waitcnt lgkmcnt(0)")
        if hs == 0:
            fill = reads(1, Fn) + SETA + ["s_cmp_eq_u32 s43, 0"]
        else:
            a(mm.pop(0))
            a("s_cbranch_scc1 k_pnb\ns_waitcnt vmcnt(0)\ns_barrier\ns_sub_u32 s43, s43, 1\nk_pnb:")
            fill = reads(0, Fn) + ["s_sub_u32 s59, s59, 1", "s_cmp_lg_u32 s59, 0"]
        for i, m in enumerate(mm):
            if first and i == 4: a("s_waitcnt lgkmcnt(12)")
            a(m)
            for _ in range(3 if (i < 4) else 4):
                if fill: a(fill.pop(0))
        for x in fill: a(x)
    a.raw(".p2align 6")
    a.label("k_pass"); a.reset()
    for r in reads(0, FB[0]): a(r)
    half(0, True)
    a("s_branch k_pm")
    a.raw(".p2align 6")
    a.label("k_pl")
    half(0, False)
    a.label("k_pm")
    half(1, False)
    a("s_cbranch_scc1 k_pl\ns_setpc_b64 s[100:101]")
def epi_list(n):
    Tm = TM + 8*(n & 1); R = acc(n); o = []
    for i in range(8): o.append(f"v_mul_f32 v{Tm+i}, s62, v{R+i}")
    for i in range(8): o += [f"v_exp_f32 v{Tm+i}, v{Tm+i}", f"v_mul_f32 v{R+i}, v{R+i}, v{R+8+i}"]
    for i in range(8): o.append(f"v_add_f32 v{Tm+i}, 1.0, v{Tm+i}")
    for i in range(8):
        o.append(f"v_rcp_f32 v{Tm+i}, v{Tm+i}")
        if i >= 2: o.append(f"v_mul_f32 v{R+i-2}, v{R+i-2}, v{Tm+i-2}")
    for i in (6, 7): o.append(f"v_mul_f32 v{R+i}, v{R+i}, v{Tm+i}")
    for i in range(4): o.append(f"v_cvt_pk_bf16_f32 v{R+8+i}, v{R+2*i}, v{R+2*i+1}")
    o.append(("st", n))
    return o
def hst(vm, n, tag):
    vm.op(f"global_store_dwordx4 v14, {vr(acc(n)+8,4)}, s[40:41] offset:{(n&1)*2048+(n>>1)*512} sc1", tag)
def run_epi(vm, lst, count):
    for _ in range(count):
        if not lst: return
        x = lst.pop(0)
        if isinstance(x, tuple): hst(vm, x[1], "st")
        else: a(x)
def pre_poll(base, off):
    a(f"s_load_dword s27, {base}, {off} glc")
def check(lbl, base, off, target, vt, sleep=1):
    a(f"""
s_mov_b32 s59, 0
{lbl}_l:
s_waitcnt lgkmcnt(0)
s_cmp_eq_u32 s27, {target}
s_cbranch_scc1 {lbl}_d
s_add_u32 s59, s59, 1
s_sleep {sleep}
s_cmp_lt_u32 s59, 256
s_cbranch_scc0 {lbl}_v
s_load_dword s27, {base}, {off} glc
s_branch {lbl}_l
{lbl}_v:
v_mov_b32 v{vt}, 0
global_load_dword v{vt}, v{vt}, {base} offset:{off} sc1
s_waitcnt vmcnt(0)
v_readfirstlane_b32 s27, v{vt}
s_cmp_lt_u32 s59, {SPIN}
s_cbranch_scc1 {lbl}_l
{lbl}_d:
""")
def own_line():
    a(f"""
s_lshl_b32 s13, s2, 7
s_add_u32 s13, s13, {FL}
s_add_u32 s28, s40, s13
s_addc_u32 s29, s41, 0
""")
def hsig_addr(v):
    a(f"""
s_lshl_b32 s13, s10, 1
s_and_b32 s58, s13, 3
s_lshl_b32 s58, s58, 3
s_lshr_b32 s13, s13, 2
s_add_u32 s13, s13, s58
s_lshl_b32 s13, s13, 7
s_add_u32 s13, s13, {FL}
v_lshrrev_b32 v{v}, 1, v1
v_lshlrev_b32 v{v}, 12, v{v}
v_and_b32 v{v+1}, 1, v1
v_lshl_add_u32 v{v}, v{v+1}, 10, v{v}
v_add_u32 v{v}, s13, v{v}
""")
def ssig_h(word):
    a(f"""
s_lshl_b32 s13, s10, 1
s_and_b32 s58, s13, 3
s_lshl_b32 s58, s58, 3
s_lshr_b32 s13, s13, 2
s_add_u32 s13, s13, s58
s_lshl_b32 s13, s13, 7
s_add_u32 s13, s13, {FL}
s_add_u32 s44, s40, s13
s_addc_u32 s45, s41, 0
s_mov_b32 s46, 1
""")
    for cb in range(7):
        for r in range(2): a(f"s_atomic_add s46, s[44:45], {cb*4096+r*1024+word}")
def last_of4(lbl, cntoff, vt, body):
    a(f"""
v_mov_b32 v{vt}, {CNT+cntoff}
v_mov_b32 v{vt+1}, 1
s_mov_b64 exec, 1
ds_add_rtn_u32 v{vt+2}, v{vt}, v{vt+1}
s_waitcnt lgkmcnt(0)
v_readfirstlane_b32 s58, v{vt+2}
s_mov_b64 exec, -1
s_cmp_eq_u32 s58, 3
s_cbranch_scc0 {lbl}
""")
    body()

Z = lambda k: 20 + 2*k
Wp = lambda k: 50 + 2*k
E = lambda k: 68 + 2*k
Y_ = {1: 84, 2: 86, 4: 88, 8: 90}
T = lambda k: 92 + 2*k
CV = lambda k: 108 + (k & 7)
FE, FX0, FX1 = 116, 132, 148
PR = 176
vy = VM()
XV = 232
a(f"""
v_xor_b32 v23, v22, v21
v_xor_b32 v24, 4, v23
s_lshl_b32 s13, s7, 5
v_add_u32 v25, s13, v20
v_mul_u32_u24 v25, 896, v25
v_lshl_add_u32 v{XV}, v23, 4, v25
v_lshl_add_u32 v{XV+1}, v24, 4, v25
v_add_u32 v{XV+1}, 6144, v{XV+1}
v_add_u32 v{XV+2}, 12288, v{XV}
v_add_u32 v{XV+3}, 12288, v{XV+1}
s_lshl_b32 s14, s7, 12
s_lshl_b32 s56, s42, 7
s_mul_i32 s57, s42, 229376
s_mul_i32 s13, s10, 114688
s_mov_b32 s46, 114688
s_mov_b32 s47, 0x20000
s_mul_i32 s63, s3, 4608
""")
a("""
s_mov_b32 s48, s32
s_mov_b32 s49, s33
s_mov_b32 s52, s34
s_mov_b32 s53, s35
s_add_u32 s44, s16, s13
s_addc_u32 s45, s17, 0
""")
if OPT["pb"]: a("s_barrier")
a("""
s_cmp_lt_u32 s3, 4
s_cbranch_scc1 k_x0
""")
dmaw(vy, 0); dmax(vy, 0)
if OPT["w1"] and not OPT["xw"]: dmaw(vy, 1)
a(f"""
s_and_b32 s9, s2, 7
s_lshl_b32 s9, s9, 2
s_add_u32 s9, s9, s8               ; rb64
s_mul_i32 s13, s9, 229376
s_mul_i32 s58, s7, 28672
s_add_u32 s13, s13, s58
s_add_u32 s16, s40, s13
s_addc_u32 s17, s41, 0
s_mov_b32 s18, {114688+28672}
s_mov_b32 s19, 0x20000
s_mov_b32 s20, s36
s_mov_b32 s21, s37
s_mov_b32 s22, 1605632
s_mov_b32 s23, 0x20000
s_mul_i32 s25, s7, 7
s_lshl_b32 s26, s12, 7               ; cb*128
""")
SW = [32+i for i in range(7)]; SH = [4, 5, 6, 39, 0, 1, 60]
for i in range(7):
    a(f"""
s_add_u32 s58, s42, {i}
s_sub_u32 s59, s58, 7
s_min_u32 s58, s58, s59
s_lshl_b32 s{SH[i]}, s58, 12
s_add_u32 s58, s58, s25
s_lshr_b32 s59, s58, 1
s_mul_i32 s59, s59, 114688
s_and_b32 s58, s58, 1
s_mul_i32 s58, s58, 28672
s_add_u32 s58, s58, s59
s_add_u32 s{SW[i]}, s58, s26
""")
a("""
s_branch k_w0
k_x0:
s_load_dwordx2 s[4:5], s[0:1], 64
s_add_u32 s57, s42, XOFF
s_sub_u32 s13, s57, 7
s_cmp_ge_u32 s57, 7
s_cselect_b32 s57, s13, s57
s_mul_i32 s57, s57, 229376           ; chunk offset of stage 9
k_w0:
v_and_b32 v4, 15, v1                 ; c
v_lshlrev_b32 v5, 2, v21             ; 4g
v_lshlrev_b32 v6, 6, v21             ; 64g
v_lshl_add_u32 v247, v4, 4, v5
v_lshl_add_u32 v248, v4, 3, v5
v_lshl_add_u32 v249, v4, 2, v6
v_cmp_gt_u32 vcc, 2, v21
v_cndmask_b32 v248, v249, v248, vcc
v_lshl_add_u32 v249, v4, 1, v6
v_lshl_add_u32 v247, v247, 2, s63
v_lshl_add_u32 v248, v248, 2, s63
v_lshl_add_u32 v249, v249, 2, s63
""".replace("XOFF", "1" if OPT["xw"] else "2"))
pass_addrs()
h_addr(0)
own_line()
if OPT["warm"]:
    a("s_mov_b64 exec, 0")
    for w in range(1, 8): a(f"s_cmp_eq_u32 s3, {w}\ns_cbranch_scc1 k_sec{w}")
    a("s_branch k_kg\nk_wd:")
    for w in range(4):
        a(f"s_cmp_eq_u32 s3, {w}\ns_cbranch_scc0 k_we{w}\ns_call_b64 s[100:101], k_epi{w}\nk_we{w}:")
    a("s_cmp_eq_u32 s3, 3\ns_cbranch_scc0 k_wp\ns_mov_b32 s43, 0\ns_mov_b32 s59, 1\ns_call_b64 s[100:101], k_pass\nk_wp:")
    a("s_mov_b64 exec, -1")
a(f"""
v_mov_b32 v245, v9
v_and_b32 v18, 15, v1
v_mul_u32_u24 v18, 288, v18
v_and_b32 v19, 48, v1
v_add3_u32 v18, v18, v19, s63
s_cmp_lt_u32 s3, 4
s_cbranch_scc1 k_x1
s_waitcnt vmcnt({len(vy.q)})
s_branch k_kg
k_x1:
s_waitcnt vmcnt(0)
k_kg:
""")
secn = [0]
def sec():
    if OPT["warm"]:
        secn[0] += 1
        a("s_cbranch_execz k_wd")
        if secn[0] < 8: a.label(f"k_sec{secn[0]}")
a.reset()
stamp(2)
a(f"""
s_mov_b32 m0, s63
v_lshlrev_b32 v238, 16, v238
v_mul_f32 v16, {fbits(LOG2E)}, v238
v_exp_f32 v16, v16
v_lshlrev_b32 v239, 16, v239
v_lshlrev_b32 v11, 16, v11
v_lshlrev_b32 v12, 16, v12
v_lshlrev_b32 v216, 16, v216
v_lshlrev_b32 v217, 16, v217
v_lshlrev_b32 v218, 16, v218
v_cvt_pk_bf16_f32 v16, v16, v16
v_and_b32 v16, 0xffff0000, v16
v_mul_f32 v8, {fbits(LOG2E)}, v16
v_mul_f32 v9, 0.15915494, v16
v_mul_f32 v17, v239, v8
v_mul_f32 v11, v11, v9
v_mul_f32 v12, v12, v16
v_mul_f32 v216, v216, v16
v_mul_f32 v{E(0)}, v217, v12
v_mul_f32 v{E(0)+1}, v217, v216
v_fma_f32 v{E(0)}, -v218, v216, v{E(0)}
v_fma_f32 v{E(0)+1}, -v218, v12, -v{E(0)+1}
""")
ydn = [0]
def ydma(fn):
    ydn[0] += 1
    a(f"s_cmp_lt_u32 s3, 4\ns_cbranch_scc1 k_yd{ydn[0]}")
    fn()
    a(f"s_mov_b32 m0, s63\nk_yd{ydn[0]}:")
anc = [(Y_[1], 16.0, True), (Z(1), 1.0, False), (Wp(1), 256.0, False)]
for n, (d, p, cj) in enumerate(anc):
    if p != 1.0: a(f"v_mul_f32 v{T(n)}, {fbits(p)}, v17\nv_mul_f32 v{T(n)+1}, {fbits(p)}, v11")
for n, (d, p, cj) in enumerate(anc):
    if p == 1.0: a(f"v_exp_f32 v{T(n)}, v17\nv_fract_f32 v{T(n)+1}, v11")
    else: a(f"v_exp_f32 v{T(n)}, v{T(n)}\nv_fract_f32 v{T(n)+1}, v{T(n)+1}")
for n, (d, p, cj) in enumerate(anc):
    a(f"v_cos_f32 v{d}, v{T(n)+1}\nv_sin_f32 v{d+1}, v{T(n)+1}")
for n, (d, p, cj) in enumerate(anc):
    a(f"v_pk_mul_f32 {vr(d,2)}, {vr(d,2)}, {vr(T(n),2)} op_sel_hi:[1,0]" + (" neg_hi:[1,0]" if cj else ""))
cnt = [0]; NDS = [0]; MK = {}
def puts(lst):
    cs = []
    for row, src in lst:
        c = CV(cnt[0]); cnt[0] += 1; cs.append(c)
        if src is None: a(f"v_mov_b32 v{c}, 0x3f80")
        else: a(f"v_cvt_pk_bf16_f32 v{c}, v{src}, v{src+1}")
    if OPT["w2"]:
        pend = list(zip([r for r, _ in lst], cs))
        while pend:
            r0, c0 = pend.pop(0)
            m = [x for x in pend if x[0]//4 == r0//4]
            if m:
                pend.remove(m[0]); r1, c1 = m[0]
                a(f"ds_write2_b32 v{176+r0//4}, v{c0}, v{c1} offset0:{(r0%4)*72} offset1:{(r1%4)*72}"); NDS[0] += 1
            else:
                a(f"ds_write_addtid_b32 v{c0} offset:{r0*288}"); NDS[0] += 1
        return
    for (row, src), c in zip(lst, cs):
        a(f"ds_write_addtid_b32 v{c} offset:{row*288}"); NDS[0] += 1
def putl(lst):
    for i in range(0, len(lst), 4): puts(lst[i:i+4])
def frags(F):
    for s in range(4): a(f"ds_read_b128 {vr(F+4*s,4)}, v18 offset:{s*64}")
    NDS[0] += 4; MK[F] = NDS[0]
def wfr(F): a(f"s_waitcnt lgkmcnt({min(15, NDS[0]-MK[F])})")
def mf(tau, F):
    for s in range(4):
        a(f"v_mfma_f32_16x16x32_bf16 {vr(KA+4*tau,4)}, {vr(F+4*s,4)}, {vr(FE+4*s,4)}, " + ("0" if s == 0 else vr(KA+4*tau,4)))
Y = Y_
if OPT["trim"]:
    cmuls([(Y[2], Y[1], Y[1]), (E(1), E(0), Y[1]), (Z(2), Z(1), Z(1)), (Wp(2), Wp(1), Wp(1))])
    cmuls([(E(2), E(0), Y[2]), (E(3), E(1), Y[2]), (Z(3), Z(2), Z(1)), (Z(4), Z(2), Z(2))])
    putl([(i, E(i)) for i in range(4)])
    cmuls([(E(4), E(2), Y[2]), (E(5), E(3), Y[2]), (Wp(3), Wp(2), Wp(1)), (Wp(4), Wp(2), Wp(2))])
    cmuls([(E(6), E(4), Y[2]), (E(7), E(5), Y[2])])
    putl([(i, E(i)) for i in range(4, 8)])
    cmuls([(T(0), E(6), Y[2]), (T(1), E(7), Y[2])])
    cmuls([(T(2), T(0), Y[2]), (T(3), T(1), Y[2])])
    putl([(8+i, T(i)) for i in range(4)])
    cmuls([(T(4), T(2), Y[2]), (T(5), T(3), Y[2])])
    cmuls([(T(6), T(4), Y[2]), (T(7), T(5), Y[2])])
    putl([(8+i, T(i)) for i in range(4, 8)])
else:
    cmuls([(Y[2], Y[1], Y[1]), (E(1), E(0), Y[1]), (Z(2), Z(1), Z(1)), (Wp(2), Wp(1), Wp(1))])
    cmuls([(Y[4], Y[2], Y[2]), (E(2), E(0), Y[2]), (E(3), E(1), Y[2]), (Z(3), Z(2), Z(1)), (Z(4), Z(2), Z(2)), (Wp(3), Wp(2), Wp(1)), (Wp(4), Wp(2), Wp(2))])
    sec()
    putl([(i, E(i)) for i in range(4)])
    cmuls([(Y[8], Y[4], Y[4])] + [(E(4+i), E(i), Y[4]) for i in range(4)])
    putl([(i, E(i)) for i in range(4, 8)])
    cmuls([(T(i), E(i), Y[8]) for i in range(4)])
    sec()
    putl([(8+i, T(i)) for i in range(4)])
    cmuls([(T(i), E(i), Y[8]) for i in range(4, 8)])
    putl([(8+i, T(i)) for i in range(4, 8)])
frags(FE)
sec()
putl([(0, None)] + [(i, Z(i)) for i in range(1, 4)])
cmuls([(Z(5), Z(4), Z(1)), (Z(6), Z(4), Z(2)), (Z(7), Z(4), Z(3)), (Z(8), Z(4), Z(4))])
putl([(i, Z(i)) for i in range(4, 8)])
cmuls([(Z(8+i), Z(8), Z(i)) for i in range(1, 4)])
sec()
putl([(i, Z(i)) for i in range(8, 12)])
cmuls([(Z(8+i), Z(8), Z(i)) for i in range(4, 8)])
putl([(i, Z(i)) for i in range(12, 16)])
frags(FX0)
sec()
cmuls([(T(r), Wp(1), Z(2*r)) for r in range(1, 4)])
putl([(0, Wp(1))] + [(r, T(r)) for r in range(1, 4)])
cmuls([(T(r), Wp(1), Z(2*r)) for r in range(4, 8)])
putl([(r, T(r)) for r in range(4, 8)])
sec()
cmuls([(T(j-1), Wp(2), Z(4*j)) for j in (1, 2, 3)])
wfr(FX0)
mf(0, FX0)
putl([(8, Wp(2))] + [(8+j, T(j-1)) for j in (1, 2, 3)])
cmuls([(T(2+j), Wp(3), Z(4*j)) for j in (1, 2, 3)])
putl([(12, Wp(3))] + [(12+j, T(2+j)) for j in (1, 2, 3)])
frags(FX1)
sec()
cmuls([(Wp(5), Wp(4), Wp(1)), (Wp(6), Wp(4), Wp(2)), (Wp(7), Wp(4), Wp(3)), (Wp(8), Wp(4), Wp(4))])
putl([(2*h, Wp(4+h)) for h in range(4)] )
cmuls([(T(h), Wp(4+h), Z(8)) for h in range(4)])
putl([(2*h+1, T(h)) for h in range(4)] + [(8, Wp(8))])
frags(FX0)
wfr(FX1)
mf(1, FX1)
a("s_waitcnt lgkmcnt(0)")
mf(2, FX0)
a(f"""
ds_write_b128 v247, {vr(KA,4)} offset:64
ds_write_b128 v248, {vr(KA+4,4)} offset:{64+1024}
s_lshr_b32 s13, s7, 1
s_mul_i32 s24, s13, {CS[1]-CS[0]}
s_add_u32 s24, s24, {CS[0]}
s_and_b32 s61, s7, 1                 ; parity
ds_write_b64 v249, {vr(KA+8,2)} offset:{64+2048}
ds_write_b64 v249, {vr(KA+10,2)} offset:{64+2048+128}
""")
sec()
a("""
s_cmp_ge_u32 s3, 4
s_cbranch_scc1 k_y
""")
vx = VM()
stamp(3)
if OPT["xw"]: dmaw(vx, 1)
if OPT["xw"] == 2:
    a("s_add_u32 s56, s56, 128\ns_cmp_eq_u32 s56, 896\ns_cselect_b32 s56, 0, s56"); dmax(vx, 1)
a("""
v_mov_b32 v244, 0
s_lshl_b32 s13, s2, 1
s_lshr_b32 s58, s7, 1
s_add_u32 s13, s13, s58
s_mul_i32 s13, s13, 14
v_min_u32 v4, 13, v1
v_add_lshl_u32 v4, v4, s13, 8
s_bitcmp1_b32 s7, 0
s_cselect_b32 s58, s34, s32
s_cselect_b32 s59, s35, s33
global_load_short_d16_hi v244, v245, s[4:5]
""")
if OPT["xt"]: a("global_load_dword v0, v4, s[58:59] offset:128")
a(f"""
s_mov_b32 s14, s24
v_and_b32 v20, 15, v1
v_lshrrev_b32 v21, 4, v1
v_or_b32 v24, 1, v20
v_lshlrev_b32 v25, 3, v21
v_sub_u32 v24, v25, v24
v_lshlrev_b32 v24, 1, v24
v_and_b32 v25, 1, v1
v_mul_u32_u24 v25, 4160, v25
v_sub_u32 v24, v24, v25
v_add_u32 v24, s14, v24
v_add_u32 v216, {4160+2*2031-512}, v24
v_add_u32 v217, {4160+2*2031-512*3}, v24
v_add_u32 v218, {4160+2*2031-512*5}, v24
v_add_u32 v219, {4160+2*2031-512*7}, v24
v_lshlrev_b32 v22, 5, v20
v_lshl_add_u32 v221, v21, 3, v22     ; 32j+8g
v_lshl_add_u32 v22, v21, 4, v22
v_add_u32 v22, s14, v22
v_add_u32 v220, {8832-32}, v22       ; B addr
s_mul_i32 s13, s60, {UTP}
s_add_u32 s13, s13, {UT}
v_add_u32 v222, s13, v10
v_add_u32 v223, s14, v10
s_and_b32 s13, s2, 7
s_lshl_b32 s13, s13, 2
s_add_u32 s13, s13, s8
s_lshl_b32 s13, s13, 8
s_lshl_b32 s58, s7, 6
s_add_u32 s13, s13, s58
s_add_u32 s13, s13, {GG}
v_lshlrev_b32 v225, 2, v20
v_add_u32 v224, s13, v225            ; g global
s_add_u32 s58, s58, {GL}
v_add_u32 v225, s58, v225            ; g LDS
""")
hsig_addr(226)
a("v_mov_b32 v227, 1")
pass_first_addr(0)
a("s_waitcnt lgkmcnt(0)")
stamp(1)
bar(0)
stamp(4)
pass_call(0, 7, 7)
stamp(6)
dmaw(vx, 9)
CA = 48
a("s_waitcnt lgkmcnt(0)")
for r in range(CA, CA+16): a(f"v_mov_b32 v{r}, 0")
EL = epi_list(0) + epi_list(1) + epi_list(2) + epi_list(3)
bar(8)
dmaw(vx, 10)
run_epi(vx, EL, OPT["xs1"])
dmaw(vx, 11)
vx.wait("W9")
bar(9)
dmaw(vx, 12)
run_epi(vx, EL, OPT["xs2"])
dmaw(vx, 13)
vx.wait("W10")
bar(10)
run_epi(vx, EL, OPT["xs3"])
a(f"v_mov_b32 v40, {CNT}\nds_write_b128 v40, {vr(CA,4)}\nds_write_b128 v40, {vr(CA,4)} offset:16")
vx.wait("W13", extra=" lgkmcnt(0)")
stamp(7)
bar(11)
stamp(8)
if OPT["xprio"]: a(f"s_setprio {OPT['xprio']}")
run_epi(vx, EL, len(EL)-30)
pre_poll("s[28:29]", 0)
run_epi(vx, EL, 999)
def uloads():
    for i in range(4): a(f"global_load_dwordx4 {vr(16+4*i,4)}, v222, s[40:41] offset:{i*1024} sc1")
    a("global_load_dword v15, v224, s[40:41] sc1")
a("s_waitcnt lgkmcnt(0)\ns_cmp_eq_u32 s27, 32\ns_cbranch_scc0 k_u0")
uloads()
a("s_waitcnt vmcnt(5)\ns_branch k_u1\nk_u0:\ns_waitcnt vmcnt(0)\nk_u1:")
def sigx():
    if "2" in OPT["sa"]: return ssig_h(4)
    a("s_mov_b64 exec, 0x3fff\nglobal_atomic_add v226, v227, s[40:41] offset:4 sc1\ns_mov_b64 exec, -1")
last_of4("k_s2", 8, 42, sigx); a.label("k_s2")
a("s_cmp_eq_u32 s27, 32\ns_cbranch_scc1 k_u2")
check("k_c1", "s[28:29]", 0, 32, 13)
uloads()
a("k_u2:\nds_read_b32 v41, v40\ns_waitcnt vmcnt(0)")
for i in range(4): a(f"ds_write_b128 v223, {vr(16+4*i,4)} offset:{8832+i*1024}")
a("ds_write_b32 v225, v15")
a(f"""
s_mov_b32 s59, {SPIN}
k_ps:
s_waitcnt lgkmcnt(0)
v_readfirstlane_b32 s58, v41
s_cmp_eq_u32 s58, 4
s_cbranch_scc1 k_psd
ds_read_b32 v41, v40
s_sub_u32 s59, s59, 1
s_cmp_lg_u32 s59, 0
s_cbranch_scc1 k_ps
k_psd:
""")
stamp(9)
a(f"s_setprio {OPT['cprio']}")
a("""
s_cmp_eq_u32 s61, 0
s_cbranch_scc0 k_set1
""")
FBUF = [88, 152]
def creads(F, amax):
    out = []
    for i in range(amax+1):
        o = 0 if (i & 1) else 128
        out.append(f"ds_read_b128 {vr(F+32+4*i,4)}, v220 offset:{512*i}")
        out.append(f"ds_read2_b32 {vr(F+4*i,2)}, v{216+(i>>1)} offset0:{o} offset1:{o+1}")
        out.append(f"ds_read2_b32 {vr(F+4*i+2,2)}, v{216+(i>>1)} offset0:{o+2} offset1:{o+3}")
    out += [f"v_subrev_u32 v{r}, 64, v{r}" for r in (216, 217, 218, 219, 220)]
    return out
for sidx, cbs in enumerate(((0, 3, 4, 7), (1, 2, 5, 6))):
    if sidx == 1:
        a.label("k_set1"); a.reset()
    amax = max(cbs)
    for x in creads(FBUF[0], amax): a(x)
    a("s_mov_b32 s21, 4")
    a.label(f"k_cl{sidx}")
    for half in range(2):
        F = FBUF[half]
        a("s_waitcnt lgkmcnt(0)")
        lists = [[(n, aa, cb-aa) for aa in range(cb+1)] for n, cb in enumerate(cbs)]
        order = []
        while any(lists):
            for L in sorted(lists, key=lambda L: -len(L)):
                if L: order.append(L.pop(0))
        fill = creads(FBUF[half ^ 1], amax)
        for k, (n, aa, bb) in enumerate(order):
            d = vr(CA+4*n, 4)
            a(f"v_mfma_f32_16x16x32_bf16 {d}, {vr(F+4*aa,4)}, {vr(F+32+4*bb,4)}, {d}")
            for _ in range(2):
                if fill: a(fill.pop(0))
        for x in fill: a(x)
    a(f"""
s_sub_u32 s21, s21, 1
s_cmp_lg_u32 s21, 0
s_cbranch_scc1 k_cl{sidx}
v_add_u32 v26, s14, v221
""")
    stamp(10)
    for n, cb in enumerate(cbs): a(f"ds_read_b64 {vr(32+2*n,2)}, v26 offset:{8832+512*cb}")
    a(f"""
s_mul_i32 s15, s60, {UTP}
s_add_u32 s15, s15, {AT}
v_add_u32 v27, s15, v221
s_waitcnt lgkmcnt(0)
""")
    for n, cb in enumerate(cbs):
        R = CA+4*n
        a(f"""
v_lshlrev_b32 v40, 16, v{32+2*n}
v_and_b32 v41, 0xffff0000, v{32+2*n}
v_lshlrev_b32 v42, 16, v{33+2*n}
v_and_b32 v43, 0xffff0000, v{33+2*n}
v_fmac_f32 v{R}, v40, v244
v_fmac_f32 v{R+1}, v41, v244
v_fmac_f32 v{R+2}, v42, v244
v_fmac_f32 v{R+3}, v43, v244
v_cvt_pk_bf16_f32 v{R}, v{R}, v{R+1}
v_cvt_pk_bf16_f32 v{R+1}, v{R+2}, v{R+3}
global_store_dwordx2 v27, {vr(R,2)}, s[40:41] offset:{512*cb} sc1
""")
    if sidx == 0: a("s_branch k_pub")
a.label("k_pub"); a.reset()
a(f"""
s_setprio 0
s_lshr_b32 s15, s2, 5
s_lshl_b32 s15, s15, 12
s_add_u32 s15, s15, {FL}
v_lshl_add_u32 v26, v1, 7, s15
s_waitcnt vmcnt(0)
""")
stamp(11)
def sig4():
    if "4" in OPT["sa"]:
        a("s_add_u32 s44, s40, s15\ns_addc_u32 s45, s41, 0\ns_mov_b32 s46, 1")
        for l in range(32): a(f"s_atomic_add s46, s[44:45], {l*128+12}")
    else: a("s_mov_b32 exec_hi, 0\nglobal_atomic_add v26, v29, s[40:41] offset:12 sc1\ns_mov_b64 exec, -1")
    a(f"""
v_lshrrev_b32 v14, 3, v1
v_and_b32 v15, 7, v1
v_lshlrev_b32 v15, 4, v15
v_mul_u32_u24 v16, {UTP}, v14
v_mul_u32_u24 v17, {ATPI}, v14
s_mul_i32 s15, s12, {64*UTP}
s_and_b32 s13, s2, 7
s_lshl_b32 s13, s13, 2
s_add_u32 s13, s13, s8
s_lshl_b32 s13, s13, 7
s_add_u32 s15, s15, s13
s_add_u32 s15, s15, {AT}
v_add3_u32 v16, v16, v15, s15
v_add_u32 v17, v17, v15
v_add_u32 v17, {CS[0]}, v17
s_mov_b32 s27, 0
""")
    check("k_c4", "s[28:29]", 12, 32, 13, sleep=2)
    stamp(12)
    for i in range(8):
        a(f"global_load_dwordx4 {vr(32+4*i,4)}, v16, s[40:41] sc1")
        if i < 7: a(f"v_add_u32 v16, {8*UTP}, v16")
    for i in range(8):
        a(f"s_waitcnt vmcnt({7-i})")
        a(f"ds_write_b128 v17, {vr(32+4*i,4)} offset:{8*i*ATPI}")
last_of4("k_fw0" if OPT["fwarm"] else "k_final", 12, 28, sig4)
a("s_branch k_final")

a.label("k_spare"); a.reset()
a(f"""
s_sub_u32 s6, s2, 224                ; r
s_lshl_b32 s13, s6, 3
s_add_u32 s13, s13, s3               ; u 0..255
s_mov_b32 s59, s13
s_mul_i32 s60, s13, 7168             ; x rows 8u..8u+7
s_mul_i32 s61, s3, {8*912}
v_min_u32 v5, 48, v1
s_lshr_b32 s14, s13, 1
s_mul_i32 s14, s14, 49
v_add_lshl_u32 v6, v5, s14, 8
s_mul_i32 s14, s13, 49
v_add_lshl_u32 v5, v5, s14, 7
v_mov_b64 v[24:25], 0
v_mov_b64 v[26:27], 0
s_mul_i32 s14, s6, 896
s_add_u32 s14, s14, {FL}
v_min_u32 v13, 880, v10
v_add_u32 v13, s14, v13
v_mov_b32 v7, 1
s_lshl_b32 s13, s8, 3
s_add_u32 s13, s13, s3
s_lshr_b32 s14, s13, 1
s_mul_i32 s14, s14, 28
v_add_u32 v2, s14, v20
v_min_u32 v3, 6, v22
v_lshlrev_b32 v3, 8, v3
s_mul_i32 s14, s9, 1792
s_add_u32 s14, s14, 128
v_add_u32 v3, s14, v3
s_and_b32 s13, s13, 1
s_cmp_eq_u32 s13, 0
s_waitcnt lgkmcnt(0)
s_cselect_b32 s44, s32, s34
s_cselect_b32 s45, s33, s35
s_cmp_eq_u32 s3, 0
s_cbranch_scc0 k_r0
global_store_dwordx4 v13, v[24:27], s[40:41] sc1
s_waitcnt vmcnt(0)
s_mov_b64 exec, 1
global_atomic_add v24, v7, s[98:99] sc1
s_mov_b64 exec, -1
k_r0:
s_mov_b32 s48, s16
s_mov_b32 s49, s17
s_mov_b32 s50, 1835008
s_mov_b32 exec_hi, 0x00ffffff
""")
P = 912
for r in range(8):
    a(f"s_add_u32 m0, s61, {r*P}\ns_add_u32 s58, s60, {r*896}\nbuffer_load_dwordx4 v10, s[48:51], s58 offen lds")
a("s_mov_b32 exec_hi, -1\nv_lshlrev_b32 v30, 4, v22")
for i in range(7): a(f"global_load_dwordx4 {vr(64+4*i,4)}, v30, s[38:39] offset:{i*128}")
ntouch = 0
a(f"""
v_mul_u32_u24 v31, {P}, v20
v_add3_u32 v31, v31, v30, s61
v_and_b32 v48, 3, v1
v_lshrrev_b32 v49, 5, v1
v_lshl_add_u32 v48, v49, 2, v48
v_bfe_u32 v49, v1, 2, 2
v_lshl_add_u32 v48, v48, 3, v49
v_mul_u32_u24 v48, {P}, v48
v_bfe_u32 v49, v1, 4, 1
v_lshl_add_u32 v48, v49, 3, v48
s_mul_i32 s13, s3, 112
v_add_u32 v48, s13, v48
v_and_b32 v49, 4, v1
v_lshlrev_b32 v49, 3, v49
v_and_b32 v50, 32, v1
v_lshrrev_b32 v50, 1, v50
v_and_b32 v51, 3, v1
v_lshlrev_b32 v51, 2, v51
v_add3_u32 v49, v49, v50, v51
v_bfe_u32 v50, v1, 3, 2
v_add_lshl_u32 v49, v49, v50, 2      ; bpermute index
; store: d = 56w + 8X + (l>>3) ; t0 = 64r
s_mul_i32 s13, s3, 56
v_add_u32 v50, s13, v20
v_mul_u32_u24 v50, {UTP}, v50
s_lshl_b32 s13, s6, 7
s_add_u32 s13, s13, {UT}
v_add3_u32 v50, v50, v30, s13
s_waitcnt vmcnt({ntouch})
""")
for i in range(7): a(f"ds_read_b128 {vr(96+4*i,4)}, v31 offset:{i*128}")
a("s_barrier")
stamp(1)
a("v_mov_b32 v8, v5")
for X in range(7):
    a(f"ds_read_b64_tr_b16 {vr(128+4*X,2)}, v48 offset:{X*16}\nds_read_b64_tr_b16 {vr(130+4*X,2)}, v48 offset:{X*16+4*P}")
a("v_mov_b64 v[60:61], 0\ns_waitcnt lgkmcnt(14)")
for i in range(28): a(f"v_dot2c_f32_bf16 v{60+(i&1)}, v{96+i}, v{64+i}")
a("s_waitcnt lgkmcnt(0)")
for X in range(7):
    for q in range(4): a(f"ds_bpermute_b32 v{160+4*X+q}, v49, v{128+4*X+q}")
    if X >= 2:
        a(f"s_waitcnt lgkmcnt(8)\nglobal_store_dwordx4 v50, {vr(160+4*(X-2),4)}, s[40:41] sc1\nv_add_u32 v50, {8*UTP}, v50")
for X in (5, 6):
    a(f"s_waitcnt lgkmcnt({4*(6-X)})\nglobal_store_dwordx4 v50, {vr(160+4*X,4)}, s[40:41] sc1\nv_add_u32 v50, {8*UTP}, v50")
a(f"""
v_add_f32 v60, v60, v61
v_add_f32_dpp v60, v60, v60 quad_perm:[1,0,3,2] row_mask:0xf bank_mask:0xf
v_add_f32_dpp v60, v60, v60 quad_perm:[2,3,0,1] row_mask:0xf bank_mask:0xf
v_add_f32_dpp v60, v60, v60 row_half_mirror row_mask:0xf bank_mask:0xf
v_cvt_pk_bf16_f32 v60, v60, v60
v_and_b32 v60, 0xffff0000, v60
v_mul_f32 v60, {fbits(-LOG2E)}, v60
v_exp_f32 v60, v60
v_add_f32 v60, 1.0, v60
v_rcp_f32 v60, v60
v_cvt_pk_bf16_f32 v60, v60, v60
v_and_b32 v60, 0xffff0000, v60
v_sub_f32 v61, 1.0, v60
v_cvt_pk_bf16_f32 v60, v60, v61
s_lshl_b32 s13, s59, 5
s_add_u32 s13, s13, {GG}
v_lshl_add_u32 v54, v20, 2, s13
global_store_dword v54, v60, s[40:41] sc1
v_min_u32 v5, 55, v1
s_mul_i32 s13, s7, 56
v_add_lshl_u32 v5, v5, s13, 7
v_add_u32 v5, {FL}, v5
global_load_dword v6, v24, s[98:99] sc1
s_waitcnt vmcnt(0)
s_barrier
""")
stamp(2)
a(f"""
s_cmp_lt_u32 s3, 4
s_cbranch_scc0 k_r2
s_mov_b32 s59, {SPIN}
k_r1:
v_readfirstlane_b32 s58, v6
s_cmp_ge_u32 s58, 32
s_cbranch_scc1 k_r1d
s_sub_u32 s59, s59, 1
s_cmp_eq_u32 s59, 0
s_cbranch_scc1 k_r1d
global_load_dword v6, v24, s[98:99] sc1
s_waitcnt vmcnt(0)
s_branch k_r1
k_r1d:
s_mov_b32 exec_hi, 0x00ffffff
global_atomic_add v5, v7, s[40:41] sc1
s_mov_b32 exec_hi, -1
k_r2:
global_load_dword v0, v8, s[36:37]
""")
stamps_out(15)
a("s_endpgm")

a.label("k_y"); a.reset()
stamp(1)
vy.wait("X0", extra=" lgkmcnt(0)")
stamp(3)
bar(0)
stamp(4)
if OPT["xw"]: a("s_add_u32 s57, s57, 229376\ns_cmp_eq_u32 s57, 1605632\ns_cselect_b32 s57, 0, s57")
elif not OPT["w1"]: dmaw(vy, 1)
if OPT["xw"] == 2: a("s_add_u32 s56, s56, 128\ns_cmp_eq_u32 s56, 896\ns_cselect_b32 s56, 0, s56")
else: dmax(vy, 1)
dmaw(vy, 2); dmax(vy, 2)
a("""
s_and_b32 s13, s7, 2
s_mul_i32 s13, s13, 4608
v_add_u32 v16, s13, v10
v_lshl_add_u32 v17, v1, 3, s13
v_lshl_add_u32 v18, v1, 2, s13
""")
G = lambda w: 32 + 16*w
def gather(w):
    o = (0, 4608, 18432, 23040)[w] + 64; R = G(w)
    a(f"""
ds_read_b128 {vr(R,4)}, v16 offset:{o}
ds_read_b64 {vr(R+4,2)}, v17 offset:{o+1024}
ds_read_b64 {vr(R+6,2)}, v17 offset:{o+1536}
ds_read_b32 v{R+8}, v16 offset:{o-4}
ds_read_b32 v{R+9}, v17 offset:{o+1032}
ds_read_b32 v{R+10}, v17 offset:{o+1020}
ds_read_b32 v{R+11}, v17 offset:{o+1544}
ds_read_b32 v{R+12}, v18 offset:{o+2048}
ds_read_b32 v{R+13}, v18 offset:{o+2052}
ds_read_b32 v{R+14}, v18 offset:{o+2304}
ds_read_b32 v{R+15}, v18 offset:{o+2308}
""")
gather(3); gather(0)
if OPT["xw"] != 2: vy.wait("X1")
bar(1)
dmaw(vy, 3)
gather(1)
dmax(vy, 3)
vy.wait("X2", extra=" lgkmcnt(0)")
bar(2)
dmaw(vy, 4)
gather(2)
dmax(vy, 4)
vy.wait("X3", extra=" lgkmcnt(0)")
bar(3)
dmaw(vy, 5)
for i in range(16): a(f"v_add_f32 v{G(0)+i}, v{G(0)+i}, v{G(1)+i}\nv_add_f32 v{G(2)+i}, v{G(2)+i}, v{G(3)+i}")
dmax(vy, 5)
vy.wait("X4")
bar(4)
stamp(5)
dmaw(vy, 6)
for i in range(16): a(f"v_add_f32 v{G(0)+i}, v{G(0)+i}, v{G(2)+i}")
k0,k1,k2,k3,a1,b1,a2,b2,km,c1,pp,c2,a3,b3,a4,b4 = range(32, 48)
EW = 204
def cv(i, lo, hi): a(f"v_cvt_pk_bf16_f32 v{EW+i}, v{lo}, v{hi}")
a(f"""
v_and_b32 v19, 1, v1
v_cmp_eq_u32 vcc, 0, v19
v_cndmask_b32 v48, v{b3}, v{a3}, vcc
v_cndmask_b32 v49, v{b4}, v{a4}, vcc
v_cmp_ne_u32 vcc, 0, v1
v_cndmask_b32 v{km}, 0, v{km}, vcc
v_cndmask_b32 v{pp}, v{pp}, v{a1}, vcc
""")
dmax(vy, 6)
a("s_load_dword s27, s[98:99], 0")
vy.wait("X5")
bar(5)
dmaw(vy, 7)
cv(5, b2, b2); cv(7, a2, a2); cv(8, b3, b3); cv(10, a3, a3); cv(11, a3, a3); cv(12, b4, b4); cv(14, a4, a4); cv(15, a4, a4)
a("s_cmp_eq_u32 s61, 0\ns_cbranch_scc0 k_eo")
cv(0, k3, k2); cv(1, k1, k0); cv(2, c1, b1); cv(3, a1, a1); cv(4, c2, c2); cv(6, b2, a2); cv(9, b3, 48); cv(13, b4, 49)
a("s_branch k_ew\nk_eo:")
cv(0, k2, k1); cv(1, k0, km); cv(2, b1, a1); cv(3, a1, pp); cv(4, c2, b2); cv(6, a2, a2); cv(9, 48, a3); cv(13, 49, a4)
a("k_ew:")
pass_first_addr(1)
a(f"""
v_lshrrev_b32 v20, 3, v1
v_and_b32 v22, 7, v1
v_mul_u32_u24 v160, 896, v20
v_and_b32 v161, 6, v20
v_xor_b32 v161, v161, v22
v_lshl_add_u32 v160, v161, 4, v160
v_add_u32 v161, 6144, v160
v_add_u32 v162, 12288, v160
v_add_u32 v163, 18432, v160
v_bfe_u32 v164, v1, 2, 3
v_lshlrev_b32 v164, 7, v164
v_lshrrev_b32 v165, 5, v1
v_lshl_add_u32 v164, v165, 11, v164
v_bfe_u32 v165, v1, 3, 2
v_lshl_add_u32 v164, v165, 5, v164
v_and_b32 v165, 3, v1
v_lshl_add_u32 v164, v165, 3, v164
v_add_u32 v164, s14, v164
v_xor_b32 v165, 32, v164
v_xor_b32 v166, 64, v164
v_xor_b32 v167, 96, v164
""")
if not OPT["rot2"]: a("s_mov_b32 s42, 0")
vy.wait("X6", extra=" lgkmcnt(0)")
bar(6)
dmaw(vy, 8)
a(f"""
s_mul_i32 s13, s61, 4160
s_add_u32 s13, s13, s24
v_lshlrev_b32 v220, 3, v1
v_sub_u32 v220, s13, v220
v_sub_u32 v221, s13, v10
v_min_u32 v48, 39, v1
v_lshlrev_b32 v48, 4, v48
v_add_u32 v222, 8256, v48
v_add_u32 v50, {4096-36*16}, v48
v_cmp_gt_u32 vcc, 36, v1
v_cndmask_b32 v222, v50, v222, vcc
v_add_u32 v222, s24, v222
v_mov_b32 v224, 0
v_mov_b32 v225, 0
v_mov_b32 v226, 0
v_mov_b32 v227, 0
v_mov_b32 v52, 0
s_mov_b32 s59, {SPIN}
k_c0_l:
s_cmp_ge_u32 s27, 32
s_cbranch_scc1 k_c0_d
s_sub_u32 s59, s59, 1
s_cmp_eq_u32 s59, 0
s_cbranch_scc1 k_c0_d
s_sleep 4
global_load_dword v53, v52, s[98:99] sc1
s_waitcnt vmcnt(0)
v_readfirstlane_b32 s27, v53
s_branch k_c0_l
k_c0_d:
""")
hsig_addr(12)
a(f"""
s_mov_b32 s19, 0x20000
s_mov_b32 s23, 0x20000
v_mov_b32 v168, {CNT}
v_mov_b32 v169, 1
""")
vy.wait("W7")
bar(7)
stamp(6)
FINA = [l.split(";")[0].strip() for l in f"""
s_lshr_b32 s13, s3, 1
s_and_b32 s58, s3, 1
s_lshl_b32 s58, s58, 3
v_and_b32 v2, 3, v1
v_lshrrev_b32 v9, 5, v1
v_lshl_add_u32 v2, v9, 2, v2
v_add_u32 v2, s58, v2
v_bfe_u32 v3, v1, 2, 3
s_lshl_b32 s59, s13, 14
v_lshlrev_b32 v5, 1, v3
v_xor_b32 v5, v5, v2
v_lshlrev_b32 v5, 4, v5
v_lshl_add_u32 v5, v2, 8, v5
v_add_u32 v5, s59, v5
v_xor_b32 v6, 16, v5
s_lshl_b32 s13, s13, 4
v_add_u32 v2, s13, v2
v_lshlrev_b32 v7, 2, v2
v_add_u32 v7, {GL}, v7
v_bfe_u32 v8, v1, 4, 1
v_and_b32 v4, 3, v1
v_lshl_add_u32 v8, v8, 2, v4
v_bfe_u32 v4, v1, 2, 2
v_lshl_add_u32 v8, v8, 3, v4
v_mul_u32_u24 v8, {ATPI}, v8
v_lshl_add_u32 v8, v9, 3, v8
s_lshl_b32 s13, s3, 4
s_add_u32 s13, s13, {CS[0]}
v_add_u32 v8, s13, v8
s_and_b32 s58, s2, 7
s_lshl_b32 s58, s58, 2
s_add_u32 s58, s58, s8
s_lshl_b32 s58, s58, 6
BPX
v_mul_u32_u24 v4, 896, v4
v_lshl_add_u32 v4, v3, 4, v4
s_lshl_b32 s58, s12, 7
v_add_u32 v4, s58, v4
""".replace("BPX", "v_add_u32 v4, s58, v2" if not OPT["bp"] else """s_lshl_b32 s13, s3, 3
s_add_u32 s58, s58, s13
v_lshrrev_b32 v4, 3, v1
v_and_b32 v3, 7, v1
v_and_b32 v9, 3, v4
v_lshl_add_u32 v9, v3, 2, v9
v_and_b32 v2, 32, v1
v_add_lshl_u32 v9, v9, v2, 2
v_add_u32 v4, s58, v4""").strip().split("\n")]
vg = VM()
ACC2 = 16; AF = [172, 188]; RING = [204, 220, 236, 80, 96, 112, 144]
WS8 = RSL + [WR[2]]
def ldw_l(n):
    p, i = divmod(n, 7)
    o = f"s_add_u32 m0, s14, {WS8[n % 8]}\n" + (f"s_add_u32 s{SW[i]}, s{SW[i]}, 57344" if p else "s_nop 0")
    return [o] + [(f"buffer_load_dwordx4 v{160+k}, s[20:23], s{SW[i]} offen offset:{k*1024} lds", f"w{n}") for k in range(4)]
def ldh_l(n):
    p, i = divmod(n, 7)
    o = [f"s_add_u32 s{SH[i]}, s{SH[i]}, 114688"] if p else []
    return o + [(f"buffer_load_dwordx4 {vr(RING[i]+4*k,4)}, v10, s[16:19], s{SH[i]} offen offset:{k*1024} sc1", f"h{n}") for k in range(4)]
def emit(l):
    for x in l:
        if isinstance(x, tuple): vg.op(*x)
        else: a(x)
def uhalf(st, hs, extra, early=[], lg=0):
    F = FB[hs]; Fn = FB[hs ^ 1]
    mm = []
    for k2 in range(2):
        for fa in range(2):
            for tb in range(2):
                d = vr(acc(2*fa+tb), 16)
                mm.append(f"v_mfma_f32_32x32x16_bf16 {d}, {vr(F+16*k2+4*fa,4)}, {vr(F+16*k2+8+4*tb,4)}, {d}")
    a(f"s_waitcnt lgkmcnt({lg})")
    if hs == 0: fill = reads(1, Fn) + (VADDR(XA[(st+1) % 7], WA[st+1]) if st < 13 else [])
    else:
        if st == 10:
            a(mm.pop(0)); a("s_barrier"); stamp(7)
            if OPT["yprio"]: a(f"s_setprio {OPT['yprio']}")
        fill = reads(0, Fn) if st < 13 else []
    fill = fill + extra
    per = max(3, -(-len(fill) // len(mm)))
    for i, m in enumerate(mm):
        a(m)
        if early: emit([early.pop(0)]);
        if early and not isinstance(early[0], tuple): pass
        emit(fill[:per]); fill = fill[per:]
    emit(early); emit(fill)
def flat(l):
    out = []
    for x in l: out.append(x)
    return out
KW = [f"ds_write_b64 v220, v[204:205] offset:4088", f"ds_write_b64 v220, v[206:207] offset:{4088-512}", f"ds_write_b128 v221, v[208:211] offset:{4080-1024}",
      f"ds_write_b128 v221, v[212:215] offset:{4080-2048}", f"ds_write_b128 v221, v[216:219] offset:{4080-3072}", "ds_write_b128 v222, v[224:227]",
      "s_mov_b64 exec, 1\nds_add_u32 v168, v169\ns_mov_b64 exec, -1"]
def split(l):
    out = []
    for x in l:
        if isinstance(x, tuple): out.append(x)
        else: out += x.split("\n")
    return out
YS = ["s_mov_b64 exec, 1\nds_add_u32 v168, v169 offset:4\ns_mov_b64 exec, -1", "ds_read_b32 v170, v168 offset:4"]
pass_call(1, 3, 3)
uhalf(10, 0, [])
uhalf(10, 1, KW)
uhalf(11, 0, [], lg=7)
uhalf(11, 1, split(ldw_l(0)))
uhalf(12, 0, [])
uhalf(12, 1, split(ldw_l(1)))
uhalf(13, 0, [])
uhalf(13, 1, YS)
stamp(8)
EL = epi_list(0) + epi_list(1) + epi_list(2) + epi_list(3)
run_epi(vg, EL, 8)
a(f"""
s_mov_b32 s59, {SPIN}
k_ys:
s_waitcnt lgkmcnt(0)
v_readfirstlane_b32 s58, v170
s_cmp_eq_u32 s58, 4
s_cbranch_scc1 k_ysd
ds_read_b32 v170, v168 offset:4
s_sub_u32 s59, s59, 1
s_cmp_lg_u32 s59, 0
s_cbranch_scc1 k_ys
k_ysd:
""")
LQ = ldw_l(2) + ldw_l(3) + ldw_l(4) + ldw_l(5) + ["PP"] + ldw_l(6)
while LQ or EL:
    while LQ:
        x = LQ.pop(0)
        if x == "PP": pre_poll("s[28:29]", 4); continue
        emit([x])
        if isinstance(x, tuple): break
    run_epi(vg, EL, OPT["vgap"])
stamp(9)
a("s_setprio 0")
def rda(n):
    F = AF[n & 1]
    out = [f"v_add_u32 v{128+db}, {WS8[n % 8]}, v{164+db}" for db in range(4)]
    return out + [f"ds_read_b64_tr_b16 {vr(F+4*db+2*hh,2)}, v{128+db} offset:{hh*1024}" for db in range(4) for hh in range(2)]
check("k_c2", "s[28:29]", 4, 14 if OPT["one"] == 1 else 56, 15); stamp(10)
PRE = [ldh_l(0), ldh_l(1), ldh_l(2), ldw_l(7), ldh_l(3), ldh_l(4)]
vg.wait("w0")
for x in rda(0): a(x)
for l in PRE[:OPT["ni"]]: emit(l)
vg.wait("st")
def sigy():
    if "3" in OPT["sa"]: return ssig_h(8)
    a("s_mov_b64 exec, 0x3fff\nglobal_atomic_add v12, v169, s[40:41] offset:8 sc1\ns_mov_b64 exec, -1")
if OPT["one"]:
    stamp(3)
    last_of4("k_s3", 16, 2, sigy); a.label("k_s3"); stamp(5)
else: sigy()
for l in PRE[OPT["ni"]:max(OPT["ni"], 4)]: emit(l)
wi, hi_ = 8, 3 + max(0, OPT["ni"]-4)
SCHS = {
 0: (6, ["h w", "h w", "h w", "h w", "w", "w", "h h h", "h", "h", "h", "h", "", "", ""]),
 1: (6, ["h w", "h w", "h w", "h w", "w", "w", "h h", "h h", "h", "h", "h", "", "", ""]),
 2: (5, ["h w", "h w", "h w", "h w", "w", "h h", "h w", "h", "h", "h", "h", "", "", ""]),
 3: (6, ["h h", "h h", "w w", "w w", "w", "w", "h h h", "h", "h", "h", "h", "", "", ""]),
 4: (5, ["h w", "h w", "h w", "h", "w", "h", "h w", "h w", "h", "h", "h", "h", "", ""]),
 6: (5, ["h w", "h", "h w", "h", "w", "h", "h w", "h", "h w", "h w", "h", "h", "", ""]),
 7: (5, ["h", "h w", "h", "h w", "w", "h", "h w", "h w", "h w", "h", "h", "h", "", ""]),
 8: (4, ["h w", "h w", "h", "h", "h", "h w", "h w", "h w", "h w", "h", "h", "", "", ""]),
 9: (5, ["h w", "h w", "h", "h", "w", "h", "h", "h w", "h w", "h w", "h", "h", "", ""]),
 10: (6, ["h w", "h w", "h", "h w", "w", "w", "h h", "h", "h w", "h", "h", "h", "", ""]),
 5: (4, ["h w", "h w", "h w", "h", "h", "h w", "h w", "h w", "h", "h", "h", "", "", ""]),
}
CK, SCH = SCHS[OPT["sch"]]
for n in range(14):
    F = AF[n & 1]; S = RING[n % 7]
    if n == CK:
        check("k_c3", "s[28:29]", 8, HT, 15); stamp(11)
    vg.wait(f"h{n}", *([f"w{n+1}"] if n < 13 else []), extra=" lgkmcnt(0)")
    if OPT["sw"] == 2: stamp(1+n, True)
    ld = []
    for t in SCH[n].split():
        if t == "h": ld += ldh_l(hi_); assert hi_ <= n + 6 and (hi_ < 7 or n >= CK) and hi_ > n; hi_ += 1
        else: ld += ldw_l(wi); assert wi <= n + 8 and wi > n + 1; wi += 1
    fill = rda(n+1) if n < 13 else []
    if n + 1 == CK: fill.insert(0, "s_load_dword s27, s[28:29], 8 glc")
    ext = []
    if n == 10: ext = ["v_and_b32 v132, 15, v1", "v_lshrrev_b32 v133, 4, v1", "v_xor_b32 v133, v133, v132", "v_lshlrev_b32 v133, 4, v133", "v_lshl_add_u32 v132, v132, 8, v133",
                       "v_add_u32 v132, s14, v132", "v_xor_b32 v133, 64, v132", "v_xor_b32 v134, 128, v132", "v_xor_b32 v135, 192, v132"]
    if n == 11: ext = FINA[:len(FINA)//2]
    if n == 12: ext = FINA[len(FINA)//2:]
    PW = [f"ds_write_b128 v{132+db}, {vr(ACC2+16*db+4*tb,4)} offset:{tb*16384}" for db in range(4) for tb in range(4)]
    j = 0
    nl = len([x for x in ld if isinstance(x, tuple)]); STR = max(1, 16 // nl) if nl else 1
    for db in range(4):
        for tb in range(4):
            d = vr(ACC2+16*db+4*tb, 4)
            a(f"v_mfma_f32_16x16x32_bf16 {d}, {vr(F+4*db,4)}, {vr(S+4*tb,4)}, " + ("0" if n == 0 else d))
            if fill: a(fill.pop(0))
            if ld and (j % STR == 0):
                x = ld.pop(0); emit([x])
                if not isinstance(x, tuple) and ld: emit([ld.pop(0)])
            if ext: a(ext.pop(0))
            if n == 13 and j >= 6: a(PW.pop(0))
            j += 1
    emit(ld)
    for x in ext: a(x)
    if n == 13:
        for x in PW: a(x)
assert wi == 14 and hi_ == 14
stamp(12)
a("s_branch k_fbar")
a.label("k_final"); a.reset()
for x in FINA: a(x)
a.label("k_fbar")
a("s_waitcnt lgkmcnt(0)")
if OPT["fwarm"]: a("s_cbranch_execz k_fw")
stamp(13)
a("s_barrier")
stamp(14)
a.label("k_fw")
for w in range(4):
    a(f"ds_read_b128 {vr(16+8*w,4)}, v5 offset:{w*4096}")
    a(f"ds_read_b128 {vr(20+8*w,4)}, v6 offset:{w*4096}")
a(f"""
ds_read_b64_tr_b16 v[48:49], v8
ds_read_b64_tr_b16 v[50:51], v8 offset:{4*ATPI}
ds_read_b32 v52, v7
s_waitcnt lgkmcnt(7)
""")
for i in range(0, 8, 2): a(f"v_pk_add_f32 {vr(16+i,2)}, {vr(16+i,2)}, {vr(24+i,2)}")
a("s_waitcnt lgkmcnt(3)")
for i in range(0, 8, 2): a(f"v_pk_add_f32 {vr(32+i,2)}, {vr(32+i,2)}, {vr(40+i,2)}")
for i in range(0, 8, 2): a(f"v_pk_add_f32 {vr(16+i,2)}, {vr(16+i,2)}, {vr(32+i,2)}")
a("s_waitcnt lgkmcnt(0)\nv_lshlrev_b32 v54, 16, v52\nv_and_b32 v55, 0xffff0000, v52")
for i in range(4):
    a(f"v_lshlrev_b32 v{24+2*i}, 16, v{48+i}\nv_and_b32 v{25+2*i}, 0xffff0000, v{48+i}")
for i in range(0, 8, 2): a(f"v_pk_mul_f32 {vr(16+i,2)}, {vr(16+i,2)}, v[54:55] op_sel:[0,1] op_sel_hi:[1,1]")
for i in range(0, 8, 2): a(f"v_pk_fma_f32 {vr(16+i,2)}, {vr(24+i,2)}, v[54:55], {vr(16+i,2)} op_sel_hi:[1,0,1]")
for i in range(4): a(f"v_cvt_pk_bf16_f32 v{32+i}, v{16+2*i}, v{17+2*i}")
if OPT["fwarm"]: a("s_cbranch_execz k_fw2")
if OPT["bp"]:
    for i in range(4): a(f"ds_bpermute_b32 v{36+i}, v9, v{32+i}")
    a(f"s_waitcnt lgkmcnt(0)\nglobal_store_dwordx4 v4, v[36:39], s[96:97] {OPT['ost'].replace('_',' ')}")
else: a(f"global_store_dwordx4 v4, v[32:35], s[96:97] {OPT['ost'].replace('_',' ')}")
stamps_out(15)
a.label("k_end")
a("s_endpgm")
if OPT["fwarm"]: a("k_fw2:\ns_mov_b64 exec, -1\ns_branch k_final\nk_fw0:\ns_mov_b64 exec, 0\ns_branch k_part")
emit_pass()
a.label("code_end")

hdr = open("cdna_kernels/%s.s.ref" % NAME).read().split("; Override launch")[0]
out = hdr + f"; @launch grid=(256,1,1) block=(512,1,1) lds={LDS}\n"
out += '.amdgcn_target "amdgcn-amd-amdhsa--gfx950"\n' + a.text()
out += f""".section .rodata,"a"
.p2align 6
.amdhsa_kernel {KN}
  .amdhsa_next_free_vgpr 256
  .amdhsa_next_free_sgpr 102
  .amdhsa_accum_offset 256
  .amdhsa_group_segment_fixed_size 0
  .amdhsa_kernarg_size 136
  .amdhsa_user_sgpr_count 2
  .amdhsa_user_sgpr_kernarg_segment_ptr 1
  .amdhsa_system_sgpr_workgroup_id_x 1
.end_amdhsa_kernel
"""
open(sys.argv[1], "w").write(out)
print("written", sys.argv[1], "lines", len(a.lines), "nops", a.nops, "")
```

```python
import sys, math, struct
from asm import *

NAME = "gated_mix__ssm_conv_s4__swiglu_ffn__prompt"
KN = NAME + "_kernel"
WDP = 0x800000
HP, UT, AT, GG, FL = 0, 0xA00000, 0xE00000, 0x1000000, 0x1010000
UTP = 4224
def fbits(x): return "0x%08x" % struct.unpack("<I", struct.pack("<f", x))[0]
LOG2E = 1.4426950408889634
OPT = dict(ntx="", ntw="", ntp="nt", stamp=0, cprio=0, yprio=1, warm=0, fwarm=0, rpg=2, w1=1, sw=0, wsig=1, xt=1, xwd=0, rot2=1, ht=0, xs1=26, xs2=26, xs3=48, vgap=9, HD=4, CK=5, xprio=2, one=1, ni=2, sch=4, cpf=0, pb=0, xw=1, w2=0, trim=1, wso=0, sa="234")
for a_ in sys.argv[2:]:
    k, v = a_.split("="); OPT[k] = v if k == "sa" else int(v) if v.lstrip("-").isdigit() else v
a = Asm()
SPIN = 40000
HT = 14 if OPT["one"] else 56

def cmuls(lst):
    for d, x, y in lst:
        assert d != x and d != y
        a(f"v_pk_mul_f32 {vr(d,2)}, {vr(x,2)}, {vr(y,2)} op_sel_hi:[1,0]")
    for d, x, y in lst:
        a(f"v_pk_fma_f32 {vr(d,2)}, {vr(x,2)}, {vr(y,2)}, {vr(d,2)} op_sel:[1,1,0] op_sel_hi:[0,1,1] neg_lo:[1,0,0]")
def bar(n):
    k = (n - 1) if n < 8 else (n - 8)
    if OPT["sw"] == 1 and n >= 1: stamp(1+2*k, True)
    a("s_barrier")
    if OPT["sw"] == 1 and n >= 1: stamp(2+2*k, True)
_seen1 = [0]
_j = [0]
def stamp(idx, force=False):
    if OPT.get("jit") and idx not in (0,):
        _j[0] += 1; k = _j[0]
        a(f"""s_cselect_b32 s66, 1, 0
s_mul_i32 s64, s2, {3+2*(k % 5)}
s_add_u32 s64, s64, s3
s_add_u32 s64, s64, {k*OPT["jit"]}
s_and_b32 s64, s64, 3
s_cmp_eq_u32 s64, 0
s_cbranch_scc0 k_jit{k}
s_sleep {20 + 13*(k % 4)}
k_jit{k}:
s_cmp_eq_u32 s66, 1""")
        return
    if OPT.get("es") and idx == 1:
        _seen1[0] += 1
        if _seen1[0] in (2, 4): return
    if OPT["sw"] and not force and idx not in (0, 15): return
    if OPT["stamp"]: a(f"{'s_memtime' if OPT['stamp']==2 else 's_memrealtime'} s[{64+2*idx}:{65+2*idx}]")
def stamps_out(idx):
    if not OPT["stamp"]: return
    a("s_waitcnt vmcnt(0)")
    stamp(idx)
    a("s_waitcnt lgkmcnt(0)")
    for i in range(16): a(f"v_writelane_b32 v250, s{64+2*i}, {i}")
    a(f"""s_lshl_b32 s64, s2, 3
s_add_u32 s64, s64, s3
s_lshl_b32 s64, s64, 6
s_add_u32 s64, s64, 0x2000000
v_lshl_add_u32 v251, v1, 2, s64
s_mov_b64 exec, 0xffff
global_store_dword v251, v250, s[40:41]""")
    if OPT.get("dbgout"):
        a(f"""
s_lshl_b32 s65, s2, 3
s_add_u32 s65, s65, s3
s_cmp_eq_u32 s65, {OPT['dbgout']}
s_cbranch_scc0 k_end
v_readlane_b32 s65, v250, 0
v_subrev_u32 v250, s65, v250
v_lshlrev_b32 v251, 2, v1
s_mov_b64 exec, 0xfffe
global_store_dword v251, v250, s[98:99]""")
def stamps_init():
    if OPT["stamp"]:
        for i in range(1,16): a(f"s_mov_b32 s{64+2*i}, 0")
        stamp(0)

class VM:
    def __init__(self): self.q = []
    def op(self, text, tag):
        a(text); self.q.append(tag)
    def n_for(self, *tags):
        idx = max(i for i, t in enumerate(self.q) if t in tags)
        return len(self.q) - 1 - idx
    def wait(self, *tags, extra=""):
        n = self.n_for(*tags); assert n <= 63
        a(f"s_waitcnt vmcnt({n}){extra}")

XA = [98304, 49152, 65536, 81920, 32768, 0, 16384]
WR = [114688, 131072, 147456]
WA = [WR[s % 3] for s in range(10)] + [WR[1], XA[0], WR[2], XA[1]]
CS = [XA[2], WR[0]]
RSL = [XA[3], WR[1], XA[4], XA[5], XA[6], XA[0], XA[1]]
TABO = 12992
CNT = CS[0] + 16064
GL = CS[1] + 16064
ATPI = 144
LDS = 163840

a.raw(f".text\n.globl {KN}\n.p2align 8\n.type {KN},@function\n{KN}:")
a("""
s_cmp_ge_u32 s2, 256
s_cbranch_scc1 k_end
s_add_u32 s2, s2, 224
s_and_b32 s2, s2, 255
""")
stamps_init()
a("""
s_load_dwordx16 s[16:31], s[0:1], 0
s_load_dwordx8 s[32:39], s[0:1], 80
s_load_dwordx2 s[40:41], s[0:1], 128
s_load_dwordx4 s[96:99], s[0:1], 112
s_getpc_b64 s[4:5]
k_pc:
v_lshrrev_b32 v2, 6, v0
v_and_b32 v1, 63, v0
v_readfirstlane_b32 s3, v2
s_lshr_b32 s6, s2, 3                 ; j
s_and_b32 s8, s6, 3                  ; rbl
; code prefetch into L2: line = rbl*56 + wave*7 + min(lane,6)
s_mul_i32 s7, s8, 6144
v_min_u32 v3, 5, v1
v_mad_u32_u24 v3, v2, 6, v3
v_lshlrev_b32 v3, 7, v3
v_add_u32 v3, s7, v3
v_min_u32 v3, code_end-k_pc-4, v3
CPF
s_and_b32 s7, s3, 3
s_lshr_b32 s14, s7, 1
s_lshl_b32 s60, s2, 1
s_add_u32 s60, s60, s14
s_lshl_b32 s13, s60, 9
s_and_b32 s14, s7, 1
s_lshl_b32 s14, s14, 7
s_add_u32 s13, s13, s14
s_and_b32 s14, s3, 4
s_lshl_b32 s14, s14, 6
s_add_u32 s13, s13, s14
v_lshl_add_u32 v8, v1, 1, s13
s_lshl_b32 s14, s60, 1
v_mov_b32 v9, s14
s_cmp_ge_u32 s2, 224
s_cbranch_scc1 k_npl
s_waitcnt lgkmcnt(0)
global_load_ushort v238, v9, s[30:31]
global_load_ushort v239, v8, s[18:19] nt
global_load_ushort v11, v8, s[20:21] nt
global_load_ushort v12, v8, s[22:23] nt
global_load_ushort v216, v8, s[24:25] nt
global_load_ushort v217, v8, s[26:27] nt
global_load_ushort v218, v8, s[28:29] nt
k_npl:
WSO
s_and_b32 s10, s2, 6
s_lshl_b32 s10, s10, 1
s_add_u32 s10, s10, s8               ; rb128
s_and_b32 s9, s2, 1
s_mul_i32 s11, s9, 7
s_lshr_b32 s12, s6, 2                ; fbl (7 = spare WG)
s_add_u32 s11, s11, s12              ; fb128
v_lshlrev_b32 v10, 4, v1
s_lshl_b32 s42, s8, 1
s_add_u32 s42, s42, s12
s_sub_u32 s43, s42, 7
s_cmp_ge_u32 s42, 7
s_cselect_b32 s42, s43, s42          ; rot
; W DMA voffsets v14,v15: row k = 16q+8i+(l>>3); chunk16 = (l&7) ^ (((l>>4)&1)<<1) ^ (i<<2)
v_lshrrev_b32 v20, 3, v1
v_lshrrev_b32 v21, 4, v1
v_and_b32 v22, 7, v1
s_lshl_b32 s13, s7, 4
v_add_u32 v25, s13, v20
v_mul_u32_u24 v25, 3584, v25
s_lshl_b32 s13, s11, 8
v_add_u32 v25, s13, v25
v_and_b32 v26, 1, v21
v_lshlrev_b32 v26, 1, v26
v_xor_b32 v26, v22, v26
v_lshl_add_u32 v240, v26, 4, v25
v_add_u32 v241, 27648, v240
v_xor_b32 v26, 4, v26
v_lshl_add_u32 v242, v26, 4, v25
v_add_u32 v243, 27648, v242
s_lshl_b32 s15, s7, 11               ; W dest offset in slot
s_mov_b32 s50, 1605632
s_mov_b32 s51, 0x20000
s_mov_b32 s54, 1605632
s_mov_b32 s55, 0x20000
s_cmp_eq_u32 s12, 7
s_cbranch_scc1 k_spare
""".replace("WSO", f"s_waitcnt lgkmcnt(0)\ns_add_u32 s40, s40, {OPT['wso']<<20}\ns_addc_u32 s41, s41, 0" if OPT["wso"] else "").replace("CPF", ["global_load_dword v0, v3, s[4:5]", "s_cmp_lt_u32 s2, 224\ns_cbranch_scc1 k_ncp\nglobal_load_dword v0, v3, s[4:5]\nk_ncp:", "s_cmp_lt_u32 s2, 192\ns_cbranch_scc1 k_ncp\nglobal_load_dword v0, v3, s[4:5]\nk_ncp:"][OPT["cpf"]]))
def dmaw(vm, st):
    a(f"s_add_u32 m0, s15, {WA[st]}")
    if st >= 7: a("s_add_u32 s58, s57, 128")
    else: a("s_mov_b32 s58, s57")
    for i in range(2): vm.op(f"buffer_load_dwordx4 v{240+i}, s[48:51], s58 offen offset:{i*1024} {OPT['ntw']} lds", f"W{st}")
    a(f"s_add_u32 m0, s15, {WA[st]+8192}\ns_add_u32 s57, s57, 229376")
    for i in range(2): vm.op(f"buffer_load_dwordx4 v{242+i}, s[52:55], s58 offen offset:{i*1024} {OPT['ntw']} lds", f"W{st}")
    a("s_cmp_eq_u32 s57, 1605632\ns_cselect_b32 s57, 0, s57")
def dmax(vm, st):
    a(f"s_add_u32 m0, s14, {XA[st]}\ns_mov_b32 s58, s56")
    for i in range(4): vm.op(f"buffer_load_dwordx4 v{232+i}, s[44:47], s58 offen offset:{i*1024} {OPT['ntx']} lds", f"X{st}")
    a("s_add_u32 s56, s56, 128\ns_cmp_eq_u32 s56, 896\ns_cselect_b32 s56, 0, s56")

FB = [16, 48]; ACC = 80; TM = 144; KA = 164
def pass_addrs():
    a(f"""
v_and_b32 v6, 31, v1
v_lshrrev_b32 v7, 5, v1
v_bfe_u32 v4, v1, 1, 3
v_xor_b32 v7, v7, v4
v_lshlrev_b32 v7, 4, v7
v_lshl_add_u32 v6, v6, 7, v7
s_lshr_b32 s13, s7, 1
s_lshl_b32 s13, s13, 13
v_add_u32 v2, s13, v6
v_lshlrev_b32 v6, 9, v1
v_and_b32 v6, 0x2000, v6
v_lshlrev_b32 v7, 5, v1
v_and_b32 v7, 0x580, v7
v_and_b32 v4, 3, v1
v_lshlrev_b32 v4, 3, v4
v_add3_u32 v6, v6, v7, v4
v_bfe_u32 v7, v1, 3, 2
s_and_b32 s13, s7, 1
s_lshl_b32 s13, s13, 1
v_xor_b32 v7, s13, v7
v_lshl_add_u32 v3, v7, 5, v6
""")
def h_addr(p):
    a(f"""
s_lshl_b32 s13, s10, 1
s_lshr_b32 s58, s7, 1
s_add_u32 s13, s13, s58
s_mul_i32 s13, s13, 56
s_lshl_b32 s58, s11, 1
s_add_u32 s13, s13, s58
s_and_b32 s58, s7, 1
s_add_u32 s13, s13, s58
s_lshr_b32 s58, s3, 2
s_mul_i32 s58, s58, 28
s_add_u32 s13, s13, s58
s_lshl_b32 s13, s13, 12
v_and_b32 v14, 15, v1
v_lshl_add_u32 v14, v14, 4, s13
v_bfe_u32 v15, v1, 4, 1
v_lshl_add_u32 v14, v15, 10, v14
v_lshrrev_b32 v15, 5, v1
v_lshl_add_u32 v14, v15, 8, v14
s_mov_b32 s62, {fbits(-LOG2E)}
""")
def nib(lst):
    v = 0
    for i, x in enumerate(lst): v |= (x // 16384) << (4*i)
    return "0x%x" % v
VADDR = lambda xs, ws: [f"v_add_u32 v6, {xs}, v2", f"v_add_u32 v4, {ws}, v3", "v_xor_b32 v7, 32, v6", "v_xor_b32 v5, 32, v4", "v_xor_b32 v8, 64, v6", "v_xor_b32 v9, 96, v6"]
SETA = ["s_and_b32 s13, s30, 15", "s_lshl_b32 s13, s13, 14", "s_lshr_b32 s30, s30, 4", "s_and_b32 s58, s31, 15", "s_lshl_b32 s58, s58, 14", "s_lshr_b32 s31, s31, 4"] + VADDR("s13", "s58")
def reads(hs, F):
    out = []
    for k2 in range(2):
        ks = 2*hs + k2
        A_ = lambda fa, hh: f"ds_read_b64_tr_b16 {vr(F+16*k2+4*fa+2*hh,2)}, v{4+fa} offset:{ks*2048+hh*512}"
        B_ = lambda tb: f"ds_read_b128 {vr(F+16*k2+8+4*tb,4)}, v{6+ks} offset:{tb*4096}"
        out += [A_(0,0), A_(0,1), B_(0), B_(1), A_(1,0), A_(1,1)]
    return out
def acc(n): return ACC + 16*n
def pass_resume(iters):
    a(f"s_mov_b32 s59, {iters}\ns_call_b64 s[100:101], k_pl")
    a.reset()
def pass_call(p, nbar, iters):
    a(f"""
s_mov_b32 s30, {nib(XA[1:]+[0])}
s_mov_b32 s31, {nib(WA[7*p+1:7*p+7]+[0])}
s_mov_b32 s43, {nbar}
s_mov_b32 s59, {iters}
s_call_b64 s[100:101], k_pass
""")
    a.reset()
def pass_first_addr(p):
    for x in VADDR(XA[0], WA[7*p]): a(x)
def emit_pass():
    def half(hs, first):
        F = FB[hs]; Fn = FB[hs ^ 1]
        mm = []
        for k2 in range(2):
            for fa in range(2):
                for tb in range(2):
                    d = vr(acc(2*fa+tb), 16)
                    mm.append(f"v_mfma_f32_32x32x16_bf16 {d}, {vr(F+16*k2+4*fa,4)}, {vr(F+16*k2+8+4*tb,4)}, " + ("0" if first and k2 == 0 else d))
        if first: a("s_waitcnt lgkmcnt(6)")
        else: a("s_waitcnt lgkmcnt(0)")
        if hs == 0:
            fill = reads(1, Fn) + SETA + ["s_cmp_eq_u32 s43, 0"]
        else:
            a(mm.pop(0))
            a("s_cbranch_scc1 k_pnb\ns_waitcnt vmcnt(0)\ns_barrier\ns_sub_u32 s43, s43, 1\nk_pnb:")
            fill = reads(0, Fn) + ["s_sub_u32 s59, s59, 1", "s_cmp_lg_u32 s59, 0"]
        for i, m in enumerate(mm):
            if first and i == 4: a("s_waitcnt lgkmcnt(12)")
            a(m)
            for _ in range(3 if (i < 4) else 4):
                if fill: a(fill.pop(0))
        for x in fill: a(x)
    a.raw(".p2align 6")
    a.label("k_pass"); a.reset()
    for r in reads(0, FB[0]): a(r)
    half(0, True)
    a("s_branch k_pm")
    a.raw(".p2align 6")
    a.label("k_pl")
    half(0, False)
    a.label("k_pm")
    half(1, False)
    a("s_cbranch_scc1 k_pl\ns_setpc_b64 s[100:101]")
def epi_list(n):
    Tm = TM + 8*(n & 1); R = acc(n); o = []
    for i in range(8): o.append(f"v_mul_f32 v{Tm+i}, s62, v{R+i}")
    for i in range(8): o += [f"v_exp_f32 v{Tm+i}, v{Tm+i}", f"v_mul_f32 v{R+i}, v{R+i}, v{R+8+i}"]
    for i in range(8): o.append(f"v_add_f32 v{Tm+i}, 1.0, v{Tm+i}")
    for i in range(8):
        o.append(f"v_rcp_f32 v{Tm+i}, v{Tm+i}")
        if i >= 2: o.append(f"v_mul_f32 v{R+i-2}, v{R+i-2}, v{Tm+i-2}")
    for i in (6, 7): o.append(f"v_mul_f32 v{R+i}, v{R+i}, v{Tm+i}")
    for i in range(4): o.append(f"v_cvt_pk_bf16_f32 v{R+8+i}, v{R+2*i}, v{R+2*i+1}")
    o.append(("st", n))
    return o
def hst(vm, n, tag):
    vm.op(f"global_store_dwordx4 v14, {vr(acc(n)+8,4)}, s[40:41] offset:{(n&1)*2048+(n>>1)*512} sc1", tag)
def run_epi(vm, lst, count):
    for _ in range(count):
        if not lst: return
        x = lst.pop(0)
        if isinstance(x, tuple): hst(vm, x[1], "st")
        else: a(x)
def pre_poll(base, off):
    a(f"s_load_dword s27, {base}, {off} glc")
def check(lbl, base, off, target, vt, sleep=1):
    a(f"""
s_mov_b32 s59, 0
{lbl}_l:
s_waitcnt lgkmcnt(0)
s_cmp_eq_u32 s27, {target}
s_cbranch_scc1 {lbl}_d
s_add_u32 s59, s59, 1
s_sleep {sleep}
s_cmp_lt_u32 s59, 256
s_cbranch_scc0 {lbl}_v
s_load_dword s27, {base}, {off} glc
s_branch {lbl}_l
{lbl}_v:
v_mov_b32 v{vt}, 0
global_load_dword v{vt}, v{vt}, {base} offset:{off} sc1
s_waitcnt vmcnt(0)
v_readfirstlane_b32 s27, v{vt}
s_cmp_lt_u32 s59, {SPIN}
s_cbranch_scc1 {lbl}_l
{lbl}_d:
""")
def own_line():
    a(f"""
s_lshl_b32 s13, s2, 7
s_add_u32 s13, s13, {FL}
s_add_u32 s28, s40, s13
s_addc_u32 s29, s41, 0
""")
def hsig_addr(v):
    a(f"""
s_lshl_b32 s13, s10, 1
s_and_b32 s58, s13, 3
s_lshl_b32 s58, s58, 3
s_lshr_b32 s13, s13, 2
s_add_u32 s13, s13, s58
s_lshl_b32 s13, s13, 7
s_add_u32 s13, s13, {FL}
v_lshrrev_b32 v{v}, 1, v1
v_lshlrev_b32 v{v}, 12, v{v}
v_and_b32 v{v+1}, 1, v1
v_lshl_add_u32 v{v}, v{v+1}, 10, v{v}
v_add_u32 v{v}, s13, v{v}
""")
def ssig_h(word):
    a(f"""
s_lshl_b32 s13, s10, 1
s_and_b32 s58, s13, 3
s_lshl_b32 s58, s58, 3
s_lshr_b32 s13, s13, 2
s_add_u32 s13, s13, s58
s_lshl_b32 s13, s13, 7
s_add_u32 s13, s13, {FL}
s_add_u32 s44, s40, s13
s_addc_u32 s45, s41, 0
s_mov_b32 s46, 1
""")
    for cb in range(7):
        for r in range(2): a(f"s_atomic_add s46, s[44:45], {cb*4096+r*1024+word}")
def last_of4(lbl, cntoff, vt, body):
    a(f"""
v_mov_b32 v{vt}, {CNT+cntoff}
v_mov_b32 v{vt+1}, 1
s_mov_b64 exec, 1
ds_add_rtn_u32 v{vt+2}, v{vt}, v{vt+1}
s_waitcnt lgkmcnt(0)
v_readfirstlane_b32 s58, v{vt+2}
s_mov_b64 exec, -1
s_cmp_eq_u32 s58, 3
s_cbranch_scc0 {lbl}
""")
    body()

Z = lambda k: 20 + 2*k
Wp = lambda k: 50 + 2*k
E = lambda k: 68 + 2*k
Y_ = {1: 84, 2: 86, 4: 88, 8: 90}
T = lambda k: 92 + 2*k
CV = lambda k: 108 + (k & 7)
FE, FX0, FX1 = 116, 132, 148
PR = 176
vy = VM()
XV = 232
a(f"""
v_xor_b32 v23, v22, v21
v_xor_b32 v24, 4, v23
s_lshl_b32 s13, s7, 5
v_add_u32 v25, s13, v20
v_mul_u32_u24 v25, 896, v25
v_lshl_add_u32 v{XV}, v23, 4, v25
v_lshl_add_u32 v{XV+1}, v24, 4, v25
v_add_u32 v{XV+1}, 6144, v{XV+1}
v_add_u32 v{XV+2}, 12288, v{XV}
v_add_u32 v{XV+3}, 12288, v{XV+1}
s_lshl_b32 s14, s7, 12
s_lshl_b32 s56, s42, 7
s_mul_i32 s57, s42, 229376
s_mul_i32 s13, s10, 114688
s_mov_b32 s46, 114688
s_mov_b32 s47, 0x20000
s_mul_i32 s63, s3, 4608
""")
a("""
s_mov_b32 s48, s32
s_mov_b32 s49, s33
s_mov_b32 s52, s34
s_mov_b32 s53, s35
s_add_u32 s44, s16, s13
s_addc_u32 s45, s17, 0
""")
if OPT["pb"]: a("s_barrier")
a("""
s_cmp_lt_u32 s3, 4
s_cbranch_scc1 k_x0
""")
dmaw(vy, 0); dmax(vy, 0)
if OPT["w1"] and not OPT["xw"]: dmaw(vy, 1)
a(f"""
s_and_b32 s9, s2, 7
s_lshl_b32 s9, s9, 2
s_add_u32 s9, s9, s8               ; rb64
s_mul_i32 s13, s9, 229376
s_mul_i32 s58, s7, 28672
s_add_u32 s13, s13, s58
s_add_u32 s16, s40, s13
s_addc_u32 s17, s41, 0
s_mov_b32 s18, {114688+28672}
s_mov_b32 s19, 0x20000
s_mov_b32 s20, s36
s_mov_b32 s21, s37
s_mov_b32 s22, 1605632
s_mov_b32 s23, 0x20000
s_mul_i32 s25, s7, 7
s_lshl_b32 s26, s12, 7               ; cb*128
""")
SW = [32+i for i in range(7)]; SH = [4, 5, 6, 39, 0, 1, 60]
for i in range(7):
    a(f"""
s_add_u32 s58, s42, {i}
s_sub_u32 s59, s58, 7
s_min_u32 s58, s58, s59
s_lshl_b32 s{SH[i]}, s58, 12
s_add_u32 s58, s58, s25
s_lshr_b32 s59, s58, 1
s_mul_i32 s59, s59, 114688
s_and_b32 s58, s58, 1
s_mul_i32 s58, s58, 28672
s_add_u32 s58, s58, s59
s_add_u32 s{SW[i]}, s58, s26
""")
a("""
s_branch k_w0
k_x0:
s_load_dwordx2 s[4:5], s[0:1], 64
s_add_u32 s57, s42, XOFF
s_sub_u32 s13, s57, 7
s_cmp_ge_u32 s57, 7
s_cselect_b32 s57, s13, s57
s_mul_i32 s57, s57, 229376           ; chunk offset of stage 9
k_w0:
v_and_b32 v4, 15, v1                 ; c
v_lshlrev_b32 v5, 2, v21             ; 4g
v_lshlrev_b32 v6, 6, v21             ; 64g
v_lshl_add_u32 v247, v4, 4, v5
v_lshl_add_u32 v248, v4, 3, v5
v_lshl_add_u32 v249, v4, 2, v6
v_cmp_gt_u32 vcc, 2, v21
v_cndmask_b32 v248, v249, v248, vcc
v_lshl_add_u32 v249, v4, 1, v6
v_lshl_add_u32 v247, v247, 2, s63
v_lshl_add_u32 v248, v248, 2, s63
v_lshl_add_u32 v249, v249, 2, s63
""".replace("XOFF", "1" if OPT["xw"] else "2"))
pass_addrs()
h_addr(0)
own_line()
if OPT["warm"]:
    a("s_mov_b64 exec, 0")
    for w in range(1, 8): a(f"s_cmp_eq_u32 s3, {w}\ns_cbranch_scc1 k_sec{w}")
    a("s_branch k_kg\nk_wd:")
    for w in range(4):
        a(f"s_cmp_eq_u32 s3, {w}\ns_cbranch_scc0 k_we{w}\ns_call_b64 s[100:101], k_epi{w}\nk_we{w}:")
    a("s_cmp_eq_u32 s3, 3\ns_cbranch_scc0 k_wp\ns_mov_b32 s43, 0\ns_mov_b32 s59, 1\ns_call_b64 s[100:101], k_pass\nk_wp:")
    a("s_mov_b64 exec, -1")
a(f"""
v_mov_b32 v245, v9
v_and_b32 v18, 15, v1
v_mul_u32_u24 v18, 288, v18
v_and_b32 v19, 48, v1
v_add3_u32 v18, v18, v19, s63
s_cmp_lt_u32 s3, 4
s_cbranch_scc1 k_x1
s_waitcnt vmcnt({len(vy.q)})
s_branch k_kg
k_x1:
s_waitcnt vmcnt(0)
k_kg:
""")
secn = [0]
def sec():
    if OPT["warm"]:
        secn[0] += 1
        a("s_cbranch_execz k_wd")
        if secn[0] < 8: a.label(f"k_sec{secn[0]}")
a.reset()
stamp(2)
a(f"""
s_mov_b32 m0, s63
v_lshlrev_b32 v238, 16, v238
v_mul_f32 v16, {fbits(LOG2E)}, v238
v_exp_f32 v16, v16
v_lshlrev_b32 v239, 16, v239
v_lshlrev_b32 v11, 16, v11
v_lshlrev_b32 v12, 16, v12
v_lshlrev_b32 v216, 16, v216
v_lshlrev_b32 v217, 16, v217
v_lshlrev_b32 v218, 16, v218
v_cvt_pk_bf16_f32 v16, v16, v16
v_and_b32 v16, 0xffff0000, v16
v_mul_f32 v8, {fbits(LOG2E)}, v16
v_mul_f32 v9, 0.15915494, v16
v_mul_f32 v17, v239, v8
v_mul_f32 v11, v11, v9
v_mul_f32 v12, v12, v16
v_mul_f32 v216, v216, v16
v_mul_f32 v{E(0)}, v217, v12
v_mul_f32 v{E(0)+1}, v217, v216
v_fma_f32 v{E(0)}, -v218, v216, v{E(0)}
v_fma_f32 v{E(0)+1}, -v218, v12, -v{E(0)+1}
""")
ydn = [0]
def ydma(fn):
    ydn[0] += 1
    a(f"s_cmp_lt_u32 s3, 4\ns_cbranch_scc1 k_yd{ydn[0]}")
    fn()
    a(f"s_mov_b32 m0, s63\nk_yd{ydn[0]}:")
anc = [(Y_[1], 16.0, True), (Z(1), 1.0, False), (Wp(1), 256.0, False)]
for n, (d, p, cj) in enumerate(anc):
    if p != 1.0: a(f"v_mul_f32 v{T(n)}, {fbits(p)}, v17\nv_mul_f32 v{T(n)+1}, {fbits(p)}, v11")
for n, (d, p, cj) in enumerate(anc):
    if p == 1.0: a(f"v_exp_f32 v{T(n)}, v17\nv_fract_f32 v{T(n)+1}, v11")
    else: a(f"v_exp_f32 v{T(n)}, v{T(n)}\nv_fract_f32 v{T(n)+1}, v{T(n)+1}")
for n, (d, p, cj) in enumerate(anc):
    a(f"v_cos_f32 v{d}, v{T(n)+1}\nv_sin_f32 v{d+1}, v{T(n)+1}")
for n, (d, p, cj) in enumerate(anc):
    a(f"v_pk_mul_f32 {vr(d,2)}, {vr(d,2)}, {vr(T(n),2)} op_sel_hi:[1,0]" + (" neg_hi:[1,0]" if cj else ""))
cnt = [0]; NDS = [0]; MK = {}
def puts(lst):
    cs = []
    for row, src in lst:
        c = CV(cnt[0]); cnt[0] += 1; cs.append(c)
        if src is None: a(f"v_mov_b32 v{c}, 0x3f80")
        else: a(f"v_cvt_pk_bf16_f32 v{c}, v{src}, v{src+1}")
    if OPT["w2"]:
        pend = list(zip([r for r, _ in lst], cs))
        while pend:
            r0, c0 = pend.pop(0)
            m = [x for x in pend if x[0]//4 == r0//4]
            if m:
                pend.remove(m[0]); r1, c1 = m[0]
                a(f"ds_write2_b32 v{176+r0//4}, v{c0}, v{c1} offset0:{(r0%4)*72} offset1:{(r1%4)*72}"); NDS[0] += 1
            else:
                a(f"ds_write_addtid_b32 v{c0} offset:{r0*288}"); NDS[0] += 1
        return
    for (row, src), c in zip(lst, cs):
        a(f"ds_write_addtid_b32 v{c} offset:{row*288}"); NDS[0] += 1
def putl(lst):
    for i in range(0, len(lst), 4): puts(lst[i:i+4])
def frags(F):
    for s in range(4): a(f"ds_read_b128 {vr(F+4*s,4)}, v18 offset:{s*64}")
    NDS[0] += 4; MK[F] = NDS[0]
def wfr(F): a(f"s_waitcnt lgkmcnt({min(15, NDS[0]-MK[F])})")
def mf(tau, F):
    for s in range(4):
        a(f"v_mfma_f32_16x16x32_bf16 {vr(KA+4*tau,4)}, {vr(F+4*s,4)}, {vr(FE+4*s,4)}, " + ("0" if s == 0 else vr(KA+4*tau,4)))
Y = Y_
if OPT["trim"]:
    cmuls([(Y[2], Y[1], Y[1]), (E(1), E(0), Y[1]), (Z(2), Z(1), Z(1)), (Wp(2), Wp(1), Wp(1))])
    cmuls([(E(2), E(0), Y[2]), (E(3), E(1), Y[2]), (Z(3), Z(2), Z(1)), (Z(4), Z(2), Z(2))])
    putl([(i, E(i)) for i in range(4)])
    cmuls([(E(4), E(2), Y[2]), (E(5), E(3), Y[2]), (Wp(3), Wp(2), Wp(1)), (Wp(4), Wp(2), Wp(2))])
    cmuls([(E(6), E(4), Y[2]), (E(7), E(5), Y[2])])
    putl([(i, E(i)) for i in range(4, 8)])
    cmuls([(T(0), E(6), Y[2]), (T(1), E(7), Y[2])])
    cmuls([(T(2), T(0), Y[2]), (T(3), T(1), Y[2])])
    putl([(8+i, T(i)) for i in range(4)])
    cmuls([(T(4), T(2), Y[2]), (T(5), T(3), Y[2])])
    cmuls([(T(6), T(4), Y[2]), (T(7), T(5), Y[2])])
    putl([(8+i, T(i)) for i in range(4, 8)])
else:
    cmuls([(Y[2], Y[1], Y[1]), (E(1), E(0), Y[1]), (Z(2), Z(1), Z(1)), (Wp(2), Wp(1), Wp(1))])
    cmuls([(Y[4], Y[2], Y[2]), (E(2), E(0), Y[2]), (E(3), E(1), Y[2]), (Z(3), Z(2), Z(1)), (Z(4), Z(2), Z(2)), (Wp(3), Wp(2), Wp(1)), (Wp(4), Wp(2), Wp(2))])
    sec()
    putl([(i, E(i)) for i in range(4)])
    cmuls([(Y[8], Y[4], Y[4])] + [(E(4+i), E(i), Y[4]) for i in range(4)])
    putl([(i, E(i)) for i in range(4, 8)])
    cmuls([(T(i), E(i), Y[8]) for i in range(4)])
    sec()
    putl([(8+i, T(i)) for i in range(4)])
    cmuls([(T(i), E(i), Y[8]) for i in range(4, 8)])
    putl([(8+i, T(i)) for i in range(4, 8)])
frags(FE)
sec()
putl([(0, None)] + [(i, Z(i)) for i in range(1, 4)])
cmuls([(Z(5), Z(4), Z(1)), (Z(6), Z(4), Z(2)), (Z(7), Z(4), Z(3)), (Z(8), Z(4), Z(4))])
putl([(i, Z(i)) for i in range(4, 8)])
cmuls([(Z(8+i), Z(8), Z(i)) for i in range(1, 4)])
sec()
putl([(i, Z(i)) for i in range(8, 12)])
cmuls([(Z(8+i), Z(8), Z(i)) for i in range(4, 8)])
putl([(i, Z(i)) for i in range(12, 16)])
frags(FX0)
sec()
cmuls([(T(r), Wp(1), Z(2*r)) for r in range(1, 4)])
putl([(0, Wp(1))] + [(r, T(r)) for r in range(1, 4)])
cmuls([(T(r), Wp(1), Z(2*r)) for r in range(4, 8)])
putl([(r, T(r)) for r in range(4, 8)])
sec()
cmuls([(T(j-1), Wp(2), Z(4*j)) for j in (1, 2, 3)])
wfr(FX0)
mf(0, FX0)
putl([(8, Wp(2))] + [(8+j, T(j-1)) for j in (1, 2, 3)])
cmuls([(T(2+j), Wp(3), Z(4*j)) for j in (1, 2, 3)])
putl([(12, Wp(3))] + [(12+j, T(2+j)) for j in (1, 2, 3)])
frags(FX1)
sec()
cmuls([(Wp(5), Wp(4), Wp(1)), (Wp(6), Wp(4), Wp(2)), (Wp(7), Wp(4), Wp(3)), (Wp(8), Wp(4), Wp(4))])
putl([(2*h, Wp(4+h)) for h in range(4)] )
cmuls([(T(h), Wp(4+h), Z(8)) for h in range(4)])
putl([(2*h+1, T(h)) for h in range(4)] + [(8, Wp(8))])
frags(FX0)
wfr(FX1)
mf(1, FX1)
a("s_waitcnt lgkmcnt(0)")
mf(2, FX0)
a(f"""
ds_write_b128 v247, {vr(KA,4)} offset:64
ds_write_b128 v248, {vr(KA+4,4)} offset:{64+1024}
s_lshr_b32 s13, s7, 1
s_mul_i32 s24, s13, {CS[1]-CS[0]}
s_add_u32 s24, s24, {CS[0]}
s_and_b32 s61, s7, 1                 ; parity
ds_write_b64 v249, {vr(KA+8,2)} offset:{64+2048}
ds_write_b64 v249, {vr(KA+10,2)} offset:{64+2048+128}
""")
sec()
a("""
s_cmp_ge_u32 s3, 4
s_cbranch_scc1 k_y
""")
vx = VM()
stamp(3)
if OPT["xw"]: dmaw(vx, 1)
if OPT["xw"] == 2:
    a("s_add_u32 s56, s56, 128\ns_cmp_eq_u32 s56, 896\ns_cselect_b32 s56, 0, s56"); dmax(vx, 1)
a("""
v_mov_b32 v244, 0
s_lshl_b32 s13, s2, 1
s_lshr_b32 s58, s7, 1
s_add_u32 s13, s13, s58
s_mul_i32 s13, s13, 14
v_min_u32 v4, 13, v1
v_add_lshl_u32 v4, v4, s13, 8
s_bitcmp1_b32 s7, 0
s_cselect_b32 s58, s34, s32
s_cselect_b32 s59, s35, s33
global_load_short_d16_hi v244, v245, s[4:5]
""")
if OPT["xt"]: a("global_load_dword v0, v4, s[58:59] offset:128")
a(f"""
s_mov_b32 s14, s24
v_and_b32 v20, 15, v1
v_lshrrev_b32 v21, 4, v1
v_or_b32 v24, 1, v20
v_lshlrev_b32 v25, 3, v21
v_sub_u32 v24, v25, v24
v_lshlrev_b32 v24, 1, v24
v_and_b32 v25, 1, v1
v_mul_u32_u24 v25, 4160, v25
v_sub_u32 v24, v24, v25
v_add_u32 v24, s14, v24
v_add_u32 v216, {4160+2*2031-512}, v24
v_add_u32 v217, {4160+2*2031-512*3}, v24
v_add_u32 v218, {4160+2*2031-512*5}, v24
v_add_u32 v219, {4160+2*2031-512*7}, v24
v_lshlrev_b32 v22, 5, v20
v_lshl_add_u32 v221, v21, 3, v22     ; 32j+8g
v_lshl_add_u32 v22, v21, 4, v22
v_add_u32 v22, s14, v22
v_add_u32 v220, {8832-32}, v22       ; B addr
s_mul_i32 s13, s60, {UTP}
s_add_u32 s13, s13, {UT}
v_add_u32 v222, s13, v10
v_add_u32 v223, s14, v10
s_and_b32 s13, s2, 7
s_lshl_b32 s13, s13, 2
s_add_u32 s13, s13, s8
s_lshl_b32 s13, s13, 8
s_lshl_b32 s58, s7, 6
s_add_u32 s13, s13, s58
s_add_u32 s13, s13, {GG}
v_lshlrev_b32 v225, 2, v20
v_add_u32 v224, s13, v225            ; g global
s_add_u32 s58, s58, {GL}
v_add_u32 v225, s58, v225            ; g LDS
""")
hsig_addr(226)
a("v_mov_b32 v227, 1")
pass_first_addr(0)
a("s_waitcnt lgkmcnt(0)")
stamp(1)
bar(0)
stamp(4)
pass_call(0, 7, 7)
stamp(6)
dmaw(vx, 9)
CA = 48
a("s_waitcnt lgkmcnt(0)")
for r in range(CA, CA+16): a(f"v_mov_b32 v{r}, 0")
EL = epi_list(0) + epi_list(1) + epi_list(2) + epi_list(3)
bar(8)
dmaw(vx, 10)
run_epi(vx, EL, OPT["xs1"])
dmaw(vx, 11)
vx.wait("W9")
bar(9)
dmaw(vx, 12)
run_epi(vx, EL, OPT["xs2"])
dmaw(vx, 13)
vx.wait("W10")
bar(10)
run_epi(vx, EL, OPT["xs3"])
a(f"v_mov_b32 v40, {CNT}\nds_write_b128 v40, {vr(CA,4)}\nds_write_b128 v40, {vr(CA,4)} offset:16")
vx.wait("W13", extra=" lgkmcnt(0)")
stamp(7)
bar(11)
stamp(8)
if OPT["xprio"]: a(f"s_setprio {OPT['xprio']}")
run_epi(vx, EL, len(EL)-30)
pre_poll("s[28:29]", 0)
run_epi(vx, EL, 999)
def uloads():
    for i in range(4): a(f"global_load_dwordx4 {vr(16+4*i,4)}, v222, s[40:41] offset:{i*1024} sc1")
    a("global_load_dword v15, v224, s[40:41] sc1")
a("s_waitcnt lgkmcnt(0)\ns_cmp_eq_u32 s27, 32\ns_cbranch_scc0 k_u0")
uloads()
a("s_waitcnt vmcnt(5)\ns_branch k_u1\nk_u0:\ns_waitcnt vmcnt(0)\nk_u1:")
def sigx():
    if "2" in OPT["sa"]: return ssig_h(4)
    a("s_mov_b64 exec, 0x3fff\nglobal_atomic_add v226, v227, s[40:41] offset:4 sc1\ns_mov_b64 exec, -1")
last_of4("k_s2", 8, 42, sigx); a.label("k_s2")
a("s_cmp_eq_u32 s27, 32\ns_cbranch_scc1 k_u2")
check("k_c1", "s[28:29]", 0, 32, 13)
uloads()
a("k_u2:\nds_read_b32 v41, v40\ns_waitcnt vmcnt(0)")
for i in range(4): a(f"ds_write_b128 v223, {vr(16+4*i,4)} offset:{8832+i*1024}")
a("ds_write_b32 v225, v15")
a(f"""
s_mov_b32 s59, {SPIN}
k_ps:
s_waitcnt lgkmcnt(0)
v_readfirstlane_b32 s58, v41
s_cmp_eq_u32 s58, 4
s_cbranch_scc1 k_psd
ds_read_b32 v41, v40
s_sub_u32 s59, s59, 1
s_cmp_lg_u32 s59, 0
s_cbranch_scc1 k_ps
k_psd:
""")
stamp(9)
a(f"s_setprio {OPT['cprio']}")
a("""
s_cmp_eq_u32 s61, 0
s_cbranch_scc0 k_set1
""")
FBUF = [88, 152]
def creads(F, amax):
    out = []
    for i in range(amax+1):
        o = 0 if (i & 1) else 128
        out.append(f"ds_read_b128 {vr(F+32+4*i,4)}, v220 offset:{512*i}")
        out.append(f"ds_read2_b32 {vr(F+4*i,2)}, v{216+(i>>1)} offset0:{o} offset1:{o+1}")
        out.append(f"ds_read2_b32 {vr(F+4*i+2,2)}, v{216+(i>>1)} offset0:{o+2} offset1:{o+3}")
    out += [f"v_subrev_u32 v{r}, 64, v{r}" for r in (216, 217, 218, 219, 220)]
    return out
for sidx, cbs in enumerate(((0, 3, 4, 7), (1, 2, 5, 6))):
    if sidx == 1:
        a.label("k_set1"); a.reset()
    amax = max(cbs)
    for x in creads(FBUF[0], amax): a(x)
    a("s_mov_b32 s21, 4")
    a.label(f"k_cl{sidx}")
    for half in range(2):
        F = FBUF[half]
        a("s_waitcnt lgkmcnt(0)")
        lists = [[(n, aa, cb-aa) for aa in range(cb+1)] for n, cb in enumerate(cbs)]
        order = []
        while any(lists):
            for L in sorted(lists, key=lambda L: -len(L)):
                if L: order.append(L.pop(0))
        fill = creads(FBUF[half ^ 1], amax)
        for k, (n, aa, bb) in enumerate(order):
            d = vr(CA+4*n, 4)
            a(f"v_mfma_f32_16x16x32_bf16 {d}, {vr(F+4*aa,4)}, {vr(F+32+4*bb,4)}, {d}")
            for _ in range(2):
                if fill: a(fill.pop(0))
        for x in fill: a(x)
    a(f"""
s_sub_u32 s21, s21, 1
s_cmp_lg_u32 s21, 0
s_cbranch_scc1 k_cl{sidx}
v_add_u32 v26, s14, v221
""")
    stamp(10)
    for n, cb in enumerate(cbs): a(f"ds_read_b64 {vr(32+2*n,2)}, v26 offset:{8832+512*cb}")
    a(f"""
s_mul_i32 s15, s60, {UTP}
s_add_u32 s15, s15, {AT}
v_add_u32 v27, s15, v221
s_waitcnt lgkmcnt(0)
""")
    for n, cb in enumerate(cbs):
        R = CA+4*n
        a(f"""
v_lshlrev_b32 v40, 16, v{32+2*n}
v_and_b32 v41, 0xffff0000, v{32+2*n}
v_lshlrev_b32 v42, 16, v{33+2*n}
v_and_b32 v43, 0xffff0000, v{33+2*n}
v_fmac_f32 v{R}, v40, v244
v_fmac_f32 v{R+1}, v41, v244
v_fmac_f32 v{R+2}, v42, v244
v_fmac_f32 v{R+3}, v43, v244
v_cvt_pk_bf16_f32 v{R}, v{R}, v{R+1}
v_cvt_pk_bf16_f32 v{R+1}, v{R+2}, v{R+3}
global_store_dwordx2 v27, {vr(R,2)}, s[40:41] offset:{512*cb} sc1
""")
    if sidx == 0: a("s_branch k_pub")
a.label("k_pub"); a.reset()
a(f"""
s_setprio 0
s_lshr_b32 s15, s2, 5
s_lshl_b32 s15, s15, 12
s_add_u32 s15, s15, {FL}
v_lshl_add_u32 v26, v1, 7, s15
s_waitcnt vmcnt(0)
""")
stamp(11)
def sig4():
    if "4" in OPT["sa"]:
        a("s_add_u32 s44, s40, s15\ns_addc_u32 s45, s41, 0\ns_mov_b32 s46, 1")
        for l in range(32): a(f"s_atomic_add s46, s[44:45], {l*128+12}")
    else: a("s_mov_b32 exec_hi, 0\nglobal_atomic_add v26, v29, s[40:41] offset:12 sc1\ns_mov_b64 exec, -1")
    a(f"""
v_lshrrev_b32 v14, 3, v1
v_and_b32 v15, 7, v1
v_lshlrev_b32 v15, 4, v15
v_mul_u32_u24 v16, {UTP}, v14
v_mul_u32_u24 v17, {ATPI}, v14
s_mul_i32 s15, s12, {64*UTP}
s_and_b32 s13, s2, 7
s_lshl_b32 s13, s13, 2
s_add_u32 s13, s13, s8
s_lshl_b32 s13, s13, 7
s_add_u32 s15, s15, s13
s_add_u32 s15, s15, {AT}
v_add3_u32 v16, v16, v15, s15
v_add_u32 v17, v17, v15
v_add_u32 v17, {CS[0]}, v17
s_mov_b32 s27, 0
""")
    check("k_c4", "s[28:29]", 12, 32, 13, sleep=2)
    stamp(12)
    for i in range(8):
        a(f"global_load_dwordx4 {vr(32+4*i,4)}, v16, s[40:41] sc1")
        if i < 7: a(f"v_add_u32 v16, {8*UTP}, v16")
    for i in range(8):
        a(f"s_waitcnt vmcnt({7-i})")
        a(f"ds_write_b128 v17, {vr(32+4*i,4)} offset:{8*i*ATPI}")
last_of4("k_fw0" if OPT["fwarm"] else "k_final", 12, 28, sig4)
a("s_branch k_final")

a.label("k_spare"); a.reset()
a(f"""
s_sub_u32 s6, s2, 224                ; r
s_lshl_b32 s13, s6, 3
s_add_u32 s13, s13, s3               ; u 0..255
s_mov_b32 s59, s13
s_mul_i32 s60, s13, 7168             ; x rows 8u..8u+7
s_mul_i32 s61, s3, {8*912}
v_min_u32 v5, 48, v1
s_lshr_b32 s14, s13, 1
s_mul_i32 s14, s14, 49
v_add_lshl_u32 v6, v5, s14, 8
s_mul_i32 s14, s13, 49
v_add_lshl_u32 v5, v5, s14, 7
v_mov_b64 v[24:25], 0
v_mov_b64 v[26:27], 0
s_mul_i32 s14, s6, 896
s_add_u32 s14, s14, {FL}
v_min_u32 v13, 880, v10
v_add_u32 v13, s14, v13
v_mov_b32 v7, 1
s_lshl_b32 s13, s8, 3
s_add_u32 s13, s13, s3
s_lshr_b32 s14, s13, 1
s_mul_i32 s14, s14, 28
v_add_u32 v2, s14, v20
v_min_u32 v3, 6, v22
v_lshlrev_b32 v3, 8, v3
s_mul_i32 s14, s9, 1792
s_add_u32 s14, s14, 128
v_add_u32 v3, s14, v3
s_and_b32 s13, s13, 1
s_cmp_eq_u32 s13, 0
s_waitcnt lgkmcnt(0)
s_cselect_b32 s44, s32, s34
s_cselect_b32 s45, s33, s35
s_cmp_eq_u32 s3, 0
s_cbranch_scc0 k_r0
global_store_dwordx4 v13, v[24:27], s[40:41] sc1
s_waitcnt vmcnt(0)
s_mov_b64 exec, 1
global_atomic_add v24, v7, s[98:99] sc1
s_mov_b64 exec, -1
k_r0:
s_mov_b32 s48, s16
s_mov_b32 s49, s17
s_mov_b32 s50, 1835008
s_mov_b32 exec_hi, 0x00ffffff
""")
P = 912
for r in range(8):
    a(f"s_add_u32 m0, s61, {r*P}\ns_add_u32 s58, s60, {r*896}\nbuffer_load_dwordx4 v10, s[48:51], s58 offen lds")
a("s_mov_b32 exec_hi, -1\nv_lshlrev_b32 v30, 4, v22")
for i in range(7): a(f"global_load_dwordx4 {vr(64+4*i,4)}, v30, s[38:39] offset:{i*128}")
ntouch = 0
a(f"""
v_mul_u32_u24 v31, {P}, v20
v_add3_u32 v31, v31, v30, s61
v_and_b32 v48, 3, v1
v_lshrrev_b32 v49, 5, v1
v_lshl_add_u32 v48, v49, 2, v48
v_bfe_u32 v49, v1, 2, 2
v_lshl_add_u32 v48, v48, 3, v49
v_mul_u32_u24 v48, {P}, v48
v_bfe_u32 v49, v1, 4, 1
v_lshl_add_u32 v48, v49, 3, v48
s_mul_i32 s13, s3, 112
v_add_u32 v48, s13, v48
v_and_b32 v49, 4, v1
v_lshlrev_b32 v49, 3, v49
v_and_b32 v50, 32, v1
v_lshrrev_b32 v50, 1, v50
v_and_b32 v51, 3, v1
v_lshlrev_b32 v51, 2, v51
v_add3_u32 v49, v49, v50, v51
v_bfe_u32 v50, v1, 3, 2
v_add_lshl_u32 v49, v49, v50, 2
; store: d = 56w + 8X + (l>>3) ; t0 = 64r
s_mul_i32 s13, s3, 56
v_add_u32 v50, s13, v20
v_mul_u32_u24 v50, {UTP}, v50
s_lshl_b32 s13, s6, 7
s_add_u32 s13, s13, {UT}
v_add3_u32 v50, v50, v30, s13
s_waitcnt vmcnt({ntouch})
""")
for i in range(7): a(f"ds_read_b128 {vr(96+4*i,4)}, v31 offset:{i*128}")
a("s_barrier")
stamp(1)
a("v_mov_b32 v8, v5")
for X in range(7):
    a(f"ds_read_b64_tr_b16 {vr(128+4*X,2)}, v48 offset:{X*16}\nds_read_b64_tr_b16 {vr(130+4*X,2)}, v48 offset:{X*16+4*P}")
a("v_mov_b64 v[60:61], 0\ns_waitcnt lgkmcnt(14)")
for i in range(28): a(f"v_dot2c_f32_bf16 v{60+(i&1)}, v{96+i}, v{64+i}")
a("s_waitcnt lgkmcnt(0)")
for X in range(7):
    for q in range(4): a(f"ds_bpermute_b32 v{160+4*X+q}, v49, v{128+4*X+q}")
    if X >= 2:
        a(f"s_waitcnt lgkmcnt(8)\nglobal_store_dwordx4 v50, {vr(160+4*(X-2),4)}, s[40:41] sc1\nv_add_u32 v50, {8*UTP}, v50")
for X in (5, 6):
    a(f"s_waitcnt lgkmcnt({4*(6-X)})\nglobal_store_dwordx4 v50, {vr(160+4*X,4)}, s[40:41] sc1\nv_add_u32 v50, {8*UTP}, v50")
a(f"""
v_add_f32 v60, v60, v61
v_add_f32_dpp v60, v60, v60 quad_perm:[1,0,3,2] row_mask:0xf bank_mask:0xf
v_add_f32_dpp v60, v60, v60 quad_perm:[2,3,0,1] row_mask:0xf bank_mask:0xf
v_add_f32_dpp v60, v60, v60 row_half_mirror row_mask:0xf bank_mask:0xf
v_cvt_pk_bf16_f32 v60, v60, v60
v_and_b32 v60, 0xffff0000, v60
v_mul_f32 v60, {fbits(-LOG2E)}, v60
v_exp_f32 v60, v60
v_add_f32 v60, 1.0, v60
v_rcp_f32 v60, v60
v_cvt_pk_bf16_f32 v60, v60, v60
v_and_b32 v60, 0xffff0000, v60
v_sub_f32 v61, 1.0, v60
v_cvt_pk_bf16_f32 v60, v60, v61
s_lshl_b32 s13, s59, 5
s_add_u32 s13, s13, {GG}
v_lshl_add_u32 v54, v20, 2, s13
global_store_dword v54, v60, s[40:41] sc1
v_min_u32 v5, 55, v1
s_mul_i32 s13, s7, 56
v_add_lshl_u32 v5, v5, s13, 7
v_add_u32 v5, {FL}, v5
global_load_dword v6, v24, s[98:99] sc1
s_waitcnt vmcnt(0)
s_barrier
""")
stamp(2)
a(f"""
s_cmp_lt_u32 s3, 4
s_cbranch_scc0 k_r2
s_mov_b32 s59, {SPIN}
k_r1:
v_readfirstlane_b32 s58, v6
s_cmp_ge_u32 s58, 32
s_cbranch_scc1 k_r1d
s_sub_u32 s59, s59, 1
s_cmp_eq_u32 s59, 0
s_cbranch_scc1 k_r1d
global_load_dword v6, v24, s[98:99] sc1
s_waitcnt vmcnt(0)
s_branch k_r1
k_r1d:
s_mov_b32 exec_hi, 0x00ffffff
global_atomic_add v5, v7, s[40:41] sc1
s_mov_b32 exec_hi, -1
k_r2:
global_load_dword v0, v8, s[36:37]
""")
stamps_out(15)
a("s_endpgm")

a.label("k_y"); a.reset()
stamp(1)
vy.wait("X0", extra=" lgkmcnt(0)")
stamp(3)
bar(0)
stamp(4)
if OPT["xw"]: a("s_add_u32 s57, s57, 229376\ns_cmp_eq_u32 s57, 1605632\ns_cselect_b32 s57, 0, s57")
elif not OPT["w1"]: dmaw(vy, 1)
if OPT["xw"] == 2: a("s_add_u32 s56, s56, 128\ns_cmp_eq_u32 s56, 896\ns_cselect_b32 s56, 0, s56")
else: dmax(vy, 1)
dmaw(vy, 2); dmax(vy, 2)
a("""
s_and_b32 s13, s7, 2
s_mul_i32 s13, s13, 4608
v_add_u32 v16, s13, v10
v_lshl_add_u32 v17, v1, 3, s13
v_lshl_add_u32 v18, v1, 2, s13
""")
G = lambda w: 32 + 16*w
def gather(w):
    o = (0, 4608, 18432, 23040)[w] + 64; R = G(w)
    a(f"""
ds_read_b128 {vr(R,4)}, v16 offset:{o}
ds_read_b64 {vr(R+4,2)}, v17 offset:{o+1024}
ds_read_b64 {vr(R+6,2)}, v17 offset:{o+1536}
ds_read_b32 v{R+8}, v16 offset:{o-4}
ds_read_b32 v{R+9}, v17 offset:{o+1032}
ds_read_b32 v{R+10}, v17 offset:{o+1020}
ds_read_b32 v{R+11}, v17 offset:{o+1544}
ds_read_b32 v{R+12}, v18 offset:{o+2048}
ds_read_b32 v{R+13}, v18 offset:{o+2052}
ds_read_b32 v{R+14}, v18 offset:{o+2304}
ds_read_b32 v{R+15}, v18 offset:{o+2308}
""")
gather(3); gather(0)
if OPT["xw"] != 2: vy.wait("X1")
bar(1)
dmaw(vy, 3)
gather(1)
dmax(vy, 3)
vy.wait("X2", extra=" lgkmcnt(0)")
bar(2)
dmaw(vy, 4)
gather(2)
dmax(vy, 4)
vy.wait("X3", extra=" lgkmcnt(0)")
bar(3)
dmaw(vy, 5)
for i in range(16): a(f"v_add_f32 v{G(0)+i}, v{G(0)+i}, v{G(1)+i}\nv_add_f32 v{G(2)+i}, v{G(2)+i}, v{G(3)+i}")
dmax(vy, 5)
vy.wait("X4")
bar(4)
stamp(5)
dmaw(vy, 6)
for i in range(16): a(f"v_add_f32 v{G(0)+i}, v{G(0)+i}, v{G(2)+i}")
k0,k1,k2,k3,a1,b1,a2,b2,km,c1,pp,c2,a3,b3,a4,b4 = range(32, 48)
EW = 204
def cv(i, lo, hi): a(f"v_cvt_pk_bf16_f32 v{EW+i}, v{lo}, v{hi}")
a(f"""
v_and_b32 v19, 1, v1
v_cmp_eq_u32 vcc, 0, v19
v_cndmask_b32 v48, v{b3}, v{a3}, vcc
v_cndmask_b32 v49, v{b4}, v{a4}, vcc
v_cmp_ne_u32 vcc, 0, v1
v_cndmask_b32 v{km}, 0, v{km}, vcc
v_cndmask_b32 v{pp}, v{pp}, v{a1}, vcc
""")
dmax(vy, 6)
a("s_load_dword s27, s[98:99], 0")
vy.wait("X5")
bar(5)
dmaw(vy, 7)
cv(5, b2, b2); cv(7, a2, a2); cv(8, b3, b3); cv(10, a3, a3); cv(11, a3, a3); cv(12, b4, b4); cv(14, a4, a4); cv(15, a4, a4)
a("s_cmp_eq_u32 s61, 0\ns_cbranch_scc0 k_eo")
cv(0, k3, k2); cv(1, k1, k0); cv(2, c1, b1); cv(3, a1, a1); cv(4, c2, c2); cv(6, b2, a2); cv(9, b3, 48); cv(13, b4, 49)
a("s_branch k_ew\nk_eo:")
cv(0, k2, k1); cv(1, k0, km); cv(2, b1, a1); cv(3, a1, pp); cv(4, c2, b2); cv(6, a2, a2); cv(9, 48, a3); cv(13, 49, a4)
a("k_ew:")
pass_first_addr(1)
a(f"""
v_lshrrev_b32 v20, 3, v1
v_and_b32 v22, 7, v1
v_mul_u32_u24 v160, 896, v20
v_and_b32 v161, 6, v20
v_xor_b32 v161, v161, v22
v_lshl_add_u32 v160, v161, 4, v160
v_add_u32 v161, 6144, v160
v_add_u32 v162, 12288, v160
v_add_u32 v163, 18432, v160
v_bfe_u32 v164, v1, 2, 3
v_lshlrev_b32 v164, 7, v164
v_lshrrev_b32 v165, 5, v1
v_lshl_add_u32 v164, v165, 11, v164
v_bfe_u32 v165, v1, 3, 2
v_lshl_add_u32 v164, v165, 5, v164
v_and_b32 v165, 3, v1
v_lshl_add_u32 v164, v165, 3, v164
v_add_u32 v164, s14, v164
v_xor_b32 v165, 32, v164
v_xor_b32 v166, 64, v164
v_xor_b32 v167, 96, v164
""")
if not OPT["rot2"]: a("s_mov_b32 s42, 0")
vy.wait("X6", extra=" lgkmcnt(0)")
bar(6)
dmaw(vy, 8)
a(f"""
s_mul_i32 s13, s61, 4160
s_add_u32 s13, s13, s24
v_lshlrev_b32 v220, 3, v1
v_sub_u32 v220, s13, v220
v_sub_u32 v221, s13, v10
v_min_u32 v48, 39, v1
v_lshlrev_b32 v48, 4, v48
v_add_u32 v222, 8256, v48
v_add_u32 v50, {4096-36*16}, v48
v_cmp_gt_u32 vcc, 36, v1
v_cndmask_b32 v222, v50, v222, vcc
v_add_u32 v222, s24, v222
v_mov_b32 v224, 0
v_mov_b32 v225, 0
v_mov_b32 v226, 0
v_mov_b32 v227, 0
v_mov_b32 v52, 0
s_mov_b32 s59, {SPIN}
k_c0_l:
s_cmp_ge_u32 s27, 32
s_cbranch_scc1 k_c0_d
s_sub_u32 s59, s59, 1
s_cmp_eq_u32 s59, 0
s_cbranch_scc1 k_c0_d
s_sleep 4
global_load_dword v53, v52, s[98:99] sc1
s_waitcnt vmcnt(0)
v_readfirstlane_b32 s27, v53
s_branch k_c0_l
k_c0_d:
""")
hsig_addr(12)
a(f"""
s_mov_b32 s19, 0x20000
s_mov_b32 s23, 0x20000
v_mov_b32 v168, {CNT}
v_mov_b32 v169, 1
""")
vy.wait("W7")
bar(7)
stamp(6)
FINA = [l.split(";")[0].strip() for l in f"""
s_lshr_b32 s13, s3, 1                ; tb
s_and_b32 s58, s3, 1
s_lshl_b32 s58, s58, 2
v_and_b32 v2, 15, v1                 ; t in block
v_lshrrev_b32 v3, 4, v1
v_add_u32 v3, s58, v3                ; dg
s_lshl_b32 s59, s13, 14
v_lshlrev_b32 v5, 1, v3
v_xor_b32 v5, v5, v2
v_lshlrev_b32 v5, 4, v5
v_lshl_add_u32 v5, v2, 8, v5
v_add_u32 v5, s59, v5
v_xor_b32 v6, 16, v5
s_lshl_b32 s13, s13, 4
v_add_u32 v2, s13, v2                ; t in tile
v_lshlrev_b32 v7, 2, v2
v_add_u32 v7, {GL}, v7
s_and_b32 s58, s2, 7
s_lshl_b32 s58, s58, 2
s_add_u32 s58, s58, s8
s_lshl_b32 s58, s58, 6
v_add_u32 v4, s58, v2
v_mul_u32_u24 v4, 896, v4
v_lshl_add_u32 v4, v3, 4, v4
s_lshl_b32 s58, s12, 7
v_add_u32 v4, s58, v4                ; out offset
v_bfe_u32 v8, v1, 2, 2
v_lshl_add_u32 v8, v3, 3, v8
v_mul_u32_u24 v8, {ATPI}, v8
v_and_b32 v9, 3, v1
v_lshl_add_u32 v8, v9, 3, v8
s_lshl_b32 s13, s13, 1
s_add_u32 s13, s13, {CS[0]}
v_add_u32 v8, s13, v8
""".strip().split("\n")]
vg = VM()
ACC2 = 16; AF = [172, 188]; RING = [204, 220, 236, 80, 96, 112, 144]
WS8 = RSL + [WR[2]]
def ldw_l(n):
    p, i = divmod(n, 7)
    o = f"s_add_u32 m0, s14, {WS8[n % 8]}\n" + (f"s_add_u32 s{SW[i]}, s{SW[i]}, 57344" if p else "s_nop 0")
    return [o] + [(f"buffer_load_dwordx4 v{160+k}, s[20:23], s{SW[i]} offen offset:{k*1024} lds", f"w{n}") for k in range(4)]
def ldh_l(n):
    p, i = divmod(n, 7)
    o = [f"s_add_u32 s{SH[i]}, s{SH[i]}, 114688"] if p else []
    return o + [(f"buffer_load_dwordx4 {vr(RING[i]+4*k,4)}, v10, s[16:19], s{SH[i]} offen offset:{k*1024} sc1", f"h{n}") for k in range(4)]
def emit(l):
    for x in l:
        if isinstance(x, tuple): vg.op(*x)
        else: a(x)
def uhalf(st, hs, extra, early=[], lg=0):
    F = FB[hs]; Fn = FB[hs ^ 1]
    mm = []
    for k2 in range(2):
        for fa in range(2):
            for tb in range(2):
                d = vr(acc(2*fa+tb), 16)
                mm.append(f"v_mfma_f32_32x32x16_bf16 {d}, {vr(F+16*k2+4*fa,4)}, {vr(F+16*k2+8+4*tb,4)}, {d}")
    a(f"s_waitcnt lgkmcnt({lg})")
    if hs == 0: fill = reads(1, Fn) + (VADDR(XA[(st+1) % 7], WA[st+1]) if st < 13 else [])
    else:
        if st == 10:
            a(mm.pop(0)); a("s_barrier"); stamp(7)
            if OPT["yprio"]: a(f"s_setprio {OPT['yprio']}")
        fill = reads(0, Fn) if st < 13 else []
    fill = fill + extra
    per = max(3, -(-len(fill) // len(mm)))
    for i, m in enumerate(mm):
        a(m)
        if early: emit([early.pop(0)]);
        if early and not isinstance(early[0], tuple): pass
        emit(fill[:per]); fill = fill[per:]
    emit(early); emit(fill)
def flat(l):
    out = []
    for x in l: out.append(x)
    return out
KW = [f"ds_write_b64 v220, v[204:205] offset:4088", f"ds_write_b64 v220, v[206:207] offset:{4088-512}", f"ds_write_b128 v221, v[208:211] offset:{4080-1024}",
      f"ds_write_b128 v221, v[212:215] offset:{4080-2048}", f"ds_write_b128 v221, v[216:219] offset:{4080-3072}", "ds_write_b128 v222, v[224:227]",
      "s_mov_b64 exec, 1\nds_add_u32 v168, v169\ns_mov_b64 exec, -1"]
def split(l):
    out = []
    for x in l:
        if isinstance(x, tuple): out.append(x)
        else: out += x.split("\n")
    return out
YS = ["s_mov_b64 exec, 1\nds_add_u32 v168, v169 offset:4\ns_mov_b64 exec, -1", "ds_read_b32 v170, v168 offset:4"]
pass_call(1, 3, 3)
uhalf(10, 0, [])
uhalf(10, 1, KW)
uhalf(11, 0, [], lg=7)
uhalf(11, 1, split(ldw_l(0)))
uhalf(12, 0, [])
uhalf(12, 1, split(ldw_l(1)))
uhalf(13, 0, [])
uhalf(13, 1, YS)
stamp(8)
EL = epi_list(0) + epi_list(1) + epi_list(2) + epi_list(3)
run_epi(vg, EL, 8)
a(f"""
s_mov_b32 s59, {SPIN}
k_ys:
s_waitcnt lgkmcnt(0)
v_readfirstlane_b32 s58, v170
s_cmp_eq_u32 s58, 4
s_cbranch_scc1 k_ysd
ds_read_b32 v170, v168 offset:4
s_sub_u32 s59, s59, 1
s_cmp_lg_u32 s59, 0
s_cbranch_scc1 k_ys
k_ysd:
""")
LQ = ldw_l(2) + ldw_l(3) + ldw_l(4) + ldw_l(5) + ["PP"] + ldw_l(6)
while LQ or EL:
    while LQ:
        x = LQ.pop(0)
        if x == "PP": pre_poll("s[28:29]", 4); continue
        emit([x])
        if isinstance(x, tuple): break
    run_epi(vg, EL, OPT["vgap"])
stamp(9)
a("s_setprio 0")
def rda(n):
    F = AF[n & 1]
    out = [f"v_add_u32 v{128+db}, {WS8[n % 8]}, v{164+db}" for db in range(4)]
    return out + [f"ds_read_b64_tr_b16 {vr(F+4*db+2*hh,2)}, v{128+db} offset:{hh*1024}" for db in range(4) for hh in range(2)]
check("k_c2", "s[28:29]", 4, 14 if OPT["one"] == 1 else 56, 15); stamp(10)
PRE = [ldh_l(0), ldh_l(1), ldh_l(2), ldw_l(7), ldh_l(3), ldh_l(4)]
vg.wait("w0")
for x in rda(0): a(x)
for l in PRE[:OPT["ni"]]: emit(l)
vg.wait("st")
def sigy():
    if "3" in OPT["sa"]: return ssig_h(8)
    a("s_mov_b64 exec, 0x3fff\nglobal_atomic_add v12, v169, s[40:41] offset:8 sc1\ns_mov_b64 exec, -1")
if OPT["one"]:
    stamp(3)
    last_of4("k_s3", 16, 2, sigy); a.label("k_s3"); stamp(5)
else: sigy()
for l in PRE[OPT["ni"]:max(OPT["ni"], 4)]: emit(l)
wi, hi_ = 8, 3 + max(0, OPT["ni"]-4)
SCHS = {
 0: (6, ["h w", "h w", "h w", "h w", "w", "w", "h h h", "h", "h", "h", "h", "", "", ""]),
 1: (6, ["h w", "h w", "h w", "h w", "w", "w", "h h", "h h", "h", "h", "h", "", "", ""]),
 2: (5, ["h w", "h w", "h w", "h w", "w", "h h", "h w", "h", "h", "h", "h", "", "", ""]),
 3: (6, ["h h", "h h", "w w", "w w", "w", "w", "h h h", "h", "h", "h", "h", "", "", ""]),
 4: (5, ["h w", "h w", "h w", "h", "w", "h", "h w", "h w", "h", "h", "h", "h", "", ""]),
 6: (5, ["h w", "h", "h w", "h", "w", "h", "h w", "h", "h w", "h w", "h", "h", "", ""]),
 7: (5, ["h", "h w", "h", "h w", "w", "h", "h w", "h w", "h w", "h", "h", "h", "", ""]),
 8: (4, ["h w", "h w", "h", "h", "h", "h w", "h w", "h w", "h w", "h", "h", "", "", ""]),
 9: (5, ["h w", "h w", "h", "h", "w", "h", "h", "h w", "h w", "h w", "h", "h", "", ""]),
 10: (6, ["h w", "h w", "h", "h w", "w", "w", "h h", "h", "h w", "h", "h", "h", "", ""]),
 5: (4, ["h w", "h w", "h w", "h", "h", "h w", "h w", "h w", "h", "h", "h", "", "", ""]),
}
CK, SCH = SCHS[OPT["sch"]]
for n in range(14):
    F = AF[n & 1]; S = RING[n % 7]
    if n == CK:
        check("k_c3", "s[28:29]", 8, HT, 15); stamp(11)
    vg.wait(f"h{n}", *([f"w{n+1}"] if n < 13 else []), extra=" lgkmcnt(0)")
    if OPT["sw"] == 2: stamp(1+n, True)
    ld = []
    for t in SCH[n].split():
        if t == "h": ld += ldh_l(hi_); assert hi_ <= n + 6 and (hi_ < 7 or n >= CK) and hi_ > n; hi_ += 1
        else: ld += ldw_l(wi); assert wi <= n + 8 and wi > n + 1; wi += 1
    fill = rda(n+1) if n < 13 else []
    if n + 1 == CK: fill.insert(0, "s_load_dword s27, s[28:29], 8 glc")
    ext = []
    if n == 10: ext = ["v_and_b32 v132, 15, v1", "v_lshrrev_b32 v133, 4, v1", "v_xor_b32 v133, v133, v132", "v_lshlrev_b32 v133, 4, v133", "v_lshl_add_u32 v132, v132, 8, v133",
                       "v_add_u32 v132, s14, v132", "v_xor_b32 v133, 64, v132", "v_xor_b32 v134, 128, v132", "v_xor_b32 v135, 192, v132"]
    if n == 11: ext = FINA[:len(FINA)//2]
    if n == 12: ext = FINA[len(FINA)//2:]
    PW = [f"ds_write_b128 v{132+db}, {vr(ACC2+16*db+4*tb,4)} offset:{tb*16384}" for db in range(4) for tb in range(4)]
    j = 0
    nl = len([x for x in ld if isinstance(x, tuple)]); STR = max(1, 16 // nl) if nl else 1
    for db in range(4):
        for tb in range(4):
            d = vr(ACC2+16*db+4*tb, 4)
            a(f"v_mfma_f32_16x16x32_bf16 {d}, {vr(F+4*db,4)}, {vr(S+4*tb,4)}, " + ("0" if n == 0 else d))
            if fill: a(fill.pop(0))
            if ld and (j % STR == 0):
                x = ld.pop(0); emit([x])
                if not isinstance(x, tuple) and ld: emit([ld.pop(0)])
            if ext: a(ext.pop(0))
            if n == 13 and j >= 6: a(PW.pop(0))
            j += 1
    emit(ld)
    for x in ext: a(x)
    if n == 13:
        for x in PW: a(x)
assert wi == 14 and hi_ == 14
stamp(12)
a("s_branch k_fbar")
a.label("k_final"); a.reset()
for x in FINA: a(x)
a.label("k_fbar")
a("s_waitcnt lgkmcnt(0)")
if OPT["fwarm"]: a("s_cbranch_execz k_fw")
stamp(13)
a("s_barrier")
stamp(14)
a.label("k_fw")
for w in range(4):
    a(f"ds_read_b128 {vr(16+8*w,4)}, v5 offset:{w*4096}")
    a(f"ds_read_b128 {vr(20+8*w,4)}, v6 offset:{w*4096}")
a(f"""
ds_read_b64_tr_b16 v[48:49], v8
ds_read_b64_tr_b16 v[50:51], v8 offset:{4*ATPI}
ds_read_b32 v52, v7
s_waitcnt lgkmcnt(7)
""")
for i in range(0, 8, 2): a(f"v_pk_add_f32 {vr(16+i,2)}, {vr(16+i,2)}, {vr(24+i,2)}")
a("s_waitcnt lgkmcnt(3)")
for i in range(0, 8, 2): a(f"v_pk_add_f32 {vr(32+i,2)}, {vr(32+i,2)}, {vr(40+i,2)}")
for i in range(0, 8, 2): a(f"v_pk_add_f32 {vr(16+i,2)}, {vr(16+i,2)}, {vr(32+i,2)}")
a("s_waitcnt lgkmcnt(0)\nv_lshlrev_b32 v54, 16, v52\nv_and_b32 v55, 0xffff0000, v52")
for i in range(4):
    a(f"v_lshlrev_b32 v{24+2*i}, 16, v{48+i}\nv_and_b32 v{25+2*i}, 0xffff0000, v{48+i}")
for i in range(0, 8, 2): a(f"v_pk_mul_f32 {vr(16+i,2)}, {vr(16+i,2)}, v[54:55] op_sel:[0,1] op_sel_hi:[1,1]")
for i in range(0, 8, 2): a(f"v_pk_fma_f32 {vr(16+i,2)}, {vr(24+i,2)}, v[54:55], {vr(16+i,2)} op_sel_hi:[1,0,1]")
for i in range(4): a(f"v_cvt_pk_bf16_f32 v{32+i}, v{16+2*i}, v{17+2*i}")
if OPT["fwarm"]: a("s_cbranch_execz k_fw2")
a("global_store_dwordx4 v4, v[32:35], s[96:97] sc0 sc1")
stamps_out(15)
a.label("k_end")
a("s_endpgm")
if OPT["fwarm"]: a("k_fw2:\ns_mov_b64 exec, -1\ns_branch k_final\nk_fw0:\ns_mov_b64 exec, 0\ns_branch k_part")
emit_pass()
a.label("code_end")

hdr = open("cdna_kernels/%s.s.ref" % NAME).read().split("; Override launch")[0]
out = hdr + f"; @launch grid=(256,1,1) block=(512,1,1) lds={LDS}\n"
out += '.amdgcn_target "amdgcn-amd-amdhsa--gfx950"\n' + '; ---------------------------------------------------------------------------------------------\n; Single fused kernel, 256 workgroups x 512 threads (one per CU).\n;   ids 0..31   helper WGs : reset hand-off counters, transpose u (uT), gate g = sigmoid(x.gate_w)\n;   ids 32..255 main WGs   : waves 0-3 ("X") and 4-7 ("Y")\n;     both : SSM kernel K[d][l] for 2 channels (powers of z by complex products, MFMA over modes)\n;     X    : GEMM1 pass 1 (h tile 128x64), SwiGLU epilogue, causal conv as Toeplitz MFMA -> aT\n;     Y    : LDS-DMA loader, GEMM1 pass 2, SwiGLU epilogue, GEMM2 (64x64 tile, split-K over waves)\n;     all  : out = g*a + (1-g)*b\n;   Cross-workgroup hand-offs (uT/g, h, aT): sc1 stores -> vmcnt(0) -> counter add; consumers poll\n;   their own counter line, then sc1 loads.  Generated by a python script (hand-written schedule).\n; ---------------------------------------------------------------------------------------------\n' + a.text()
out += f""".section .rodata,"a"
.p2align 6
.amdhsa_kernel {KN}
  .amdhsa_next_free_vgpr 256
  .amdhsa_next_free_sgpr 102
  .amdhsa_accum_offset 256
  .amdhsa_group_segment_fixed_size 0
  .amdhsa_kernarg_size 136
  .amdhsa_user_sgpr_count 2
  .amdhsa_user_sgpr_kernarg_segment_ptr 1
  .amdhsa_system_sgpr_workgroup_id_x 1
.end_amdhsa_kernel
"""
open(sys.argv[1], "w").write(out)
print("written", sys.argv[1], "lines", len(a.lines), "nops", a.nops, "")
```
